```python
import torch

def _softmax(x, axis=-1):
    return torch.softmax(x, dim=axis)
def _gelu(x):
    return torch.nn.functional.gelu(x, approximate="tanh")
def _silu(x):
    return torch.nn.functional.silu(x)
def _sigmoid(x):
    return torch.sigmoid(x)
def _layernorm(x, axis=-1, eps=1e-5):
    m = x.mean(dim=axis, keepdim=True)
    v = x.var(dim=axis, keepdim=True, unbiased=False)
    return (x - m) / torch.sqrt(v + eps)
def _scatter_add(tgt, idx, src, axis=0):
    return tgt.clone().index_add_(axis, idx, src)
def _segment_sum(src, seg, n):
    out = torch.zeros((n,) + src.shape[1:], dtype=src.dtype)
    return out.index_add_(0, seg, src)
def _pad(x, pw):
    flat = tuple(v for pair in reversed(pw) for v in pair)
    return torch.nn.functional.pad(x, flat)

kernel_name = 'standalone__edge_featured_mpnn_gatedgcn__graph'

def setup_inputs():

    _w = (lambda a: (lambda t: t.to(torch.bfloat16) if t.is_floating_point() else t)(torch.as_tensor(a)))
    N, deg, D, De = 25000, 32, 64, max(0, 1)
    E = N * deg
    return {
        "x": _w((lambda *s: torch.randn(*s, dtype=torch.bfloat16) * 0.8)(N, D)),
        "e_attr": _w((lambda *s: torch.randn(*s, dtype=torch.bfloat16) * 0.8)(E, De)),
        "src": _w((lambda lo, hi, *s: torch.randint(lo, hi, s))(0, N, E).to(torch.int64)),
        "dst": _w((lambda lo, hi, *s: torch.randint(lo, hi, s))(0, N, E).to(torch.int64)),
        "w_a": _w((lambda *s: torch.randn(*s, dtype=torch.bfloat16) * 0.8)(D, D)),
        "w_b": _w((lambda *s: torch.randn(*s, dtype=torch.bfloat16) * 0.8)(D, D)),
        "w_c": _w((lambda *s: torch.randn(*s, dtype=torch.bfloat16) * 0.8)(De, D)),
        "w_u": _w((lambda *s: torch.randn(*s, dtype=torch.bfloat16) * 0.05)(D, D)),
        "w_v": _w((lambda *s: torch.randn(*s, dtype=torch.bfloat16) * 0.05)(D, D)),
    }

def reference(x, e_attr, src, dst, w_a, w_b, w_c, w_u, w_v):
    N, D = x.shape
    hv = x @ w_v
    g = x[dst] @ w_a + x[src] @ w_b + e_attr @ w_c
    eta = _sigmoid(g)
    denom = _segment_sum(eta, dst, N) + 1e-6
    eta_n = eta / denom[dst]
    agg = _segment_sum(eta_n * hv[src], dst, N)
    z = x @ w_u + agg
    relu_z = torch.where(z > 0, z, 0 * z)
    return x + relu_z
```

```python
import re
REG = re.compile(r"\b([vas])(\d+)\b|\b([vas])\[(\d+):(\d+)\]|\b(vcc_lo|vcc_hi|vcc|exec_lo|exec_hi|exec|m0)\b")
TRANS = ("v_exp_f32", "v_log_f32", "v_rcp_f32", "v_rsq_f32", "v_sqrt_f32", "v_sin_f32", "v_cos_f32")

def regs(tok):
    out = set()
    for m in REG.finditer(tok):
        if m.group(1): out.add(m.group(1) + m.group(2))
        elif m.group(3):
            for i in range(int(m.group(4)), int(m.group(5)) + 1): out.add(m.group(3) + str(i))
        else:
            n = m.group(6)
            out.add("vcc" if n.startswith("vcc") else "exec" if n.startswith("exec") else n)
    return out

def split_ops(s):
    ops, depth, cur = [], 0, ""
    for ch in s:
        if ch == "[": depth += 1
        if ch == "]": depth -= 1
        if ch == "," and depth == 0: ops.append(cur.strip()); cur = ""
        else: cur += ch
    if cur.strip(): ops.append(cur.strip())
    return ops

class I:
    def __init__(self, line):
        self.line = line
        t = line.split(";")[0].strip()
        p = t.split(None, 1)
        self.mn = p[0]
        ops = split_ops(p[1]) if len(p) > 1 else []
        mn = self.mn
        self.mfma = mn.startswith("v_mfma")
        self.valu = mn.startswith("v_") and not self.mfma
        self.salu = mn.startswith("s_")
        self.ds = mn.startswith("ds_")
        self.vmem = mn.startswith(("buffer_", "global_", "flat_"))
        self.lds_dma = self.vmem and re.search(r"\blds\b", t) is not None
        self.dpp = "_dpp" in mn or "row_" in t or "quad_perm" in t
        self.trans = mn.startswith(TRANS)
        self.w, self.r = set(), set()
        self.srcc = set()
        nodst = (mn.startswith(("ds_write", "buffer_store", "global_store", "s_cmp", "s_bitcmp", "s_cbranch", "s_branch", "s_waitcnt", "s_nop", "s_barrier", "s_endpgm", "s_setprio", "s_sleep"))
                 or (self.ds and mn.startswith(("ds_add", "ds_max", "ds_or", "ds_min")) and "rtn" not in mn)
                 or self.lds_dma or (self.vmem and "atomic" in mn and "sc0" not in t))
        if nodst:
            for o in ops: self.r |= regs(o)
        else:
            if ops: self.w |= regs(ops[0])
            for o in ops[1:]: self.r |= regs(o)
            if mn.startswith(("v_add_co", "v_sub_co", "v_addc_co", "v_subb_co")):
                self.w |= regs(ops[1])
            if mn.startswith(("v_fmac", "v_writelane")) or self.dpp: self.r |= regs(ops[0])
            if mn.startswith("v_cmpx"): self.w.add("exec")
            if mn.startswith("v_permlane") and "swap" in mn:
                self.w |= regs(ops[1]); self.r |= regs(ops[0])
            if "saveexec" in mn: self.w.add("exec")
        if self.mfma: self.srcc = regs(ops[3])
        if self.lds_dma: self.r.add("m0")
        self.store_data = set()
        if mn.startswith(("buffer_store_dwordx4", "buffer_store_dwordx3", "global_store_dwordx4")):
            self.store_data = regs(ops[0] if mn.startswith("buffer") else ops[1])
        self.states = 1
        if mn == "s_nop": self.states = int(ops[0], 0) + 1

def need(p, c):
    n = 0
    sg = lambda s: {x for x in s if x[0] == "s" or x == "vcc"}
    vg = lambda s: {x for x in s if x[0] in "va" and x != "vcc"}
    if p.valu:
        if (c.valu) and sg(p.w) & c.r:
            n = max(n, 4 if c.mn.startswith(("v_readlane", "v_writelane")) else 2)
        if c.vmem and sg(p.w) & c.r: n = max(n, 5)
        if c.mn.startswith(("v_readlane", "v_readfirstlane")) and vg(p.w) & c.r: n = max(n, 1)
        if c.dpp and vg(p.w) & c.r: n = max(n, 2)
        if c.mn.startswith("v_permlane") and vg(p.w) & c.r: n = max(n, 2)
        if p.trans and c.valu and not c.trans and vg(p.w) & c.r: n = max(n, 1)
        if c.mfma and vg(p.w) & c.r: n = max(n, 2)
        if "exec" in p.w:
            if c.dpp: n = max(n, 5)
            if c.mn.startswith(("v_readlane", "v_readfirstlane", "v_writelane", "v_permlane")): n = max(n, 4)
            if c.mfma: n = max(n, 4)
    if p.salu and "m0" in p.w and c.lds_dma: n = max(n, 1)
    if p.mfma:
        passes = 8 if "32x32x16" in p.mn else 4
        d = {8: (10, 12, 12, 7), 4: (6, 8, 8, 3)}[passes]
        if c.mfma:
            if p.w & c.srcc and p.w != c.srcc: n = max(n, d[0])
            if p.w & (c.r - c.srcc): n = max(n, d[1])
            if p.w & c.w and p.w != c.srcc: n = max(n, d[0])
        elif c.valu or c.vmem or c.ds:
            if p.w & (c.r | c.w): n = max(n, d[2])
            if c.valu and p.srcc & c.w: n = max(n, d[3])
    if p.store_data and p.store_data & c.w: n = max(n, 2)
    return n

def fix(lines, verbose=False):
    out, hist = [], []
    nins = 0
    for ln in lines:
        t = ln.split(";")[0].strip()
        if not t or t.endswith(":") or t.startswith("."):
            out.append(ln); continue
        c = I(ln)
        dist, req = 0, 0
        for p in reversed(hist):
            req = max(req, need(p, c) - dist)
            dist += p.states
            if dist >= 20: break
        if req > 0:
            nins += 1
            if verbose: print(f"hazard: +{req} before: {t}")
            nop = f"    s_nop {req-1}"
            out.append(nop); hist.append(I(nop))
        out.append(ln); hist.append(c)
    return out
```

```python
import sys, struct
sys.path.insert(0, "gen")
import hazard
VERBOSE = "--verbose" in sys.argv

NAME = "standalone__edge_featured_mpnn_gatedgcn__graph"
N, E = 25000, 800000
NCH, CH = 250, 3200
NPB = 98
WS_REC   = 0
WS_OFFS  = 0x700000
WS_WF    = 0x780000
WS_STAMP = 0x7C0000
WS_SIZE  = 0x800000
L_STG   = 0
L_XOWN  = 32768
L_ACC   = 65536
L_SCHED = L_ACC + 13 * 4096
SCAP    = 192
L_BEXT  = L_SCHED + SCAP * 128
L_BCON  = L_BEXT + 16 * 1024
L_CNT   = L_BCON + 1024
L_BASE  = L_CNT + 512
L_ORD   = L_BASE + 512
L_RANK  = L_ORD + 512
L_H2    = L_RANK + 512
L_LG    = L_H2 + 128
L_ENDS  = L_LG + 64
L_FLAG  = L_ENDS + 64
L_END   = L_FLAG + 16
assert L_END <= 163840, L_END
LDS2 = 163840
LIMQ = 14
SH = 48
LOG2E = 1.4426950408889634

def f2u(x): return struct.unpack("<I", struct.pack("<f", x))[0]

class Asm:
    def __init__(self): self.l = []
    def __call__(self, s):
        for ln in s.strip("\n").split("\n"):
            self.l.append(ln if ln.rstrip().endswith(":") and not ln.startswith(" ") else "    " + ln.strip())
    def label(self, n): self.l.append(n + ":")
    def text(self): return "\n".join(hazard.fix(self.l, VERBOSE)) + "\n"

def vr(a, n=1): return f"v{a}" if n == 1 else f"v[{a}:{a+n-1}]"
def ar(a, n=1): return f"a{a}" if n == 1 else f"a[{a}:{a+n-1}]"

def scan_rows(A, v, op="v_add_u32", upto=64):
    for sh in (1, 2, 4, 8):
        A("s_nop 1")
        A(f"{op}_dpp v{v}, v{v}, v{v} row_shr:{sh} row_mask:0xf bank_mask:0xf")
    if upto >= 32:
        A("s_nop 1")
        A(f"{op}_dpp v{v}, v{v}, v{v} row_bcast:15 row_mask:0xa bank_mask:0xf")
    if upto >= 64:
        A("s_nop 1")
        A(f"{op}_dpp v{v}, v{v}, v{v} row_bcast:31 row_mask:0xc bank_mask:0xf")

def stamp(A, idx, on, sreg=90, wsrd="s[8:11]", base=0):
    if on:
        A(f"s_memtime s[{sreg}:{sreg+1}]")
        A("s_waitcnt lgkmcnt(0)")
        A(f"v_writelane_b32 v159, s{sreg}, {idx}")

def gen_k1(A, diag):
    A.label("bin_kernel")
    A(f"""
    s_load_dwordx4 s[4:7], s[0:1], 8
    s_load_dwordx2 s[8:9], s[0:1], 24
    s_load_dwordx2 s[24:25], s[0:1], 88
    s_load_dwordx4 s[28:31], s[0:1], 32
    s_load_dwordx4 s[32:35], s[0:1], 56
    s_mov_b32 s26, {WS_SIZE}
    s_mov_b32 s27, 0x20000
    s_cmp_ge_u32 s2, {NCH}
    s_cbranch_scc1 K1_W
    s_mov_b32 s14, {E*4}
    s_mov_b32 s15, 0x20000
    s_mov_b32 s18, {E*4}
    s_mov_b32 s19, 0x20000
    s_mov_b32 s22, {E*2}
    s_mov_b32 s23, 0x20000
    s_mul_i32 s36, s2, {CH*4}
    s_mul_i32 s37, s2, {CH*2}
    s_mul_i32 s38, s2, {CH*8}
    v_lshlrev_b32 v1, 4, v0
    v_lshlrev_b32 v2, 3, v0
    v_lshlrev_b32 v3, 2, v0
    v_mov_b32 v4, 0
    v_cmp_gt_u32 vcc, 256, v0
    s_and_saveexec_b64 s[40:41], vcc
    ds_write_b32 v3, v4
    s_mov_b64 exec, s[40:41]
    s_movk_i32 s39, {CH//4}
    v_cmp_gt_u32 s[42:43], s39, v0
    s_waitcnt lgkmcnt(0)
    s_mov_b32 s12, s8
    s_mov_b32 s13, s9
    s_mov_b32 s16, s6
    s_mov_b32 s17, s7
    s_mov_b32 s20, s4
    s_mov_b32 s21, s5
    s_mov_b64 exec, s[42:43]
    buffer_load_dwordx4 v[8:11], v1, s[12:15], s36 offen
    buffer_load_dwordx4 v[12:15], v1, s[16:19], s36 offen
    buffer_load_dwordx2 v[16:17], v2, s[20:23], s37 offen
    s_barrier
    s_mov_b32 s44, 42800
    s_movk_i32 s45, {-NPB*4 & 0xffff if False else NPB*4}
    v_mov_b32 v5, 1
    s_waitcnt vmcnt(2)
    """)
    for k in range(4):
        A(f"v_mul_u32_u24 v{20+k}, s44, v{8+k}")
    for k in range(4):
        A(f"v_lshrrev_b32 v{20+k}, 22, v{20+k}")
    for k in range(4):
        A(f"v_mul_u32_u24 v{32+k}, s45, v{20+k}")
        A(f"v_lshlrev_b32 v{20+k}, 2, v{20+k}")
        A(f"ds_add_rtn_u32 v{36+k}, v{20+k}, v5")
    for k in range(4):
        A(f"v_lshlrev_b32 v{8+k}, 2, v{8+k}")
        A(f"v_sub_u32 v{8+k}, v{8+k}, v{32+k}")
        A(f"v_add_u32 v{25+2*k}, {L_CNT}, v{8+k}")
    A("s_mov_b32 s46, 0xffff0000")
    A("s_waitcnt vmcnt(0)")
    A("v_lshlrev_b32 v18, 16, v16")
    A("v_lshlrev_b32 v19, 16, v17")
    A("v_and_b32 v16, s46, v16")
    A("v_and_b32 v17, s46, v17")
    A("v_or_b32 v24, v12, v18")
    A("v_or_b32 v26, v13, v16")
    A("v_or_b32 v28, v14, v19")
    A("v_or_b32 v30, v15, v17")
    A("""
    s_mov_b64 exec, -1
    v_and_b32 v6, 63, v0
    v_lshlrev_b32 v6, 4, v6
    s_waitcnt lgkmcnt(0)
    s_barrier
    ds_read_b128 v[40:43], v6
    s_waitcnt lgkmcnt(0)
    v_add_u32 v45, v40, v41
    v_add_u32 v46, v45, v42
    v_add_u32 v47, v46, v43
    v_mov_b32 v48, v47
    """)
    scan_rows(A, 48)
    A("""
    v_sub_u32 v44, v48, v47
    v_add_u32 v47, v44, v46
    v_add_u32 v46, v44, v45
    v_add_u32 v45, v44, v40
    ds_write_b128 v6, v[44:47] offset:1024
    s_mov_b64 exec, s[42:43]
    """)
    for k in range(4):
        A(f"ds_read_b32 v{32+k}, v{20+k} offset:1024")
    A(f"""
    s_mov_b64 exec, -1
    v_cmp_gt_u32 vcc, 256, v0
    s_and_saveexec_b64 s[40:41], vcc
    s_cbranch_execz K1_NOPUB
    ds_read_b32 v50, v3
    ds_read_b32 v51, v3 offset:1024
    s_and_b32 s47, s2, 31
    s_lshl_b32 s47, s47, 5
    s_lshr_b32 s48, s2, 5
    s_lshl_b32 s48, s48, 2
    s_add_u32 s47, s47, s48
    s_add_u32 s47, s47, {WS_OFFS}
    v_lshlrev_b32 v52, 10, v0
    s_waitcnt lgkmcnt(0)
    v_lshl_or_b32 v50, v50, 16, v51
    buffer_store_dword v50, v52, s[24:27], s47 offen
K1_NOPUB:
    s_mov_b64 exec, s[42:43]
    s_waitcnt lgkmcnt(0)
    """)
    for k in range(4):
        A(f"v_add_lshl_u32 v{32+k}, v{32+k}, v{36+k}, 3")
        A(f"ds_write_b64 v{32+k}, v[{24+2*k}:{25+2*k}] offset:2048")
    A(f"""
    s_waitcnt lgkmcnt(0)
    s_barrier
    ds_read_b128 v[8:11], v1 offset:2048
    ds_read_b128 v[12:15], v1 offset:{2048+CH*4}
    s_add_u32 s39, s38, {CH*4}
    s_waitcnt lgkmcnt(1)
    buffer_store_dwordx4 v[8:11], v1, s[24:27], s38 offen
    s_waitcnt lgkmcnt(0)
    buffer_store_dwordx4 v[12:15], v1, s[24:27], s39 offen
    s_endpgm
K1_W:
    s_cmp_ge_u32 s2, {NCH+4}
    s_cbranch_scc1 K1_END
    v_readfirstlane_b32 s40, v0
    s_lshr_b32 s40, s40, 6
    s_cmp_ge_u32 s40, 8
    s_cbranch_scc1 K1_END
    s_sub_u32 s41, s2, {NCH}
    s_waitcnt lgkmcnt(0)
    ; mi: 0 -> w_b (s30:31), 1 -> w_v (s34:35), 2 -> w_a (s28:29), 3 -> w_u (s32:33)
    s_cmp_eq_u32 s41, 0
    s_cselect_b32 s12, s30, s34
    s_cselect_b32 s13, s31, s35
    s_cselect_b32 s42, 0x{f2u(-LOG2E):08x}, 1.0
    s_cmp_eq_u32 s41, 2
    s_cselect_b32 s12, s28, s12
    s_cselect_b32 s13, s29, s13
    s_cmp_eq_u32 s41, 3
    s_cselect_b32 s12, s32, s12
    s_cselect_b32 s13, s33, s13
    s_mov_b32 s14, 8192
    s_mov_b32 s15, 0x20000
    s_and_b32 s43, s40, 3
    s_lshl_b32 s43, s43, 11
    s_lshr_b32 s44, s40, 2
    s_lshl_b32 s44, s44, 6
    s_add_u32 s43, s43, s44
    v_and_b32 v1, 31, v0
    v_lshlrev_b32 v1, 1, v1
    v_bfe_u32 v2, v0, 5, 1
    v_lshl_add_u32 v1, v2, 10, v1
    """)
    for t in range(8):
        A(f"buffer_load_ushort v{8+t}, v1, s[12:15], s43 offen offset:{t*128}")
    A(f"""
    s_lshl_b32 s41, s41, 13
    s_add_u32 s41, s41, {WS_WF}
    v_lshlrev_b32 v3, 4, v0
    s_waitcnt vmcnt(0)
    """)
    for t in range(8):
        A(f"v_lshlrev_b32 v{8+t}, 16, v{8+t}")
    for t in range(8):
        A(f"v_mul_f32 v{8+t}, s42, v{8+t}")
    for t in range(4):
        A(f"v_cvt_pk_bf16_f32 v{16+t}, v{8+2*t}, v{9+2*t}")
    A("""
    buffer_store_dwordx4 v[16:19], v3, s[24:27], s41 offen
K1_END:
    s_endpgm
    """)

V_TID, V_LANE = 0, 1
V_PEND = 2
V_S1, V_S2 = 3, 4
V_BX, V_B0, V_BINC = 5, 6, 7
V_AEXT = 8
V_REC = 12
V_R32 = 16
V_T0, V_T1 = 17, 18
V_CO0, V_CO1 = 19, 20
V_MHI, V_FV, V_FP = 21, 22, 23
V_XA = 24
V_ACA = 28
V_T2, V_T3, V_T4 = 29, 30, 31
V_G = [32, 48]
V_V = [64, 80]
V_M, V_S, V_Q = 96, 104, 112
V_ACC = 120
V_X = 152
NV = 160
A_WB, A_WV, A_X, A_BX = 0, 32, 64, 80
NA = 88
S_XS, S_WS, S_OUT, S_WC = 4, 8, 12, 16
S_O3, S_O2, S_O1 = 20, 21, 22
S_128 = 23
S_C = 24
S_BIN, S_WAVE, S_FIRST, S_PASS32, S_SUB, S_AGAIN = 26, 27, 28, 29, 30, 31
S_N, S_MASK, S_GN, S_GF = 32, 33, 34, 35
S_M0A, S_M0B = 36, 37
S_NB128 = 38
S_T = 40

def srd(b): return f"s[{b}:{b+3}]"

def mfma(d, a, b, c):
    return f"v_mfma_f32_32x32x16_bf16 {d}, {a}, {b}, {c}"

def mf_list(nt):
    G, V = vr(V_G[nt], 16), vr(V_V[nt], 16)
    L = [mfma(G, vr(V_AEXT, 4), ar(A_BX + 4*nt, 4), "0")]
    for ks in range(4):
        L.append(mfma(V, ar(A_X + 4*ks, 4), ar(A_WV + 16*nt + 4*ks, 4), "0" if ks == 0 else V))
        L.append(mfma(G, ar(A_X + 4*ks, 4), ar(A_WB + 16*nt + 4*ks, 4), G))
    return L

def trans_list(ntexp, rcp=True, exp=True):
    L = []
    if rcp:
        L += [f"v_rcp_f32 v{V_M+i}, v{V_M+i}" for i in range(8)]
    if exp:
        L += [f"v_exp_f32_e64 v{V_G[ntexp]+i}, v{V_G[ntexp]+i} clamp" for i in range(16)]
    return L

def pk_acc(nt):
    L = []
    for q in range(4):
        a = V_ACC + 16*nt + 4*q
        L.append(f"v_pk_fma_f32 {vr(a,2)}, {vr(V_Q+2*q,2)}, {vr(V_M+2*q,2)}, {vr(a,2)}")
        L.append(f"v_pk_fma_f32 {vr(a+2,2)}, {vr(V_S+2*q,2)}, {vr(V_M+2*q,2)}, {vr(a+2,2)}")
    return L

def pk_msq(nt):
    G, V = V_G[nt], V_V[nt]
    L = []
    for i in range(8):
        L.append(f"v_pk_add_f32 {vr(G+2*i,2)}, {vr(G+2*i,2)}, s[{S_C}:{S_C+1}]")
    for q in range(4):
        L.append(f"v_pk_mul_f32 {vr(V_Q+2*q,2)}, {vr(V+4*q,2)}, {vr(G+4*q+2,2)}")
    for q in range(4):
        L.append(f"v_pk_mul_f32 {vr(V_M+2*q,2)}, {vr(G+4*q,2)}, {vr(G+4*q+2,2)}")
    for q in range(4):
        L.append(f"v_pk_add_f32 {vr(V_S+2*q,2)}, {vr(G+4*q,2)}, {vr(G+4*q+2,2)}")
    for q in range(4):
        L.append(f"v_pk_fma_f32 {vr(V_Q+2*q,2)}, {vr(V+4*q+2,2)}, {vr(G+4*q,2)}, {vr(V_Q+2*q,2)}")
    return L

def emit_mf(A, mf, tr, extra, counts):
    ti = 0
    for g, m in enumerate(mf):
        A(m)
        for x in extra.get(g, []):
            A(x)
        for _ in range(counts[g]):
            A(tr[ti]); ti += 1
    assert ti == len(tr), (ti, len(tr))

def dma(m, vo):
    so = [f"s{S_O3}", f"s{S_O2}", f"s{S_O1}", "0"][m]
    off = f" offset:{1024*m}" if m else ""
    return f"buffer_load_dwordx4 v{vo}, {srd(S_XS)}, {so} offen{off} lds"

def mad_off(m):
    co = V_CO0 if m % 2 == 0 else V_CO1
    return f"v_mad_u32_u16 v{V_REC+m}, v{V_REC+m}, s{S_128}, v{co}"

def aext_ops():
    return [f"v_bfe_i32 v{V_T0}, v{V_R32}, 15, 1",
            f"v_bfi_b32 v{V_T0}, v{V_T0}, v{V_FP}, v{V_FV}",
            f"v_and_or_b32 v{V_AEXT}, v{V_R32}, v{V_MHI}, v{V_T0}"]

def flush(A):
    A(f"s_lshl_b32 s{S_T}, s{S_GF}, 12")
    A(f"v_add_u32 v{V_T2}, s{S_T}, v{V_ACA}")
    for nt in range(2):
        for q in range(4):
            a = V_ACC + 16*nt + 4*q
            A(f"v_add_f32 v{a}, v{a}, v{a+1}")
            A(f"v_add_f32 v{a+2}, v{a+2}, v{a+3}")
            A(f"ds_add_f32 v{V_T2}, v{a} offset:{nt*2048+q*512}")
            A(f"ds_add_f32 v{V_T2}, v{a+2} offset:{nt*2048+q*512+256}")
    A(f"s_add_u32 s{S_GF}, s{S_GF}, 1")

def zero_acc(A):
    for i in range(32):
        A(f"v_mov_b32 v{V_ACC+i}, 0")

def gen_k2(A, diag):
    T = S_T
    A.label("mpnn_kernel")
    A(f"""
    s_cmp_ge_u32 s2, 256
    s_cbranch_scc1 K2_END
    s_load_dwordx2 s[{S_XS}:{S_XS+1}], s[0:1], 0
    s_load_dwordx2 s[{S_WS}:{S_WS+1}], s[0:1], 88
    s_load_dwordx2 s[{S_OUT}:{S_OUT+1}], s[0:1], 72
    s_load_dwordx2 s[{S_WC}:{S_WC+1}], s[0:1], 48
    """)
    if diag:
        A("v_mov_b32 v159, 0")
    stamp(A, 0, diag)
    A(f"""
    s_mov_b32 s{S_XS+2}, {N*128+3072}
    s_mov_b32 s{S_XS+3}, 0x20000
    s_mov_b32 s{S_WS+2}, {WS_SIZE}
    s_mov_b32 s{S_WS+3}, 0x20000
    s_mov_b32 s{S_OUT+2}, {N*128}
    s_mov_b32 s{S_OUT+3}, 0x20000
    s_mov_b32 s{S_WC+2}, 128
    s_mov_b32 s{S_WC+3}, 0x20000
    s_movk_i32 s{S_O3}, 3072
    s_movk_i32 s{S_O2}, 2048
    s_movk_i32 s{S_O1}, 1024
    s_movk_i32 s{S_128}, 128
    s_mov_b32 s{S_C}, 0x{f2u(2.0**-SH):08x}
    s_mov_b32 s{S_C+1}, 0x{f2u(2.0**-SH):08x}
    s_and_b32 s{S_BIN}, s2, 7
    s_lshl_b32 s{S_BIN}, s{S_BIN}, 5
    s_lshr_b32 s{T}, s2, 3
    s_or_b32 s{S_BIN}, s{S_BIN}, s{T}
    s_mul_i32 s{S_NB128}, s{S_BIN}, {NPB*128}
    v_readfirstlane_b32 s{S_WAVE}, v0
    s_lshr_b32 s{S_WAVE}, s{S_WAVE}, 6
    s_mov_b32 s{S_FIRST}, 1
    s_mov_b32 s{S_PASS32}, 0
    s_mov_b32 s{S_SUB}, 0
    v_and_b32 v{V_LANE}, 63, v0
    v_mov_b32 v{V_PEND}, 0
    s_lshl_b32 s{S_M0A}, s{S_WAVE}, 12
    s_add_u32 s{S_M0B}, s{S_M0A}, 32768
    v_and_b32 v{V_T0}, 7, v{V_LANE}
    v_lshrrev_b32 v{V_T1}, 4, v{V_LANE}
    v_xor_b32 v{V_T0}, v{V_T0}, v{V_T1}
    v_lshlrev_b32 v{V_CO0}, 4, v{V_T0}
    v_xor_b32 v{V_CO1}, 64, v{V_CO0}
    v_lshrrev_b32 v{V_T2}, 4, v0
    v_lshlrev_b32 v{V_T2}, 5, v{V_T2}
    s_lshl_b32 s{T}, s{S_BIN}, 10
    s_add_u32 s{T}, s{T}, {WS_OFFS}
    s_waitcnt lgkmcnt(0)
    s_sub_u32 s{S_XS}, s{S_XS}, 3072
    s_subb_u32 s{S_XS+1}, s{S_XS+1}, 0
    buffer_load_dwordx4 v[32:35], v{V_T2}, {srd(S_WS)}, s{T} offen
    buffer_load_dwordx4 v[36:39], v{V_T2}, {srd(S_WS)}, s{T} offen offset:16
    v_lshrrev_b32 v{V_T3}, 3, v{V_LANE}
    v_lshlrev_b32 v{V_T3}, 7, v{V_T3}
    s_lshl_b32 s{T+1}, s{S_WAVE}, 11
    s_add_u32 m0, s{T+1}, {L_XOWN}
    s_add_u32 s{T+1}, s{T+1}, s{S_NB128}
    s_add_u32 s{T+1}, s{T+1}, 3072
    v_add_u32 v{V_T4}, v{V_T3}, v{V_CO0}
    v_add_u32 v{V_T3}, v{V_T3}, v{V_CO1}
    buffer_load_dwordx4 v{V_T4}, {srd(S_XS)}, s{T+1} offen lds
    buffer_load_dwordx4 v{V_T3}, {srd(S_XS)}, s{T+1} offen offset:1024 lds
    s_mul_i32 s{T+2}, s{S_WAVE}, 3072
    s_mov_b32 m0, s{T+2}
    s_add_u32 s{T+2}, s{T+2}, {WS_WF}
    v_lshlrev_b32 v{V_T4}, 4, v{V_LANE}
    buffer_load_dwordx4 v{V_T4}, {srd(S_WS)}, s{T+2} offen lds
    buffer_load_dwordx4 v{V_T4}, {srd(S_WS)}, s{T+2} offen offset:1024 lds
    buffer_load_dwordx4 v{V_T4}, {srd(S_WS)}, s{T+2} offen offset:2048 lds
    v_lshlrev_b32 v{V_T3}, 1, v{V_LANE}
    buffer_load_ushort v{V_X}, v{V_T3}, {srd(S_WC)}, 0 offen
    s_branch K2_INIT
K2_AGAIN:
    s_mov_b32 s{S_FIRST}, 0
    v_lshrrev_b32 v{V_T2}, 4, v0
    v_lshlrev_b32 v{V_T2}, 5, v{V_T2}
    s_lshl_b32 s{T}, s{S_BIN}, 10
    s_add_u32 s{T}, s{T}, {WS_OFFS}
    buffer_load_dwordx4 v[32:35], v{V_T2}, {srd(S_WS)}, s{T} offen
    buffer_load_dwordx4 v[36:39], v{V_T2}, {srd(S_WS)}, s{T} offen offset:16
    s_waitcnt vmcnt(0)
K2_INIT:
    v_lshlrev_b32 v{V_T2}, 2, v0
    v_add_u32 v{V_T3}, {L_CNT}, v{V_T2}
    v_add_u32 v{V_T4}, {L_H2-512}, v{V_T2}
    v_cmp_gt_u32 vcc, 128, v0
    v_cndmask_b32 v{V_T3}, v{V_T4}, v{V_T3}, vcc
    v_subrev_u32 v{V_T4}, {128+32}, v0
    v_cmp_gt_u32 vcc, 13, v{V_T4}
    v_cndmask_b32 v{V_T4}, 0, 1, vcc
    v_cmp_gt_u32 vcc, {128+68}, v0
    s_and_saveexec_b64 s[{T}:{T+1}], vcc
    ds_write_b32 v{V_T3}, v{V_T4}
    s_mov_b64 exec, s[{T}:{T+1}]
    v_mov_b32 v112, 0xffff
    v_mov_b32 v113, 0xffff
    v_mov_b32 v114, 0xffff
    v_mov_b32 v115, 0xffff
    v_lshlrev_b32 v{V_T2}, 4, v0
    v_add_u32 v{V_T2}, {L_SCHED}, v{V_T2}
    ds_write_b128 v{V_T2}, v[112:115]
    ds_write_b128 v{V_T2}, v[112:115] offset:8192
    ds_write_b128 v{V_T2}, v[112:115] offset:16384
    """)
    for i in range(16):
        A(f"v_mov_b32 v{96+i}, -1")
    A(f"""
    v_and_b32 v{V_T3}, 15, v0
    v_lshlrev_b32 v{V_T3}, 1, v{V_T3}
    v_add_u32 v{V_T3}, s{S_PASS32}, v{V_T3}
    v_lshrrev_b32 v{V_T4}, 4, v0
    v_cmp_gt_u32 vcc, {NCH-224}, v{V_T4}
    v_mul_u32_u24 v{V_T4}, {CH*8}, v{V_T4}
    v_lshl_add_u32 v{V_T4}, v{V_T3}, 3, v{V_T4}
    v_mov_b32 v{V_T2}, 0x40000000
    s_waitcnt vmcnt(6)
    v_cndmask_b32 v39, 0, v39, vcc
    """)
    stamp(A, 1, diag)
    for r in range(8):
        A(f"""
        v_lshrrev_b32 v{40+r}, 16, v{32+r}
        v_and_b32 v{32+r}, 0xffff, v{32+r}
        v_sub_u32 v{40+r}, v{40+r}, v{V_T3}
        v_lshl_add_u32 v{32+r}, v{32+r}, 3, v{V_T4}
        v_cmp_lt_i32 vcc, 0, v{40+r}
        s_mov_b32 s{T}, {r*32*CH*8}
        s_nop 0
        v_cndmask_b32 v{32+r}, v{V_T2}, v{32+r}, vcc
        buffer_load_dwordx4 v[{64+4*r}:{67+4*r}], v{32+r}, {srd(S_WS)}, s{T} offen
        """)
    A(f"""
    s_cmp_eq_u32 s{S_FIRST}, 0
    s_cbranch_scc1 K2_NOZ
    v_mov_b32 v112, 0
    v_mov_b32 v113, 0
    v_mov_b32 v114, 0
    v_mov_b32 v115, 0
    v_lshlrev_b32 v{V_T2}, 4, v0
    v_add_u32 v{V_T2}, {L_ACC}, v{V_T2}
    """)
    for i in range(6):
        A(f"ds_write_b128 v{V_T2}, v[112:115] offset:{i*8192}")
    A(f"""
    v_cmp_gt_u32 vcc, 256, v0
    s_and_saveexec_b64 s[{T}:{T+1}], vcc
    ds_write_b128 v{V_T2}, v[112:115] offset:{6*8192}
    s_mov_b64 exec, s[{T}:{T+1}]
K2_NOZ:
    s_waitcnt vmcnt(8) lgkmcnt(0)
    s_barrier
    s_cmp_eq_u32 s{S_FIRST}, 0
    s_cbranch_scc1 K2_NOW
    v_lshlrev_b32 v{V_T2}, 4, v{V_LANE}
    """)
    for i in range(16):
        A(f"ds_read_b128 {ar(4*i,4)}, v{V_T2} offset:{i*1024}")
    A(f"""
    s_and_b32 s{T}, s{S_WAVE}, 1
    s_lshl_b32 s{T}, s{T}, 12
    v_add_u32 v{V_T4}, s{T}, v{V_T2}
    """)
    for ks in range(4):
        A(f"ds_read_b128 {vr(48+4*ks,4)}, v{V_T4} offset:{16384+ks*1024}")
    A(f"""
    v_lshlrev_b32 v{V_X}, 16, v{V_X}
    v_mul_f32 v{V_X}, 0x{f2u(-LOG2E):08x}, v{V_X}
    v_mov_b32 v{V_X+1}, 0x{f2u(-float(SH)):08x}
    v_cvt_pk_bf16_f32 v112, v{V_X+1}, v{V_X}
    v_add_u32 v{V_T2}, {L_BCON}, v{V_T2}
    s_cmp_lg_u32 s{S_WAVE}, 7
    s_cbranch_scc1 K2_NOW
    ds_write_b128 v{V_T2}, v[112:115]
K2_NOW:
    """)
    A(f"v_max_i32 v{V_T2}, v40, v41")
    A(f"v_max3_i32 v{V_T2}, v{V_T2}, v42, v43")
    A(f"v_max3_i32 v{V_T2}, v{V_T2}, v44, v45")
    A(f"v_max3_i32 v{V_T2}, v{V_T2}, v46, v47")
    A(f"""
    v_mov_b32 v{V_T3}, 1
    v_mov_b32 v{V_T4}, {L_FLAG}
    v_cmpx_lt_i32 vcc, 32, v{V_T2}
    ds_write_b32 v{V_T4}, v{V_T3}
    s_mov_b64 exec, -1
    v_mov_b32 v{V_T3}, 16
    s_cmp_lg_u32 s{S_SUB}, 0
    s_cbranch_scc1 K2_P1B
    """)
    for r in range(8):
        A(f"""
        s_waitcnt vmcnt({7-r})
        v_cmpx_lt_i32 vcc, 0, v{40+r}
        ds_add_rtn_u32 v{96+2*r}, v{65+4*r}, v{V_T3}
        v_cmpx_lt_i32 vcc, 1, v{40+r}
        ds_add_rtn_u32 v{97+2*r}, v{67+4*r}, v{V_T3}
        s_mov_b64 exec, -1
        """)
    A("s_branch K2_P1D")
    A.label("K2_P1B")
    A("s_waitcnt vmcnt(0)")
    for i in range(16):
        A(f"""
        v_and_b32 v{V_T2}, {1<<i}, v{V_PEND}
        v_cmpx_ne_u32 vcc, 0, v{V_T2}
        ds_add_rtn_u32 v{96+i}, v{65+2*i}, v{V_T3}
        s_mov_b64 exec, -1
        """)
    A.label("K2_P1D")
    A("s_waitcnt lgkmcnt(0)")
    stamp(A, 2, diag)
    A(f"""
    s_barrier
    s_cmp_lg_u32 s{S_WAVE}, 0
    s_cbranch_scc1 K2_SORTED
    """)
    c0, c1, q0, q1, k0, k1, r0, r1, h, ex, a4, g0, g1, L, st, t0, t1 = range(112, 129)
    A(f"""
    v_lshlrev_b32 v{a4}, 2, v{V_LANE}
    v_add_u32 v{a4}, {L_CNT}, v{a4}
    ds_read_b32 v{c0}, v{a4}
    ds_read_b32 v{c1}, v{a4} offset:256
    s_mov_b32 s{T+2}, -1
    s_waitcnt lgkmcnt(0)
    v_add_u32 v{q0}, 48, v{c0}
    v_add_u32 v{q1}, 48, v{c1}
    v_lshrrev_b32 v{q0}, 6, v{q0}
    v_lshrrev_b32 v{q1}, 6, v{q1}
    s_cmp_eq_u32 s{S_FIRST}, 0
    s_cbranch_scc1 K2_OLDRANK
    v_add_u32 v{k0}, 1, v{q0}
    v_add_u32 v{k1}, 1, v{q1}
    v_min_u32 v{k0}, 31, v{k0}
    v_min_u32 v{k1}, 31, v{k1}
    v_cmp_gt_u32 vcc, {NPB-64}, v{V_LANE}
    v_lshlrev_b32 v{k0}, 2, v{k0}
    v_lshlrev_b32 v{k1}, 2, v{k1}
    v_cndmask_b32 v{k1}, 0, v{k1}, vcc
    v_mov_b32 v{t0}, 1
    v_add_u32 v{g0}, {L_H2}, v{k0}
    v_add_u32 v{g1}, {L_H2}, v{k1}
    ds_add_rtn_u32 v{r0}, v{g0}, v{t0}
    ds_add_rtn_u32 v{r1}, v{g1}, v{t0}
    v_and_b32 v{t1}, 31, v{V_LANE}
    v_lshlrev_b32 v{t1}, 2, v{t1}
    v_sub_u32 v{t1}, {L_H2+124}, v{t1}
    ds_read_b32 v{h}, v{t1}
    v_sub_u32 v{k0}, 124, v{k0}
    v_sub_u32 v{k1}, 124, v{k1}
    s_waitcnt lgkmcnt(0)
    v_mov_b32 v{ex}, v{h}
    """)
    scan_rows(A, ex, upto=32)
    A(f"""
    v_sub_u32 v{ex}, v{ex}, v{h}
    ds_bpermute_b32 v{t0}, v{k0}, v{ex}
    ds_bpermute_b32 v{t1}, v{k1}, v{ex}
    v_lshlrev_b32 v{g0}, 7, v{V_LANE}
    v_add_u32 v{g0}, s{S_NB128}, v{g0}
    v_add_u32 v{g1}, {64*128}, v{g0}
    v_mov_b32 v{L}, 0x40000000
    v_cndmask_b32 v{g1}, v{L}, v{g1}, vcc
    s_waitcnt lgkmcnt(0)
    v_add_u32 v{r0}, v{r0}, v{t0}
    v_add_u32 v{r1}, v{r1}, v{t1}
    ds_write_b32 v{a4}, v{r0} offset:{L_RANK-L_CNT}
    ds_write_b32 v{a4}, v{r1} offset:{L_RANK-L_CNT+256}
    v_lshlrev_b32 v{t0}, 2, v{r0}
    v_lshlrev_b32 v{t1}, 2, v{r1}
    v_add_u32 v{t0}, {L_ORD}, v{t0}
    v_add_u32 v{t1}, {L_ORD}, v{t1}
    ds_write_b32 v{t0}, v{g0}
    ds_write_b32 v{t1}, v{g1}
    s_branch K2_HAVERANK
K2_OLDRANK:
    ds_read_b32 v{r0}, v{a4} offset:{L_RANK-L_CNT}
    ds_read_b32 v{r1}, v{a4} offset:{L_RANK-L_CNT+256}
    s_waitcnt lgkmcnt(0)
K2_HAVERANK:
    v_lshrrev_b32 v{g0}, 3, v{r0}
    v_lshrrev_b32 v{g1}, 3, v{r1}
    v_lshlrev_b32 v{g0}, 2, v{g0}
    v_lshlrev_b32 v{g1}, 2, v{g1}
    v_add_u32 v{t0}, {L_LG}, v{g0}
    v_add_u32 v{t1}, {L_LG}, v{g1}
    ds_max_u32 v{t0}, v{q0}
    ds_max_u32 v{t1}, v{q1}
    v_and_b32 v{k0}, 15, v{V_LANE}
    v_lshlrev_b32 v{k0}, 2, v{k0}
    v_add_u32 v{k0}, {L_LG}, v{k0}
    ds_read_b32 v{L}, v{k0}
    s_waitcnt lgkmcnt(0)
    v_mov_b32 v{st}, v{L}
    """)
    scan_rows(A, st, upto=16)
    A(f"""
    s_nop 1
    v_readlane_b32 s{T}, v{st}, 15
    s_cmp_le_u32 s{T}, {SCAP}
    s_cbranch_scc1 K2_FITS
    v_min_u32 v{L}, {LIMQ}, v{L}
    s_mov_b32 s{T+2}, {LIMQ*64}
    v_mov_b32 v{st}, v{L}
    """)
    scan_rows(A, st, upto=16)
    A(f"""
K2_FITS:
    ds_write_b32 v{k0}, v{st} offset:{L_ENDS-L_LG}
    v_sub_u32 v{st}, v{st}, v{L}
    ds_bpermute_b32 v{t0}, v{g0}, v{st}
    ds_bpermute_b32 v{t1}, v{g1}, v{st}
    v_mov_b32 v{k0}, {L_FLAG+8}
    v_mov_b32 v{k1}, s{T+2}
    ds_write_b32 v{k0}, v{k1}
    v_and_b32 v{c0}, 3, v{r0}
    v_and_b32 v{c1}, 3, v{r1}
    v_lshlrev_b32 v{c0}, 2, v{c0}
    v_lshlrev_b32 v{c1}, 2, v{c1}
    v_and_b32 v{r0}, 4, v{r0}
    v_and_b32 v{r1}, 4, v{r1}
    v_lshl_add_u32 v{c0}, v{r0}, 4, v{c0}
    v_lshl_add_u32 v{c1}, v{r1}, 4, v{c1}
    v_add_u32 v{c0}, {L_SCHED}, v{c0}
    v_add_u32 v{c1}, {L_SCHED}, v{c1}
    s_waitcnt lgkmcnt(0)
    v_lshl_add_u32 v{c0}, v{t0}, 7, v{c0}
    v_lshl_add_u32 v{c1}, v{t1}, 7, v{c1}
    ds_write_b32 v{a4}, v{c0} offset:{L_BASE-L_CNT}
    ds_write_b32 v{a4}, v{c1} offset:{L_BASE-L_CNT+256}
    s_waitcnt lgkmcnt(0)
K2_SORTED:
    s_barrier
    """)
    stamp(A, 3, diag)
    A(f"v_mov_b32 v{V_T2}, {L_FLAG+8}")
    A(f"ds_read_b32 v{V_T4}, v{V_T2}")
    for i in range(16):
        A(f"ds_read_b32 v{120+i}, v{65+2*i} offset:{L_BASE-L_CNT}")
    A(f"""
    v_and_b32 v{V_T2}, 3, v{V_LANE}
    v_bfe_u32 v{V_T3}, v{V_LANE}, 3, 1
    v_lshl_add_u32 v{V_T2}, v{V_T3}, 2, v{V_T2}
    v_bfe_u32 v{V_T3}, v{V_LANE}, 2, 1
    v_lshl_add_u32 v{V_T2}, v{V_T3}, 3, v{V_T2}
    v_bfe_u32 v{V_T3}, v{V_LANE}, 4, 1
    v_lshl_add_u32 v{V_T2}, v{V_T3}, 4, v{V_T2}
    s_lshr_b32 s{T}, s{S_WAVE}, 1
    s_lshl_b32 s{T}, s{T}, 7
    s_add_u32 s{T}, s{T}, {L_ORD}
    v_lshl_add_u32 v{V_T2}, v{V_T2}, 2, s{T}
    ds_read_b32 v{V_X}, v{V_T2}
    """)
    for i in range(16):
        if i == 0: A("s_waitcnt lgkmcnt(13)")
        if i == 4: A("s_waitcnt lgkmcnt(9)")
        if i == 8: A("s_waitcnt lgkmcnt(5)")
        if i == 12: A("s_waitcnt lgkmcnt(1)")
        A(f"""
        v_and_b32 v{V_T2}, -64, v{96+i}
        v_add3_u32 v{120+i}, v{120+i}, v{96+i}, v{V_T2}
        v_cmpx_gt_u32 vcc, v{V_T4}, v{96+i}
        ds_write_b32 v{120+i}, v{64+2*i}
        s_mov_b64 exec, -1
        """)
    A(f"""
    v_readfirstlane_b32 s{T}, v{V_T4}
    s_cmp_eq_u32 s{T}, -1
    s_cbranch_scc1 K2_NOPEND
    v_mov_b32 v{V_PEND}, 0
    """)
    for i in range(16):
        A(f"""
        v_cmp_le_u32 vcc, v{V_T4}, v{96+i}
        v_cmp_ne_u32 s[{T}:{T+1}], -1, v{96+i}
        s_and_b64 vcc, vcc, s[{T}:{T+1}]
        v_mov_b32 v{V_T2}, {1<<i}
        v_cndmask_b32 v{V_T2}, 0, v{V_T2}, vcc
        v_or_b32 v{V_PEND}, v{V_PEND}, v{V_T2}
        """)
    A(f"""
    v_mov_b32 v{V_T3}, 1
    v_mov_b32 v{V_T2}, {L_FLAG+4}
    v_cmpx_ne_u32 vcc, 0, v{V_PEND}
    ds_write_b32 v{V_T2}, v{V_T3}
    s_mov_b64 exec, -1
K2_NOPEND:
    s_cmp_eq_u32 s{S_FIRST}, 0
    s_cbranch_scc1 K2_NOBEXT
    s_waitcnt lgkmcnt(0)
    v_subrev_u32 v{V_X}, s{S_NB128}, v{V_X}
    v_and_b32 v{V_X}, 0x3f80, v{V_X}
    v_bfe_u32 v{V_T2}, v{V_X}, 8, 3
    v_lshrrev_b32 v{V_T3}, 5, v{V_LANE}
    v_xor_b32 v{V_T2}, v{V_T2}, v{V_T3}
    v_lshl_add_u32 v{V_X}, v{V_T2}, 4, v{V_X}
    """)
    for ks in range(4):
        A(f"v_xor_b32 v{V_T2}, {32*ks}, v{V_X}")
        A(f"ds_read_b128 {vr(32+4*ks,4)}, v{V_T2} offset:{L_XOWN}")
    for ks in range(4):
        A(f"s_waitcnt lgkmcnt({3-ks})")
        A(mfma(vr(120,16), vr(32+4*ks,4), vr(48+4*ks,4), "0" if ks == 0 else vr(120,16)))
    A(f"""
    s_lshr_b32 s{T}, s{S_WAVE}, 1
    s_lshl_b32 s{T}, s{T}, 12
    s_and_b32 s{T+1}, s{S_WAVE}, 1
    s_lshl_b32 s{T+1}, s{T+1}, 9
    s_add_u32 s{T}, s{T}, s{T+1}
    s_add_u32 s{T}, s{T}, {L_BEXT}
    v_and_b32 v{V_T2}, 31, v{V_LANE}
    v_lshlrev_b32 v{V_T2}, 4, v{V_T2}
    v_lshl_add_u32 v{V_T2}, v{V_T3}, 10, v{V_T2}
    v_add_u32 v{V_T2}, s{T}, v{V_T2}
    s_mov_b32 s{T}, 0x{f2u(-LOG2E):08x}
    s_nop 7
    s_nop 3
    """)
    for i in range(16):
        A(f"v_mul_f32 v{120+i}, s{T}, v{120+i}")
    for i in range(8):
        A(f"v_cvt_pk_bf16_f32 v{136+i}, v{120+2*i}, v{121+2*i}")
    A(f"""
    ds_write_b128 v{V_T2}, v[136:139]
    ds_write_b128 v{V_T2}, v[140:143] offset:2048
K2_NOBEXT:
    s_waitcnt lgkmcnt(0)
    s_barrier
    """)
    stamp(A, 4, diag)
    A(f"""
    v_and_b32 v{V_T2}, 15, v{V_LANE}
    v_lshlrev_b32 v{V_T2}, 2, v{V_T2}
    v_add_u32 v{V_T2}, {L_ENDS}, v{V_T2}
    ds_read_b32 v{V_T3}, v{V_T2}
    v_mov_b32 v{V_T2}, {L_FLAG}
    ds_read_b64 v[{V_X}:{V_X+1}], v{V_T2}
    ; constants
    v_lshrrev_b32 v{V_T4}, 5, v{V_LANE}
    v_cmp_eq_u32 vcc, 0, v{V_T4}
    v_and_b32 v{V_T0}, 31, v{V_LANE}
    v_bfe_u32 v{V_T1}, v{V_T0}, 1, 3
    v_xor_b32 v{V_T1}, v{V_T1}, v{V_T4}
    v_lshlrev_b32 v{V_T1}, 4, v{V_T1}
    v_lshl_add_u32 v{V_T1}, v{V_T0}, 7, v{V_T1}
    v_add_u32 v{V_XA}, s{S_M0A}, v{V_T1}
    v_xor_b32 v{V_XA+1}, 32, v{V_XA}
    v_xor_b32 v{V_XA+2}, 64, v{V_XA}
    v_xor_b32 v{V_XA+3}, 96, v{V_XA}
    v_lshlrev_b32 v{V_T1}, 4, v{V_T0}
    v_add_u32 v{V_B0}, {L_BEXT}, v{V_T1}
    v_add_u32 v{V_T1}, {L_BCON}, v{V_T1}
    v_cndmask_b32 v{V_B0}, v{V_T1}, v{V_B0}, vcc
    v_mov_b32 v{V_T1}, 1024
    v_cndmask_b32 v{V_BINC}, 0, v{V_T1}, vcc
    v_lshrrev_b32 v{V_T1}, 3, v{V_T0}
    v_and_b32 v{V_X+2}, 4, v{V_T0}
    v_add_u32 v{V_T1}, v{V_T1}, v{V_X+2}
    v_and_b32 v{V_X+2}, 1, v{V_T1}
    v_lshlrev_b32 v{V_X+2}, 4, v{V_X+2}
    v_mov_b32 v{V_X+3}, 0x3f80
    v_lshlrev_b32 v{V_X+2}, v{V_X+2}, v{V_X+3}
    v_cndmask_b32 v{V_X+2}, 0, v{V_X+2}, vcc
    v_lshrrev_b32 v{V_T1}, 1, v{V_T1}
    """)
    for d in range(4):
        A(f"v_cmp_eq_u32 s[{T}:{T+1}], {d}, v{V_T1}")
        A("s_nop 1")
        A(f"v_cndmask_b32 v{V_AEXT+d}, 0, v{V_X+2}, s[{T}:{T+1}]")
    A(f"""
    v_mov_b32 v{V_T1}, 0xffff0000
    v_cndmask_b32 v{V_MHI}, v{V_T1}, 0, vcc
    v_cndmask_b32 v{V_FV}, v{V_X+3}, v{V_AEXT}, vcc
    v_mov_b32 v{V_T1}, 0xf180
    v_cndmask_b32 v{V_FP}, v{V_T1}, v{V_AEXT}, vcc
    v_lshlrev_b32 v{V_ACA}, 2, v{V_LANE}
    v_add_u32 v{V_ACA}, {L_ACC}, v{V_ACA}
    v_lshrrev_b32 v{V_S1}, 3, v{V_LANE}
    v_lshlrev_b32 v{V_S1}, 4, v{V_S1}
    v_and_b32 v{V_S2}, 7, v{V_T0}
    v_lshlrev_b32 v{V_S2}, 4, v{V_S2}
    v_lshrrev_b32 v{V_T1}, 3, v{V_T0}
    v_lshl_add_u32 v{V_S2}, v{V_T1}, 2, v{V_S2}
    s_waitcnt lgkmcnt(0)
    v_readlane_b32 s{T}, v{V_T3}, 15
    v_readfirstlane_b32 s{T+4}, v{V_X}
    v_readfirstlane_b32 s{T+5}, v{V_X+1}
    s_and_b32 s{T+1}, s{S_WAVE}, 3
    s_lshl_b32 s{T+1}, s{T+1}, 1
    s_lshr_b32 s{T+2}, s{S_WAVE}, 2
    s_add_u32 s{T+1}, s{T+1}, s{T+2}
    s_mul_i32 s{T+2}, s{T+1}, s{T}
    s_add_u32 s{T+3}, s{T+2}, s{T}
    s_lshr_b32 s{T+2}, s{T+2}, 3
    s_lshr_b32 s{T+3}, s{T+3}, 3
    s_sub_u32 s{S_N}, s{T+3}, s{T+2}
    s_max_u32 s{S_N}, s{S_N}, 1
    s_min_u32 s{S_N}, s{S_N}, 28
    s_lshl_b32 s{T+5}, s{T+5}, 1
    s_or_b32 s{S_AGAIN}, s{T+4}, s{T+5}
    s_lshl_b32 s{T+3}, s{T+2}, 7
    s_add_u32 s{T+3}, s{T+3}, {L_SCHED}
    v_add_u32 v{V_S1}, s{T+3}, v{V_S1}
    v_add_u32 v{V_S2}, s{T+3}, v{V_S2}
    ds_read_b128 {vr(V_REC,4)}, v{V_S1}
    ds_read_b128 {vr(V_X+4,4)}, v{V_S1} offset:128
    ds_read_b32 v{V_R32}, v{V_S2}
    v_cmp_ge_u32 vcc, s{T+2}, v{V_T3}
    s_and_b32 s{T+4}, vcc_lo, 0xffff
    s_bcnt1_i32_b32 s{S_GN}, s{T+4}
    s_mov_b32 s{S_GF}, s{S_GN}
    v_subrev_u32 v{V_T3}, s{T+2}, v{V_T3}
    v_cmp_gt_u32 vcc, 32, v{V_T3}
    v_lshlrev_b32 v{V_T3}, v{V_T3}, 1
    s_nop 0
    v_cndmask_b32 v{V_T3}, 0, v{V_T3}, vcc
    """)
    scan_rows(A, V_T3, op="v_or_b32", upto=16)
    A(f"""
    s_nop 1
    v_readlane_b32 s{S_MASK}, v{V_T3}, 15
    s_and_b32 s{S_MASK}, s{S_MASK}, -2
    v_mad_u32_u24 v{V_BX}, v{V_BINC}, s{S_GN}, v{V_B0}
    ds_read_b128 {ar(A_BX,4)}, v{V_BX}
    ds_read_b128 {ar(A_BX+4,4)}, v{V_BX} offset:512
    s_mov_b32 m0, s{S_M0A}
    s_waitcnt lgkmcnt(4)
    """)
    for m in range(4):
        A(mad_off(m)); A(dma(m, V_REC+m))
    A(f"s_mov_b32 m0, s{S_M0B}")
    A("s_waitcnt lgkmcnt(3)")
    for m in range(4):
        A(f"v_mov_b32 v{V_REC+m}, v{V_X+4+m}")
    for m in range(4):
        A(mad_off(m)); A(dma(m, V_REC+m))
    A(f"ds_read_b128 {vr(V_REC,4)}, v{V_S1} offset:256")
    A("s_waitcnt lgkmcnt(3)")
    for x in aext_ops(): A(x)
    zero_acc(A)
    for i in range(8):
        A(f"v_mov_b32 v{V_M+i}, 1.0")
        A(f"v_mov_b32 v{V_S+i}, 0")
        A(f"v_mov_b32 v{V_Q+i}, 0")
    A(f"v_add_u32 v{V_S1}, 384, v{V_S1}")
    A(f"v_add_u32 v{V_S2}, 128, v{V_S2}")
    A("s_waitcnt vmcnt(4)")
    for ks in range(4):
        A(f"ds_read_b128 {ar(A_X+4*ks,4)}, v{V_XA+ks}")
    A(f"s_mov_b32 m0, s{S_M0A}")
    A("s_waitcnt lgkmcnt(0)")
    stamp(A, 5, diag)
    ex = {2*m+1: [mad_off(m), dma(m, V_REC+m)] for m in range(4)}
    emit_mf(A, mf_list(0), [], ex, [0]*9)
    A("s_nop 7")
    A("s_nop 7")
    CA = [3, 3, 2, 2, 3, 2, 3, 2, 4]
    CB = [3, 2, 3, 2, 3, 2, 3, 2, 4]
    for P in range(2):
        A.label(f"K2_LOOP{P}")
        xoff = 32768 if P == 0 else 0
        pre = [f"s_bfe_u32 s{T}, s{S_MASK}, 0x10001",
               f"s_add_u32 s{S_GN}, s{S_GN}, s{T}"]
        for x in pre: A(x)
        ex = {0: [f"v_mad_u32_u24 v{V_BX}, v{V_BINC}, s{S_GN}, v{V_B0}",
                  f"ds_read_b32 v{V_R32}, v{V_S2}",
                  f"ds_read_b128 {vr(V_REC,4)}, v{V_S1}"],
              1: [f"ds_read_b128 {ar(A_BX,4)}, v{V_BX}",
                  f"ds_read_b128 {ar(A_BX+4,4)}, v{V_BX} offset:512"],
              2: [f"v_add_u32 v{V_S1}, 128, v{V_S1}", f"v_add_u32 v{V_S2}, 128, v{V_S2}"],
              3: ["s_waitcnt vmcnt(4)",
                  f"ds_read_b128 {ar(A_X,4)}, v{V_XA} offset:{xoff}"],
              5: [f"ds_read_b128 {ar(A_X+4,4)}, v{V_XA+1} offset:{xoff}",
                  "s_waitcnt lgkmcnt(5)"] + aext_ops()[:2],
              7: [f"ds_read_b128 {ar(A_X+8,4)}, v{V_XA+2} offset:{xoff}", aext_ops()[2]],
              }
        emit_mf(A, mf_list(1), trans_list(0), ex, CA)
        A(f"ds_read_b128 {ar(A_X+12,4)}, v{V_XA+3} offset:{xoff}")
        for x in pk_acc(1) + pk_msq(0): A(x)
        A(f"s_bitcmp1_b32 s{S_MASK}, 0")
        A(f"s_cbranch_scc1 K2_FLUSH{P}")
        A.label(f"K2_RET{P}")
        A(f"s_lshr_b32 s{S_MASK}, s{S_MASK}, 1")
        A(f"s_sub_u32 s{S_N}, s{S_N}, 1")
        A(f"s_cmp_eq_u32 s{S_N}, 0")
        A("s_cbranch_scc1 K2_TAIL")
        A(f"s_mov_b32 m0, s{S_M0B if P == 0 else S_M0A}")
        A("s_waitcnt lgkmcnt(0)")
        ex = {2*m+1: [mad_off(m), dma(m, V_REC+m)] for m in range(4)}
        emit_mf(A, mf_list(0), trans_list(1), ex, CB)
        for x in pk_acc(0) + pk_msq(1): A(x)
    A("s_branch K2_LOOP0")
    for P in range(2):
        A.label(f"K2_FLUSH{P}")
        flush(A)
        A("s_nop 0")
        zero_acc(A)
        A(f"s_branch K2_RET{P}")
    A.label("K2_TAIL")
    for x in trans_list(1): A(x)
    A("s_nop 0")
    for x in pk_acc(0) + pk_msq(1): A(x)
    for x in trans_list(0, exp=False): A(x)
    A("s_nop 0")
    for x in pk_acc(1): A(x)
    flush(A)
    stamp(A, 6, diag)
    A(f"""
    s_lshr_b32 s{T}, s{S_WAVE}, 1
    s_and_b32 s{T+1}, s{S_WAVE}, 1
    s_lshl_b32 s{T+2}, s{T}, 7
    s_add_u32 s{T+2}, s{T+2}, {L_ORD}
    v_bfe_u32 v{V_T2}, v{V_LANE}, 3, 2
    v_lshlrev_b32 v{V_T2}, 5, v{V_T2}
    v_lshrrev_b32 v{V_T3}, 5, v{V_LANE}
    v_lshlrev_b32 v{V_T3}, 4, v{V_T3}
    v_add3_u32 v{V_T2}, v{V_T2}, v{V_T3}, s{T+2}
    ds_read_b128 {vr(V_REC,4)}, v{V_T2}
    v_add_u32 v{V_T3}, s{T+2}, v{V_T3}
    """)
    for g in range(4):
        A(f"ds_read_b128 {vr(96+4*g,4)}, v{V_T3} offset:{32*g}")
    A(f"""
    s_mov_b32 m0, s{S_M0A}
    s_lshl_b32 s{T+3}, s{T+1}, 12
    s_add_u32 s{T+3}, s{T+3}, {WS_WF+3*8192}
    v_lshlrev_b32 v{V_T4}, 4, v{V_LANE}
    s_lshl_b32 s{T+4}, s{T+1}, 11
    v_add_u32 v{V_T4}, s{T+4}, v{V_T4}
    v_xor_b32 v{V_T2}, 2048, v{V_T4}
    s_waitcnt vmcnt(0) lgkmcnt(4)
    """)
    for m in range(4):
        co = V_CO0 if m % 2 == 0 else V_CO1
        A(f"v_add_u32 v{V_REC+m}, v{V_REC+m}, v{co}")
        A(dma(m, V_REC+m))
    A(f"""
    buffer_load_dwordx4 v[48:51], v{V_T4}, {srd(S_WS)}, s{T+3} offen
    buffer_load_dwordx4 v[52:55], v{V_T4}, {srd(S_WS)}, s{T+3} offen offset:1024
    buffer_load_dwordx4 v[56:59], v{V_T2}, {srd(S_WS)}, s{T+3} offen
    buffer_load_dwordx4 v[60:63], v{V_T2}, {srd(S_WS)}, s{T+3} offen offset:1024
    """)
    A(f"""
    v_and_b32 v{V_T0}, 31, v{V_LANE}
    v_lshrrev_b32 v{V_T1}, 5, v{V_LANE}
    v_lshlrev_b32 v{V_T1}, 3, v{V_T1}
    v_sub_u32 v{V_T1}, v{V_T0}, v{V_T1}
    v_and_b32 v{V_T2}, 1, v{V_T0}
    v_lshlrev_b32 v{V_T2}, 4, v{V_T2}
    v_mov_b32 v{V_T3}, 0x3f80
    v_lshlrev_b32 v{V_T2}, v{V_T2}, v{V_T3}
    v_ashrrev_i32 v{V_T1}, 1, v{V_T1}
    """)
    for u in range(2):
        for d in range(4):
            A(f"v_cmp_eq_u32 vcc, {8*u+d}, v{V_T1}")
            A("s_nop 1")
            A(f"v_cndmask_b32 v{112+4*u+d}, 0, v{V_T2}, vcc")
    A(f"""
    s_lshl_b32 s{T+4}, s{T+1}, 6
    v_lshl_add_u32 v{V_T0}, v{V_T0}, 1, s{T+4}
    s_lshl_b32 s{T+2}, s{T}, 14
    s_lshl_b32 s{T+3}, s{T+1}, 11
    s_add_u32 s{T+2}, s{T+2}, s{T+3}
    v_add_u32 v{V_ACA}, s{T+2}, v{V_ACA}
    s_waitcnt lgkmcnt(0)
    s_barrier
    s_cmp_lg_u32 s{S_AGAIN}, 0
    s_cbranch_scc1 K2_NEXT
    """)
    stamp(A, 7, diag)
    for g in range(4):
        for q in range(4):
            r = 4*q + g
            A(f"ds_read2st64_b32 {vr(120+2*r,2)}, v{V_ACA} offset0:{16*g+2*q} offset1:{16*g+2*q+1}")
    for u in range(4):
        A(f"v_xor_b32 v{V_XA+u}, s{T+4}, v{V_XA+u}")
    A("s_waitcnt vmcnt(4)")
    for u in range(4):
        A(f"ds_read_b128 {vr(32+4*u,4)}, v{V_XA+u}")
    A("s_waitcnt vmcnt(0) lgkmcnt(0)")
    for u in range(4):
        A(mfma(vr(64,16), vr(32+4*u,4), vr(48+4*u,4), "0" if u == 0 else vr(64,16)))
    for u in range(2):
        A(mfma(vr(80,16), vr(32+4*u,4), vr(112+4*u,4), "0" if u == 0 else vr(80,16)))
    A(f"s_mov_b32 s{T}, 0x{f2u(1e-6 * 2.0**SH):08x}")
    for r in range(16):
        A(f"v_add_f32 v{121+2*r}, s{T}, v{121+2*r}")
    for r in range(16):
        A(f"v_rcp_f32 v{121+2*r}, v{121+2*r}")
    for g in range(4):
        for q in range(4):
            A(f"v_add_u32 v{96+4*g+q}, v{96+4*g+q}, v{V_T0}")
    for r in range(16):
        A(f"v_fma_f32 v{64+r}, v{120+2*r}, v{121+2*r}, v{64+r}")
    for r in range(16):
        A(f"v_max_f32 v{64+r}, 0, v{64+r}")
    for r in range(16):
        A(f"v_add_f32 v{64+r}, v{64+r}, v{80+r}")
    for r in range(0, 16, 2):
        A(f"v_cvt_pk_bf16_f32 v{32+r//2}, v{64+r}, v{65+r}")
    for r in range(16):
        q, g = r >> 2, r & 3
        op = "buffer_store_short" if r % 2 == 0 else "buffer_store_short_d16_hi"
        A(f"{op} v{32+r//2}, v{96+4*g+q}, {srd(S_OUT)}, 0 offen")
    if diag:
        stamp(A, 8, diag)
        A(f"""
        s_lshl_b32 s{T}, s2, 3
        s_add_u32 s{T}, s{T}, s{S_WAVE}
        s_lshl_b32 s{T}, s{T}, 6
        s_add_u32 s{T}, s{T}, {WS_STAMP}
        v_lshlrev_b32 v{V_T2}, 2, v{V_LANE}
        v_cmpx_gt_u32 vcc, 16, v{V_LANE}
        buffer_store_dword v159, v{V_T2}, {srd(S_WS)}, s{T} offen
        """)
    A(f"""
K2_END:
    s_endpgm
K2_NEXT:
    s_waitcnt vmcnt(0)
    s_add_u32 s{S_SUB}, s{S_SUB}, 1
    s_cmp_gt_u32 s{S_SUB}, 160
    s_cbranch_scc1 K2_END
    s_bitcmp1_b32 s{S_AGAIN}, 1
    s_cbranch_scc1 K2_AGAIN
    s_mov_b32 s{S_SUB}, 0
    s_add_u32 s{S_PASS32}, s{S_PASS32}, 32
    s_cmp_gt_u32 s{S_PASS32}, {CH}
    s_cbranch_scc1 K2_END
    s_branch K2_AGAIN
    """)

HEADER = open(f"cdna_kernels/{NAME}.s.ref").read().split("; Override")[0]

def build(diag=False):
    A = Asm()
    out = HEADER
    out += f"; @launch kernel=bin_kernel grid=({NCH+4},1,1) block=(832,1,1) lds={2048+CH*8}\n"
    out += f"; @launch kernel=mpnn_kernel grid=(256,1,1) block=(512,1,1) lds={LDS2}\n"
    out += '.amdgcn_target "amdgcn-amd-amdhsa--gfx950"\n.text\n'
    out += ".globl bin_kernel\n.p2align 8\n.type bin_kernel,@function\n"
    gen_k1(A, diag)
    out += A.text()
    A = Asm()
    out += ".globl mpnn_kernel\n.p2align 8\n.type mpnn_kernel,@function\n"
    gen_k2(A, diag)
    out += A.text()
    out += f""".section .rodata,"a"
.p2align 6
.amdhsa_kernel bin_kernel
  .amdhsa_next_free_vgpr 64
  .amdhsa_next_free_sgpr 64
  .amdhsa_accum_offset 64
  .amdhsa_group_segment_fixed_size 0
  .amdhsa_kernarg_size 96
  .amdhsa_user_sgpr_count 2
  .amdhsa_user_sgpr_kernarg_segment_ptr 1
  .amdhsa_system_sgpr_workgroup_id_x 1
  .amdhsa_float_denorm_mode_32 3
.end_amdhsa_kernel
.p2align 6
.amdhsa_kernel mpnn_kernel
  .amdhsa_next_free_vgpr {NV+NA}
  .amdhsa_next_free_sgpr 96
  .amdhsa_accum_offset {NV}
  .amdhsa_group_segment_fixed_size 0
  .amdhsa_kernarg_size 96
  .amdhsa_user_sgpr_count 2
  .amdhsa_user_sgpr_kernarg_segment_ptr 1
  .amdhsa_system_sgpr_workgroup_id_x 1
  .amdhsa_float_denorm_mode_32 3
.end_amdhsa_kernel
"""
    return out

if __name__ == "__main__":
    diag = "--diag" in sys.argv
    path = sys.argv[1] if len(sys.argv) > 1 and not sys.argv[1].startswith("--") else f"cdna_kernels/{NAME}.s"
    open(path, "w").write(build(diag))
    print("wrote", path)
```

```python
import sys, struct
sys.path.insert(0, "gen")
import hazard
VERBOSE = "--verbose" in sys.argv

NAME = "standalone__edge_featured_mpnn_gatedgcn__graph"
N, E = 25000, 800000
NCH, CH = 250, 3200
NPB = 98
WS_REC   = 0
WS_OFFS  = 0x700000
WS_WF    = 0x780000
WS_STAMP = 0x7C0000
WS_SIZE  = 0x800000
L_STG   = 0
L_XOWN  = 32768
L_ACC   = 65536
L_SCHED = L_ACC + 13 * 4096
SCAP    = 192
L_BEXT  = L_SCHED + SCAP * 128
L_BCON  = L_BEXT + 16 * 1024
L_CNT   = L_BCON + 1024
L_BASE  = L_CNT + 512
L_ORD   = L_BASE + 512
L_RANK  = L_ORD + 512
L_H2    = L_RANK + 512
L_LG    = L_H2 + 128
L_ENDS  = L_LG + 64
L_TG    = L_ENDS + 64
L_FLAG  = L_TG + 64
L_END   = L_FLAG + 16
assert L_END <= 163840, L_END
LDS2 = 163840
LIMQ = 14
SH = 48
LOG2E = 1.4426950408889634

def f2u(x): return struct.unpack("<I", struct.pack("<f", x))[0]

class Asm:
    def __init__(self): self.l = []
    def __call__(self, s):
        for ln in s.strip("\n").split("\n"):
            self.l.append(ln if ln.rstrip().endswith(":") and not ln.startswith(" ") else "    " + ln.strip())
    def label(self, n): self.l.append(n + ":")
    def text(self): return "\n".join(hazard.fix(self.l, VERBOSE)) + "\n"

def vr(a, n=1): return f"v{a}" if n == 1 else f"v[{a}:{a+n-1}]"
def ar(a, n=1): return f"a{a}" if n == 1 else f"a[{a}:{a+n-1}]"

def scan_rows(A, v, op="v_add_u32", upto=64):
    for sh in (1, 2, 4, 8):
        A("s_nop 1")
        A(f"{op}_dpp v{v}, v{v}, v{v} row_shr:{sh} row_mask:0xf bank_mask:0xf")
    if upto >= 32:
        A("s_nop 1")
        A(f"{op}_dpp v{v}, v{v}, v{v} row_bcast:15 row_mask:0xa bank_mask:0xf")
    if upto >= 64:
        A("s_nop 1")
        A(f"{op}_dpp v{v}, v{v}, v{v} row_bcast:31 row_mask:0xc bank_mask:0xf")

def stamp(A, idx, on, sreg=90, wsrd="s[8:11]", base=0):
    if on:
        A(f"s_memtime s[{sreg}:{sreg+1}]")
        A("s_waitcnt lgkmcnt(0)")
        A(f"v_writelane_b32 v160, s{sreg}, {idx}")

def gen_k1(A, diag):
    A.label("bin_kernel")
    A(f"""
    s_load_dwordx4 s[4:7], s[0:1], 8
    s_load_dwordx2 s[8:9], s[0:1], 24
    s_load_dwordx2 s[24:25], s[0:1], 88
    s_load_dwordx4 s[28:31], s[0:1], 32
    s_load_dwordx4 s[32:35], s[0:1], 56
    s_mov_b32 s26, {WS_SIZE}
    s_mov_b32 s27, 0x20000
    s_cmp_ge_u32 s2, {NCH}
    s_cbranch_scc1 K1_W
    s_mov_b32 s14, {E*4}
    s_mov_b32 s15, 0x20000
    s_mov_b32 s18, {E*4}
    s_mov_b32 s19, 0x20000
    s_mov_b32 s22, {E*2}
    s_mov_b32 s23, 0x20000
    s_mul_i32 s36, s2, {CH*4}
    s_mul_i32 s37, s2, {CH*2}
    s_mul_i32 s38, s2, {CH*8}
    v_lshlrev_b32 v1, 4, v0
    v_lshlrev_b32 v2, 3, v0
    v_lshlrev_b32 v3, 2, v0
    v_mov_b32 v4, 0
    v_cmp_gt_u32 vcc, 256, v0
    s_and_saveexec_b64 s[40:41], vcc
    ds_write_b32 v3, v4
    s_mov_b64 exec, s[40:41]
    s_movk_i32 s39, {CH//4}
    v_cmp_gt_u32 s[42:43], s39, v0
    s_waitcnt lgkmcnt(0)
    s_mov_b32 s12, s8
    s_mov_b32 s13, s9
    s_mov_b32 s16, s6
    s_mov_b32 s17, s7
    s_mov_b32 s20, s4
    s_mov_b32 s21, s5
    s_mov_b64 exec, s[42:43]
    buffer_load_dwordx4 v[8:11], v1, s[12:15], s36 offen
    buffer_load_dwordx4 v[12:15], v1, s[16:19], s36 offen
    buffer_load_dwordx2 v[16:17], v2, s[20:23], s37 offen
    s_barrier
    s_mov_b32 s44, 42800
    s_movk_i32 s45, {-NPB*4 & 0xffff if False else NPB*4}
    v_mov_b32 v5, 1
    s_waitcnt vmcnt(2)
    """)
    for k in range(4):
        A(f"v_mul_u32_u24 v{20+k}, s44, v{8+k}")
    for k in range(4):
        A(f"v_lshrrev_b32 v{20+k}, 22, v{20+k}")
    for k in range(4):
        A(f"v_mul_u32_u24 v{32+k}, s45, v{20+k}")
        A(f"v_lshlrev_b32 v{20+k}, 2, v{20+k}")
        A(f"ds_add_rtn_u32 v{36+k}, v{20+k}, v5")
    for k in range(4):
        A(f"v_lshlrev_b32 v{8+k}, 2, v{8+k}")
        A(f"v_sub_u32 v{8+k}, v{8+k}, v{32+k}")
        A(f"v_add_u32 v{25+2*k}, {L_CNT}, v{8+k}")
    A("s_mov_b32 s46, 0xffff0000")
    A("s_waitcnt vmcnt(0)")
    A("v_lshlrev_b32 v18, 16, v16")
    A("v_lshlrev_b32 v19, 16, v17")
    A("v_and_b32 v16, s46, v16")
    A("v_and_b32 v17, s46, v17")
    A("v_or_b32 v24, v12, v18")
    A("v_or_b32 v26, v13, v16")
    A("v_or_b32 v28, v14, v19")
    A("v_or_b32 v30, v15, v17")
    A("""
    s_mov_b64 exec, -1
    v_and_b32 v6, 63, v0
    v_lshlrev_b32 v6, 4, v6
    s_waitcnt lgkmcnt(0)
    s_barrier
    ds_read_b128 v[40:43], v6
    s_waitcnt lgkmcnt(0)
    v_add_u32 v45, v40, v41
    v_add_u32 v46, v45, v42
    v_add_u32 v47, v46, v43
    v_mov_b32 v48, v47
    """)
    scan_rows(A, 48)
    A("""
    v_sub_u32 v44, v48, v47
    v_add_u32 v47, v44, v46
    v_add_u32 v46, v44, v45
    v_add_u32 v45, v44, v40
    ds_write_b128 v6, v[44:47] offset:1024
    s_mov_b64 exec, s[42:43]
    """)
    for k in range(4):
        A(f"ds_read_b32 v{32+k}, v{20+k} offset:1024")
    A(f"""
    s_mov_b64 exec, -1
    v_cmp_gt_u32 vcc, 256, v0
    s_and_saveexec_b64 s[40:41], vcc
    s_cbranch_execz K1_NOPUB
    ds_read_b32 v50, v3
    ds_read_b32 v51, v3 offset:1024
    s_and_b32 s47, s2, 31
    s_lshl_b32 s47, s47, 5
    s_lshr_b32 s48, s2, 5
    s_lshl_b32 s48, s48, 2
    s_add_u32 s47, s47, s48
    s_add_u32 s47, s47, {WS_OFFS}
    v_lshlrev_b32 v52, 10, v0
    s_waitcnt lgkmcnt(0)
    v_lshl_or_b32 v50, v50, 16, v51
    buffer_store_dword v50, v52, s[24:27], s47 offen
K1_NOPUB:
    s_mov_b64 exec, s[42:43]
    s_waitcnt lgkmcnt(0)
    """)
    for k in range(4):
        A(f"v_add_lshl_u32 v{32+k}, v{32+k}, v{36+k}, 3")
        A(f"ds_write_b64 v{32+k}, v[{24+2*k}:{25+2*k}] offset:2048")
    A(f"""
    s_waitcnt lgkmcnt(0)
    s_barrier
    ds_read_b128 v[8:11], v1 offset:2048
    ds_read_b128 v[12:15], v1 offset:{2048+CH*4}
    s_add_u32 s39, s38, {CH*4}
    s_waitcnt lgkmcnt(1)
    buffer_store_dwordx4 v[8:11], v1, s[24:27], s38 offen
    s_waitcnt lgkmcnt(0)
    buffer_store_dwordx4 v[12:15], v1, s[24:27], s39 offen
    s_endpgm
K1_W:
    s_cmp_ge_u32 s2, {NCH+4}
    s_cbranch_scc1 K1_END
    v_readfirstlane_b32 s40, v0
    s_lshr_b32 s40, s40, 6
    s_cmp_ge_u32 s40, 8
    s_cbranch_scc1 K1_END
    s_sub_u32 s41, s2, {NCH}
    s_waitcnt lgkmcnt(0)
    ; mi: 0 -> w_b (s30:31), 1 -> w_v (s34:35), 2 -> w_a (s28:29), 3 -> w_u (s32:33)
    s_cmp_eq_u32 s41, 0
    s_cselect_b32 s12, s30, s34
    s_cselect_b32 s13, s31, s35
    s_cselect_b32 s42, 0x{f2u(-LOG2E):08x}, 1.0
    s_cmp_eq_u32 s41, 2
    s_cselect_b32 s12, s28, s12
    s_cselect_b32 s13, s29, s13
    s_cmp_eq_u32 s41, 3
    s_cselect_b32 s12, s32, s12
    s_cselect_b32 s13, s33, s13
    s_mov_b32 s14, 8192
    s_mov_b32 s15, 0x20000
    s_and_b32 s43, s40, 3
    s_lshl_b32 s43, s43, 11
    s_lshr_b32 s44, s40, 2
    s_lshl_b32 s44, s44, 6
    s_add_u32 s43, s43, s44
    v_and_b32 v1, 31, v0
    v_lshlrev_b32 v1, 1, v1
    v_bfe_u32 v2, v0, 5, 1
    v_lshl_add_u32 v1, v2, 10, v1
    """)
    for t in range(8):
        A(f"buffer_load_ushort v{8+t}, v1, s[12:15], s43 offen offset:{t*128}")
    A(f"""
    s_lshl_b32 s41, s41, 13
    s_add_u32 s41, s41, {WS_WF}
    v_lshlrev_b32 v3, 4, v0
    s_waitcnt vmcnt(0)
    """)
    for t in range(8):
        A(f"v_lshlrev_b32 v{8+t}, 16, v{8+t}")
    for t in range(8):
        A(f"v_mul_f32 v{8+t}, s42, v{8+t}")
    for t in range(4):
        A(f"v_cvt_pk_bf16_f32 v{16+t}, v{8+2*t}, v{9+2*t}")
    A("""
    buffer_store_dwordx4 v[16:19], v3, s[24:27], s41 offen
K1_END:
    s_endpgm
    """)

V_TID, V_LANE = 0, 1
V_PEND = 2
V_S1, V_S2 = 3, 4
V_BX, V_B0, V_BINC = 5, 6, 7
V_AEXT = 8
V_REC = 12
V_R32 = 16
V_T0, V_T1 = 17, 18
V_CO0, V_CO1 = 19, 20
V_MHI, V_FV, V_FP = 21, 22, 23
V_XA = 24
V_ACA = 28
V_T2, V_T3, V_T4 = 29, 30, 31
V_G = [32, 48]
V_V = [64, 80]
V_M, V_S, V_Q = 96, 104, 112
V_ACC = 120
V_X = 152
NV = 164
A_WB, A_WV, A_X, A_BX = 0, 32, 64, 80
NA = 88
S_XS, S_WS, S_OUT, S_WC = 4, 8, 12, 16
S_O3, S_O2, S_O1 = 20, 21, 22
S_128 = 23
S_C = 24
S_BIN, S_WAVE, S_FIRST, S_PASS32, S_SUB, S_AGAIN = 26, 27, 28, 29, 30, 31
S_N, S_MASK, S_GN, S_GF = 32, 33, 34, 35
S_M0A, S_M0B = 36, 37
S_NB128 = 38
S_SLOW = 39
S_T = 40

def srd(b): return f"s[{b}:{b+3}]"

def mfma(d, a, b, c):
    return f"v_mfma_f32_32x32x16_bf16 {d}, {a}, {b}, {c}"

def mf_list(nt):
    G, V = vr(V_G[nt], 16), vr(V_V[nt], 16)
    L = [mfma(G, vr(V_AEXT, 4), ar(A_BX + 4*nt, 4), "0")]
    for ks in range(4):
        L.append(mfma(V, ar(A_X + 4*ks, 4), ar(A_WV + 16*nt + 4*ks, 4), "0" if ks == 0 else V))
        L.append(mfma(G, ar(A_X + 4*ks, 4), ar(A_WB + 16*nt + 4*ks, 4), G))
    return L

def trans_list(ntexp, rcp=True, exp=True):
    L = []
    if rcp:
        L += [f"v_rcp_f32 v{V_M+i}, v{V_M+i}" for i in range(8)]
    if exp:
        L += [f"v_exp_f32_e64 v{V_G[ntexp]+i}, v{V_G[ntexp]+i} clamp" for i in range(16)]
    return L

def pk_acc(nt):
    L = []
    for q in range(4):
        a = V_ACC + 16*nt + 4*q
        L.append(f"v_pk_fma_f32 {vr(a,2)}, {vr(V_Q+2*q,2)}, {vr(V_M+2*q,2)}, {vr(a,2)}")
        L.append(f"v_pk_fma_f32 {vr(a+2,2)}, {vr(V_S+2*q,2)}, {vr(V_M+2*q,2)}, {vr(a+2,2)}")
    return L

def pk_msq(nt):
    G, V = V_G[nt], V_V[nt]
    L = []
    for i in range(8):
        L.append(f"v_pk_add_f32 {vr(G+2*i,2)}, {vr(G+2*i,2)}, s[{S_C}:{S_C+1}]")
    for q in range(4):
        L.append(f"v_pk_mul_f32 {vr(V_Q+2*q,2)}, {vr(V+4*q,2)}, {vr(G+4*q+2,2)}")
    for q in range(4):
        L.append(f"v_pk_mul_f32 {vr(V_M+2*q,2)}, {vr(G+4*q,2)}, {vr(G+4*q+2,2)}")
    for q in range(4):
        L.append(f"v_pk_add_f32 {vr(V_S+2*q,2)}, {vr(G+4*q,2)}, {vr(G+4*q+2,2)}")
    for q in range(4):
        L.append(f"v_pk_fma_f32 {vr(V_Q+2*q,2)}, {vr(V+4*q+2,2)}, {vr(G+4*q,2)}, {vr(V_Q+2*q,2)}")
    return L

def emit_mf(A, mf, tr, extra, counts):
    ti = 0
    for g, m in enumerate(mf):
        A(m)
        for x in extra.get(g, []):
            A(x)
        for _ in range(counts[g]):
            A(tr[ti]); ti += 1
    assert ti == len(tr), (ti, len(tr))

def dma(m, vo):
    so = [f"s{S_O3}", f"s{S_O2}", f"s{S_O1}", "0"][m]
    off = f" offset:{1024*m}" if m else ""
    return f"buffer_load_dwordx4 v{vo}, {srd(S_XS)}, {so} offen{off} lds"

def mad_off(m):
    co = V_CO0 if m % 2 == 0 else V_CO1
    return f"v_mad_u32_u16 v{V_REC+m}, v{V_REC+m}, s{S_128}, v{co}"

def aext_ops():
    return [f"v_bfe_i32 v{V_T0}, v{V_R32}, 15, 1",
            f"v_bfi_b32 v{V_T0}, v{V_T0}, v{V_FP}, v{V_FV}",
            f"v_and_or_b32 v{V_AEXT}, v{V_R32}, v{V_MHI}, v{V_T0}"]

def flush(A, tag):
    for i in range(8):
        a = V_ACC + 4*i
        A(f"v_add_f32 v{a}, v{a}, v{a+1}")
        A(f"v_add_f32 v{a+2}, v{a+2}, v{a+3}")
    A(f"s_cmp_lg_u32 s{S_SLOW}, 0")
    A(f"s_cbranch_scc1 K2_FLS{tag}")
    for i in range(8):
        a = V_ACC + 4*i
        A(f"ds_write2st64_b32 v{V_T2}, v{a}, v{a+2} offset0:{2*i} offset1:{2*i+1}")
    A(f"s_branch K2_FLD{tag}")
    A.label(f"K2_FLS{tag}")
    for i in range(8):
        a = V_ACC + 4*i
        A(f"ds_add_f32 v{V_T2}, v{a} offset:{i*512}")
        A(f"ds_add_f32 v{V_T2}, v{a+2} offset:{i*512+256}")
    A.label(f"K2_FLD{tag}")

def zero_acc(A):
    for i in range(32):
        A(f"v_mov_b32 v{V_ACC+i}, 0")

def gen_k2(A, diag):
    T = S_T
    A.label("mpnn_kernel")
    A(f"""
    s_cmp_ge_u32 s2, 256
    s_cbranch_scc1 K2_END
    s_load_dwordx2 s[{S_XS}:{S_XS+1}], s[0:1], 0
    s_load_dwordx2 s[{S_WS}:{S_WS+1}], s[0:1], 88
    s_load_dwordx2 s[{S_OUT}:{S_OUT+1}], s[0:1], 72
    s_load_dwordx2 s[{S_WC}:{S_WC+1}], s[0:1], 48
    """)
    if diag:
        A("v_mov_b32 v160, 0")
    stamp(A, 0, diag)
    A(f"""
    s_mov_b32 s{S_XS+2}, {N*128+3072}
    s_mov_b32 s{S_XS+3}, 0x20000
    s_mov_b32 s{S_WS+2}, {WS_SIZE}
    s_mov_b32 s{S_WS+3}, 0x20000
    s_mov_b32 s{S_OUT+2}, {N*128}
    s_mov_b32 s{S_OUT+3}, 0x20000
    s_mov_b32 s{S_WC+2}, 128
    s_mov_b32 s{S_WC+3}, 0x20000
    s_movk_i32 s{S_O3}, 3072
    s_movk_i32 s{S_O2}, 2048
    s_movk_i32 s{S_O1}, 1024
    s_movk_i32 s{S_128}, 128
    s_mov_b32 s{S_C}, 0x{f2u(2.0**-SH):08x}
    s_mov_b32 s{S_C+1}, 0x{f2u(2.0**-SH):08x}
    s_and_b32 s{S_BIN}, s2, 7
    s_lshl_b32 s{S_BIN}, s{S_BIN}, 5
    s_lshr_b32 s{T}, s2, 3
    s_or_b32 s{S_BIN}, s{S_BIN}, s{T}
    s_mul_i32 s{S_NB128}, s{S_BIN}, {NPB*128}
    v_readfirstlane_b32 s{S_WAVE}, v0
    s_lshr_b32 s{S_WAVE}, s{S_WAVE}, 6
    s_mov_b32 s{S_FIRST}, 1
    s_mov_b32 s{S_PASS32}, 0
    s_mov_b32 s{S_SUB}, 0
    v_and_b32 v{V_LANE}, 63, v0
    v_mov_b32 v{V_PEND}, 0
    s_lshl_b32 s{S_M0A}, s{S_WAVE}, 12
    s_add_u32 s{S_M0B}, s{S_M0A}, 32768
    v_and_b32 v{V_T0}, 7, v{V_LANE}
    v_lshrrev_b32 v{V_T1}, 4, v{V_LANE}
    v_xor_b32 v{V_T0}, v{V_T0}, v{V_T1}
    v_lshlrev_b32 v{V_CO0}, 4, v{V_T0}
    v_xor_b32 v{V_CO1}, 64, v{V_CO0}
    v_lshrrev_b32 v{V_T2}, 4, v0
    v_lshlrev_b32 v{V_T2}, 5, v{V_T2}
    s_lshl_b32 s{T}, s{S_BIN}, 10
    s_add_u32 s{T}, s{T}, {WS_OFFS}
    s_waitcnt lgkmcnt(0)
    s_sub_u32 s{S_XS}, s{S_XS}, 3072
    s_subb_u32 s{S_XS+1}, s{S_XS+1}, 0
    buffer_load_dwordx4 v[32:35], v{V_T2}, {srd(S_WS)}, s{T} offen
    buffer_load_dwordx4 v[36:39], v{V_T2}, {srd(S_WS)}, s{T} offen offset:16
    v_lshrrev_b32 v{V_T3}, 3, v{V_LANE}
    v_lshlrev_b32 v{V_T3}, 7, v{V_T3}
    s_lshl_b32 s{T+1}, s{S_WAVE}, 11
    s_add_u32 m0, s{T+1}, {L_XOWN}
    s_add_u32 s{T+1}, s{T+1}, s{S_NB128}
    s_add_u32 s{T+1}, s{T+1}, 3072
    v_add_u32 v{V_T4}, v{V_T3}, v{V_CO0}
    v_add_u32 v{V_T3}, v{V_T3}, v{V_CO1}
    buffer_load_dwordx4 v{V_T4}, {srd(S_XS)}, s{T+1} offen lds
    buffer_load_dwordx4 v{V_T3}, {srd(S_XS)}, s{T+1} offen offset:1024 lds
    s_mul_i32 s{T+2}, s{S_WAVE}, 3072
    s_mov_b32 m0, s{T+2}
    s_add_u32 s{T+2}, s{T+2}, {WS_WF}
    v_lshlrev_b32 v{V_T4}, 4, v{V_LANE}
    buffer_load_dwordx4 v{V_T4}, {srd(S_WS)}, s{T+2} offen lds
    buffer_load_dwordx4 v{V_T4}, {srd(S_WS)}, s{T+2} offen offset:1024 lds
    buffer_load_dwordx4 v{V_T4}, {srd(S_WS)}, s{T+2} offen offset:2048 lds
    v_lshlrev_b32 v{V_T3}, 1, v{V_LANE}
    buffer_load_ushort v{V_X}, v{V_T3}, {srd(S_WC)}, 0 offen
    s_branch K2_INIT
K2_AGAIN:
    s_mov_b32 s{S_FIRST}, 0
    v_lshrrev_b32 v{V_T2}, 4, v0
    v_lshlrev_b32 v{V_T2}, 5, v{V_T2}
    s_lshl_b32 s{T}, s{S_BIN}, 10
    s_add_u32 s{T}, s{T}, {WS_OFFS}
    buffer_load_dwordx4 v[32:35], v{V_T2}, {srd(S_WS)}, s{T} offen
    buffer_load_dwordx4 v[36:39], v{V_T2}, {srd(S_WS)}, s{T} offen offset:16
    s_waitcnt vmcnt(0)
K2_INIT:
    v_lshlrev_b32 v{V_T2}, 2, v0
    v_add_u32 v{V_T3}, {L_CNT}, v{V_T2}
    v_add_u32 v{V_T4}, {L_H2-512}, v{V_T2}
    v_cmp_gt_u32 vcc, 128, v0
    v_cndmask_b32 v{V_T3}, v{V_T4}, v{V_T3}, vcc
    v_subrev_u32 v{V_T4}, {128+32}, v0
    v_cmp_gt_u32 vcc, 13, v{V_T4}
    v_cndmask_b32 v{V_T4}, 0, 1, vcc
    v_cmp_gt_u32 vcc, {128+84}, v0
    s_and_saveexec_b64 s[{T}:{T+1}], vcc
    ds_write_b32 v{V_T3}, v{V_T4}
    s_mov_b64 exec, s[{T}:{T+1}]
    v_mov_b32 v112, 0xffff
    v_mov_b32 v113, 0xffff
    v_mov_b32 v114, 0xffff
    v_mov_b32 v115, 0xffff
    v_lshlrev_b32 v{V_T2}, 4, v0
    v_add_u32 v{V_T2}, {L_SCHED}, v{V_T2}
    ds_write_b128 v{V_T2}, v[112:115]
    ds_write_b128 v{V_T2}, v[112:115] offset:8192
    ds_write_b128 v{V_T2}, v[112:115] offset:16384
    """)
    for i in range(16):
        A(f"v_mov_b32 v{96+i}, -1")
    A(f"""
    v_and_b32 v{V_T3}, 15, v0
    v_lshlrev_b32 v{V_T3}, 1, v{V_T3}
    v_add_u32 v{V_T3}, s{S_PASS32}, v{V_T3}
    v_lshrrev_b32 v{V_T4}, 4, v0
    v_cmp_gt_u32 vcc, {NCH-224}, v{V_T4}
    v_mul_u32_u24 v{V_T4}, {CH*8}, v{V_T4}
    v_lshl_add_u32 v{V_T4}, v{V_T3}, 3, v{V_T4}
    v_mov_b32 v{V_T2}, 0x40000000
    s_waitcnt vmcnt(6)
    v_cndmask_b32 v39, 0, v39, vcc
    """)
    stamp(A, 1, diag)
    for r in range(8):
        A(f"""
        v_lshrrev_b32 v{40+r}, 16, v{32+r}
        v_and_b32 v{32+r}, 0xffff, v{32+r}
        v_sub_u32 v{40+r}, v{40+r}, v{V_T3}
        v_lshl_add_u32 v{32+r}, v{32+r}, 3, v{V_T4}
        v_cmp_lt_i32 vcc, 0, v{40+r}
        s_mov_b32 s{T}, {r*32*CH*8}
        s_nop 0
        v_cndmask_b32 v{32+r}, v{V_T2}, v{32+r}, vcc
        buffer_load_dwordx4 v[{64+4*r}:{67+4*r}], v{32+r}, {srd(S_WS)}, s{T} offen
        """)
    A(f"""
    v_mov_b32 v113, 0
    v_mov_b32 v114, 0
    v_mov_b32 v115, 0
    s_waitcnt vmcnt(8) lgkmcnt(0)
    s_barrier
    s_cmp_eq_u32 s{S_FIRST}, 0
    s_cbranch_scc1 K2_NOW
    v_lshlrev_b32 v{V_T2}, 4, v{V_LANE}
    """)
    for i in range(16):
        A(f"ds_read_b128 {ar(4*i,4)}, v{V_T2} offset:{i*1024}")
    A(f"""
    s_and_b32 s{T}, s{S_WAVE}, 1
    s_lshl_b32 s{T}, s{T}, 12
    v_add_u32 v{V_T4}, s{T}, v{V_T2}
    """)
    for ks in range(4):
        A(f"ds_read_b128 {vr(48+4*ks,4)}, v{V_T4} offset:{16384+ks*1024}")
    A(f"""
    v_lshlrev_b32 v{V_X}, 16, v{V_X}
    v_mul_f32 v{V_X}, 0x{f2u(-LOG2E):08x}, v{V_X}
    v_mov_b32 v{V_X+1}, 0x{f2u(-float(SH)):08x}
    v_cvt_pk_bf16_f32 v112, v{V_X+1}, v{V_X}
    v_add_u32 v{V_T2}, {L_BCON}, v{V_T2}
    s_cmp_lg_u32 s{S_WAVE}, 7
    s_cbranch_scc1 K2_NOW
    ds_write_b128 v{V_T2}, v[112:115]
K2_NOW:
    """)
    A(f"v_max_i32 v{V_T2}, v40, v41")
    A(f"v_max3_i32 v{V_T2}, v{V_T2}, v42, v43")
    A(f"v_max3_i32 v{V_T2}, v{V_T2}, v44, v45")
    A(f"v_max3_i32 v{V_T2}, v{V_T2}, v46, v47")
    A(f"""
    v_mov_b32 v{V_T3}, 1
    v_mov_b32 v{V_T4}, {L_FLAG}
    v_cmpx_lt_i32 vcc, 32, v{V_T2}
    ds_write_b32 v{V_T4}, v{V_T3}
    s_mov_b64 exec, -1
    v_mov_b32 v{V_T3}, 16
    s_cmp_lg_u32 s{S_SUB}, 0
    s_cbranch_scc1 K2_P1B
    """)
    for r in range(8):
        A(f"""
        s_waitcnt vmcnt({7-r})
        v_cmpx_lt_i32 vcc, 0, v{40+r}
        ds_add_rtn_u32 v{96+2*r}, v{65+4*r}, v{V_T3}
        v_cmpx_lt_i32 vcc, 1, v{40+r}
        ds_add_rtn_u32 v{97+2*r}, v{67+4*r}, v{V_T3}
        s_mov_b64 exec, -1
        """)
    A("s_branch K2_P1D")
    A.label("K2_P1B")
    A("s_waitcnt vmcnt(0)")
    for i in range(16):
        A(f"""
        v_and_b32 v{V_T2}, {1<<i}, v{V_PEND}
        v_cmpx_ne_u32 vcc, 0, v{V_T2}
        ds_add_rtn_u32 v{96+i}, v{65+2*i}, v{V_T3}
        s_mov_b64 exec, -1
        """)
    A.label("K2_P1D")
    A("s_waitcnt lgkmcnt(0)")
    stamp(A, 2, diag)
    A(f"""
    s_barrier
    s_cmp_lg_u32 s{S_WAVE}, 0
    s_cbranch_scc1 K2_SORTED
    """)
    c0, c1, q0, q1, k0, k1, r0, r1, h, ex, a4, g0, g1, L, st, t0, t1 = range(112, 129)
    A(f"""
    v_lshlrev_b32 v{a4}, 2, v{V_LANE}
    v_add_u32 v{a4}, {L_CNT}, v{a4}
    ds_read_b32 v{c0}, v{a4}
    ds_read_b32 v{c1}, v{a4} offset:256
    s_mov_b32 s{T+2}, -1
    s_waitcnt lgkmcnt(0)
    v_add_u32 v{q0}, 48, v{c0}
    v_add_u32 v{q1}, 48, v{c1}
    v_lshrrev_b32 v{q0}, 6, v{q0}
    v_lshrrev_b32 v{q1}, 6, v{q1}
    s_cmp_eq_u32 s{S_FIRST}, 0
    s_cbranch_scc1 K2_OLDRANK
    v_add_u32 v{k0}, 1, v{q0}
    v_add_u32 v{k1}, 1, v{q1}
    v_min_u32 v{k0}, 31, v{k0}
    v_min_u32 v{k1}, 31, v{k1}
    v_cmp_gt_u32 vcc, {NPB-64}, v{V_LANE}
    v_lshlrev_b32 v{k0}, 2, v{k0}
    v_lshlrev_b32 v{k1}, 2, v{k1}
    v_cndmask_b32 v{k1}, 0, v{k1}, vcc
    v_mov_b32 v{t0}, 1
    v_add_u32 v{g0}, {L_H2}, v{k0}
    v_add_u32 v{g1}, {L_H2}, v{k1}
    ds_add_rtn_u32 v{r0}, v{g0}, v{t0}
    ds_add_rtn_u32 v{r1}, v{g1}, v{t0}
    v_and_b32 v{t1}, 31, v{V_LANE}
    v_lshlrev_b32 v{t1}, 2, v{t1}
    v_sub_u32 v{t1}, {L_H2+124}, v{t1}
    ds_read_b32 v{h}, v{t1}
    v_sub_u32 v{k0}, 124, v{k0}
    v_sub_u32 v{k1}, 124, v{k1}
    s_waitcnt lgkmcnt(0)
    v_mov_b32 v{ex}, v{h}
    """)
    scan_rows(A, ex, upto=32)
    A(f"""
    v_sub_u32 v{ex}, v{ex}, v{h}
    ds_bpermute_b32 v{t0}, v{k0}, v{ex}
    ds_bpermute_b32 v{t1}, v{k1}, v{ex}
    v_lshlrev_b32 v{g0}, 7, v{V_LANE}
    v_add_u32 v{g0}, s{S_NB128}, v{g0}
    v_add_u32 v{g1}, {64*128}, v{g0}
    v_mov_b32 v{L}, 0x40000000
    v_cndmask_b32 v{g1}, v{L}, v{g1}, vcc
    s_waitcnt lgkmcnt(0)
    v_add_u32 v{r0}, v{r0}, v{t0}
    v_add_u32 v{r1}, v{r1}, v{t1}
    ds_write_b32 v{a4}, v{r0} offset:{L_RANK-L_CNT}
    ds_write_b32 v{a4}, v{r1} offset:{L_RANK-L_CNT+256}
    v_lshlrev_b32 v{t0}, 2, v{r0}
    v_lshlrev_b32 v{t1}, 2, v{r1}
    v_add_u32 v{t0}, {L_ORD}, v{t0}
    v_add_u32 v{t1}, {L_ORD}, v{t1}
    ds_write_b32 v{t0}, v{g0}
    ds_write_b32 v{t1}, v{g1}
    s_branch K2_HAVERANK
K2_OLDRANK:
    ds_read_b32 v{r0}, v{a4} offset:{L_RANK-L_CNT}
    ds_read_b32 v{r1}, v{a4} offset:{L_RANK-L_CNT+256}
    s_waitcnt lgkmcnt(0)
K2_HAVERANK:
    v_lshrrev_b32 v{g0}, 3, v{r0}
    v_lshrrev_b32 v{g1}, 3, v{r1}
    v_lshlrev_b32 v{g0}, 2, v{g0}
    v_lshlrev_b32 v{g1}, 2, v{g1}
    v_add_u32 v{t0}, {L_LG}, v{g0}
    v_add_u32 v{t1}, {L_LG}, v{g1}
    ds_max_u32 v{t0}, v{q0}
    ds_max_u32 v{t1}, v{q1}
    v_and_b32 v{k0}, 15, v{V_LANE}
    v_lshlrev_b32 v{k0}, 2, v{k0}
    v_add_u32 v{k0}, {L_LG}, v{k0}
    ds_read_b32 v{L}, v{k0}
    s_waitcnt lgkmcnt(0)
    v_mov_b32 v{st}, v{L}
    """)
    scan_rows(A, st, upto=16)
    A(f"""
    s_nop 1
    v_readlane_b32 s{T}, v{st}, 15
    s_cmp_le_u32 s{T}, {SCAP}
    s_cbranch_scc1 K2_FITS
    v_min_u32 v{L}, {LIMQ}, v{L}
    s_mov_b32 s{T+2}, {LIMQ*64}
    v_mov_b32 v{st}, v{L}
    """)
    scan_rows(A, st, upto=16)
    A(f"""
K2_FITS:
    ds_write_b32 v{k0}, v{st} offset:{L_ENDS-L_LG}
    v_sub_u32 v{st}, v{st}, v{L}
    ds_bpermute_b32 v{t0}, v{g0}, v{st}
    ds_bpermute_b32 v{t1}, v{g1}, v{st}
    v_mov_b32 v{k0}, {L_FLAG+8}
    v_mov_b32 v{k1}, s{T+2}
    ds_write_b32 v{k0}, v{k1}
    v_and_b32 v{c0}, 3, v{r0}
    v_and_b32 v{c1}, 3, v{r1}
    v_lshlrev_b32 v{c0}, 2, v{c0}
    v_lshlrev_b32 v{c1}, 2, v{c1}
    v_and_b32 v{r0}, 4, v{r0}
    v_and_b32 v{r1}, 4, v{r1}
    v_lshl_add_u32 v{c0}, v{r0}, 4, v{c0}
    v_lshl_add_u32 v{c1}, v{r1}, 4, v{c1}
    v_add_u32 v{c0}, {L_SCHED}, v{c0}
    v_add_u32 v{c1}, {L_SCHED}, v{c1}
    s_waitcnt lgkmcnt(0)
    v_lshl_add_u32 v{c0}, v{t0}, 7, v{c0}
    v_lshl_add_u32 v{c1}, v{t1}, 7, v{c1}
    ds_write_b32 v{a4}, v{c0} offset:{L_BASE-L_CNT}
    ds_write_b32 v{a4}, v{c1} offset:{L_BASE-L_CNT+256}
    s_waitcnt lgkmcnt(0)
K2_SORTED:
    s_barrier
    """)
    stamp(A, 3, diag)
    A(f"v_mov_b32 v{V_T2}, {L_FLAG+8}")
    A(f"ds_read_b32 v{V_T4}, v{V_T2}")
    for i in range(16):
        A(f"ds_read_b32 v{120+i}, v{65+2*i} offset:{L_BASE-L_CNT}")
    A(f"""
    v_and_b32 v{V_T2}, 3, v{V_LANE}
    v_bfe_u32 v{V_T3}, v{V_LANE}, 3, 1
    v_lshl_add_u32 v{V_T2}, v{V_T3}, 2, v{V_T2}
    v_bfe_u32 v{V_T3}, v{V_LANE}, 2, 1
    v_lshl_add_u32 v{V_T2}, v{V_T3}, 3, v{V_T2}
    v_bfe_u32 v{V_T3}, v{V_LANE}, 4, 1
    v_lshl_add_u32 v{V_T2}, v{V_T3}, 4, v{V_T2}
    s_lshr_b32 s{T}, s{S_WAVE}, 1
    s_lshl_b32 s{T}, s{T}, 7
    s_add_u32 s{T}, s{T}, {L_ORD}
    v_lshl_add_u32 v{V_T2}, v{V_T2}, 2, s{T}
    ds_read_b32 v{V_X}, v{V_T2}
    """)
    for i in range(16):
        if i == 0: A("s_waitcnt lgkmcnt(13)")
        if i == 4: A("s_waitcnt lgkmcnt(9)")
        if i == 8: A("s_waitcnt lgkmcnt(5)")
        if i == 12: A("s_waitcnt lgkmcnt(1)")
        A(f"""
        v_and_b32 v{V_T2}, -64, v{96+i}
        v_add3_u32 v{120+i}, v{120+i}, v{96+i}, v{V_T2}
        v_cmpx_gt_u32 vcc, v{V_T4}, v{96+i}
        ds_write_b32 v{120+i}, v{64+2*i}
        s_mov_b64 exec, -1
        """)
    A(f"""
    v_readfirstlane_b32 s{T}, v{V_T4}
    s_cmp_eq_u32 s{T}, -1
    s_cbranch_scc1 K2_NOPEND
    v_mov_b32 v{V_PEND}, 0
    """)
    for i in range(16):
        A(f"""
        v_cmp_le_u32 vcc, v{V_T4}, v{96+i}
        v_cmp_ne_u32 s[{T}:{T+1}], -1, v{96+i}
        s_and_b64 vcc, vcc, s[{T}:{T+1}]
        v_mov_b32 v{V_T2}, {1<<i}
        v_cndmask_b32 v{V_T2}, 0, v{V_T2}, vcc
        v_or_b32 v{V_PEND}, v{V_PEND}, v{V_T2}
        """)
    A(f"""
    v_mov_b32 v{V_T3}, 1
    v_mov_b32 v{V_T2}, {L_FLAG+4}
    v_cmpx_ne_u32 vcc, 0, v{V_PEND}
    ds_write_b32 v{V_T2}, v{V_T3}
    s_mov_b64 exec, -1
K2_NOPEND:
    s_cmp_eq_u32 s{S_FIRST}, 0
    s_cbranch_scc1 K2_NOBEXT
    s_waitcnt lgkmcnt(0)
    v_subrev_u32 v{V_X}, s{S_NB128}, v{V_X}
    v_and_b32 v{V_X}, 0x3f80, v{V_X}
    v_bfe_u32 v{V_T2}, v{V_X}, 8, 3
    v_lshrrev_b32 v{V_T3}, 5, v{V_LANE}
    v_xor_b32 v{V_T2}, v{V_T2}, v{V_T3}
    v_lshl_add_u32 v{V_X}, v{V_T2}, 4, v{V_X}
    """)
    for ks in range(4):
        A(f"v_xor_b32 v{V_T2}, {32*ks}, v{V_X}")
        A(f"ds_read_b128 {vr(32+4*ks,4)}, v{V_T2} offset:{L_XOWN}")
    for ks in range(4):
        A(f"s_waitcnt lgkmcnt({3-ks})")
        A(mfma(vr(120,16), vr(32+4*ks,4), vr(48+4*ks,4), "0" if ks == 0 else vr(120,16)))
    A(f"""
    s_lshr_b32 s{T}, s{S_WAVE}, 1
    s_lshl_b32 s{T}, s{T}, 12
    s_and_b32 s{T+1}, s{S_WAVE}, 1
    s_lshl_b32 s{T+1}, s{T+1}, 9
    s_add_u32 s{T}, s{T}, s{T+1}
    s_add_u32 s{T}, s{T}, {L_BEXT}
    v_and_b32 v{V_T2}, 31, v{V_LANE}
    v_lshlrev_b32 v{V_T2}, 4, v{V_T2}
    v_lshl_add_u32 v{V_T2}, v{V_T3}, 10, v{V_T2}
    v_add_u32 v{V_T2}, s{T}, v{V_T2}
    s_mov_b32 s{T}, 0x{f2u(-LOG2E):08x}
    s_nop 7
    s_nop 3
    """)
    for i in range(16):
        A(f"v_mul_f32 v{120+i}, s{T}, v{120+i}")
    for i in range(8):
        A(f"v_cvt_pk_bf16_f32 v{136+i}, v{120+2*i}, v{121+2*i}")
    A(f"""
    ds_write_b128 v{V_T2}, v[136:139]
    ds_write_b128 v{V_T2}, v[140:143] offset:2048
K2_NOBEXT:
    s_waitcnt lgkmcnt(0)
    s_barrier
    """)
    stamp(A, 4, diag)
    A(f"""
    v_and_b32 v{V_T2}, 15, v{V_LANE}
    v_lshlrev_b32 v{V_T2}, 2, v{V_T2}
    v_add_u32 v{V_T2}, {L_ENDS}, v{V_T2}
    ds_read_b32 v{V_T3}, v{V_T2}
    v_mov_b32 v{V_T2}, {L_FLAG}
    ds_read_b64 v[{V_X}:{V_X+1}], v{V_T2}
    ; constants
    v_lshrrev_b32 v{V_T4}, 5, v{V_LANE}
    v_cmp_eq_u32 vcc, 0, v{V_T4}
    v_and_b32 v{V_T0}, 31, v{V_LANE}
    v_bfe_u32 v{V_T1}, v{V_T0}, 1, 3
    v_xor_b32 v{V_T1}, v{V_T1}, v{V_T4}
    v_lshlrev_b32 v{V_T1}, 4, v{V_T1}
    v_lshl_add_u32 v{V_T1}, v{V_T0}, 7, v{V_T1}
    v_add_u32 v{V_XA}, s{S_M0A}, v{V_T1}
    v_xor_b32 v{V_XA+1}, 32, v{V_XA}
    v_xor_b32 v{V_XA+2}, 64, v{V_XA}
    v_xor_b32 v{V_XA+3}, 96, v{V_XA}
    v_lshlrev_b32 v{V_T1}, 4, v{V_T0}
    v_add_u32 v{V_B0}, {L_BEXT}, v{V_T1}
    v_add_u32 v{V_T1}, {L_BCON}, v{V_T1}
    v_cndmask_b32 v{V_B0}, v{V_T1}, v{V_B0}, vcc
    v_mov_b32 v{V_T1}, 1024
    v_cndmask_b32 v{V_BINC}, 0, v{V_T1}, vcc
    v_lshrrev_b32 v{V_T1}, 3, v{V_T0}
    v_and_b32 v{V_X+2}, 4, v{V_T0}
    v_add_u32 v{V_T1}, v{V_T1}, v{V_X+2}
    v_and_b32 v{V_X+2}, 1, v{V_T1}
    v_lshlrev_b32 v{V_X+2}, 4, v{V_X+2}
    v_mov_b32 v{V_X+3}, 0x3f80
    v_lshlrev_b32 v{V_X+2}, v{V_X+2}, v{V_X+3}
    v_cndmask_b32 v{V_X+2}, 0, v{V_X+2}, vcc
    v_lshrrev_b32 v{V_T1}, 1, v{V_T1}
    """)
    for d in range(4):
        A(f"v_cmp_eq_u32 s[{T}:{T+1}], {d}, v{V_T1}")
        A("s_nop 1")
        A(f"v_cndmask_b32 v{V_AEXT+d}, 0, v{V_X+2}, s[{T}:{T+1}]")
    A(f"""
    v_mov_b32 v{V_T1}, 0xffff0000
    v_cndmask_b32 v{V_MHI}, v{V_T1}, 0, vcc
    v_cndmask_b32 v{V_FV}, v{V_X+3}, v{V_AEXT}, vcc
    v_mov_b32 v{V_T1}, 0xf180
    v_cndmask_b32 v{V_FP}, v{V_T1}, v{V_AEXT}, vcc
    v_lshlrev_b32 v{V_ACA}, 2, v{V_LANE}
    v_add_u32 v{V_ACA}, {L_ACC}, v{V_ACA}
    v_lshrrev_b32 v{V_S1}, 3, v{V_LANE}
    v_lshlrev_b32 v{V_S1}, 4, v{V_S1}
    v_and_b32 v{V_S2}, 7, v{V_T0}
    v_lshlrev_b32 v{V_S2}, 4, v{V_S2}
    v_lshrrev_b32 v{V_T1}, 3, v{V_T0}
    v_lshl_add_u32 v{V_S2}, v{V_T1}, 2, v{V_S2}
    s_waitcnt lgkmcnt(0)
    v_readlane_b32 s{T}, v{V_T3}, 15
    v_readfirstlane_b32 s{T+4}, v{V_X}
    v_readfirstlane_b32 s{T+5}, v{V_X+1}
    s_and_b32 s{T+1}, s{S_WAVE}, 3
    s_lshl_b32 s{T+1}, s{T+1}, 1
    s_lshr_b32 s{T+2}, s{S_WAVE}, 2
    s_add_u32 s{T+1}, s{T+1}, s{T+2}
    s_mul_i32 s{T+2}, s{T+1}, s{T}
    s_add_u32 s{T+3}, s{T+2}, s{T}
    s_lshr_b32 s{T+2}, s{T+2}, 3
    s_lshr_b32 s{T+3}, s{T+3}, 3
    s_sub_u32 s{S_N}, s{T+3}, s{T+2}
    s_max_u32 s{S_N}, s{S_N}, 1
    s_min_u32 s{S_N}, s{S_N}, 28
    s_lshl_b32 s{T+5}, s{T+5}, 1
    s_or_b32 s{S_AGAIN}, s{T+4}, s{T+5}
    s_xor_b32 s{S_SLOW}, s{S_FIRST}, 1
    s_or_b32 s{S_SLOW}, s{S_SLOW}, s{S_AGAIN}
    s_cmp_eq_u32 s{S_SLOW}, 0
    s_cbranch_scc1 K2_NOZ
    s_cmp_eq_u32 s{S_FIRST}, 0
    s_cbranch_scc1 K2_NOZ
    v_mov_b32 v112, 0
    v_mov_b32 v113, 0
    v_mov_b32 v114, 0
    v_mov_b32 v115, 0
    v_lshlrev_b32 v{V_T2}, 4, v0
    v_add_u32 v{V_T2}, {L_ACC}, v{V_T2}
    ds_write_b128 v{V_T2}, v[112:115]
    ds_write_b128 v{V_T2}, v[112:115] offset:8192
    ds_write_b128 v{V_T2}, v[112:115] offset:16384
    ds_write_b128 v{V_T2}, v[112:115] offset:24576
    ds_write_b128 v{V_T2}, v[112:115] offset:32768
    ds_write_b128 v{V_T2}, v[112:115] offset:40960
    v_cmp_gt_u32 vcc, 256, v0
    s_and_saveexec_b64 s[{T+4}:{T+5}], vcc
    ds_write_b128 v{V_T2}, v[112:115] offset:49152
    s_mov_b64 exec, s[{T+4}:{T+5}]
    s_waitcnt lgkmcnt(0)
    s_barrier
K2_NOZ:
    s_lshl_b32 s{T+3}, s{T+2}, 7
    s_add_u32 s{T+3}, s{T+3}, {L_SCHED}
    v_add_u32 v{V_S1}, s{T+3}, v{V_S1}
    v_add_u32 v{V_S2}, s{T+3}, v{V_S2}
    ds_read_b128 {vr(V_REC,4)}, v{V_S1}
    ds_read_b128 {vr(V_X+4,4)}, v{V_S1} offset:128
    ds_read_b32 v{V_R32}, v{V_S2}
    v_cmp_ge_u32 vcc, s{T+2}, v{V_T3}
    s_and_b32 s{T+4}, vcc_lo, 0xffff
    s_bcnt1_i32_b32 s{S_GN}, s{T+4}
    s_mov_b32 s{S_GF}, s{S_GN}
    v_subrev_u32 v{V_T3}, s{T+2}, v{V_T3}
    v_cmp_gt_u32 vcc, 32, v{V_T3}
    v_lshlrev_b32 v{V_T3}, v{V_T3}, 1
    s_nop 0
    v_cndmask_b32 v{V_T3}, 0, v{V_T3}, vcc
    """)
    scan_rows(A, V_T3, op="v_or_b32", upto=16)
    A(f"""
    s_nop 1
    v_readlane_b32 s{S_MASK}, v{V_T3}, 15
    s_and_b32 s{S_MASK}, s{S_MASK}, -2
    v_mad_u32_u24 v{V_BX}, v{V_BINC}, s{S_GN}, v{V_B0}
    ds_read_b128 {ar(A_BX,4)}, v{V_BX}
    ds_read_b128 {ar(A_BX+4,4)}, v{V_BX} offset:512
    s_mov_b32 m0, s{S_M0A}
    s_waitcnt lgkmcnt(4)
    """)
    for m in range(4):
        A(mad_off(m)); A(dma(m, V_REC+m))
    A(f"s_mov_b32 m0, s{S_M0B}")
    A("s_waitcnt lgkmcnt(3)")
    for m in range(4):
        A(f"v_mov_b32 v{V_REC+m}, v{V_X+4+m}")
    for m in range(4):
        A(mad_off(m)); A(dma(m, V_REC+m))
    A(f"ds_read_b128 {vr(V_REC,4)}, v{V_S1} offset:256")
    A("s_waitcnt lgkmcnt(3)")
    for x in aext_ops(): A(x)
    zero_acc(A)
    for i in range(8):
        A(f"v_mov_b32 v{V_M+i}, 1.0")
        A(f"v_mov_b32 v{V_S+i}, 0")
        A(f"v_mov_b32 v{V_Q+i}, 0")
    A(f"v_add_u32 v{V_S1}, 384, v{V_S1}")
    A(f"v_add_u32 v{V_S2}, 128, v{V_S2}")
    A("s_waitcnt vmcnt(4)")
    for ks in range(4):
        A(f"ds_read_b128 {ar(A_X+4*ks,4)}, v{V_XA+ks}")
    A(f"s_mov_b32 m0, s{S_M0A}")
    A("s_waitcnt lgkmcnt(0)")
    stamp(A, 5, diag)
    ex = {2*m+1: [mad_off(m), dma(m, V_REC+m)] for m in range(4)}
    emit_mf(A, mf_list(0), [], ex, [0]*9)
    A("s_nop 7")
    A("s_nop 7")
    CA = [3, 3, 2, 2, 3, 2, 3, 2, 4]
    CB = [3, 2, 3, 2, 3, 2, 3, 2, 4]
    for P in range(2):
        A.label(f"K2_LOOP{P}")
        xoff = 32768 if P == 0 else 0
        pre = [f"s_bfe_u32 s{T}, s{S_MASK}, 0x10001",
               f"s_add_u32 s{S_GN}, s{S_GN}, s{T}"]
        for x in pre: A(x)
        ex = {0: [f"v_mad_u32_u24 v{V_BX}, v{V_BINC}, s{S_GN}, v{V_B0}",
                  f"ds_read_b32 v{V_R32}, v{V_S2}",
                  f"ds_read_b128 {vr(V_REC,4)}, v{V_S1}"],
              1: [f"ds_read_b128 {ar(A_BX,4)}, v{V_BX}",
                  f"ds_read_b128 {ar(A_BX+4,4)}, v{V_BX} offset:512"],
              2: [f"v_add_u32 v{V_S1}, 128, v{V_S1}", f"v_add_u32 v{V_S2}, 128, v{V_S2}"],
              3: ["s_waitcnt vmcnt(4)",
                  f"ds_read_b128 {ar(A_X,4)}, v{V_XA} offset:{xoff}"],
              5: [f"ds_read_b128 {ar(A_X+4,4)}, v{V_XA+1} offset:{xoff}",
                  "s_waitcnt lgkmcnt(5)"] + aext_ops()[:2],
              7: [f"ds_read_b128 {ar(A_X+8,4)}, v{V_XA+2} offset:{xoff}", aext_ops()[2]],
              }
        emit_mf(A, mf_list(1), trans_list(0), ex, CA)
        A(f"ds_read_b128 {ar(A_X+12,4)}, v{V_XA+3} offset:{xoff}")
        for x in pk_acc(1) + pk_msq(0): A(x)
        A(f"s_bitcmp1_b32 s{S_MASK}, 0")
        A(f"s_cbranch_scc1 K2_FLUSH{P}")
        A.label(f"K2_RET{P}")
        A(f"s_lshr_b32 s{S_MASK}, s{S_MASK}, 1")
        A(f"s_sub_u32 s{S_N}, s{S_N}, 1")
        A(f"s_cmp_eq_u32 s{S_N}, 0")
        A("s_cbranch_scc1 K2_TAIL")
        A(f"s_mov_b32 m0, s{S_M0B if P == 0 else S_M0A}")
        A("s_waitcnt lgkmcnt(0)")
        ex = {2*m+1: [mad_off(m), dma(m, V_REC+m)] for m in range(4)}
        emit_mf(A, mf_list(0), trans_list(1), ex, CB)
        for x in pk_acc(0) + pk_msq(1): A(x)
    A("s_branch K2_LOOP0")
    for P in range(2):
        A.label(f"K2_FLUSH{P}")
        A(f"s_lshl_b32 s{S_T}, s{S_GF}, 12")
        A(f"v_add_u32 v{V_T2}, s{S_T}, v{V_ACA}")
        flush(A, P)
        A(f"s_add_u32 s{S_GF}, s{S_GF}, 1")
        zero_acc(A)
        A(f"s_branch K2_RET{P}")
    A.label("K2_TAIL")
    for x in trans_list(1): A(x)
    A("s_nop 0")
    for x in pk_acc(0) + pk_msq(1): A(x)
    for x in trans_list(0, exp=False): A(x)
    A("s_nop 0")
    for x in pk_acc(1): A(x)
    A(f"""
    s_lshl_b32 s{T}, s{S_GF}, 12
    s_and_b32 s{T+1}, s{S_MASK}, 1
    s_or_b32 s{T+1}, s{T+1}, s{S_SLOW}
    s_cmp_lg_u32 s{T+1}, 0
    s_cbranch_scc1 K2_TAILW
    s_sub_u32 s{T}, s{S_M0B}, {L_ACC}
    s_lshl_b32 s{T+1}, s{S_GF}, 2
    s_add_u32 s{T+1}, s{T+1}, {L_TG}
    v_mov_b32 v{V_T3}, s{T+1}
    s_lshl_b32 s{T+1}, 1, s{S_WAVE}
    v_mov_b32 v{V_T4}, s{T+1}
    v_cmpx_eq_u32 vcc, 0, v{V_LANE}
    ds_or_b32 v{V_T3}, v{V_T4}
    s_mov_b64 exec, -1
K2_TAILW:
    v_add_u32 v{V_T2}, s{T}, v{V_ACA}
    s_waitcnt vmcnt(0)
    """)
    flush(A, "T")
    stamp(A, 6, diag)
    A(f"""
    s_lshr_b32 s{T}, s{S_WAVE}, 1
    s_and_b32 s{T+1}, s{S_WAVE}, 1
    s_lshl_b32 s{T+2}, s{T}, 7
    s_add_u32 s{T+2}, s{T+2}, {L_ORD}
    v_bfe_u32 v{V_T2}, v{V_LANE}, 3, 2
    v_lshlrev_b32 v{V_T2}, 5, v{V_T2}
    v_lshrrev_b32 v{V_T3}, 5, v{V_LANE}
    v_lshlrev_b32 v{V_T3}, 4, v{V_T3}
    v_add3_u32 v{V_T2}, v{V_T2}, v{V_T3}, s{T+2}
    ds_read_b128 {vr(V_REC,4)}, v{V_T2}
    v_add_u32 v{V_T3}, s{T+2}, v{V_T3}
    """)
    for g in range(4):
        A(f"ds_read_b128 {vr(96+4*g,4)}, v{V_T3} offset:{32*g}")
    A(f"""
    s_mov_b32 m0, s{S_M0A}
    s_lshl_b32 s{T+3}, s{T+1}, 12
    s_add_u32 s{T+3}, s{T+3}, {WS_WF+3*8192}
    v_lshlrev_b32 v{V_T4}, 4, v{V_LANE}
    s_lshl_b32 s{T+4}, s{T+1}, 11
    v_add_u32 v{V_T4}, s{T+4}, v{V_T4}
    v_xor_b32 v{V_T2}, 2048, v{V_T4}
    s_waitcnt vmcnt(0) lgkmcnt(4)
    """)
    for m in range(4):
        co = V_CO0 if m % 2 == 0 else V_CO1
        A(f"v_add_u32 v{V_REC+m}, v{V_REC+m}, v{co}")
        A(dma(m, V_REC+m))
    A(f"""
    buffer_load_dwordx4 v[48:51], v{V_T4}, {srd(S_WS)}, s{T+3} offen
    buffer_load_dwordx4 v[52:55], v{V_T4}, {srd(S_WS)}, s{T+3} offen offset:1024
    buffer_load_dwordx4 v[56:59], v{V_T2}, {srd(S_WS)}, s{T+3} offen
    buffer_load_dwordx4 v[60:63], v{V_T2}, {srd(S_WS)}, s{T+3} offen offset:1024
    """)
    A(f"""
    v_and_b32 v{V_T0}, 31, v{V_LANE}
    v_lshrrev_b32 v{V_T1}, 5, v{V_LANE}
    v_lshlrev_b32 v{V_T1}, 3, v{V_T1}
    v_sub_u32 v{V_T1}, v{V_T0}, v{V_T1}
    v_and_b32 v{V_T2}, 1, v{V_T0}
    v_lshlrev_b32 v{V_T2}, 4, v{V_T2}
    v_mov_b32 v{V_T3}, 0x3f80
    v_lshlrev_b32 v{V_T2}, v{V_T2}, v{V_T3}
    v_ashrrev_i32 v{V_T1}, 1, v{V_T1}
    """)
    for u in range(2):
        for d in range(4):
            A(f"v_cmp_eq_u32 vcc, {8*u+d}, v{V_T1}")
            A("s_nop 1")
            A(f"v_cndmask_b32 v{112+4*u+d}, 0, v{V_T2}, vcc")
    A(f"""
    s_lshl_b32 s{T+4}, s{T+1}, 6
    v_lshl_add_u32 v{V_T0}, v{V_T0}, 1, s{T+4}
    s_lshl_b32 s{T+2}, s{T}, 14
    s_lshl_b32 s{T+3}, s{T+1}, 11
    s_add_u32 s{T+2}, s{T+2}, s{T+3}
    v_add_u32 v{V_ACA}, s{T+2}, v{V_ACA}
    s_waitcnt lgkmcnt(0)
    s_barrier
    s_cmp_lg_u32 s{S_AGAIN}, 0
    s_cbranch_scc1 K2_NEXT
    """)
    stamp(A, 7, diag)
    for g in range(4):
        for q in range(4):
            r = 4*q + g
            A(f"ds_read2st64_b32 {vr(120+2*r,2)}, v{V_ACA} offset0:{16*g+2*q} offset1:{16*g+2*q+1}")
    A(f"s_lshl_b32 s{T+5}, s{T}, 4")
    A(f"s_add_u32 s{T+5}, s{T+5}, {L_TG}")
    A(f"v_mov_b32 v{V_T2}, s{T+5}")
    A(f"ds_read_b128 {vr(V_REC,4)}, v{V_T2}")
    for u in range(4):
        A(f"v_xor_b32 v{V_XA+u}, s{T+4}, v{V_XA+u}")
    A(f"v_lshlrev_b32 v{V_T3}, 2, v{V_LANE}")
    A(f"s_add_u32 s{T+3}, s{T+3}, 32768")
    A(f"v_add_u32 v{V_T3}, s{T+3}, v{V_T3}")
    A("s_waitcnt lgkmcnt(0)")
    for g in range(4):
        A(f"v_readfirstlane_b32 s{T+6+g}, v{V_REC+g}")
    for g in range(4):
        A(f"""
K2_PL{g}:
    s_cmp_eq_u32 s{T+6+g}, 0
    s_cbranch_scc1 K2_PD{g}
    s_ff1_i32_b32 s{T+5}, s{T+6+g}
    s_bitset0_b32 s{T+6+g}, s{T+5}
    s_lshl_b32 s{T+5}, s{T+5}, 12
    v_add_u32 v{V_T2}, s{T+5}, v{V_T3}
        """)
        for q in range(4):
            A(f"ds_read2st64_b32 {vr(V_X+2*q,2)}, v{V_T2} offset0:{2*q} offset1:{2*q+1}")
        A("s_waitcnt lgkmcnt(0)")
        for q in range(4):
            r = 4*q + g
            A(f"v_add_f32 v{120+2*r}, v{120+2*r}, v{V_X+2*q}")
            A(f"v_add_f32 v{121+2*r}, v{121+2*r}, v{V_X+2*q+1}")
        A(f"s_branch K2_PL{g}")
        A.label(f"K2_PD{g}")
    A("s_waitcnt vmcnt(4)")
    for u in range(4):
        A(f"ds_read_b128 {vr(32+4*u,4)}, v{V_XA+u}")
    A("s_waitcnt vmcnt(0) lgkmcnt(0)")
    for u in range(4):
        A(mfma(vr(64,16), vr(32+4*u,4), vr(48+4*u,4), "0" if u == 0 else vr(64,16)))
    for u in range(2):
        A(mfma(vr(80,16), vr(32+4*u,4), vr(112+4*u,4), "0" if u == 0 else vr(80,16)))
    A(f"s_mov_b32 s{T}, 0x{f2u(1e-6 * 2.0**SH):08x}")
    for r in range(16):
        A(f"v_add_f32 v{121+2*r}, s{T}, v{121+2*r}")
    for r in range(16):
        A(f"v_rcp_f32 v{121+2*r}, v{121+2*r}")
    for g in range(4):
        for q in range(4):
            A(f"v_add_u32 v{96+4*g+q}, v{96+4*g+q}, v{V_T0}")
    for r in range(16):
        A(f"v_fma_f32 v{64+r}, v{120+2*r}, v{121+2*r}, v{64+r}")
    for r in range(16):
        A(f"v_max_f32 v{64+r}, 0, v{64+r}")
    for r in range(16):
        A(f"v_add_f32 v{64+r}, v{64+r}, v{80+r}")
    for r in range(0, 16, 2):
        A(f"v_cvt_pk_bf16_f32 v{32+r//2}, v{64+r}, v{65+r}")
    for r in range(16):
        q, g = r >> 2, r & 3
        op = "buffer_store_short" if r % 2 == 0 else "buffer_store_short_d16_hi"
        A(f"{op} v{32+r//2}, v{96+4*g+q}, {srd(S_OUT)}, 0 offen")
    if diag:
        stamp(A, 8, diag)
        A(f"""
        s_lshl_b32 s{T}, s2, 3
        s_add_u32 s{T}, s{T}, s{S_WAVE}
        s_lshl_b32 s{T}, s{T}, 6
        s_add_u32 s{T}, s{T}, {WS_STAMP}
        v_lshlrev_b32 v{V_T2}, 2, v{V_LANE}
        v_cmpx_gt_u32 vcc, 16, v{V_LANE}
        buffer_store_dword v160, v{V_T2}, {srd(S_WS)}, s{T} offen
        """)
    A(f"""
K2_END:
    s_endpgm
K2_NEXT:
    s_waitcnt vmcnt(0)
    s_add_u32 s{S_SUB}, s{S_SUB}, 1
    s_cmp_gt_u32 s{S_SUB}, 160
    s_cbranch_scc1 K2_END
    s_bitcmp1_b32 s{S_AGAIN}, 1
    s_cbranch_scc1 K2_AGAIN
    s_mov_b32 s{S_SUB}, 0
    s_add_u32 s{S_PASS32}, s{S_PASS32}, 32
    s_cmp_gt_u32 s{S_PASS32}, {CH}
    s_cbranch_scc1 K2_END
    s_branch K2_AGAIN
    """)

HEADER = open(f"cdna_kernels/{NAME}.s.ref").read().split("; Override")[0]

def build(diag=False):
    A = Asm()
    out = HEADER
    out += f"; @launch kernel=bin_kernel grid=({NCH+4},1,1) block=(832,1,1) lds={2048+CH*8}\n"
    out += f"; @launch kernel=mpnn_kernel grid=(256,1,1) block=(512,1,1) lds={LDS2}\n"
    out += '.amdgcn_target "amdgcn-amd-amdhsa--gfx950"\n.text\n'
    out += ".globl bin_kernel\n.p2align 8\n.type bin_kernel,@function\n"
    gen_k1(A, diag)
    out += A.text()
    A = Asm()
    out += ".globl mpnn_kernel\n.p2align 8\n.type mpnn_kernel,@function\n"
    gen_k2(A, diag)
    out += A.text()
    out += f""".section .rodata,"a"
.p2align 6
.amdhsa_kernel bin_kernel
  .amdhsa_next_free_vgpr 64
  .amdhsa_next_free_sgpr 64
  .amdhsa_accum_offset 64
  .amdhsa_group_segment_fixed_size 0
  .amdhsa_kernarg_size 96
  .amdhsa_user_sgpr_count 2
  .amdhsa_user_sgpr_kernarg_segment_ptr 1
  .amdhsa_system_sgpr_workgroup_id_x 1
  .amdhsa_float_denorm_mode_32 3
.end_amdhsa_kernel
.p2align 6
.amdhsa_kernel mpnn_kernel
  .amdhsa_next_free_vgpr {NV+NA}
  .amdhsa_next_free_sgpr 96
  .amdhsa_accum_offset {NV}
  .amdhsa_group_segment_fixed_size 0
  .amdhsa_kernarg_size 96
  .amdhsa_user_sgpr_count 2
  .amdhsa_user_sgpr_kernarg_segment_ptr 1
  .amdhsa_system_sgpr_workgroup_id_x 1
  .amdhsa_float_denorm_mode_32 3
.end_amdhsa_kernel
"""
    return out

if __name__ == "__main__":
    diag = "--diag" in sys.argv
    path = sys.argv[1] if len(sys.argv) > 1 and not sys.argv[1].startswith("--") else f"cdna_kernels/{NAME}.s"
    open(path, "w").write(build(diag))
    print("wrote", path)
```

```python
import sys, struct
sys.path.insert(0, "gen")
import hazard
VERBOSE = "--verbose" in sys.argv

NAME = "standalone__edge_featured_mpnn_gatedgcn__graph"
N, E = 25000, 800000
NCH, CH = 250, 3200
NPB = 98
WS_REC   = 0
WS_OFFS  = 0x700000
WS_WF    = 0x780000
WS_STAMP = 0x790000
WS_SIZE  = 0x800000
L_STG   = 0
L_XOWN  = 32768
L_ACC   = 65536
L_SCHED = L_ACC + 13 * 4096
SCAP    = 192
L_BEXT  = L_SCHED + SCAP * 128
L_BCON  = L_BEXT + 16 * 1024
L_CNT   = L_BCON + 1024
L_BASE  = L_CNT + 512
L_ORD   = L_BASE + 512
L_RANK  = L_ORD + 512
L_H2    = L_RANK + 512
L_LG    = L_H2 + 128
L_ENDS  = L_LG + 64
L_TG    = L_ENDS + 64
L_FLAG  = L_TG + 64
L_END   = L_FLAG + 16
assert L_END <= 163840, L_END
LDS2 = 163840
LIMQ = 14
SH = 48
LOG2E = 1.4426950408889634

def f2u(x): return struct.unpack("<I", struct.pack("<f", x))[0]

class Asm:
    def __init__(self): self.l = []
    def __call__(self, s):
        for ln in s.strip("\n").split("\n"):
            self.l.append(ln if ln.rstrip().endswith(":") and not ln.startswith(" ") else "    " + ln.strip())
    def label(self, n): self.l.append(n + ":")
    def text(self): return "\n".join(hazard.fix(self.l, VERBOSE)) + "\n"

def vr(a, n=1): return f"v{a}" if n == 1 else f"v[{a}:{a+n-1}]"
def ar(a, n=1): return f"a{a}" if n == 1 else f"a[{a}:{a+n-1}]"

def scan_rows(A, v, op="v_add_u32", upto=64):
    for sh in (1, 2, 4, 8):
        A("s_nop 1")
        A(f"{op}_dpp v{v}, v{v}, v{v} row_shr:{sh} row_mask:0xf bank_mask:0xf")
    if upto >= 32:
        A("s_nop 1")
        A(f"{op}_dpp v{v}, v{v}, v{v} row_bcast:15 row_mask:0xa bank_mask:0xf")
    if upto >= 64:
        A("s_nop 1")
        A(f"{op}_dpp v{v}, v{v}, v{v} row_bcast:31 row_mask:0xc bank_mask:0xf")

def stamp(A, idx, on, sreg=90, v=160, real=False):
    if on:
        A(f"{'s_memrealtime' if real else 's_memtime'} s[{sreg}:{sreg+1}]")
        A("s_waitcnt lgkmcnt(0)")
        A(f"v_writelane_b32 v{v}, s{sreg}, {idx}")
        if v == 160 and not real:
            A(f"s_memrealtime s[{sreg}:{sreg+1}]")
            A("s_waitcnt lgkmcnt(0)")
            A(f"v_writelane_b32 v{v}, s{sreg}, {idx+16}")

def gen_k1(A, diag):
    A.label("bin_kernel")
    A(f"""
    s_load_dwordx4 s[4:7], s[0:1], 8
    s_load_dwordx2 s[8:9], s[0:1], 24
    s_load_dwordx2 s[24:25], s[0:1], 88
    s_load_dwordx4 s[28:31], s[0:1], 32
    s_load_dwordx4 s[32:35], s[0:1], 56
    s_mov_b32 s26, {WS_SIZE}
    s_mov_b32 s27, 0x20000
    s_cmp_ge_u32 s2, {NCH}
    s_cbranch_scc1 K1_W
    """)
    if diag: A("v_mov_b32 v60, 0")
    stamp(A, 0, diag, sreg=60, v=60)
    stamp(A, 14, diag, sreg=60, v=60, real=True)
    A(f"""
    s_mov_b32 s14, {E*4}
    s_mov_b32 s15, 0x20000
    s_mov_b32 s18, {E*4}
    s_mov_b32 s19, 0x20000
    s_mov_b32 s22, {E*2}
    s_mov_b32 s23, 0x20000
    s_mul_i32 s36, s2, {CH*4}
    s_mul_i32 s37, s2, {CH*2}
    s_mul_i32 s38, s2, {CH*8}
    v_lshlrev_b32 v1, 4, v0
    v_lshlrev_b32 v2, 3, v0
    v_lshlrev_b32 v3, 2, v0
    v_mov_b32 v4, 0
    v_cmp_gt_u32 vcc, 256, v0
    s_and_saveexec_b64 s[40:41], vcc
    ds_write_b32 v3, v4
    s_mov_b64 exec, s[40:41]
    s_movk_i32 s39, {CH//4}
    v_cmp_gt_u32 s[42:43], s39, v0
    s_waitcnt lgkmcnt(0)
    s_mov_b32 s12, s8
    s_mov_b32 s13, s9
    s_mov_b32 s16, s6
    s_mov_b32 s17, s7
    s_mov_b32 s20, s4
    s_mov_b32 s21, s5
    s_mov_b64 exec, s[42:43]
    buffer_load_dwordx4 v[8:11], v1, s[12:15], s36 offen
    buffer_load_dwordx4 v[12:15], v1, s[16:19], s36 offen
    buffer_load_dwordx2 v[16:17], v2, s[20:23], s37 offen
    s_barrier
    s_mov_b32 s44, 42800
    s_movk_i32 s45, {-NPB*4 & 0xffff if False else NPB*4}
    v_mov_b32 v5, 1
    s_waitcnt vmcnt(2)
    """)
    stamp(A, 1, diag, sreg=60, v=60)
    for k in range(4):
        A(f"v_mul_u32_u24 v{20+k}, s44, v{8+k}")
    for k in range(4):
        A(f"v_lshrrev_b32 v{20+k}, 22, v{20+k}")
    for k in range(4):
        A(f"v_mul_u32_u24 v{32+k}, s45, v{20+k}")
        A(f"v_lshlrev_b32 v{20+k}, 2, v{20+k}")
        A(f"ds_add_rtn_u32 v{36+k}, v{20+k}, v5")
    for k in range(4):
        A(f"v_lshlrev_b32 v{8+k}, 2, v{8+k}")
        A(f"v_sub_u32 v{8+k}, v{8+k}, v{32+k}")
        A(f"v_add_u32 v{25+2*k}, {L_CNT}, v{8+k}")
    A("s_mov_b32 s46, 0xffff0000")
    A("s_waitcnt vmcnt(0)")
    A("v_lshlrev_b32 v18, 16, v16")
    A("v_lshlrev_b32 v19, 16, v17")
    A("v_and_b32 v16, s46, v16")
    A("v_and_b32 v17, s46, v17")
    A("v_or_b32 v24, v12, v18")
    A("v_or_b32 v26, v13, v16")
    A("v_or_b32 v28, v14, v19")
    A("v_or_b32 v30, v15, v17")
    A("""
    s_mov_b64 exec, -1
    v_and_b32 v6, 63, v0
    v_lshlrev_b32 v6, 4, v6
    s_waitcnt lgkmcnt(0)
    """)
    stamp(A, 2, diag, sreg=60, v=60)
    A("""
    s_barrier
    """)
    stamp(A, 3, diag, sreg=60, v=60)
    A("""
    ds_read_b128 v[40:43], v6
    s_waitcnt lgkmcnt(0)
    v_add_u32 v45, v40, v41
    v_add_u32 v46, v45, v42
    v_add_u32 v47, v46, v43
    v_mov_b32 v48, v47
    """)
    scan_rows(A, 48)
    A("""
    v_sub_u32 v44, v48, v47
    v_add_u32 v47, v44, v46
    v_add_u32 v46, v44, v45
    v_add_u32 v45, v44, v40
    ds_write_b128 v6, v[44:47] offset:1024
    s_mov_b64 exec, s[42:43]
    """)
    for k in range(4):
        A(f"ds_read_b32 v{32+k}, v{20+k} offset:1024")
    A(f"""
    s_mov_b64 exec, -1
    v_cmp_gt_u32 vcc, 256, v0
    s_and_saveexec_b64 s[40:41], vcc
    s_cbranch_execz K1_NOPUB
    ds_read_b32 v50, v3
    ds_read_b32 v51, v3 offset:1024
    s_and_b32 s47, s2, 31
    s_lshl_b32 s47, s47, 5
    s_lshr_b32 s48, s2, 5
    s_lshl_b32 s48, s48, 2
    s_add_u32 s47, s47, s48
    s_add_u32 s47, s47, {WS_OFFS}
    v_lshlrev_b32 v52, 10, v0
    s_waitcnt lgkmcnt(0)
    v_lshl_or_b32 v50, v50, 16, v51
    buffer_store_dword v50, v52, s[24:27], s47 offen
K1_NOPUB:
    s_mov_b64 exec, s[42:43]
    s_waitcnt lgkmcnt(0)
    """)
    for k in range(4):
        A(f"v_add_lshl_u32 v{32+k}, v{32+k}, v{36+k}, 3")
        A(f"ds_write_b64 v{32+k}, v[{24+2*k}:{25+2*k}] offset:2048")
    A(f"""
    s_waitcnt lgkmcnt(0)
    """)
    stamp(A, 4, diag, sreg=60, v=60)
    A(f"""
    s_barrier
    ds_read_b128 v[8:11], v1 offset:2048
    ds_read_b128 v[12:15], v1 offset:{2048+CH*4}
    s_add_u32 s39, s38, {CH*4}
    s_waitcnt lgkmcnt(1)
    buffer_store_dwordx4 v[8:11], v1, s[24:27], s38 offen
    s_waitcnt lgkmcnt(0)
    buffer_store_dwordx4 v[12:15], v1, s[24:27], s39 offen
    """)
    if diag:
        stamp(A, 5, diag, sreg=60, v=60)
        A("s_waitcnt vmcnt(0)")
        stamp(A, 6, diag, sreg=60, v=60)
        stamp(A, 15, diag, sreg=60, v=60, real=True)
        A(f"""
        s_mov_b64 exec, -1
        s_lshl_b32 s40, s2, 6
        s_add_u32 s40, s40, {WS_STAMP+0x50000}
        v_cmpx_gt_u32 vcc, 16, v0
        s_cbranch_execz K1_END
        buffer_store_dword v60, v3, s[24:27], s40 offen
        """)
    A(f"""
    s_endpgm
K1_W:
    s_cmp_ge_u32 s2, {NCH+4}
    s_cbranch_scc1 K1_END
    v_readfirstlane_b32 s40, v0
    s_lshr_b32 s40, s40, 6
    s_cmp_ge_u32 s40, 8
    s_cbranch_scc1 K1_END
    s_sub_u32 s41, s2, {NCH}
    s_waitcnt lgkmcnt(0)
    ; mi: 0 -> w_b (s30:31), 1 -> w_v (s34:35), 2 -> w_a (s28:29), 3 -> w_u (s32:33)
    s_cmp_eq_u32 s41, 0
    s_cselect_b32 s12, s30, s34
    s_cselect_b32 s13, s31, s35
    s_cselect_b32 s42, 0x{f2u(-LOG2E):08x}, 1.0
    s_cmp_eq_u32 s41, 2
    s_cselect_b32 s12, s28, s12
    s_cselect_b32 s13, s29, s13
    s_cmp_eq_u32 s41, 3
    s_cselect_b32 s12, s32, s12
    s_cselect_b32 s13, s33, s13
    s_mov_b32 s14, 8192
    s_mov_b32 s15, 0x20000
    s_and_b32 s43, s40, 3
    s_lshl_b32 s43, s43, 11
    s_lshr_b32 s44, s40, 2
    s_lshl_b32 s44, s44, 6
    s_add_u32 s43, s43, s44
    v_and_b32 v1, 31, v0
    v_lshlrev_b32 v1, 1, v1
    v_bfe_u32 v2, v0, 5, 1
    v_lshl_add_u32 v1, v2, 10, v1
    """)
    for t in range(8):
        A(f"buffer_load_ushort v{8+t}, v1, s[12:15], s43 offen offset:{t*128}")
    A(f"""
    s_lshl_b32 s41, s41, 13
    s_add_u32 s41, s41, {WS_WF}
    v_lshlrev_b32 v3, 4, v0
    s_waitcnt vmcnt(0)
    """)
    for t in range(8):
        A(f"v_lshlrev_b32 v{8+t}, 16, v{8+t}")
    for t in range(8):
        A(f"v_mul_f32 v{8+t}, s42, v{8+t}")
    for t in range(4):
        A(f"v_cvt_pk_bf16_f32 v{16+t}, v{8+2*t}, v{9+2*t}")
    A("""
    buffer_store_dwordx4 v[16:19], v3, s[24:27], s41 offen
K1_END:
    s_endpgm
    """)

V_TID, V_LANE = 0, 1
V_PEND = 2
V_S1, V_S2 = 3, 4
V_BX, V_B0, V_BINC = 5, 6, 7
V_AEXT = 8
V_REC = 12
V_R32 = 16
V_T0, V_T1 = 17, 18
V_CO0, V_CO1 = 19, 20
V_MHI, V_FV, V_FP = 21, 22, 23
V_XA = 24
V_ACA = 28
V_T2, V_T3, V_T4 = 29, 30, 31
V_G = [32, 48]
V_V = [64, 80]
V_M, V_S, V_Q = 96, 104, 112
V_ACC = 120
V_X = 152
NV = 164
A_WB, A_WV, A_X, A_BX = 0, 32, 64, 80
NA = 88
S_XS, S_WS, S_OUT, S_WC = 4, 8, 12, 16
S_O3, S_O2, S_O1 = 20, 21, 22
S_128 = 23
S_C = 24
S_BIN, S_WAVE, S_FIRST, S_PASS32, S_SUB, S_AGAIN = 26, 27, 28, 29, 30, 31
S_N, S_MASK, S_GN, S_GF = 32, 33, 34, 35
S_M0A, S_M0B = 36, 37
S_NB128 = 38
S_SLOW = 39
S_T = 40

def srd(b): return f"s[{b}:{b+3}]"

def mfma(d, a, b, c):
    return f"v_mfma_f32_32x32x16_bf16 {d}, {a}, {b}, {c}"

def mf_list(nt):
    G, V = vr(V_G[nt], 16), vr(V_V[nt], 16)
    L = [mfma(G, vr(V_AEXT, 4), ar(A_BX + 4*nt, 4), "0")]
    for ks in range(4):
        L.append(mfma(V, ar(A_X + 4*ks, 4), ar(A_WV + 16*nt + 4*ks, 4), "0" if ks == 0 else V))
        L.append(mfma(G, ar(A_X + 4*ks, 4), ar(A_WB + 16*nt + 4*ks, 4), G))
    return L

def trans_list(ntexp, rcp=True, exp=True):
    L = []
    if rcp:
        L += [f"v_rcp_f32 v{V_M+i}, v{V_M+i}" for i in range(8)]
    if exp:
        L += [f"v_exp_f32_e64 v{V_G[ntexp]+i}, v{V_G[ntexp]+i} clamp" for i in range(16)]
    return L

def pk_acc(nt):
    L = []
    for q in range(4):
        a = V_ACC + 16*nt + 4*q
        L.append(f"v_pk_fma_f32 {vr(a,2)}, {vr(V_Q+2*q,2)}, {vr(V_M+2*q,2)}, {vr(a,2)}")
        L.append(f"v_pk_fma_f32 {vr(a+2,2)}, {vr(V_S+2*q,2)}, {vr(V_M+2*q,2)}, {vr(a+2,2)}")
    return L

def pk_msq(nt):
    G, V = V_G[nt], V_V[nt]
    L = []
    for i in range(8):
        L.append(f"v_pk_add_f32 {vr(G+2*i,2)}, {vr(G+2*i,2)}, s[{S_C}:{S_C+1}]")
    for q in range(4):
        L.append(f"v_pk_mul_f32 {vr(V_Q+2*q,2)}, {vr(V+4*q,2)}, {vr(G+4*q+2,2)}")
    for q in range(4):
        L.append(f"v_pk_mul_f32 {vr(V_M+2*q,2)}, {vr(G+4*q,2)}, {vr(G+4*q+2,2)}")
    for q in range(4):
        L.append(f"v_pk_add_f32 {vr(V_S+2*q,2)}, {vr(G+4*q,2)}, {vr(G+4*q+2,2)}")
    for q in range(4):
        L.append(f"v_pk_fma_f32 {vr(V_Q+2*q,2)}, {vr(V+4*q+2,2)}, {vr(G+4*q,2)}, {vr(V_Q+2*q,2)}")
    return L

def emit_mf(A, mf, tr, extra, counts):
    ti = 0
    for g, m in enumerate(mf):
        A(m)
        for x in extra.get(g, []):
            A(x)
        for _ in range(counts[g]):
            A(tr[ti]); ti += 1
    assert ti == len(tr), (ti, len(tr))

def dma(m, vo):
    so = [f"s{S_O3}", f"s{S_O2}", f"s{S_O1}", "0"][m]
    off = f" offset:{1024*m}" if m else ""
    return f"buffer_load_dwordx4 v{vo}, {srd(S_XS)}, {so} offen{off} lds"

def mad_off(m):
    co = V_CO0 if m % 2 == 0 else V_CO1
    return f"v_mad_u32_u16 v{V_REC+m}, v{V_REC+m}, s{S_128}, v{co}"

def aext_ops():
    return [f"v_bfe_i32 v{V_T0}, v{V_R32}, 15, 1",
            f"v_bfi_b32 v{V_T0}, v{V_T0}, v{V_FP}, v{V_FV}",
            f"v_and_or_b32 v{V_AEXT}, v{V_R32}, v{V_MHI}, v{V_T0}"]

def flush(A, tag):
    for i in range(8):
        a = V_ACC + 4*i
        A(f"v_add_f32 v{a}, v{a}, v{a+1}")
        A(f"v_add_f32 v{a+2}, v{a+2}, v{a+3}")
    A(f"s_cmp_lg_u32 s{S_SLOW}, 0")
    A(f"s_cbranch_scc1 K2_FLS{tag}")
    for i in range(8):
        a = V_ACC + 4*i
        A(f"ds_write2st64_b32 v{V_T2}, v{a}, v{a+2} offset0:{2*i} offset1:{2*i+1}")
    A(f"s_branch K2_FLD{tag}")
    A.label(f"K2_FLS{tag}")
    for i in range(8):
        a = V_ACC + 4*i
        A(f"ds_add_f32 v{V_T2}, v{a} offset:{i*512}")
        A(f"ds_add_f32 v{V_T2}, v{a+2} offset:{i*512+256}")
    A.label(f"K2_FLD{tag}")

def zero_acc(A):
    for i in range(32):
        A(f"v_mov_b32 v{V_ACC+i}, 0")

def gen_k2(A, diag):
    T = S_T
    A.label("mpnn_kernel")
    A(f"""
    s_cmp_ge_u32 s2, 256
    s_cbranch_scc1 K2_END
    s_load_dwordx2 s[{S_XS}:{S_XS+1}], s[0:1], 0
    s_load_dwordx2 s[{S_WS}:{S_WS+1}], s[0:1], 88
    s_load_dwordx2 s[{S_OUT}:{S_OUT+1}], s[0:1], 72
    s_load_dwordx2 s[{S_WC}:{S_WC+1}], s[0:1], 48
    """)
    if diag:
        A("v_mov_b32 v160, 0")
    stamp(A, 0, diag)
    stamp(A, 14, diag, real=True)
    A(f"""
    s_mov_b32 s{S_XS+2}, {N*128+3072}
    s_mov_b32 s{S_XS+3}, 0x20000
    s_mov_b32 s{S_WS+2}, {WS_SIZE}
    s_mov_b32 s{S_WS+3}, 0x20000
    s_mov_b32 s{S_OUT+2}, {N*128}
    s_mov_b32 s{S_OUT+3}, 0x20000
    s_mov_b32 s{S_WC+2}, 128
    s_mov_b32 s{S_WC+3}, 0x20000
    s_movk_i32 s{S_O3}, 3072
    s_movk_i32 s{S_O2}, 2048
    s_movk_i32 s{S_O1}, 1024
    s_movk_i32 s{S_128}, 128
    s_mov_b32 s{S_C}, 0x{f2u(2.0**-SH):08x}
    s_mov_b32 s{S_C+1}, 0x{f2u(2.0**-SH):08x}
    s_and_b32 s{S_BIN}, s2, 7
    s_lshl_b32 s{S_BIN}, s{S_BIN}, 5
    s_lshr_b32 s{T}, s2, 3
    s_or_b32 s{S_BIN}, s{S_BIN}, s{T}
    s_mul_i32 s{S_NB128}, s{S_BIN}, {NPB*128}
    v_readfirstlane_b32 s{S_WAVE}, v0
    s_lshr_b32 s{S_WAVE}, s{S_WAVE}, 6
    s_mov_b32 s{S_FIRST}, 1
    s_mov_b32 s{S_PASS32}, 0
    s_mov_b32 s{S_SUB}, 0
    v_and_b32 v{V_LANE}, 63, v0
    v_mov_b32 v{V_PEND}, 0
    s_lshl_b32 s{S_M0A}, s{S_WAVE}, 12
    s_add_u32 s{S_M0B}, s{S_M0A}, 32768
    v_and_b32 v{V_T0}, 7, v{V_LANE}
    v_lshrrev_b32 v{V_T1}, 4, v{V_LANE}
    v_xor_b32 v{V_T0}, v{V_T0}, v{V_T1}
    v_lshlrev_b32 v{V_CO0}, 4, v{V_T0}
    v_xor_b32 v{V_CO1}, 64, v{V_CO0}
    v_lshrrev_b32 v{V_T2}, 4, v0
    v_lshlrev_b32 v{V_T2}, 5, v{V_T2}
    s_lshl_b32 s{T}, s{S_BIN}, 10
    s_add_u32 s{T}, s{T}, {WS_OFFS}
    s_waitcnt lgkmcnt(0)
    s_sub_u32 s{S_XS}, s{S_XS}, 3072
    s_subb_u32 s{S_XS+1}, s{S_XS+1}, 0
    buffer_load_dwordx4 v[32:35], v{V_T2}, {srd(S_WS)}, s{T} offen
    buffer_load_dwordx4 v[36:39], v{V_T2}, {srd(S_WS)}, s{T} offen offset:16
    v_lshrrev_b32 v{V_T3}, 3, v{V_LANE}
    v_lshlrev_b32 v{V_T3}, 7, v{V_T3}
    s_lshl_b32 s{T+1}, s{S_WAVE}, 11
    s_add_u32 m0, s{T+1}, {L_XOWN}
    s_add_u32 s{T+1}, s{T+1}, s{S_NB128}
    s_add_u32 s{T+1}, s{T+1}, 3072
    v_add_u32 v{V_T4}, v{V_T3}, v{V_CO0}
    v_add_u32 v{V_T3}, v{V_T3}, v{V_CO1}
    buffer_load_dwordx4 v{V_T4}, {srd(S_XS)}, s{T+1} offen lds
    buffer_load_dwordx4 v{V_T3}, {srd(S_XS)}, s{T+1} offen offset:1024 lds
    s_mul_i32 s{T+2}, s{S_WAVE}, 3072
    s_mov_b32 m0, s{T+2}
    s_add_u32 s{T+2}, s{T+2}, {WS_WF}
    v_lshlrev_b32 v{V_T4}, 4, v{V_LANE}
    buffer_load_dwordx4 v{V_T4}, {srd(S_WS)}, s{T+2} offen lds
    buffer_load_dwordx4 v{V_T4}, {srd(S_WS)}, s{T+2} offen offset:1024 lds
    buffer_load_dwordx4 v{V_T4}, {srd(S_WS)}, s{T+2} offen offset:2048 lds
    v_lshlrev_b32 v{V_T3}, 1, v{V_LANE}
    buffer_load_ushort v{V_X}, v{V_T3}, {srd(S_WC)}, 0 offen
    s_branch K2_INIT
K2_AGAIN:
    s_mov_b32 s{S_FIRST}, 0
    v_lshrrev_b32 v{V_T2}, 4, v0
    v_lshlrev_b32 v{V_T2}, 5, v{V_T2}
    s_lshl_b32 s{T}, s{S_BIN}, 10
    s_add_u32 s{T}, s{T}, {WS_OFFS}
    buffer_load_dwordx4 v[32:35], v{V_T2}, {srd(S_WS)}, s{T} offen
    buffer_load_dwordx4 v[36:39], v{V_T2}, {srd(S_WS)}, s{T} offen offset:16
    s_waitcnt vmcnt(0)
K2_INIT:
    v_lshlrev_b32 v{V_T2}, 2, v0
    v_add_u32 v{V_T3}, {L_CNT}, v{V_T2}
    v_add_u32 v{V_T4}, {L_H2-512}, v{V_T2}
    v_cmp_gt_u32 vcc, 128, v0
    v_cndmask_b32 v{V_T3}, v{V_T4}, v{V_T3}, vcc
    v_subrev_u32 v{V_T4}, {128+32}, v0
    v_cmp_gt_u32 vcc, 13, v{V_T4}
    v_cndmask_b32 v{V_T4}, 0, 1, vcc
    v_cmp_gt_u32 vcc, {128+84}, v0
    s_and_saveexec_b64 s[{T}:{T+1}], vcc
    ds_write_b32 v{V_T3}, v{V_T4}
    s_mov_b64 exec, s[{T}:{T+1}]
    v_mov_b32 v112, 0xffff
    v_mov_b32 v113, 0xffff
    v_mov_b32 v114, 0xffff
    v_mov_b32 v115, 0xffff
    v_lshlrev_b32 v{V_T2}, 4, v0
    v_add_u32 v{V_T2}, {L_SCHED}, v{V_T2}
    ds_write_b128 v{V_T2}, v[112:115]
    ds_write_b128 v{V_T2}, v[112:115] offset:8192
    ds_write_b128 v{V_T2}, v[112:115] offset:16384
    """)
    for i in range(16):
        A(f"v_mov_b32 v{96+i}, -1")
    A(f"""
    v_and_b32 v{V_T3}, 15, v0
    v_lshlrev_b32 v{V_T3}, 1, v{V_T3}
    v_add_u32 v{V_T3}, s{S_PASS32}, v{V_T3}
    v_lshrrev_b32 v{V_T4}, 4, v0
    v_cmp_gt_u32 vcc, {NCH-224}, v{V_T4}
    v_mul_u32_u24 v{V_T4}, {CH*8}, v{V_T4}
    v_lshl_add_u32 v{V_T4}, v{V_T3}, 3, v{V_T4}
    v_mov_b32 v{V_T2}, 0x40000000
    s_waitcnt vmcnt(6)
    v_cndmask_b32 v39, 0, v39, vcc
    """)
    stamp(A, 1, diag)
    for r in range(8):
        A(f"""
        v_lshrrev_b32 v{40+r}, 16, v{32+r}
        v_and_b32 v{32+r}, 0xffff, v{32+r}
        v_sub_u32 v{40+r}, v{40+r}, v{V_T3}
        v_lshl_add_u32 v{32+r}, v{32+r}, 3, v{V_T4}
        v_cmp_lt_i32 vcc, 0, v{40+r}
        s_mov_b32 s{T}, {r*32*CH*8}
        s_nop 0
        v_cndmask_b32 v{32+r}, v{V_T2}, v{32+r}, vcc
        buffer_load_dwordx4 v[{64+4*r}:{67+4*r}], v{32+r}, {srd(S_WS)}, s{T} offen
        """)
    A(f"""
    v_mov_b32 v113, 0
    v_mov_b32 v114, 0
    v_mov_b32 v115, 0
    s_waitcnt vmcnt(8) lgkmcnt(0)
    s_barrier
    s_cmp_eq_u32 s{S_FIRST}, 0
    s_cbranch_scc1 K2_NOW
    v_lshlrev_b32 v{V_T2}, 4, v{V_LANE}
    """)
    for i in range(16):
        A(f"ds_read_b128 {ar(4*i,4)}, v{V_T2} offset:{i*1024}")
    A(f"""
    s_and_b32 s{T}, s{S_WAVE}, 1
    s_lshl_b32 s{T}, s{T}, 12
    v_add_u32 v{V_T4}, s{T}, v{V_T2}
    """)
    for ks in range(4):
        A(f"ds_read_b128 {vr(48+4*ks,4)}, v{V_T4} offset:{16384+ks*1024}")
    A(f"""
    v_lshlrev_b32 v{V_X}, 16, v{V_X}
    v_mul_f32 v{V_X}, 0x{f2u(-LOG2E):08x}, v{V_X}
    v_mov_b32 v{V_X+1}, 0x{f2u(-float(SH)):08x}
    v_cvt_pk_bf16_f32 v112, v{V_X+1}, v{V_X}
    v_add_u32 v{V_T2}, {L_BCON}, v{V_T2}
    s_cmp_lg_u32 s{S_WAVE}, 7
    s_cbranch_scc1 K2_NOW
    ds_write_b128 v{V_T2}, v[112:115]
K2_NOW:
    """)
    A(f"v_max_i32 v{V_T2}, v40, v41")
    A(f"v_max3_i32 v{V_T2}, v{V_T2}, v42, v43")
    A(f"v_max3_i32 v{V_T2}, v{V_T2}, v44, v45")
    A(f"v_max3_i32 v{V_T2}, v{V_T2}, v46, v47")
    A(f"""
    v_mov_b32 v{V_T3}, 1
    v_mov_b32 v{V_T4}, {L_FLAG}
    v_cmpx_lt_i32 vcc, 32, v{V_T2}
    ds_write_b32 v{V_T4}, v{V_T3}
    s_mov_b64 exec, -1
    v_mov_b32 v{V_T3}, 16
    s_cmp_lg_u32 s{S_SUB}, 0
    s_cbranch_scc1 K2_P1B
    """)
    for r in range(8):
        A(f"""
        s_waitcnt vmcnt({7-r})
        v_cmpx_lt_i32 vcc, 0, v{40+r}
        ds_add_rtn_u32 v{96+2*r}, v{65+4*r}, v{V_T3}
        v_cmpx_lt_i32 vcc, 1, v{40+r}
        ds_add_rtn_u32 v{97+2*r}, v{67+4*r}, v{V_T3}
        s_mov_b64 exec, -1
        """)
    A("s_branch K2_P1D")
    A.label("K2_P1B")
    A("s_waitcnt vmcnt(0)")
    for i in range(16):
        A(f"""
        v_and_b32 v{V_T2}, {1<<i}, v{V_PEND}
        v_cmpx_ne_u32 vcc, 0, v{V_T2}
        ds_add_rtn_u32 v{96+i}, v{65+2*i}, v{V_T3}
        s_mov_b64 exec, -1
        """)
    A.label("K2_P1D")
    A("s_waitcnt lgkmcnt(0)")
    stamp(A, 2, diag)
    A(f"""
    s_barrier
    s_cmp_lg_u32 s{S_WAVE}, 0
    s_cbranch_scc1 K2_SORTED
    """)
    c0, c1, q0, q1, k0, k1, r0, r1, h, ex, a4, g0, g1, L, st, t0, t1 = range(112, 129)
    A(f"""
    v_lshlrev_b32 v{a4}, 2, v{V_LANE}
    v_add_u32 v{a4}, {L_CNT}, v{a4}
    ds_read_b32 v{c0}, v{a4}
    ds_read_b32 v{c1}, v{a4} offset:256
    s_mov_b32 s{T+2}, -1
    s_waitcnt lgkmcnt(0)
    v_add_u32 v{q0}, 48, v{c0}
    v_add_u32 v{q1}, 48, v{c1}
    v_lshrrev_b32 v{q0}, 6, v{q0}
    v_lshrrev_b32 v{q1}, 6, v{q1}
    s_cmp_eq_u32 s{S_FIRST}, 0
    s_cbranch_scc1 K2_OLDRANK
    v_add_u32 v{k0}, 1, v{q0}
    v_add_u32 v{k1}, 1, v{q1}
    v_min_u32 v{k0}, 31, v{k0}
    v_min_u32 v{k1}, 31, v{k1}
    v_cmp_gt_u32 vcc, {NPB-64}, v{V_LANE}
    v_lshlrev_b32 v{k0}, 2, v{k0}
    v_lshlrev_b32 v{k1}, 2, v{k1}
    v_cndmask_b32 v{k1}, 0, v{k1}, vcc
    v_mov_b32 v{t0}, 1
    v_add_u32 v{g0}, {L_H2}, v{k0}
    v_add_u32 v{g1}, {L_H2}, v{k1}
    ds_add_rtn_u32 v{r0}, v{g0}, v{t0}
    ds_add_rtn_u32 v{r1}, v{g1}, v{t0}
    v_and_b32 v{t1}, 31, v{V_LANE}
    v_lshlrev_b32 v{t1}, 2, v{t1}
    v_sub_u32 v{t1}, {L_H2+124}, v{t1}
    ds_read_b32 v{h}, v{t1}
    v_sub_u32 v{k0}, 124, v{k0}
    v_sub_u32 v{k1}, 124, v{k1}
    s_waitcnt lgkmcnt(0)
    v_mov_b32 v{ex}, v{h}
    """)
    scan_rows(A, ex, upto=32)
    A(f"""
    v_sub_u32 v{ex}, v{ex}, v{h}
    ds_bpermute_b32 v{t0}, v{k0}, v{ex}
    ds_bpermute_b32 v{t1}, v{k1}, v{ex}
    v_lshlrev_b32 v{g0}, 7, v{V_LANE}
    v_add_u32 v{g0}, s{S_NB128}, v{g0}
    v_add_u32 v{g1}, {64*128}, v{g0}
    v_mov_b32 v{L}, 0x40000000
    v_cndmask_b32 v{g1}, v{L}, v{g1}, vcc
    s_waitcnt lgkmcnt(0)
    v_add_u32 v{r0}, v{r0}, v{t0}
    v_add_u32 v{r1}, v{r1}, v{t1}
    ds_write_b32 v{a4}, v{r0} offset:{L_RANK-L_CNT}
    ds_write_b32 v{a4}, v{r1} offset:{L_RANK-L_CNT+256}
    v_lshlrev_b32 v{t0}, 2, v{r0}
    v_lshlrev_b32 v{t1}, 2, v{r1}
    v_add_u32 v{t0}, {L_ORD}, v{t0}
    v_add_u32 v{t1}, {L_ORD}, v{t1}
    ds_write_b32 v{t0}, v{g0}
    ds_write_b32 v{t1}, v{g1}
    s_branch K2_HAVERANK
K2_OLDRANK:
    ds_read_b32 v{r0}, v{a4} offset:{L_RANK-L_CNT}
    ds_read_b32 v{r1}, v{a4} offset:{L_RANK-L_CNT+256}
    s_waitcnt lgkmcnt(0)
K2_HAVERANK:
    v_lshrrev_b32 v{g0}, 3, v{r0}
    v_lshrrev_b32 v{g1}, 3, v{r1}
    v_lshlrev_b32 v{g0}, 2, v{g0}
    v_lshlrev_b32 v{g1}, 2, v{g1}
    v_add_u32 v{t0}, {L_LG}, v{g0}
    v_add_u32 v{t1}, {L_LG}, v{g1}
    ds_max_u32 v{t0}, v{q0}
    ds_max_u32 v{t1}, v{q1}
    v_and_b32 v{k0}, 15, v{V_LANE}
    v_lshlrev_b32 v{k0}, 2, v{k0}
    v_add_u32 v{k0}, {L_LG}, v{k0}
    ds_read_b32 v{L}, v{k0}
    s_waitcnt lgkmcnt(0)
    v_mov_b32 v{st}, v{L}
    """)
    scan_rows(A, st, upto=16)
    A(f"""
    s_nop 1
    v_readlane_b32 s{T}, v{st}, 15
    s_cmp_le_u32 s{T}, {SCAP}
    s_cbranch_scc1 K2_FITS
    v_min_u32 v{L}, {LIMQ}, v{L}
    s_mov_b32 s{T+2}, {LIMQ*64}
    v_mov_b32 v{st}, v{L}
    """)
    scan_rows(A, st, upto=16)
    A(f"""
K2_FITS:
    ds_write_b32 v{k0}, v{st} offset:{L_ENDS-L_LG}
    v_sub_u32 v{st}, v{st}, v{L}
    ds_bpermute_b32 v{t0}, v{g0}, v{st}
    ds_bpermute_b32 v{t1}, v{g1}, v{st}
    v_mov_b32 v{k0}, {L_FLAG+8}
    v_mov_b32 v{k1}, s{T+2}
    ds_write_b32 v{k0}, v{k1}
    v_and_b32 v{c0}, 3, v{r0}
    v_and_b32 v{c1}, 3, v{r1}
    v_lshlrev_b32 v{c0}, 2, v{c0}
    v_lshlrev_b32 v{c1}, 2, v{c1}
    v_and_b32 v{r0}, 4, v{r0}
    v_and_b32 v{r1}, 4, v{r1}
    v_lshl_add_u32 v{c0}, v{r0}, 4, v{c0}
    v_lshl_add_u32 v{c1}, v{r1}, 4, v{c1}
    v_add_u32 v{c0}, {L_SCHED}, v{c0}
    v_add_u32 v{c1}, {L_SCHED}, v{c1}
    s_waitcnt lgkmcnt(0)
    v_lshl_add_u32 v{c0}, v{t0}, 7, v{c0}
    v_lshl_add_u32 v{c1}, v{t1}, 7, v{c1}
    ds_write_b32 v{a4}, v{c0} offset:{L_BASE-L_CNT}
    ds_write_b32 v{a4}, v{c1} offset:{L_BASE-L_CNT+256}
    s_waitcnt lgkmcnt(0)
K2_SORTED:
    s_barrier
    """)
    stamp(A, 3, diag)
    A(f"v_mov_b32 v{V_T2}, {L_FLAG+8}")
    A(f"ds_read_b32 v{V_T4}, v{V_T2}")
    for i in range(16):
        A(f"ds_read_b32 v{120+i}, v{65+2*i} offset:{L_BASE-L_CNT}")
    A(f"""
    v_and_b32 v{V_T2}, 3, v{V_LANE}
    v_bfe_u32 v{V_T3}, v{V_LANE}, 3, 1
    v_lshl_add_u32 v{V_T2}, v{V_T3}, 2, v{V_T2}
    v_bfe_u32 v{V_T3}, v{V_LANE}, 2, 1
    v_lshl_add_u32 v{V_T2}, v{V_T3}, 3, v{V_T2}
    v_bfe_u32 v{V_T3}, v{V_LANE}, 4, 1
    v_lshl_add_u32 v{V_T2}, v{V_T3}, 4, v{V_T2}
    s_lshr_b32 s{T}, s{S_WAVE}, 1
    s_lshl_b32 s{T}, s{T}, 7
    s_add_u32 s{T}, s{T}, {L_ORD}
    v_lshl_add_u32 v{V_T2}, v{V_T2}, 2, s{T}
    ds_read_b32 v{V_X}, v{V_T2}
    """)
    for i in range(16):
        if i == 0: A("s_waitcnt lgkmcnt(13)")
        if i == 4: A("s_waitcnt lgkmcnt(9)")
        if i == 8: A("s_waitcnt lgkmcnt(5)")
        if i == 12: A("s_waitcnt lgkmcnt(1)")
        A(f"""
        v_and_b32 v{V_T2}, -64, v{96+i}
        v_add3_u32 v{120+i}, v{120+i}, v{96+i}, v{V_T2}
        v_cmpx_gt_u32 vcc, v{V_T4}, v{96+i}
        ds_write_b32 v{120+i}, v{64+2*i}
        s_mov_b64 exec, -1
        """)
    A(f"""
    v_readfirstlane_b32 s{T}, v{V_T4}
    s_cmp_eq_u32 s{T}, -1
    s_cbranch_scc1 K2_NOPEND
    v_mov_b32 v{V_PEND}, 0
    """)
    for i in range(16):
        A(f"""
        v_cmp_le_u32 vcc, v{V_T4}, v{96+i}
        v_cmp_ne_u32 s[{T}:{T+1}], -1, v{96+i}
        s_and_b64 vcc, vcc, s[{T}:{T+1}]
        v_mov_b32 v{V_T2}, {1<<i}
        v_cndmask_b32 v{V_T2}, 0, v{V_T2}, vcc
        v_or_b32 v{V_PEND}, v{V_PEND}, v{V_T2}
        """)
    A(f"""
    v_mov_b32 v{V_T3}, 1
    v_mov_b32 v{V_T2}, {L_FLAG+4}
    v_cmpx_ne_u32 vcc, 0, v{V_PEND}
    ds_write_b32 v{V_T2}, v{V_T3}
    s_mov_b64 exec, -1
K2_NOPEND:
    s_cmp_eq_u32 s{S_FIRST}, 0
    s_cbranch_scc1 K2_NOBEXT
    s_waitcnt lgkmcnt(0)
    v_subrev_u32 v{V_X}, s{S_NB128}, v{V_X}
    v_and_b32 v{V_X}, 0x3f80, v{V_X}
    v_bfe_u32 v{V_T2}, v{V_X}, 8, 3
    v_lshrrev_b32 v{V_T3}, 5, v{V_LANE}
    v_xor_b32 v{V_T2}, v{V_T2}, v{V_T3}
    v_lshl_add_u32 v{V_X}, v{V_T2}, 4, v{V_X}
    """)
    for ks in range(4):
        A(f"v_xor_b32 v{V_T2}, {32*ks}, v{V_X}")
        A(f"ds_read_b128 {vr(32+4*ks,4)}, v{V_T2} offset:{L_XOWN}")
    for ks in range(4):
        A(f"s_waitcnt lgkmcnt({3-ks})")
        A(mfma(vr(120,16), vr(32+4*ks,4), vr(48+4*ks,4), "0" if ks == 0 else vr(120,16)))
    A(f"""
    s_lshr_b32 s{T}, s{S_WAVE}, 1
    s_lshl_b32 s{T}, s{T}, 12
    s_and_b32 s{T+1}, s{S_WAVE}, 1
    s_lshl_b32 s{T+1}, s{T+1}, 9
    s_add_u32 s{T}, s{T}, s{T+1}
    s_add_u32 s{T}, s{T}, {L_BEXT}
    v_and_b32 v{V_T2}, 31, v{V_LANE}
    v_lshlrev_b32 v{V_T2}, 4, v{V_T2}
    v_lshl_add_u32 v{V_T2}, v{V_T3}, 10, v{V_T2}
    v_add_u32 v{V_T2}, s{T}, v{V_T2}
    s_mov_b32 s{T}, 0x{f2u(-LOG2E):08x}
    s_nop 7
    s_nop 3
    """)
    for i in range(16):
        A(f"v_mul_f32 v{120+i}, s{T}, v{120+i}")
    for i in range(8):
        A(f"v_cvt_pk_bf16_f32 v{136+i}, v{120+2*i}, v{121+2*i}")
    A(f"""
    ds_write_b128 v{V_T2}, v[136:139]
    ds_write_b128 v{V_T2}, v[140:143] offset:2048
K2_NOBEXT:
    s_waitcnt lgkmcnt(0)
    s_barrier
    """)
    stamp(A, 4, diag)
    A(f"""
    v_and_b32 v{V_T2}, 15, v{V_LANE}
    v_lshlrev_b32 v{V_T2}, 2, v{V_T2}
    v_add_u32 v{V_T2}, {L_ENDS}, v{V_T2}
    ds_read_b32 v{V_T3}, v{V_T2}
    v_mov_b32 v{V_T2}, {L_FLAG}
    ds_read_b64 v[{V_X}:{V_X+1}], v{V_T2}
    ; constants
    v_lshrrev_b32 v{V_T4}, 5, v{V_LANE}
    v_cmp_eq_u32 vcc, 0, v{V_T4}
    v_and_b32 v{V_T0}, 31, v{V_LANE}
    v_bfe_u32 v{V_T1}, v{V_T0}, 1, 3
    v_xor_b32 v{V_T1}, v{V_T1}, v{V_T4}
    v_lshlrev_b32 v{V_T1}, 4, v{V_T1}
    v_lshl_add_u32 v{V_T1}, v{V_T0}, 7, v{V_T1}
    v_add_u32 v{V_XA}, s{S_M0A}, v{V_T1}
    v_xor_b32 v{V_XA+1}, 32, v{V_XA}
    v_xor_b32 v{V_XA+2}, 64, v{V_XA}
    v_xor_b32 v{V_XA+3}, 96, v{V_XA}
    v_lshlrev_b32 v{V_T1}, 4, v{V_T0}
    v_add_u32 v{V_B0}, {L_BEXT}, v{V_T1}
    v_add_u32 v{V_T1}, {L_BCON}, v{V_T1}
    v_cndmask_b32 v{V_B0}, v{V_T1}, v{V_B0}, vcc
    v_mov_b32 v{V_T1}, 1024
    v_cndmask_b32 v{V_BINC}, 0, v{V_T1}, vcc
    v_lshrrev_b32 v{V_T1}, 3, v{V_T0}
    v_and_b32 v{V_X+2}, 4, v{V_T0}
    v_add_u32 v{V_T1}, v{V_T1}, v{V_X+2}
    v_and_b32 v{V_X+2}, 1, v{V_T1}
    v_lshlrev_b32 v{V_X+2}, 4, v{V_X+2}
    v_mov_b32 v{V_X+3}, 0x3f80
    v_lshlrev_b32 v{V_X+2}, v{V_X+2}, v{V_X+3}
    v_cndmask_b32 v{V_X+2}, 0, v{V_X+2}, vcc
    v_lshrrev_b32 v{V_T1}, 1, v{V_T1}
    """)
    for d in range(4):
        A(f"v_cmp_eq_u32 s[{T}:{T+1}], {d}, v{V_T1}")
        A("s_nop 1")
        A(f"v_cndmask_b32 v{V_AEXT+d}, 0, v{V_X+2}, s[{T}:{T+1}]")
    A(f"""
    v_mov_b32 v{V_T1}, 0xffff0000
    v_cndmask_b32 v{V_MHI}, v{V_T1}, 0, vcc
    v_cndmask_b32 v{V_FV}, v{V_X+3}, v{V_AEXT}, vcc
    v_mov_b32 v{V_T1}, 0xf180
    v_cndmask_b32 v{V_FP}, v{V_T1}, v{V_AEXT}, vcc
    v_lshlrev_b32 v{V_ACA}, 2, v{V_LANE}
    v_add_u32 v{V_ACA}, {L_ACC}, v{V_ACA}
    v_lshrrev_b32 v{V_S1}, 3, v{V_LANE}
    v_lshlrev_b32 v{V_S1}, 4, v{V_S1}
    v_and_b32 v{V_S2}, 7, v{V_T0}
    v_lshlrev_b32 v{V_S2}, 4, v{V_S2}
    v_lshrrev_b32 v{V_T1}, 3, v{V_T0}
    v_lshl_add_u32 v{V_S2}, v{V_T1}, 2, v{V_S2}
    s_waitcnt lgkmcnt(0)
    v_readlane_b32 s{T}, v{V_T3}, 15
    v_readfirstlane_b32 s{T+4}, v{V_X}
    v_readfirstlane_b32 s{T+5}, v{V_X+1}
    s_and_b32 s{T+1}, s{S_WAVE}, 3
    s_lshl_b32 s{T+1}, s{T+1}, 1
    s_lshr_b32 s{T+2}, s{S_WAVE}, 2
    s_add_u32 s{T+1}, s{T+1}, s{T+2}
    s_mul_i32 s{T+2}, s{T+1}, s{T}
    s_add_u32 s{T+3}, s{T+2}, s{T}
    s_lshr_b32 s{T+2}, s{T+2}, 3
    s_lshr_b32 s{T+3}, s{T+3}, 3
    s_sub_u32 s{S_N}, s{T+3}, s{T+2}
    s_max_u32 s{S_N}, s{S_N}, 1
    s_min_u32 s{S_N}, s{S_N}, 28
    s_lshl_b32 s{T+5}, s{T+5}, 1
    s_or_b32 s{S_AGAIN}, s{T+4}, s{T+5}
    s_xor_b32 s{S_SLOW}, s{S_FIRST}, 1
    s_or_b32 s{S_SLOW}, s{S_SLOW}, s{S_AGAIN}
    s_cmp_eq_u32 s{S_SLOW}, 0
    s_cbranch_scc1 K2_NOZ
    s_cmp_eq_u32 s{S_FIRST}, 0
    s_cbranch_scc1 K2_NOZ
    v_mov_b32 v112, 0
    v_mov_b32 v113, 0
    v_mov_b32 v114, 0
    v_mov_b32 v115, 0
    v_lshlrev_b32 v{V_T2}, 4, v0
    v_add_u32 v{V_T2}, {L_ACC}, v{V_T2}
    ds_write_b128 v{V_T2}, v[112:115]
    ds_write_b128 v{V_T2}, v[112:115] offset:8192
    ds_write_b128 v{V_T2}, v[112:115] offset:16384
    ds_write_b128 v{V_T2}, v[112:115] offset:24576
    ds_write_b128 v{V_T2}, v[112:115] offset:32768
    ds_write_b128 v{V_T2}, v[112:115] offset:40960
    v_cmp_gt_u32 vcc, 256, v0
    s_and_saveexec_b64 s[{T+4}:{T+5}], vcc
    ds_write_b128 v{V_T2}, v[112:115] offset:49152
    s_mov_b64 exec, s[{T+4}:{T+5}]
    s_waitcnt lgkmcnt(0)
    s_barrier
K2_NOZ:
    s_lshl_b32 s{T+3}, s{T+2}, 7
    s_add_u32 s{T+3}, s{T+3}, {L_SCHED}
    v_add_u32 v{V_S1}, s{T+3}, v{V_S1}
    v_add_u32 v{V_S2}, s{T+3}, v{V_S2}
    ds_read_b128 {vr(V_REC,4)}, v{V_S1}
    ds_read_b128 {vr(V_X+4,4)}, v{V_S1} offset:128
    ds_read_b32 v{V_R32}, v{V_S2}
    v_cmp_ge_u32 vcc, s{T+2}, v{V_T3}
    s_and_b32 s{T+4}, vcc_lo, 0xffff
    s_bcnt1_i32_b32 s{S_GN}, s{T+4}
    s_mov_b32 s{S_GF}, s{S_GN}
    v_subrev_u32 v{V_T3}, s{T+2}, v{V_T3}
    v_cmp_gt_u32 vcc, 32, v{V_T3}
    v_lshlrev_b32 v{V_T3}, v{V_T3}, 1
    s_nop 0
    v_cndmask_b32 v{V_T3}, 0, v{V_T3}, vcc
    """)
    scan_rows(A, V_T3, op="v_or_b32", upto=16)
    A(f"""
    s_nop 1
    v_readlane_b32 s{S_MASK}, v{V_T3}, 15
    s_and_b32 s{S_MASK}, s{S_MASK}, -2
    v_mad_u32_u24 v{V_BX}, v{V_BINC}, s{S_GN}, v{V_B0}
    ds_read_b128 {ar(A_BX,4)}, v{V_BX}
    ds_read_b128 {ar(A_BX+4,4)}, v{V_BX} offset:512
    s_mov_b32 m0, s{S_M0A}
    s_waitcnt lgkmcnt(4)
    """)
    for m in range(4):
        A(mad_off(m)); A(dma(m, V_REC+m))
    A(f"s_mov_b32 m0, s{S_M0B}")
    A("s_waitcnt lgkmcnt(3)")
    for m in range(4):
        A(f"v_mov_b32 v{V_REC+m}, v{V_X+4+m}")
    for m in range(4):
        A(mad_off(m)); A(dma(m, V_REC+m))
    A(f"ds_read_b128 {vr(V_REC,4)}, v{V_S1} offset:256")
    A("s_waitcnt lgkmcnt(3)")
    for x in aext_ops(): A(x)
    zero_acc(A)
    for i in range(8):
        A(f"v_mov_b32 v{V_M+i}, 1.0")
        A(f"v_mov_b32 v{V_S+i}, 0")
        A(f"v_mov_b32 v{V_Q+i}, 0")
    A(f"v_add_u32 v{V_S1}, 384, v{V_S1}")
    A(f"v_add_u32 v{V_S2}, 128, v{V_S2}")
    A("s_waitcnt vmcnt(4)")
    for ks in range(4):
        A(f"ds_read_b128 {ar(A_X+4*ks,4)}, v{V_XA+ks}")
    A(f"s_mov_b32 m0, s{S_M0A}")
    A("s_waitcnt lgkmcnt(0)")
    stamp(A, 5, diag)
    ex = {2*m+1: [mad_off(m), dma(m, V_REC+m)] for m in range(4)}
    emit_mf(A, mf_list(0), [], ex, [0]*9)
    A("s_nop 7")
    A("s_nop 7")
    CA = [3, 3, 2, 2, 3, 2, 3, 2, 4]
    CB = [3, 2, 3, 2, 3, 2, 3, 2, 4]
    for P in range(2):
        A.label(f"K2_LOOP{P}")
        xoff = 32768 if P == 0 else 0
        pre = [f"s_bfe_u32 s{T}, s{S_MASK}, 0x10001",
               f"s_add_u32 s{S_GN}, s{S_GN}, s{T}"]
        for x in pre: A(x)
        ex = {0: [f"v_mad_u32_u24 v{V_BX}, v{V_BINC}, s{S_GN}, v{V_B0}",
                  f"ds_read_b32 v{V_R32}, v{V_S2}",
                  f"ds_read_b128 {vr(V_REC,4)}, v{V_S1}"],
              1: [f"ds_read_b128 {ar(A_BX,4)}, v{V_BX}",
                  f"ds_read_b128 {ar(A_BX+4,4)}, v{V_BX} offset:512"],
              2: [f"v_add_u32 v{V_S1}, 128, v{V_S1}", f"v_add_u32 v{V_S2}, 128, v{V_S2}"],
              3: ["s_waitcnt vmcnt(4)",
                  f"ds_read_b128 {ar(A_X,4)}, v{V_XA} offset:{xoff}"],
              5: [f"ds_read_b128 {ar(A_X+4,4)}, v{V_XA+1} offset:{xoff}",
                  "s_waitcnt lgkmcnt(5)"] + aext_ops()[:2],
              7: [f"ds_read_b128 {ar(A_X+8,4)}, v{V_XA+2} offset:{xoff}", aext_ops()[2]],
              }
        emit_mf(A, mf_list(1), trans_list(0), ex, CA)
        A(f"ds_read_b128 {ar(A_X+12,4)}, v{V_XA+3} offset:{xoff}")
        for x in pk_acc(1) + pk_msq(0): A(x)
        A(f"s_bitcmp1_b32 s{S_MASK}, 0")
        A(f"s_cbranch_scc1 K2_FLUSH{P}")
        A.label(f"K2_RET{P}")
        A(f"s_lshr_b32 s{S_MASK}, s{S_MASK}, 1")
        A(f"s_sub_u32 s{S_N}, s{S_N}, 1")
        A(f"s_cmp_eq_u32 s{S_N}, 0")
        A("s_cbranch_scc1 K2_TAIL")
        A(f"s_mov_b32 m0, s{S_M0B if P == 0 else S_M0A}")
        A("s_waitcnt lgkmcnt(0)")
        ex = {2*m+1: [mad_off(m), dma(m, V_REC+m)] for m in range(4)}
        emit_mf(A, mf_list(0), trans_list(1), ex, CB)
        for x in pk_acc(0) + pk_msq(1): A(x)
    A("s_branch K2_LOOP0")
    for P in range(2):
        A.label(f"K2_FLUSH{P}")
        A(f"s_lshl_b32 s{S_T}, s{S_GF}, 12")
        A(f"v_add_u32 v{V_T2}, s{S_T}, v{V_ACA}")
        flush(A, P)
        A(f"s_add_u32 s{S_GF}, s{S_GF}, 1")
        zero_acc(A)
        A(f"s_branch K2_RET{P}")
    A.label("K2_TAIL")
    for x in trans_list(1): A(x)
    A("s_nop 0")
    for x in pk_acc(0) + pk_msq(1): A(x)
    for x in trans_list(0, exp=False): A(x)
    A("s_nop 0")
    for x in pk_acc(1): A(x)
    A(f"""
    s_lshl_b32 s{T}, s{S_GF}, 12
    s_and_b32 s{T+1}, s{S_MASK}, 1
    s_or_b32 s{T+1}, s{T+1}, s{S_SLOW}
    s_cmp_lg_u32 s{T+1}, 0
    s_cbranch_scc1 K2_TAILW
    s_sub_u32 s{T}, s{S_M0B}, {L_ACC}
    s_lshl_b32 s{T+1}, s{S_GF}, 2
    s_add_u32 s{T+1}, s{T+1}, {L_TG}
    v_mov_b32 v{V_T3}, s{T+1}
    s_lshl_b32 s{T+1}, 1, s{S_WAVE}
    v_mov_b32 v{V_T4}, s{T+1}
    v_cmpx_eq_u32 vcc, 0, v{V_LANE}
    ds_or_b32 v{V_T3}, v{V_T4}
    s_mov_b64 exec, -1
K2_TAILW:
    v_add_u32 v{V_T2}, s{T}, v{V_ACA}
    s_waitcnt vmcnt(0)
    """)
    flush(A, "T")
    stamp(A, 6, diag)
    A(f"""
    s_lshr_b32 s{T}, s{S_WAVE}, 1
    s_and_b32 s{T+1}, s{S_WAVE}, 1
    s_lshl_b32 s{T+2}, s{T}, 7
    s_add_u32 s{T+2}, s{T+2}, {L_ORD}
    v_bfe_u32 v{V_T2}, v{V_LANE}, 3, 2
    v_lshlrev_b32 v{V_T2}, 5, v{V_T2}
    v_lshrrev_b32 v{V_T3}, 5, v{V_LANE}
    v_lshlrev_b32 v{V_T3}, 4, v{V_T3}
    v_add3_u32 v{V_T2}, v{V_T2}, v{V_T3}, s{T+2}
    ds_read_b128 {vr(V_REC,4)}, v{V_T2}
    v_add_u32 v{V_T3}, s{T+2}, v{V_T3}
    """)
    for g in range(4):
        A(f"ds_read_b128 {vr(96+4*g,4)}, v{V_T3} offset:{32*g}")
    A(f"""
    s_mov_b32 m0, s{S_M0A}
    s_lshl_b32 s{T+3}, s{T+1}, 12
    s_add_u32 s{T+3}, s{T+3}, {WS_WF+3*8192}
    v_lshlrev_b32 v{V_T4}, 4, v{V_LANE}
    s_lshl_b32 s{T+4}, s{T+1}, 11
    v_add_u32 v{V_T4}, s{T+4}, v{V_T4}
    v_xor_b32 v{V_T2}, 2048, v{V_T4}
    s_waitcnt vmcnt(0) lgkmcnt(4)
    """)
    for m in range(4):
        co = V_CO0 if m % 2 == 0 else V_CO1
        A(f"v_add_u32 v{V_REC+m}, v{V_REC+m}, v{co}")
        A(dma(m, V_REC+m))
    A(f"""
    buffer_load_dwordx4 v[48:51], v{V_T4}, {srd(S_WS)}, s{T+3} offen
    buffer_load_dwordx4 v[52:55], v{V_T4}, {srd(S_WS)}, s{T+3} offen offset:1024
    buffer_load_dwordx4 v[56:59], v{V_T2}, {srd(S_WS)}, s{T+3} offen
    buffer_load_dwordx4 v[60:63], v{V_T2}, {srd(S_WS)}, s{T+3} offen offset:1024
    """)
    A(f"""
    v_and_b32 v{V_T0}, 31, v{V_LANE}
    v_lshrrev_b32 v{V_T1}, 5, v{V_LANE}
    v_lshlrev_b32 v{V_T1}, 3, v{V_T1}
    v_sub_u32 v{V_T1}, v{V_T0}, v{V_T1}
    v_and_b32 v{V_T2}, 1, v{V_T0}
    v_lshlrev_b32 v{V_T2}, 4, v{V_T2}
    v_mov_b32 v{V_T3}, 0x3f80
    v_lshlrev_b32 v{V_T2}, v{V_T2}, v{V_T3}
    v_ashrrev_i32 v{V_T1}, 1, v{V_T1}
    """)
    for u in range(2):
        for d in range(4):
            A(f"v_cmp_eq_u32 vcc, {8*u+d}, v{V_T1}")
            A("s_nop 1")
            A(f"v_cndmask_b32 v{112+4*u+d}, 0, v{V_T2}, vcc")
    A(f"""
    s_lshl_b32 s{T+4}, s{T+1}, 6
    v_lshl_add_u32 v{V_T0}, v{V_T0}, 1, s{T+4}
    s_lshl_b32 s{T+2}, s{T}, 14
    s_lshl_b32 s{T+3}, s{T+1}, 11
    s_add_u32 s{T+2}, s{T+2}, s{T+3}
    v_add_u32 v{V_ACA}, s{T+2}, v{V_ACA}
    s_waitcnt lgkmcnt(0)
    s_barrier
    s_cmp_lg_u32 s{S_AGAIN}, 0
    s_cbranch_scc1 K2_NEXT
    """)
    stamp(A, 7, diag)
    for g in range(4):
        for q in range(4):
            r = 4*q + g
            A(f"ds_read2st64_b32 {vr(120+2*r,2)}, v{V_ACA} offset0:{16*g+2*q} offset1:{16*g+2*q+1}")
    A(f"s_lshl_b32 s{T+5}, s{T}, 4")
    A(f"s_add_u32 s{T+5}, s{T+5}, {L_TG}")
    A(f"v_mov_b32 v{V_T2}, s{T+5}")
    A(f"ds_read_b128 {vr(V_REC,4)}, v{V_T2}")
    for u in range(4):
        A(f"v_xor_b32 v{V_XA+u}, s{T+4}, v{V_XA+u}")
    A(f"v_lshlrev_b32 v{V_T3}, 2, v{V_LANE}")
    A(f"s_add_u32 s{T+3}, s{T+3}, 32768")
    A(f"v_add_u32 v{V_T3}, s{T+3}, v{V_T3}")
    A("s_waitcnt lgkmcnt(0)")
    for g in range(4):
        A(f"v_readfirstlane_b32 s{T+6+g}, v{V_REC+g}")
    for g in range(4):
        A(f"""
K2_PL{g}:
    s_cmp_eq_u32 s{T+6+g}, 0
    s_cbranch_scc1 K2_PD{g}
    s_ff1_i32_b32 s{T+5}, s{T+6+g}
    s_bitset0_b32 s{T+6+g}, s{T+5}
    s_lshl_b32 s{T+5}, s{T+5}, 12
    v_add_u32 v{V_T2}, s{T+5}, v{V_T3}
        """)
        for q in range(4):
            A(f"ds_read2st64_b32 {vr(V_X+2*q,2)}, v{V_T2} offset0:{2*q} offset1:{2*q+1}")
        A("s_waitcnt lgkmcnt(0)")
        for q in range(4):
            r = 4*q + g
            A(f"v_add_f32 v{120+2*r}, v{120+2*r}, v{V_X+2*q}")
            A(f"v_add_f32 v{121+2*r}, v{121+2*r}, v{V_X+2*q+1}")
        A(f"s_branch K2_PL{g}")
        A.label(f"K2_PD{g}")
    A("s_waitcnt vmcnt(4)")
    for u in range(4):
        A(f"ds_read_b128 {vr(32+4*u,4)}, v{V_XA+u}")
    A("s_waitcnt vmcnt(0) lgkmcnt(0)")
    for u in range(4):
        A(mfma(vr(64,16), vr(32+4*u,4), vr(48+4*u,4), "0" if u == 0 else vr(64,16)))
    for u in range(2):
        A(mfma(vr(80,16), vr(32+4*u,4), vr(112+4*u,4), "0" if u == 0 else vr(80,16)))
    A(f"s_mov_b32 s{T}, 0x{f2u(1e-6 * 2.0**SH):08x}")
    for r in range(16):
        A(f"v_add_f32 v{121+2*r}, s{T}, v{121+2*r}")
    for r in range(16):
        A(f"v_rcp_f32 v{121+2*r}, v{121+2*r}")
    for g in range(4):
        for q in range(4):
            A(f"v_add_u32 v{96+4*g+q}, v{96+4*g+q}, v{V_T0}")
    for r in range(16):
        A(f"v_fma_f32 v{64+r}, v{120+2*r}, v{121+2*r}, v{64+r}")
    for r in range(16):
        A(f"v_max_f32 v{64+r}, 0, v{64+r}")
    for r in range(16):
        A(f"v_add_f32 v{64+r}, v{64+r}, v{80+r}")
    if "--perturb" in sys.argv:
        dl = float(sys.argv[sys.argv.index("--perturb")+1])
        A(f"v_mov_b32 v{V_T2}, 0x{f2u(dl):08x}")
        for r in range(16):
            q, g = r >> 2, r & 3
            A(f"v_cmp_eq_u32 vcc, 130, v{96+4*g+q}")
            A(f"v_cndmask_b32 v{V_T3}, 0, v{V_T2}, vcc")
            A(f"v_add_f32 v{64+r}, v{64+r}, v{V_T3}")
    for r in range(0, 16, 2):
        A(f"v_cvt_pk_bf16_f32 v{32+r//2}, v{64+r}, v{65+r}")
    for r in range(16):
        q, g = r >> 2, r & 3
        op = "buffer_store_short" if r % 2 == 0 else "buffer_store_short_d16_hi"
        A(f"{op} v{32+r//2}, v{96+4*g+q}, {srd(S_OUT)}, 0 offen")
    if diag:
        stamp(A, 8, diag)
        A("s_waitcnt vmcnt(0)")
        stamp(A, 9, diag)
        stamp(A, 15, diag, real=True)
        A(f"""
        s_lshl_b32 s{T}, s2, 3
        s_add_u32 s{T}, s{T}, s{S_WAVE}
        s_lshl_b32 s{T}, s{T}, 7
        s_add_u32 s{T}, s{T}, {WS_STAMP}
        v_lshlrev_b32 v{V_T2}, 2, v{V_LANE}
        v_cmpx_gt_u32 vcc, 32, v{V_LANE}
        buffer_store_dword v160, v{V_T2}, {srd(S_WS)}, s{T} offen
        """)
    A(f"""
K2_END:
    s_endpgm
K2_NEXT:
    s_waitcnt vmcnt(0)
    s_add_u32 s{S_SUB}, s{S_SUB}, 1
    s_cmp_gt_u32 s{S_SUB}, 160
    s_cbranch_scc1 K2_END
    s_bitcmp1_b32 s{S_AGAIN}, 1
    s_cbranch_scc1 K2_AGAIN
    s_mov_b32 s{S_SUB}, 0
    s_add_u32 s{S_PASS32}, s{S_PASS32}, 32
    s_cmp_gt_u32 s{S_PASS32}, {CH}
    s_cbranch_scc1 K2_END
    s_branch K2_AGAIN
    """)

HEADER = open(f"cdna_kernels/{NAME}.s.ref").read().split("; Override")[0]

def build(diag=False):
    A = Asm()
    out = HEADER
    out += f"; @launch kernel=bin_kernel grid=({NCH+4},1,1) block=(832,1,1) lds={2048+CH*8}\n"
    out += f"; @launch kernel=mpnn_kernel grid=(256,1,1) block=(512,1,1) lds={LDS2}\n"
    out += '.amdgcn_target "amdgcn-amd-amdhsa--gfx950"\n.text\n'
    out += ".globl bin_kernel\n.p2align 8\n.type bin_kernel,@function\n"
    gen_k1(A, diag)
    out += A.text()
    A = Asm()
    out += ".globl mpnn_kernel\n.p2align 8\n.type mpnn_kernel,@function\n"
    gen_k2(A, diag)
    out += A.text()
    out += f""".section .rodata,"a"
.p2align 6
.amdhsa_kernel bin_kernel
  .amdhsa_next_free_vgpr 64
  .amdhsa_next_free_sgpr 64
  .amdhsa_accum_offset 64
  .amdhsa_group_segment_fixed_size 0
  .amdhsa_kernarg_size 96
  .amdhsa_user_sgpr_count 2
  .amdhsa_user_sgpr_kernarg_segment_ptr 1
  .amdhsa_system_sgpr_workgroup_id_x 1
  .amdhsa_float_denorm_mode_32 3
.end_amdhsa_kernel
.p2align 6
.amdhsa_kernel mpnn_kernel
  .amdhsa_next_free_vgpr {NV+NA}
  .amdhsa_next_free_sgpr 96
  .amdhsa_accum_offset {NV}
  .amdhsa_group_segment_fixed_size 0
  .amdhsa_kernarg_size 96
  .amdhsa_user_sgpr_count 2
  .amdhsa_user_sgpr_kernarg_segment_ptr 1
  .amdhsa_system_sgpr_workgroup_id_x 1
  .amdhsa_float_denorm_mode_32 3
.end_amdhsa_kernel
"""
    return out

if __name__ == "__main__":
    diag = "--diag" in sys.argv
    path = sys.argv[1] if len(sys.argv) > 1 and not sys.argv[1].startswith("--") else f"cdna_kernels/{NAME}.s"
    open(path, "w").write(build(diag))
    print("wrote", path)
```

```python
import sys
sys.path.insert(0, "bench")
from runner import *
from runner import _check, _hip

def kern(name, W, D, pf, prio, check=False):
    nsteps = 416 // W
    spw = 512 // W
    s = f"""
.text
.globl {name}
.p2align 8
.type {name},@function
{name}:
    s_load_dwordx2 s[4:5], s[0:1], 0
    s_load_dwordx2 s[8:9], s[0:1], 8
    s_waitcnt lgkmcnt(0)
    s_mov_b32 s6, 0x400000
    s_mov_b32 s7, 0x20000
    s_and_b32 s3, s2, 1
    s_mul_i32 s3, s3, 3200000
    s_add_u32 s8, s8, s3
    s_addc_u32 s9, s9, 0
    s_mov_b32 s32, s8
    s_mov_b32 s33, s9
    s_mov_b32 s34, {25000*128}
    s_mov_b32 s35, 0x20000
    s_sub_u32 s8, s8, 1024
    s_subb_u32 s9, s9, 0
    s_or_b32 s9, s9, {16<<16}
    s_mov_b32 s10, {25000*8+64}
    s_mov_b32 s11, 0x800000
    s_mov_b32 s20, 1664525
    s_mov_b32 s21, 1013904223
    s_mov_b32 s22, 25000
    s_mov_b32 s28, 0x27800000
    s_mov_b32 s29, 0x27800000
"""
    if pf == 1:
        s += f"""
    s_lshr_b32 s31, s2, 3
    s_mul_i32 s31, s31, {782*128}
    v_lshlrev_b32 v1, 7, v0
    v_cmpx_gt_u32 vcc, 782, v0
    buffer_load_dword v64, v1, s[32:35], s31 offen
    s_mov_b64 exec, -1
"""
    elif pf == 2:
        s += f"""
    s_lshr_b32 s31, s2, 3
    s_mul_i32 s31, s31, {782*128}
    v_lshlrev_b32 v1, 7, v0
    v_cmpx_gt_u32 vcc, 782, v0
    buffer_load_dword v64, v1, s[32:35], s31 offen
    buffer_load_dword v65, v1, s[32:35], s31 offen offset:64
    s_mov_b64 exec, -1
"""
    elif pf:
        s += f"""
    s_lshr_b32 s31, s2, 3
    s_mul_i32 s31, s31, {pf*1024}
    v_lshlrev_b32 v1, 4, v0
"""
        for i in range(pf // W):
            s += f"    buffer_load_dwordx4 v[64:67], v1, s[32:35], s31 offen\n    s_add_u32 s31, s31, {W*1024}\n"
    per = 4096 // (64*W)
    s += f"""
    s_lshl_b32 s3, s2, 10
    v_add_u32 v5, s3, v0
    v_mul_lo_u32 v5, v5, s20
    v_add_u32 v5, s21, v5
    v_mul_u32_u24 v6, {per*16}, v0
    v_and_b32 v7, 63, v0
    v_mul_u32_u24 v7, {per}, v7
    v_cmp_le_u32 vcc, {nsteps*8}, v7
"""
    for k in range(per):
        s += f"""    v_add_u32 v10, {k}, v7
    v_and_b32 v10, 7, v10
    v_sub_u32 v10, 8, v10
"""
        for j in range(2):
            s += f"""    v_mul_lo_u32 v5, v5, s20
    v_add_u32 v5, s21, v5
    v_mul_hi_u32 v{24+j}, v5, s22
    v_add_lshl_u32 v{24+j}, v{24+j}, v10, 7
    v_mov_b32 v{26+j}, 1024
    v_cndmask_b32 v{24+j}, v{24+j}, v{26+j}, vcc
    v_and_b32 v8, 0x807f0000, v5
    v_or_b32 v{26+j}, 0x3f000000, v8
"""
        s += f"    ds_write_b128 v6, v[24:27] offset:{16*k}\n"
    s += f"""
    v_and_b32 v1, 63, v0
    v_lshrrev_b32 v2, 6, v0
    v_lshrrev_b32 v3, 3, v1
    v_lshlrev_b32 v3, 4, v3
    v_mul_u32_u24 v2, {spw*128}, v2
    v_add_u32 v3, v2, v3
"""
    for i in list(range(8, 16)): s += f"    v_mov_b32 v{i}, 0\n"
    for i in range(16, 20): s += f"    v_mov_b32 v{i}, 0x28000000\n"
    for i in range(20, 24): s += f"    v_mov_b32 v{i}, 0x3f312345\n"
    s += f"""
    s_waitcnt vmcnt(0) lgkmcnt(0)
    s_barrier
    s_memtime s[12:13]
    s_memrealtime s[24:25]
    s_waitcnt lgkmcnt(0)
"""
    R = D + 1
    def rd(st, r): return f"    ds_read_b128 v[{96+4*r}:{99+4*r}], v3 offset:{128*st}\n"
    def ld(d, r):
        b = 64 + 8*d
        return f"""    buffer_load_dwordx4 v[{b}:{b+3}], v{96+4*r}, s[8:11], 0 offen
    buffer_load_dwordx4 v[{b+4}:{b+7}], v{97+4*r}, s[8:11], 0 offen
"""
    def c_t(d, r):
        b = 64 + 8*d; e = 98 + 4*r
        o = ""
        for h in range(2):
            for k in range(2):
                sel = "op_sel_hi:[0,1,1]" if h == 0 else "op_sel:[1,0,0] op_sel_hi:[1,1,1]"
                o += f"    v_pk_fma_f32 v[{24+4*h+2*k}:{25+4*h+2*k}], v[{e}:{e+1}], v[{20+2*k}:{21+2*k}], v[{b+4*h+2*k}:{b+4*h+2*k+1}] {sel}\n"
        for i in range(4): o += f"    v_lshlrev_b64 v[{32+2*i}:{33+2*i}], 16, v[{b+2*i}:{b+2*i+1}]\n"
        return o
    def c_rest():
        o = ""
        for i in range(8): o += f"    v_exp_f32 v{24+i}, v{24+i}\n"
        for i in range(4): o += f"    v_pk_fma_f32 v[{24+2*i}:{25+2*i}], v[{24+2*i}:{25+2*i}], v[{16+2*(i%2)}:{17+2*(i%2)}], s[28:29] clamp\n"
        for k in range(2): o += f"    v_pk_mul_f32 v[{40+2*k}:{41+2*k}], v[{24+2*k}:{25+2*k}], v[{28+2*k}:{29+2*k}]\n"
        for i in range(4): o += f"    v_rcp_f32 v{40+i}, v{40+i}\n"
        for k in range(2): o += f"    v_pk_add_f32 v[{56+2*k}:{57+2*k}], v[{24+2*k}:{25+2*k}], v[{28+2*k}:{29+2*k}]\n"
        for k in range(2): o += f"    v_pk_mul_f32 v[{60+2*k}:{61+2*k}], v[{32+2*k}:{33+2*k}], v[{28+2*k}:{29+2*k}]\n"
        for k in range(2): o += f"    v_pk_fma_f32 v[{60+2*k}:{61+2*k}], v[{36+2*k}:{37+2*k}], v[{24+2*k}:{25+2*k}], v[{60+2*k}:{61+2*k}]\n"
        for k in range(2): o += f"    v_pk_fma_f32 v[{12+2*k}:{13+2*k}], v[{56+2*k}:{57+2*k}], v[{40+2*k}:{41+2*k}], v[{12+2*k}:{13+2*k}]\n"
        for k in range(2): o += f"    v_pk_fma_f32 v[{8+2*k}:{9+2*k}], v[{60+2*k}:{61+2*k}], v[{40+2*k}:{41+2*k}], v[{8+2*k}:{9+2*k}]\n"
        return o
    for d in range(R): s += rd(d, d)
    for d in range(D):
        s += f"    s_waitcnt lgkmcnt({R-1-d})\n" + ld(d, d)
    if check:
        s += f"""    s_waitcnt vmcnt(0)
    v_lshlrev_b32 v4, 5, v0
    s_lshl_b32 s3, s2, 15
    buffer_store_dwordx4 v[64:67], v4, s[4:7], s3 offen
    buffer_store_dwordx4 v[96:99], v4, s[4:7], s3 offen offset:16
    s_endpgm
"""
    ev = 1 << (nsteps - 1)
    pev = []
    if prio:
        pev = [nsteps - 1 - x for x in prio]
        for p in pev: ev |= 1 << p
        s += "    s_setprio 3\n"
    s += f"    s_mov_b32 s16, {ev & 0xffffffff}\n    s_mov_b32 s17, {ev >> 32}\n    s_mov_b32 s18, {len(pev)}\n    .p2align 6\nL_{name}:\n"
    U = D * R
    for u in range(U):
        d = u % D; r = u % R
        s += f"    s_waitcnt vmcnt({2*(D-1)}) lgkmcnt(0)\n"
        s += c_t(d, r)
        s += ld(d, (u + D) % R)
        s += rd(u + R, r)
        s += c_rest()
        s += f"    s_bitcmp1_b64 s[16:17], {u}\n    s_cbranch_scc1 EV_{name}_{u}\nRT_{name}_{u}:\n"
    s += f"""    v_add_u32 v3, {128*U}, v3
    s_lshr_b64 s[16:17], s[16:17], {U}
    s_branch L_{name}
"""
    for u in range(U):
        s += f"""EV_{name}_{u}:
    s_cmp_eq_u32 s18, 0
    s_cbranch_scc1 E_{name}
    s_sub_u32 s18, s18, 1
    s_setprio 0
    s_cmp_eq_u32 s18, 0
    s_cbranch_scc1 RT_{name}_{u}
    s_setprio 1
    s_cmp_eq_u32 s18, 1
    s_cbranch_scc1 RT_{name}_{u}
    s_setprio 2
    s_branch RT_{name}_{u}
"""
    s += f"""E_{name}:
    s_memtime s[14:15]
    s_memrealtime s[26:27]
    s_waitcnt lgkmcnt(0)
    s_sub_u32 s14, s14, s12
    s_sub_u32 s26, s26, s24
    v_mov_b32 v2, s14
    v_mov_b32 v3, s26
    v_lshrrev_b32 v4, 6, v0
    s_lshl_b32 s3, s2, 4
    v_add_u32 v4, s3, v4
    v_lshlrev_b32 v4, 3, v4
    buffer_store_dwordx2 v[2:3], v4, s[4:7], 0 offen
    s_endpgm
.section .rodata,"a"
.p2align 6
.amdhsa_kernel {name}
  .amdhsa_next_free_vgpr 128
  .amdhsa_next_free_sgpr 40
  .amdhsa_accum_offset 128
  .amdhsa_kernarg_size 16
  .amdhsa_user_sgpr_count 2
  .amdhsa_user_sgpr_kernarg_segment_ptr 1
  .amdhsa_system_sgpr_workgroup_id_x 1
.end_amdhsa_kernel
"""
    return s

names = []
asm = '.amdgcn_target "amdgcn-amd-amdhsa--gfx950"\n'
info = {}
asm += kern("chk", 16, 2, 0, None, check=True);
for (W, D, pf, prio) in [(16, 2, 0, (7,4,2)), (16, 2, 96, (7, 4, 2)), (16, 2, 1, (7, 4, 2)), (16, 2, 2, (7, 4, 2))]:
    nm = f"k_w{W}_d{D}_pf{pf}_pr{'x' if not prio else '_'.join(map(str,prio))}"
    asm += kern(nm, W, D, pf, prio)
    names.append(nm); info[nm] = W
co = assemble(asm, ["chk"] + names, 16, "mb_tdirect3")
if not os.path.exists("/dev/kfd"):
    print("assembled"); sys.exit(0)
mod = Mod(co)
buf = DeviceBuffer(4 << 20)
B = (np.random.randn(1600000) * 7).astype(np.float32).view(np.uint32) & 0xffff0000
V = ((np.random.randn(1600000) * 0.3).astype(np.float32).view(np.uint32)) >> 16
tabn = np.concatenate([np.zeros(1024, np.uint32), (B | V).astype(np.uint32)])
tab = DeviceBuffer.from_numpy(tabn)
tab2 = DeviceBuffer.from_numpy(tabn)
flush = DeviceBuffer(512 << 20)
tp = tab.ptr + 4096
launch(mod.fn("chk"), (2, 1, 1), (1024, 1, 1), [buf.ptr, tp], lds=65536+4096); sync()
o = buf.to_numpy(np.uint32, (2, 1024, 8))
T = tabn[1024:].reshape(2, 25000*8, 4)
lane = np.arange(1024) & 63
ok = all(np.array_equal(o[w, :, :4], T[w][o[w, :, 4].astype(np.int64)//16 + lane - 64]) for w in range(2))
print("ADD_TID check:", ok)
if not ok:
    print(o[0, :10]); print(T[0][o[0, :10, 4].astype(np.int64) + lane[:10] - 64]); sys.exit(1)
for nm in names:
    f = mod.fn(nm); W = info[nm]
    out = []
    for mode in ("warm", "rewritten"):
        for rep in range(3):
            if mode == "rewritten":
                memset(flush, rep, 512 << 20)
                _check(_hip.hipMemcpy(ctypes.c_void_p(tab.ptr), ctypes.c_void_p(tab2.ptr), 6400000+4096, 3))
            sync()
            launch(f, (256, 1, 1), (64*W, 1, 1), [buf.ptr, tp], lds=65536+32768)
            sync()
        o = buf.to_numpy(np.uint32, (256, 16, 2))[:, :W]
        cyc = np.median(o[:, :, 0].max(axis=1)); us = np.median(o[:, :, 1].max(axis=1)) / 100
        out.append(f"{mode}: {cyc:6.0f} cyc ({cyc/104:5.1f}/step) {us:5.2f} us (max {o[:,:,1].max()/100:5.2f})")
    print(f"{nm}: " + " | ".join(out))
```

```python
import sys, struct
sys.path.insert(0, "gen")
import hazard
VERBOSE = "--verbose" in sys.argv
def opt(name, default):
    if name in sys.argv: return type(default)(sys.argv[sys.argv.index(name)+1])
    return default

NAME = "standalone__edge_featured_mpnn_gatedgcn__graph"
N, E = 25000, 800000
NCH, CH = 250, 3200
NPB = 196
CHP = 3584
NTILE = 782
TW = 7
NTW = (2*NTILE + TW - 1)//TW
WS_REC  = 0
WS_LOC  = 0x380000
WS_OFFS = 0x470000
WS_WF   = 0x490000
WS_STAMP = 0x4A0000
WS_TAB  = 0x600000
HS      = 0x320000
PADROW  = 25088
WS_SIZE = WS_TAB + 2*HS
assert 250*CHP*4 <= WS_LOC and WS_LOC + 250*CHP <= WS_OFFS
L_CNT, L_H2, L_LG, L_FLAG, L_ORD, L_BL = 0, 1024, 1280, 1408, 1536, 2560
L_AU   = 3072
AUS    = 272
L_SIDE = L_AU + 200*AUS
L_XST  = L_SIDE
L_WST  = L_SIDE + 25600
L_LIST = L_SIDE + 33792
LS     = 296
CAP    = 74
LDS2   = L_LIST + 200*LS
BLCAP  = 128
SH = 48
LOG2E = 1.4426950408889634
D = opt("--depth", 2)
R = D + 1
U = D * R

def f2u(x): return struct.unpack("<I", struct.pack("<f", x))[0]

class Asm:
    def __init__(self): self.l = []
    def __call__(self, s):
        for ln in s.strip("\n").split("\n"):
            t = ln.strip()
            if not t: continue
            self.l.append(t if t.endswith(":") else "    " + t)
    def label(self, n): self.l.append(n + ":")
    def text(self): return "\n".join(hazard.fix(self.l, VERBOSE)) + "\n"

def vr(a, n=1): return f"v{a}" if n == 1 else f"v[{a}:{a+n-1}]"
def sr(a, n=1): return f"s{a}" if n == 1 else f"s[{a}:{a+n-1}]"
def srd(b): return f"s[{b}:{b+3}]"
def mfma(d, a, b, c): return f"v_mfma_f32_32x32x16_bf16 {d}, {a}, {b}, {c}"

def scan(A, v, op="v_add_u32", upto=64):
    for sh in (1, 2, 4, 8):
        A(f"{op}_dpp v{v}, v{v}, v{v} row_shr:{sh} row_mask:0xf bank_mask:0xf")
    if upto >= 32:
        A(f"{op}_dpp v{v}, v{v}, v{v} row_bcast:15 row_mask:0xa bank_mask:0xf")
    if upto >= 64:
        A(f"{op}_dpp v{v}, v{v}, v{v} row_bcast:31 row_mask:0xc bank_mask:0xf")

def stamp(A, idx, on, sreg, v):
    if on:
        A(f"s_memtime s[{sreg}:{sreg+1}]")
        A(f"s_memrealtime s[{sreg+2}:{sreg+3}]")
        A("s_waitcnt lgkmcnt(0)")
        A(f"v_writelane_b32 v{v}, s{sreg}, {idx}")
        A(f"v_writelane_b32 v{v}, s{sreg+2}, {idx+16}")

K1_HIST, K1_OFF, K1_LOC, K1_REC = 0, 512, 1024, 1024 + CHP
LDS1 = max(K1_REC + CHP*4, 16384)

def gen_k1(A, diag):
    st = lambda i: stamp(A, i, diag, 60, 90)
    A.label("bin_kernel")
    A(f"""
    s_load_dwordx4 s[4:7], s[0:1], 8
    s_load_dwordx2 s[8:9], s[0:1], 24
    s_load_dwordx2 s[24:25], s[0:1], 88
    s_mov_b32 s26, {WS_SIZE}
    s_mov_b32 s27, 0x20000
    s_cmp_ge_u32 s2, {NCH}
    s_cbranch_scc1 K1_T
    """)
    if diag: A("v_mov_b32 v90, 0")
    st(0)
    A(f"""
    s_mov_b32 s14, {E*4}
    s_mov_b32 s15, 0x20000
    s_mov_b32 s18, {E*4}
    s_mov_b32 s19, 0x20000
    s_mov_b32 s22, {E*2}
    s_mov_b32 s23, 0x20000
    s_mul_i32 s36, s2, {CH*4}
    s_mul_i32 s37, s2, {CH*2}
    s_add_u32 s38, s36, {CH*2}
    s_add_u32 s39, s37, {CH}
    v_lshlrev_b32 v1, 4, v0
    v_lshlrev_b32 v2, 3, v0
    v_lshlrev_b32 v3, 2, v0
    s_movk_i32 s40, {CH//8}
    v_cmp_gt_u32 s[42:43], s40, v0
    s_waitcnt lgkmcnt(0)
    s_mov_b32 s12, s8
    s_mov_b32 s13, s9
    s_mov_b32 s16, s6
    s_mov_b32 s17, s7
    s_mov_b32 s20, s4
    s_mov_b32 s21, s5
    s_mov_b64 exec, s[42:43]
    buffer_load_dwordx4 v[8:11], v1, s[12:15], s36 offen
    buffer_load_dwordx4 v[12:15], v1, s[12:15], s38 offen
    buffer_load_dwordx4 v[16:19], v1, s[16:19], s36 offen
    buffer_load_dwordx4 v[20:23], v1, s[16:19], s38 offen
    buffer_load_dwordx2 v[24:25], v2, s[20:23], s37 offen
    buffer_load_dwordx2 v[26:27], v2, s[20:23], s39 offen
    s_mov_b64 exec, -1
    v_mov_b32 v4, -1
    v_mov_b32 v5, -1
    ds_write_b64 v2, v[4:5] offset:{K1_LOC}
    v_mov_b32 v6, 0
    v_cmp_gt_u32 vcc, 128, v0
    s_and_saveexec_b64 s[40:41], vcc
    ds_write_b32 v3, v6
    s_mov_b64 exec, s[42:43]
    s_mov_b32 s44, 42800
    s_movk_i32 s45, {NPB}
    v_mov_b32 v5, 1
    s_waitcnt lgkmcnt(0)
    s_barrier
    """)
    for hlf in range(2):
        A(f"s_waitcnt vmcnt({5-hlf})")
        if hlf == 0: st(1)
        ks = range(4*hlf, 4*hlf+4)
        for k in ks: A(f"v_mul_u32_u24 v{28+k}, s44, v{8+k}")
        for k in ks: A(f"v_lshrrev_b32 v{28+k}, 23, v{28+k}")
        for k in ks:
            A(f"v_mul_u32_u24 v{44+k}, s45, v{28+k}")
            A(f"v_lshlrev_b32 v{28+k}, 2, v{28+k}")
            A(f"ds_add_rtn_u32 v{36+k}, v{28+k}, v5")
        for k in ks: A(f"v_sub_u32 v{8+k}, v{8+k}, v{44+k}")
    A(f"""
    s_mov_b32 s46, 0x05040100
    s_mov_b32 s47, 0x07060100
    s_waitcnt vmcnt(0)
    """)
    for k in range(8):
        A(f"v_perm_b32 v{16+k}, v{24+k//2}, v{16+k}, s{46 + (k&1)}")
    A("""
    s_mov_b64 exec, -1
    v_and_b32 v6, 63, v0
    v_lshlrev_b32 v6, 3, v6
    s_waitcnt lgkmcnt(0)
    """)
    st(2)
    A("s_barrier")
    st(3)
    A("""
    ds_read_b64 v[52:53], v6
    s_waitcnt lgkmcnt(0)
    v_add_u32 v52, 3, v52
    v_add_u32 v53, 3, v53
    v_and_b32 v52, -4, v52
    v_and_b32 v53, -4, v53
    v_add_u32 v54, v52, v53
    v_mov_b32 v55, v54
    """)
    scan(A, 55)
    A(f"""
    v_sub_u32 v54, v55, v54
    v_add_u32 v55, v54, v52
    ds_write_b64 v6, v[54:55] offset:{K1_OFF}
    s_mov_b64 exec, s[42:43]
    """)
    for k in range(8):
        A(f"ds_read_b32 v{44+k}, v{28+k} offset:{K1_OFF}")
    A(f"""
    s_mov_b64 exec, -1
    v_readfirstlane_b32 s48, v0
    s_cmp_ge_u32 s48, 128
    s_cbranch_scc1 K1_NOPUB
    v_lshlrev_b32 v52, 14, v52
    v_lshlrev_b32 v53, 14, v53
    v_lshrrev_b32 v54, 2, v54
    v_lshrrev_b32 v55, 2, v55
    v_or_b32 v52, v52, v54
    v_or_b32 v53, v53, v55
    v_cmp_gt_u32 vcc, 64, v0
    s_lshl_b32 s48, s48, 4
    s_and_b32 s49, s2, 127
    s_lshl_b32 s49, s49, 3
    s_lshr_b32 s50, s2, 7
    s_lshl_b32 s50, s50, 2
    s_add_u32 s49, s49, s50
    s_add_u32 s49, s49, s48
    s_add_u32 s49, s49, {WS_OFFS}
    v_cndmask_b32 v52, v53, v52, vcc
    v_lshlrev_b32 v56, 8, v6
    buffer_store_dword v52, v56, s[24:27], s49 offen
K1_NOPUB:
    s_mov_b64 exec, s[42:43]
    """)
    for k in range(8):
        if k % 4 == 0: A(f"s_waitcnt lgkmcnt({4 if k == 0 else 0})")
        A(f"v_add_u32 v{44+k}, v{44+k}, v{36+k}")
        A(f"v_lshlrev_b32 v{36+k}, 2, v{44+k}")
        A(f"ds_write_b8 v{44+k}, v{8+k} offset:{K1_LOC}")
        A(f"ds_write_b32 v{36+k}, v{16+k} offset:{K1_REC}")
    A(f"""
    s_mov_b64 exec, -1
    s_mul_i32 s38, s2, {CHP*4}
    s_add_u32 s39, s38, {448*16}
    s_mul_i32 s40, s2, {CHP}
    s_add_u32 s40, s40, {WS_LOC}
    s_waitcnt lgkmcnt(0)
    """)
    st(4)
    A(f"""
    s_barrier
    ds_read_b128 v[8:11], v1 offset:{K1_REC}
    ds_read_b128 v[12:15], v1 offset:{K1_REC+448*16}
    ds_read_b64 v[16:17], v2 offset:{K1_LOC}
    s_waitcnt lgkmcnt(2)
    buffer_store_dwordx4 v[8:11], v1, s[24:27], s38 offen
    s_waitcnt lgkmcnt(1)
    buffer_store_dwordx4 v[12:15], v1, s[24:27], s39 offen
    s_waitcnt lgkmcnt(0)
    buffer_store_dwordx2 v[16:17], v2, s[24:27], s40 offen
    """)
    def k1_dump():
        if diag:
            st(5)
            A("s_waitcnt vmcnt(0)")
            st(6)
            A(f"""
            s_lshl_b32 s40, s2, 7
            s_add_u32 s40, s40, {WS_STAMP+0x80000}
            v_lshlrev_b32 v3, 2, v0
            v_cmpx_gt_u32 vcc, 32, v0
            s_cbranch_execz K1_END
            buffer_store_dword v90, v3, s[24:27], s40 offen
            """)
    k1_dump()
    A(f"""
    s_endpgm
K1_T:
    s_load_dwordx2 s[12:13], s[0:1], 0
    s_load_dwordx2 s[16:17], s[0:1], 40
    s_load_dwordx2 s[20:21], s[0:1], 64
    s_load_dwordx2 s[28:29], s[0:1], 32
    s_load_dwordx2 s[30:31], s[0:1], 56
    s_mov_b32 s14, {N*128}
    s_mov_b32 s15, 0x20000
    s_mov_b32 s18, 8192
    s_mov_b32 s19, 0x20000
    s_mov_b32 s22, 8192
    s_mov_b32 s23, 0x20000
    v_readfirstlane_b32 s40, v0
    s_lshr_b32 s40, s40, 6
    v_and_b32 v1, 63, v0
    s_cmp_ge_u32 s2, {NCH+NTW}
    s_cbranch_scc1 K1_W
    """)
    if diag: A("v_mov_b32 v90, 0")
    st(0)
    A(f"""
    s_sub_u32 s41, s2, {NCH}
    s_mul_i32 s41, s41, {TW}
    s_add_u32 s41, s41, s40
    s_lshr_b32 s42, s41, 1
    s_and_b32 s43, s41, 1
    s_lshl_b32 s42, s42, 12
    v_and_b32 v2, 31, v1
    v_lshrrev_b32 v3, 5, v1
    v_lshlrev_b32 v4, 7, v2
    v_lshl_add_u32 v4, v3, 4, v4
    v_lshlrev_b32 v5, 4, v1
    s_lshl_b32 s44, s40, 10
    s_mov_b32 m0, s44
    s_waitcnt lgkmcnt(0)
    buffer_load_dwordx4 v5, s[16:19], s44 offen lds
    s_add_u32 m0, s44, 8192
    s_cmp_lg_u32 s40, 0
    buffer_load_dwordx4 v5, s[20:23], s44 offen lds
    s_cbranch_scc1 K1_T1
    s_movk_i32 s45, 7168
    s_mov_b32 m0, s45
    s_nop 0
    buffer_load_dwordx4 v5, s[16:19], s45 offen lds
    s_add_u32 m0, s45, 8192
    s_nop 0
    buffer_load_dwordx4 v5, s[20:23], s45 offen lds
K1_T1:
    """)
    for ks in range(4):
        A(f"buffer_load_dwordx4 {vr(8+4*ks,4)}, v4, s[12:15], s42 offen offset:{32*ks}")
    A(f"""
    v_bfe_u32 v6, v1, 2, 2
    v_lshl_add_u32 v6, v3, 3, v6
    v_lshlrev_b32 v6, 7, v6
    v_bfe_u32 v7, v1, 4, 1
    v_lshl_add_u32 v6, v7, 5, v6
    v_and_b32 v7, 3, v1
    v_lshl_add_u32 v6, v7, 3, v6
    s_lshl_b32 s45, s43, 6
    v_add_u32 v6, s45, v6
    v_and_b32 v7, 1, v1
    v_xor_b32 v7, 1, v7
    v_lshlrev_b32 v7, 15, v7
    v_lshlrev_b32 v4, 9, v3
    v_lshl_add_u32 v4, v2, 2, v4
    s_mul_i32 s45, s43, {HS}
    s_add_u32 s45, s45, s42
    s_add_u32 s45, s45, {WS_TAB}
    s_mov_b32 s46, 0x{f2u(-LOG2E):08x}
    s_mov_b32 s47, 0x07060302
    s_waitcnt vmcnt(4)
    s_barrier
    """)
    st(1)
    for ks in range(4):
        for mat in range(2):
            for tt in range(2):
                A(f"ds_read_b64_tr_b16 {vr(24+8*ks+4*mat+2*tt,2)}, v6 offset:{mat*8192+(16*ks+4*tt)*128}")
    A(f"""
    s_cmp_ge_u32 s41, {2*NTILE}
    s_cbranch_scc1 K1_END
    s_waitcnt vmcnt(0)
    """)
    for ks in range(4):
        A(f"s_waitcnt lgkmcnt({12-4*ks})")
        A(mfma(vr(56,16), vr(8+4*ks,4), vr(24+8*ks,4), "0" if ks == 0 else vr(56,16)))
        A(mfma(vr(72,16), vr(8+4*ks,4), vr(28+8*ks,4), "0" if ks == 0 else vr(72,16)))
    st(2)
    for r in range(16):
        A(f"v_mul_f32 v{56+r}, s46, v{56+r}")
    for r in range(16):
        A(f"v_add_u32 v{72+r}, v7, v{72+r}")
        A(f"v_perm_b32 v{56+r}, v{56+r}, v{72+r}, s47")
        A(f"buffer_store_dword v{56+r}, v4, s[24:27], s45 offen offset:{(8*(r>>2)+(r&3))*128}")
    k1_dump()
    A(f"""
    s_endpgm
K1_W:
    s_sub_u32 s41, s2, {NCH+NTW}
    s_mul_i32 s41, s41, {TW}
    s_add_u32 s41, s41, s40
    s_cmp_gt_u32 s41, 16
    s_cbranch_scc1 K1_END
    s_waitcnt lgkmcnt(0)
    s_cmp_eq_u32 s41, 16
    s_cbranch_scc1 K1_PAD
    s_cmp_lt_u32 s41, 8
    s_cselect_b32 s16, s28, s30
    s_cselect_b32 s17, s29, s31
    s_bfe_u32 s42, s41, 0x10002
    s_and_b32 s43, s41, 3
    s_lshl_b32 s44, s42, 1
    s_xor_b32 s43, s43, s44
    s_lshl_b32 s43, s43, 11
    s_lshl_b32 s42, s42, 6
    s_add_u32 s43, s43, s42
    v_and_b32 v2, 19, v1
    v_bfe_u32 v3, v1, 2, 1
    v_lshl_add_u32 v2, v3, 3, v2
    v_bfe_u32 v3, v1, 3, 1
    v_lshl_add_u32 v2, v3, 2, v2
    v_lshlrev_b32 v2, 1, v2
    v_lshrrev_b32 v3, 5, v1
    v_lshl_add_u32 v2, v3, 10, v2
    """)
    for t in range(8):
        A(f"buffer_load_ushort v{16+t}, v2, s[16:19], s43 offen offset:{t*128}")
    A(f"""
    s_lshl_b32 s41, s41, 10
    s_add_u32 s41, s41, {WS_WF}
    v_lshlrev_b32 v3, 4, v1
    s_waitcnt vmcnt(0)
    v_lshl_or_b32 v8, v17, 16, v16
    v_lshl_or_b32 v9, v19, 16, v18
    v_lshl_or_b32 v10, v21, 16, v20
    v_lshl_or_b32 v11, v23, 16, v22
    buffer_store_dwordx4 v[8:11], v3, s[24:27], s41 offen
    s_endpgm
K1_PAD:
    v_and_b32 v2, 31, v1
    v_lshlrev_b32 v2, 2, v2
    v_lshrrev_b32 v3, 5, v1
    s_mov_b32 s42, {HS}
    v_mad_u32_u24 v2, v3, s42, v2
    v_mov_b32 v4, 0x7f000000
    s_mov_b32 s42, {WS_TAB + PADROW*128}
    buffer_store_dword v4, v2, s[24:27], s42 offen
K1_END:
    s_endpgm
    """)

V_LANE, V_P, V_NB, V_OA = 1, 2, 3, 4
V_AUC, V_OUTC = 5, 6
V_LC = 7
V_NUM, V_DEN = 8, 12
V_EA, V_WC = 16, 20
V_T, V_V, V_M = 24, 32, 40
V_I0, V_I1 = 44, 46
V_S, V_Q = 48, 52
V_UX = 56
V_LN = 60
V_HL = 61
V_X0, V_X1 = 62, 63
V_DAT = 64
V_E = 96
V_HD = 104
V_HUX = 112
V_AN = 116
V_STAMP = 127
S_WS, S_TAB, S_OUT, S_X, S_WCD = 4, 8, 12, 16, 20
S_C = 24
S_BIN, S_HALF, S_WAVE, S_WP = 26, 27, 28, 29
S_EV, S_EVC, S_FL, S_FF = 30, 32, 34, 36
S_N1, S_GC, S_GF, S_HEAD, S_U, S_TT, S_GS = 38, 39, 40, 41, 42, 43, 44
S_RET, S_RET2 = 46, 48
S_EPS = 50
S_MSK = 52
S_T = 54

def ld_rows(d):
    b = V_DAT + 8*d
    return [f"buffer_load_dwordx4 {vr(b,4)}, {vr(V_I0,2)}, {srd(S_TAB)}, 0 idxen offen",
            f"buffer_load_dwordx4 {vr(b+4,4)}, {vr(V_I1,2)}, {srd(S_TAB)}, 0 idxen offen"]
def rd_rec(off, r):
    return [f"ds_read_u16 v{V_I0}, v{V_P} offset:{off}",
            f"ds_read_u16 v{V_I1}, v{V_P} offset:{off+4}",
            f"ds_read_u16_d16_hi v{V_E+2*r}, v{V_P} offset:{off+2}",
            f"ds_read_u16_d16_hi v{V_E+2*r+1}, v{V_P} offset:{off+6}"]
def c_head(d, r):
    b = V_DAT + 8*d; e = V_E + 2*r
    o = []
    for h in range(2):
        for k in range(2):
            sel = "op_sel_hi:[0,1,1]" if h == 0 else "op_sel:[1,0,0] op_sel_hi:[1,1,1]"
            o.append(f"v_pk_fma_f32 {vr(V_T+4*h+2*k,2)}, {vr(e,2)}, {vr(V_WC+2*k,2)}, {vr(b+4*h+2*k,2)} {sel}")
    for i in range(4): o.append(f"v_lshlrev_b64 {vr(V_V+2*i,2)}, 16, {vr(b+2*i,2)}")
    return o
def c_rest():
    o = []
    T, V, M, S, Q = V_T, V_V, V_M, V_S, V_Q
    for i in range(8): o.append(f"v_exp_f32 v{T+i}, v{T+i}")
    for i in range(4): o.append(f"v_pk_fma_f32 {vr(T+2*i,2)}, {vr(T+2*i,2)}, {vr(V_EA+2*(i%2),2)}, {sr(S_C,2)} clamp")
    for k in range(2): o.append(f"v_pk_mul_f32 {vr(M+2*k,2)}, {vr(T+2*k,2)}, {vr(T+4+2*k,2)}")
    for i in range(4): o.append(f"v_rcp_f32 v{M+i}, v{M+i}")
    for k in range(2): o.append(f"v_pk_add_f32 {vr(S+2*k,2)}, {vr(T+2*k,2)}, {vr(T+4+2*k,2)}")
    for k in range(2): o.append(f"v_pk_mul_f32 {vr(Q+2*k,2)}, {vr(V+2*k,2)}, {vr(T+4+2*k,2)}")
    for k in range(2): o.append(f"v_pk_fma_f32 {vr(Q+2*k,2)}, {vr(V+4+2*k,2)}, {vr(T+2*k,2)}, {vr(Q+2*k,2)}")
    for k in range(2): o.append(f"v_pk_fma_f32 {vr(V_DEN+2*k,2)}, {vr(S+2*k,2)}, {vr(M+2*k,2)}, {vr(V_DEN+2*k,2)}")
    for k in range(2): o.append(f"v_pk_fma_f32 {vr(V_NUM+2*k,2)}, {vr(Q+2*k,2)}, {vr(M+2*k,2)}, {vr(V_NUM+2*k,2)}")
    return o

def finalize(A, num, den, ux, loc):
    T, V = V_T, V_V
    for k in range(2): A(f"v_pk_add_f32 {vr(den+2*k,2)}, {vr(den+2*k,2)}, {sr(S_EPS,2)}")
    for i in range(4): A(f"v_rcp_f32 v{den+i}, v{den+i}")
    for i in range(4): A(f"v_and_b32 v{T+i}, s{S_MSK}, v{ux+i}")
    for i in range(4): A(f"v_lshlrev_b32 v{V+i}, 16, v{ux+i}")
    for k in range(2): A(f"v_pk_fma_f32 {vr(T+2*k,2)}, {vr(num+2*k,2)}, {vr(den+2*k,2)}, {vr(T+2*k,2)}")
    A(f"v_lshl_add_u32 v{T+4}, v{loc}, 7, v{V_OUTC}")
    A(f"v_cmp_gt_u32 vcc, {NPB}, v{loc}")
    for i in range(4): A(f"v_max_f32 v{T+i}, 0, v{T+i}")
    for k in range(2): A(f"v_pk_add_f32 {vr(T+2*k,2)}, {vr(T+2*k,2)}, {vr(V+2*k,2)}")
    A(f"v_cndmask_b32 v{T+4}, -1, v{T+4}, vcc")
    A(f"v_cvt_pk_bf16_f32 v{T+6}, v{T}, v{T+1}")
    A(f"v_cvt_pk_bf16_f32 v{T+7}, v{T+2}, v{T+3}")
    A(f"buffer_store_dwordx2 {vr(T+6,2)}, v{T+4}, {srd(S_OUT)}, 0 offen")

def gen_k2(A, diag):
    T = S_T
    st = lambda i: stamp(A, i, diag, 90, V_STAMP)
    PFLATE = "--pfearly" not in sys.argv
    A.label("mpnn_kernel")
    A(f"""
    s_cmp_ge_u32 s2, 256
    s_cbranch_scc1 K2_END
    s_load_dwordx2 {sr(S_WS,2)}, s[0:1], 88
    s_load_dwordx2 {sr(S_X,2)}, s[0:1], 0
    s_load_dwordx2 {sr(S_OUT,2)}, s[0:1], 72
    s_load_dwordx2 {sr(S_WCD,2)}, s[0:1], 48
    """)
    if diag: A(f"v_mov_b32 v{V_STAMP}, 0")
    st(0)
    A(f"""
    s_mov_b32 s{S_WS+2}, {WS_SIZE}
    s_mov_b32 s{S_WS+3}, 0x20000
    s_mov_b32 s{S_X+2}, {N*128}
    s_mov_b32 s{S_X+3}, 0x20000
    s_mov_b32 s{S_OUT+2}, {N*128}
    s_mov_b32 s{S_OUT+3}, 0x20000
    s_mov_b32 s{S_WCD+2}, 128
    s_mov_b32 s{S_WCD+3}, 0x20000
    s_mov_b32 s{S_TAB+2}, {PADROW+1}
    s_mov_b32 s{S_TAB+3}, 0x20000
    s_and_b32 s{S_HALF}, s2, 1
    s_bfe_u32 s{T}, s2, 0x20001
    s_lshr_b32 s{T+1}, s2, 3
    s_lshl_b32 s{S_BIN}, s{T}, 5
    s_add_u32 s{S_BIN}, s{S_BIN}, s{T+1}
    v_readfirstlane_b32 s{S_WAVE}, v0
    s_lshr_b32 s{S_WAVE}, s{S_WAVE}, 6
    v_and_b32 v{V_LANE}, 63, v0
    v_and_b32 v24, -8, v0
    s_lshl_b32 s{T+2}, s{S_BIN}, 10
    s_add_u32 s{T+2}, s{T+2}, {WS_OFFS}
    v_lshrrev_b32 v25, 5, v0
    v_mul_u32_u24 v25, {CHP*4}, v25
    v_and_b32 v26, 31, v0
    v_lshl_add_u32 v25, v26, 7, v25
    s_mul_i32 s{T+3}, s{T}, {26*128+64}
    s_and_b32 s{T+3}, s{T+3}, -128
    s_sub_u32 s{T+3}, s{T+3}, 256
    s_max_i32 s{T+3}, s{T+3}, 0
    s_mul_i32 s{T+4}, s{T+1}, {8*CHP*4}
    s_add_u32 s{T+3}, s{T+3}, s{T+4}
    v_lshrrev_b32 v27, 3, v{V_LANE}
    v_mul_u32_u24 v27, {CHP}, v27
    v_and_b32 v26, 7, v0
    v_lshl_add_u32 v27, v26, 7, v27
    s_mul_i32 s{T+5}, s{T}, 851
    s_sub_u32 s{T+5}, s{T+5}, 64
    s_max_i32 s{T+5}, s{T+5}, 0
    s_mul_i32 s{T+6}, s{T+1}, {8*CHP}
    s_add_u32 s{T+5}, s{T+5}, s{T+6}
    s_add_u32 s{T+5}, s{T+5}, {WS_LOC}
    s_cmp_eq_u32 s{S_WAVE}, 4
    s_cselect_b32 s{T+3}, s{T+5}, s{T+3}
    s_cselect_b64 vcc, -1, 0
    v_cndmask_b32 v25, v25, v27, vcc
    s_waitcnt lgkmcnt(0)
    buffer_load_dwordx2 v[32:33], v24, {srd(S_WS)}, s{T+2} offen
    s_cmp_gt_u32 s{S_WAVE}, 4
    s_cbranch_scc1 K2_NOPF
    buffer_load_ubyte v126, v25, {srd(S_WS)}, s{T+3} offen
    s_branch K2_PFD
K2_NOPF:
    s_sub_u32 s{T+7}, s{S_WAVE}, 5
    s_mul_i32 s{T+7}, s{T+7}, 3
    v_and_b32 v26, 7, v{V_LANE}
    v_lshrrev_b32 v27, 4, v{V_LANE}
    v_xor_b32 v26, v26, v27
    v_lshlrev_b32 v26, 4, v26
    v_lshrrev_b32 v27, 3, v{V_LANE}
    v_lshl_add_u32 v26, v27, 7, v26
    v_lshlrev_b32 v28, 4, v{V_LANE}
    s_mul_i32 s{T+8}, s{S_BIN}, {NPB*128}
    s_lshl_b32 s{T+9}, s{S_HALF}, 12
    s_add_u32 s{T+9}, s{T+9}, {WS_WF}
    """)
    for i in range(3):
        A(f"""
        s_add_u32 s{T+10}, s{T+7}, {i}
        s_lshl_b32 s{T+11}, s{T+10}, 10
        s_add_u32 m0, s{T+11}, {L_XST}
        s_cmp_ge_u32 s{T+10}, 25
        s_cbranch_scc1 K2_W{i}
        s_and_b32 s{T+10}, s{T+10}, 1
        s_lshl_b32 s{T+10}, s{T+10}, 6
        v_xor_b32 v27, s{T+10}, v26
        s_add_u32 s{T+11}, s{T+11}, s{T+8}
        buffer_load_dwordx4 v27, {srd(S_X)}, s{T+11} offen lds
        s_branch K2_WD{i}
K2_W{i}:
        s_sub_u32 s{T+11}, s{T+11}, {25*1024}
        s_and_b32 s{T+10}, s{T+11}, 4096
        s_add_u32 s{T+11}, s{T+11}, s{T+10}
        s_add_u32 s{T+11}, s{T+11}, s{T+9}
        buffer_load_dwordx4 v28, {srd(S_WS)}, s{T+11} offen lds
K2_WD{i}:
        """)
    A(f"""
K2_PFD:
    s_mul_i32 s{T+2}, s{S_HALF}, {HS}
    s_add_u32 s{T+2}, s{T+2}, {WS_TAB}
    s_add_u32 s{S_TAB}, s{S_WS}, s{T+2}
    s_addc_u32 s{S_TAB+1}, s{S_WS+1}, 0
    s_or_b32 s{S_TAB+1}, s{S_TAB+1}, {128<<16}
    s_mul_i32 s{T+3}, s{T+1}, {782*128}
    s_add_u32 s{T+12}, s{T+2}, s{T+3}
    v_and_b32 v26, 7, v{V_LANE}
    v_lshlrev_b32 v27, 3, v26
    s_lshl_b32 s{T+4}, s{S_HALF}, 6
    buffer_load_dwordx2 {vr(V_WC+2,2)}, v27, {srd(S_WCD)}, s{T+4} offen
    """)
    def table_pf():
        A(f"""
        v_min_u32 v30, 781, v0
        v_lshlrev_b32 v30, 7, v30
        buffer_load_ubyte v126, v30, {srd(S_WS)}, s{T+12} offen
        """)
    if not PFLATE: table_pf()
    npf = 0 if PFLATE else 1
    A(f"""
    s_mul_i32 s{T+5}, s{S_BIN}, {NPB*128}
    s_add_u32 s{T+5}, s{T+5}, s{T+4}
    v_add_u32 v{V_OUTC}, s{T+5}, v27
    v_lshlrev_b32 v{V_I0+1}, 4, v26
    v_mov_b32 v{V_I1+1}, v{V_I0+1}
    v_add_u32 v{V_AUC}, {L_AU}, v{V_I0+1}
    v_lshrrev_b32 v{V_OA}, 3, v{V_LANE}
    v_lshlrev_b32 v{V_OA}, 2, v{V_OA}
    s_mov_b32 s{S_C}, 0x{f2u(2.0**-SH):08x}
    s_mov_b32 s{S_C+1}, 0x{f2u(2.0**-SH):08x}
    s_mov_b32 s{S_EPS}, 0x{f2u(1e-6*2.0**SH):08x}
    s_mov_b32 s{S_EPS+1}, 0x{f2u(1e-6*2.0**SH):08x}
    s_mov_b32 s{S_MSK}, 0xffff0000
    v_mul_u32_u24 v28, {LS}, v0
    v_add_u32 v28, {L_LIST}, v28
    v_cmp_gt_u32 vcc, 200, v0
    v_mov_b32 v29, 0x40000000
    v_cndmask_b32 v28, v29, v28, vcc
    v_cmp_gt_u32 vcc, 256, v0
    v_cndmask_b32 v28, 0, v28, vcc
    v_cmp_gt_u32 vcc, 384, v0
    v_mov_b32 v29, {NPB}
    v_cndmask_b32 v28, v29, v28, vcc
    v_lshlrev_b32 v29, 2, v0
    v_cmp_gt_u32 vcc, 640, v0
    s_and_saveexec_b64 {sr(T+6,2)}, vcc
    ds_write_b32 v29, v28
    s_mov_b64 exec, {sr(T+6,2)}
    v_mov_b32 v36, {PADROW}
    v_mov_b32 v37, {PADROW}
    v_mov_b32 v38, {PADROW}
    v_mov_b32 v39, {PADROW}
    v_lshlrev_b32 v29, 4, v0
    v_add_u32 v29, {L_LIST}, v29
    ds_write_b128 v29, v[36:39]
    ds_write_b128 v29, v[36:39] offset:16384
    ds_write_b128 v29, v[36:39] offset:32768
    ds_write_b128 v29, v[36:39] offset:49152
    """)
    for i in range(2*R): A(f"v_mov_b32 v{V_E+i}, 0")
    A(f"""
    v_lshrrev_b32 v28, 3, v0
    v_cmp_gt_u32 vcc, {NCH-128}, v28
    v_mul_u32_u24 v28, {CHP//4}, v28
    v_add_u32 v28, v28, v26
    s_mov_b32 s{T+2}, {128*CHP*4}
    s_mov_b32 s{T+3}, {WS_LOC}
    s_mov_b32 s{T+4}, {WS_LOC+128*CHP}
    v_mov_b32 v31, 0x04000000
    s_waitcnt lgkmcnt(0)
    s_barrier
    s_cmp_gt_u32 s{S_WAVE}, 4
    s_cbranch_scc1 K2_WO1
    s_waitcnt vmcnt({2+npf})
K2_WO1:
    s_waitcnt vmcnt({4+npf})
    """)
    st(1)
    A(f"""
    v_cndmask_b32 v33, 0, v33, vcc
    v_lshrrev_b32 v40, 16, v32
    v_lshrrev_b32 v41, 16, v33
    v_and_b32 v32, 0xffff, v32
    v_and_b32 v33, 0xffff, v33
    v_cmp_lt_u32 {sr(T+6,2)}, v26, v40
    v_cmp_lt_u32 {sr(T+8,2)}, v26, v41
    v_add_u32 v32, v32, v28
    v_add_u32 v33, v33, v28
    v_cndmask_b32 v42, v31, v32, {sr(T+6,2)}
    v_cndmask_b32 v43, v31, v33, {sr(T+8,2)}
    v_lshlrev_b32 v36, 2, v42
    v_lshlrev_b32 v37, 2, v43
    v_lshlrev_b32 v38, 4, v42
    v_lshlrev_b32 v39, 4, v43
    buffer_load_dword v72, v36, {srd(S_WS)}, s{T+3} offen
    buffer_load_dword v73, v37, {srd(S_WS)}, s{T+4} offen
    buffer_load_dwordx4 v[64:67], v38, {srd(S_WS)}, 0 offen
    buffer_load_dwordx4 v[68:71], v39, {srd(S_WS)}, s{T+2} offen
    """)
    A(f"""
    v_add_u32 v36, 8, v26
    v_add_u32 v33, {128*CHP//4}, v33
    v_mov_b32 v37, {L_FLAG+4}
    v_mov_b32 v38, 4
    """)
    for r in range(2):
        A(f"""
        v_cmpx_lt_u32 vcc, v36, v{40+r}
        s_cbranch_execz K2_NOV{r}
        ds_add_rtn_u32 v39, v37, v38
        v_add_u32 v42, 8, v{32+r}
        s_waitcnt lgkmcnt(0)
        v_cmpx_gt_u32 vcc, {BLCAP*4}, v39
        ds_write_b32 v39, v42 offset:{L_BL}
K2_NOV{r}:
        s_mov_b64 exec, -1
        """)
    A(f"""
    v_max_u32 v36, v40, v41
    v_mov_b32 v37, {L_FLAG}
    v_cmpx_lt_u32 vcc, 16, v36
    ds_write_b32 v37, v38
    s_mov_b64 exec, -1
    s_waitcnt vmcnt(4) lgkmcnt(0)
    s_barrier
    """)
    st(2)
    A(f"""
    s_cmp_ge_u32 s{S_WAVE}, 14
    s_cbranch_scc1 K2_BR
    """)
    A(f"""
    s_lshr_b32 s{T+10}, s{S_WAVE}, 1
    s_and_b32 s{T+11}, s{S_WAVE}, 1
    v_and_b32 v28, 31, v{V_LANE}
    v_lshrrev_b32 v29, 5, v{V_LANE}
    v_bfe_u32 v30, v28, 1, 3
    v_xor_b32 v30, v30, v29
    v_lshlrev_b32 v30, 4, v30
    v_lshl_add_u32 v30, v28, 7, v30
    s_lshl_b32 s{T+13}, s{S_HALF}, 6
    v_xor_b32 v30, s{T+13}, v30
    s_lshl_b32 s{T+13}, s{T+10}, 12
    s_add_u32 s{T+13}, s{T+13}, {L_XST}
    v_add_u32 v30, s{T+13}, v30
    v_lshlrev_b32 v31, 4, v{V_LANE}
    s_lshl_b32 s{T+13}, s{T+11}, 12
    s_add_u32 s{T+13}, s{T+13}, {L_WST}
    v_add_u32 v31, s{T+13}, v31
    """)
    XB, WB, DD = 76, 104, 48
    for u in range(4):
        A(f"v_xor_b32 v36, {32*u}, v30")
        A(f"ds_read_b128 {vr(XB+4*u,4)}, v36")
        A(f"ds_read_b128 {vr(WB+4*u,4)}, v31 offset:{1024*u}")
    A(f"""
    s_lshl_b32 s{T+13}, s{T+10}, 5
    v_add_u32 v28, s{T+13}, v28
    v_mul_u32_u24 v30, {AUS}, v28
    v_lshl_add_u32 v30, v29, 5, v30
    s_lshl_b32 s{T+13}, s{T+11}, 7
    s_add_u32 s{T+13}, s{T+13}, {L_AU}
    v_add_u32 v30, s{T+13}, v30
    """)
    for u in range(4):
        A(f"s_waitcnt lgkmcnt({6-2*u})")
        A(mfma(vr(DD,16), vr(WB+4*u,4), vr(XB+4*u,4), "0" if u == 0 else vr(DD,16)))
    A(f"""
    v_cmp_gt_u32 vcc, {NPB}, v28
    s_mov_b32 s{T+13}, 0x{f2u(-LOG2E):08x}
    v_mov_b32 v31, 0x{f2u(-float(SH)):08x}
    s_cmp_eq_u32 s{T+11}, 0
    s_cbranch_scc0 K2_JU
    s_nop 7
    """)
    A(f"v_max3_f32 v36, |v{DD}|, |v{DD+1}|, |v{DD+2}|")
    for i in range(3, 15, 2): A(f"v_max3_f32 v36, |v{DD+i}|, |v{DD+i+1}|, v36")
    A(f"v_max_f32 v36, |v{DD+15}|, v36")
    for i in range(16): A(f"v_fma_f32 v{DD+i}, v{DD+i}, s{T+13}, v31")
    A(f"""
    s_mov_b64 exec, vcc
    v_mov_b32 v37, {L_FLAG}
    v_cmpx_nge_f32 vcc, 0x{f2u(49.0):08x}, v36
    ds_write_b32 v37, v38
    s_branch K2_JW
K2_JU:
    s_mov_b32 s{T+14}, 0x05040100
    s_mov_b32 s{T+13}, 0x07060302
    s_nop 5
    """)
    for i in range(8): A(f"v_cvt_pk_bf16_f32 v{WB+i}, v{DD+2*i}, v{DD+2*i+1}")
    for i in range(8):
        A(f"v_perm_b32 v{DD+2*i}, v{WB+i}, v{XB+i}, s{T+14}")
        A(f"v_perm_b32 v{DD+2*i+1}, v{WB+i}, v{XB+i}, s{T+13}")
    A(f"""
K2_JW:
    s_mov_b64 exec, -1
    v_cmpx_gt_u32 vcc, 200, v28
    ds_write_b128 v30, {vr(DD,4)}
    ds_write_b128 v30, {vr(DD+4,4)} offset:16
    ds_write_b128 v30, {vr(DD+8,4)} offset:64
    ds_write_b128 v30, {vr(DD+12,4)} offset:80
    s_mov_b64 exec, -1
    """)
    if PFLATE: table_pf()
    A(f"""
    s_waitcnt vmcnt({1 if PFLATE else 0})
    s_branch K2_INS
K2_BR:
    v_mov_b32 v37, {L_FLAG+4}
    v_subrev_u32 v36, {14*64}, v0
    v_lshlrev_b32 v36, 2, v36
    ds_read_b32 v39, v37
    ds_read_b32 v42, v36 offset:{L_BL}
    v_mov_b32 v31, 0x10000000
    s_waitcnt lgkmcnt(0)
    v_cmp_lt_u32 {sr(T+10,2)}, v36, v39
    v_lshlrev_b32 v43, 4, v42
    v_lshlrev_b32 v42, 2, v42
    v_cndmask_b32 v43, v31, v43, {sr(T+10,2)}
    v_cndmask_b32 v42, v31, v42, {sr(T+10,2)}
    buffer_load_dword v74, v42, {srd(S_WS)}, s{T+3} offen
    buffer_load_dwordx4 v[76:79], v43, {srd(S_WS)}, 0 offen
    v_mov_b32 v37, {L_FLAG}
    v_cmpx_lt_u32 vcc, {BLCAP*4}, v39
    ds_write_b32 v37, v38
    s_mov_b64 exec, -1
    s_waitcnt vmcnt(2)
K2_INS:
    """)
    st(3)
    def ins_atom(locw, a0):
        for k in range(4):
            A(f"v_lshlrev_b32_sdwa v{a0+k}, v39, v{locw} dst_sel:DWORD dst_unused:UNUSED_PAD src0_sel:DWORD src1_sel:BYTE_{k}")
            A(f"ds_add_rtn_u32 v{a0+k}, v{a0+k}, v38")
    def ins_write(a0, rec):
        for k in range(4):
            A(f"ds_write_b32 v{a0+k}, v{rec+k}")
    A("v_mov_b32 v39, 2")
    A(f"s_mov_b64 exec, {sr(T+6,2)}")
    ins_atom(72, 80)
    A(f"s_mov_b64 exec, {sr(T+8,2)}")
    ins_atom(73, 84)
    A("s_waitcnt lgkmcnt(0)")
    ins_write(84, 68)
    A(f"s_mov_b64 exec, {sr(T+6,2)}")
    ins_write(80, 64)
    A(f"""
    s_cmp_lt_u32 s{S_WAVE}, 14
    s_cbranch_scc1 K2_INSD
    s_mov_b64 exec, {sr(T+10,2)}
    s_waitcnt vmcnt(0)
    """)
    ins_atom(74, 88)
    A("s_waitcnt lgkmcnt(0)")
    ins_write(88, 76)
    A(f"""
K2_INSD:
    s_mov_b64 exec, -1
    v_lshlrev_b32 v{V_WC}, 16, v{V_WC+2}
    v_and_b32 v{V_WC+1}, s{S_MSK}, v{V_WC+2}
    v_lshlrev_b32 v{V_WC+2}, 16, v{V_WC+3}
    v_and_b32 v{V_WC+3}, s{S_MSK}, v{V_WC+3}
    s_mov_b32 s{T+13}, 0x{f2u(-LOG2E):08x}
    v_mul_f32 v{V_WC}, s{T+13}, v{V_WC}
    v_mul_f32 v{V_WC+1}, s{T+13}, v{V_WC+1}
    v_mul_f32 v{V_WC+2}, s{T+13}, v{V_WC+2}
    v_mul_f32 v{V_WC+3}, s{T+13}, v{V_WC+3}
    s_barrier
    """)
    st(4)
    A(f"""
    s_cmp_ge_u32 s{S_WAVE}, 4
    s_cbranch_scc1 K2_S1
    s_setprio 3
    v_lshlrev_b32 v28, 2, v0
    ds_read_b32 v29, v28
    v_mul_u32_u24 v30, {LS}, v0
    v_add_u32 v30, {L_LIST-4}, v30
    v_cmp_gt_u32 vcc, 200, v0
    s_mov_b64 {sr(T+6,2)}, vcc
    v_cmp_gt_u32 vcc, {NPB}, v0
    v_mov_b32 v37, {L_FLAG}
    v_mov_b32 v36, 1
    s_waitcnt lgkmcnt(0)
    v_sub_u32 v29, v29, v30
    v_lshrrev_b32 v29, 3, v29
    v_max_u32 v31, 1, v29
    v_min_u32 v31, 63, v31
    v_cndmask_b32 v31, 0, v31, vcc
    v_lshlrev_b32 v32, 2, v31
    v_sub_u32 v32, 252, v32
    s_mov_b64 exec, {sr(T+6,2)}
    ds_add_rtn_u32 v33, v32, v36 offset:{L_H2}
    v_cmpx_lt_u32 vcc, {CAP//2}, v29
    ds_write_b32 v37, v38
    s_mov_b64 exec, -1
    v_lshlrev_b32 v34, 2, v{V_LANE}
    s_waitcnt lgkmcnt(0)
K2_S1:
    s_barrier
    s_cmp_ge_u32 s{S_WAVE}, 4
    s_cbranch_scc1 K2_S2
    ds_read_b32 v35, v34 offset:{L_H2}
    s_waitcnt lgkmcnt(0)
    v_mov_b32 v36, v35
    """)
    scan(A, 36)
    A(f"""
    v_sub_u32 v36, v36, v35
    ds_bpermute_b32 v36, v32, v36
    s_waitcnt lgkmcnt(0)
    v_add_u32 v33, v33, v36
    v_lshlrev_b32 v36, 2, v33
    v_and_b32 v35, 7, v33
    v_lshrrev_b32 v33, 1, v33
    s_mov_b64 exec, {sr(T+6,2)}
    ds_write_b32 v36, v0 offset:{L_ORD}
    v_cmpx_eq_u32 vcc, 0, v35
    ds_write_b32 v33, v31 offset:{L_LG}
    s_mov_b64 exec, -1
K2_S2:
    v_and_b32 v34, 31, v{V_LANE}
    v_lshlrev_b32 v34, 2, v34
    v_mov_b32 v37, {L_FLAG}
    s_and_b32 s{S_WP}, s{S_WAVE}, 3
    s_lshl_b32 s{S_WP}, s{S_WP}, 2
    s_lshr_b32 s{T}, s{S_WAVE}, 2
    s_add_u32 s{S_WP}, s{S_WP}, s{T}
    s_waitcnt lgkmcnt(0)
    s_barrier
    """)
    st(5)
    A(f"""
    s_setprio 3
    ds_read_b32 v35, v34 offset:{L_LG}
    ds_read_b32 v38, v37
    s_waitcnt lgkmcnt(0)
    v_mov_b32 v36, v35
    v_readfirstlane_b32 s{T}, v38
    s_cmp_lg_u32 s{T}, 0
    s_cbranch_scc1 K2_SLOW
    """)
    scan(A, 36, upto=32)
    A(f"""
    v_readlane_b32 s{S_TT}, v36, 31
    s_mul_i32 s{T+1}, s{S_WP}, s{S_TT}
    s_add_u32 s{T+2}, s{T+1}, s{S_TT}
    s_lshr_b32 s{T+1}, s{T+1}, 4
    s_lshr_b32 s{T+2}, s{T+2}, 4
    s_sub_u32 s{S_N1}, s{T+2}, s{T+1}
    s_sub_u32 s{S_N1}, s{S_N1}, 1
    s_min_u32 s{S_N1}, s{S_N1}, 58
    v_cmp_ge_u32 vcc, s{T+1}, v36
    s_bcnt1_i32_b32 s{S_GC}, vcc_lo
    s_lshl_b32 s{T+3}, s{S_GC}, 5
    v_add_u32 v{V_OA}, s{T+3}, v{V_OA}
    ds_read_b32 v{V_LC}, v{V_OA} offset:{L_ORD}
    ds_read_b32 v{V_LN}, v{V_OA} offset:{L_ORD+32}
    v_sub_u32 v35, v36, v35
    v_readlane_b32 s{S_GS}, v35, s{S_GC}
    s_mov_b32 s{S_GF}, s{S_GC}
    v_subrev_u32 v36, s{T+1}, v36
    v_subrev_u32 v36, 1, v36
    v_cmp_gt_u32 vcc, 64, v36
    v_mov_b32 v40, 1
    v_mov_b32 v41, 0
    v_lshlrev_b64 v[40:41], v36, v[40:41]
    v_cndmask_b32 v40, 0, v40, vcc
    v_cndmask_b32 v41, 0, v41, vcc
    """)
    for sh in (1, 2, 4, 8):
        for v in (40, 41):
            A(f"v_or_b32_dpp v{v}, v{v}, v{v} row_shr:{sh} row_mask:0xf bank_mask:0xf")
    for v in (40, 41):
        A(f"v_or_b32_dpp v{v}, v{v}, v{v} row_bcast:15 row_mask:0xa bank_mask:0xf")
    A(f"""
    v_readlane_b32 s{S_FL}, v40, 31
    v_readlane_b32 s{S_FL+1}, v41, 31
    s_sub_u32 s{T+4}, s{T+1}, s{S_GS}
    s_cmp_lg_u32 s{T+4}, 0
    s_cselect_b32 s{S_HEAD}, 1, 0
    s_lshl_b32 s{T+4}, s{T+4}, 3
    s_add_u32 s{T+4}, s{T+4}, {L_LIST}
    s_movk_i32 s{T+5}, {LS}
    v_mov_b32 v36, s{T+4}
    s_waitcnt lgkmcnt(0)
    v_mad_u32_u24 v{V_P}, v{V_LC}, s{T+5}, v36
    v_mov_b32 v{V_NB}, v{V_LN}
    """)
    for j in range(R):
        for x in rd_rec(0, j): A(x)
        if j == 0:
            A(f"""
            s_movk_i32 s{T+5}, {AUS}
            v_mad_u32_u24 v36, v{V_LC}, s{T+5}, v{V_AUC}
            ds_read_b128 {vr(V_EA,4)}, v36
            ds_read_b128 {vr(V_UX,4)}, v36 offset:128
            v_mad_u32_u24 v36, v{V_LN}, s{T+5}, v{V_AUC}
            ds_read_b128 {vr(V_AN,4)}, v36
            """)
        A(f"""
        v_add_u32 v{V_P}, 8, v{V_P}
        s_bitcmp1_b64 {sr(S_FL,2)}, {j}
        s_cbranch_scc0 K2_PR{j}
        s_mov_b32 s{S_U}, -1
        s_call_b64 {sr(S_RET2,2)}, K2_FETCH
K2_PR{j}:
        """)
        if j < D:
            A("s_waitcnt lgkmcnt(0)")
            for x in ld_rows(j): A(x)
    A(f"""
    s_lshr_b64 {sr(S_FF,2)}, {sr(S_FL,2)}, {R}
    s_or_b64 {sr(S_EV,2)}, {sr(S_FL,2)}, {sr(S_FF,2)}
    s_lshl_b64 {sr(T,2)}, 1, s{S_N1}
    s_or_b64 {sr(S_EV,2)}, {sr(S_EV,2)}, {sr(T,2)}
    s_lshr_b64 {sr(T+2,2)}, {sr(T,2)}, 2
    s_or_b64 {sr(S_EV,2)}, {sr(S_EV,2)}, {sr(T+2,2)}
    s_lshr_b64 {sr(T+2,2)}, {sr(T,2)}, 4
    s_or_b64 {sr(S_EV,2)}, {sr(S_EV,2)}, {sr(T+2,2)}
    s_lshr_b64 {sr(T+2,2)}, {sr(T,2)}, 7
    s_or_b64 {sr(S_EV,2)}, {sr(S_EV,2)}, {sr(T+2,2)}
    s_mov_b64 {sr(S_EVC,2)}, {sr(S_EV,2)}
    """)
    for i in range(4): A(f"v_exp_f32 v{V_EA+i}, v{V_EA+i}")
    for i in range(8): A(f"v_mov_b32 v{V_NUM+i}, 0")
    st(6)
    A(".p2align 6")
    A.label("K2_LOOP")
    for u in range(U):
        d, r = u % D, u % R
        A(f"s_waitcnt vmcnt({2*(D-1)}) lgkmcnt(0)")
        for x in c_head(d, r) + ld_rows(d) + rd_rec(8*u, r) + c_rest(): A(x)
        A(f"s_bitcmp1_b64 {sr(S_EV,2)}, {u}")
        A(f"s_cbranch_scc1 K2_EV{u}")
        A.label(f"K2_RT{u}")
    A(f"""
    v_add_u32 v{V_P}, {8*U}, v{V_P}
    s_lshr_b64 {sr(S_EV,2)}, {sr(S_EV,2)}, {U}
    s_cbranch_scc1 K2_LOOP
    s_branch K2_TAIL
    """)
    for u in range(U):
        A(f"""
K2_EV{u}:
        s_mov_b32 s{S_U}, {u}
        s_call_b64 {sr(S_RET,2)}, K2_EVENT
        s_branch K2_RT{u}
        """)
    A(f"""
K2_FETCH:
    s_add_u32 s{S_GF}, s{S_GF}, 1
    s_lshl_b32 s{T}, s{S_U}, 3
    s_sub_u32 s{T}, {L_LIST-8}, s{T}
    v_mov_b32 v{V_X0}, s{T}
    s_movk_i32 s{T+1}, {LS}
    v_mad_u32_u24 v{V_P}, v{V_NB}, s{T+1}, v{V_X0}
    s_sub_u32 s{T}, s{S_GF}, s{S_GC}
    s_lshl_b32 s{T}, s{T}, 5
    v_add_u32 v{V_X0}, s{T}, v{V_OA}
    ds_read_b32 v{V_NB}, v{V_X0} offset:{L_ORD+32}
    s_setpc_b64 {sr(S_RET2,2)}
K2_EVENT:
    s_ff1_i32_b64 s{T+4}, {sr(S_EVC,2)}
    s_bitset0_b64 {sr(S_EVC,2)}, s{T+4}
    s_bitcmp1_b64 {sr(S_FF,2)}, s{T+4}
    s_cbranch_scc0 K2_E1
    s_call_b64 {sr(S_RET2,2)}, K2_FETCH
K2_E1:
    s_bitcmp1_b64 {sr(S_FL,2)}, s{T+4}
    s_cbranch_scc0 K2_E3
    s_cmp_eq_u32 s{S_HEAD}, 1
    s_cbranch_scc0 K2_E2
    s_mov_b32 s{S_HEAD}, 2
    """)
    for i in range(8): A(f"v_mov_b32 v{V_HD+i}, v{V_NUM+i}")
    for i in range(4): A(f"v_mov_b32 v{V_HUX+i}, v{V_UX+i}")
    A(f"v_mov_b32 v{V_HL}, v{V_LC}")
    A("s_branch K2_E2B")
    A.label("K2_E2")
    finalize(A, V_NUM, V_DEN, V_UX, V_LC)
    A(f"""
K2_E2B:
    s_cmp_eq_u32 s{T+4}, s{S_N1}
    s_cbranch_scc1 K2_DONE
    s_add_u32 s{S_GC}, s{S_GC}, 1
    v_add_u32 v{V_OA}, 32, v{V_OA}
    v_mov_b32 v{V_LC}, v{V_LN}
    ds_read_b32 v{V_LN}, v{V_OA} offset:{L_ORD+32}
    s_movk_i32 s{T+1}, {AUS}
    v_mad_u32_u24 v{V_X0}, v{V_LC}, s{T+1}, v{V_AUC}
    ds_read_b128 {vr(V_UX,4)}, v{V_X0} offset:128
    """)
    for i in range(4): A(f"v_exp_f32 v{V_EA+i}, v{V_AN+i}")
    for i in range(8): A(f"v_mov_b32 v{V_NUM+i}, 0")
    A(f"""
    s_waitcnt lgkmcnt(1)
    v_mad_u32_u24 v{V_X0}, v{V_LN}, s{T+1}, v{V_AUC}
    ds_read_b128 {vr(V_AN,4)}, v{V_X0}
K2_E3:
    s_sub_u32 s{T}, s{S_N1}, s{T+4}
    s_cmp_eq_u32 s{T}, 0
    s_cbranch_scc1 K2_TAIL
    s_cmp_gt_u32 s{T}, 7
    s_cbranch_scc1 K2_E4
    s_setprio 2
    s_cmp_gt_u32 s{T}, 4
    s_cbranch_scc1 K2_E4
    s_setprio 1
    s_cmp_gt_u32 s{T}, 2
    s_cbranch_scc1 K2_E4
    s_setprio 0
K2_E4:
    s_setpc_b64 {sr(S_RET,2)}
K2_TAIL:
    s_lshl_b32 s{T}, s{S_WP}, 11
    s_add_u32 s{T}, s{T}, {L_SIDE}
    v_lshl_add_u32 v{V_X0}, v{V_LANE}, 4, s{T}
    ds_write_b128 v{V_X0}, {vr(V_NUM,4)}
    ds_write_b128 v{V_X0}, {vr(V_DEN,4)} offset:1024
K2_DONE:
    s_waitcnt lgkmcnt(0)
    """)
    st(7)
    A(f"""
    s_barrier
    s_cmp_eq_u32 s{S_HEAD}, 2
    s_cbranch_scc0 K2_FIN
    v_lshlrev_b32 v{V_X1}, 4, v{V_LANE}
K2_HL:
    s_sub_u32 s{S_WP}, s{S_WP}, 1
    s_lshl_b32 s{T}, s{S_WP}, 11
    s_add_u32 s{T}, s{T}, {L_SIDE}
    v_add_u32 v{V_X0}, s{T}, v{V_X1}
    ds_read_b128 {vr(V_NUM,4)}, v{V_X0}
    ds_read_b128 {vr(V_DEN,4)}, v{V_X0} offset:1024
    s_mul_i32 s{T}, s{S_WP}, s{S_TT}
    s_lshr_b32 s{T}, s{T}, 4
    s_waitcnt lgkmcnt(0)
    """)
    for k in range(4): A(f"v_pk_add_f32 {vr(V_HD+2*k,2)}, {vr(V_HD+2*k,2)}, {vr(V_NUM+2*k,2)}")
    A(f"""
    s_cmp_gt_u32 s{T}, s{S_GS}
    s_cselect_b32 s{T}, s{S_WP}, 0
    s_cmp_gt_i32 s{T}, 0
    s_cbranch_scc1 K2_HL
    """)
    finalize(A, V_HD, V_HD+4, V_HUX, V_HL)
    A.label("K2_FIN")
    if diag:
        st(8)
        A("s_waitcnt vmcnt(0)")
        st(9)
        A(f"""
        s_lshl_b32 s{T}, s2, 4
        s_add_u32 s{T}, s{T}, s{S_WAVE}
        s_lshl_b32 s{T}, s{T}, 7
        s_add_u32 s{T}, s{T}, {WS_STAMP}
        v_lshlrev_b32 v{V_X0}, 2, v{V_LANE}
        v_cmpx_gt_u32 vcc, 32, v{V_LANE}
        buffer_store_dword v{V_STAMP}, v{V_X0}, {srd(S_WS)}, s{T} offen
        """)
    A("""
K2_END:
    s_endpgm
    """)
    A(f"""
K2_SLOW:
    s_setprio 0
    s_waitcnt vmcnt(0)
    v_mov_b32 v36, 0
    v_mov_b32 v37, 0
    v_mov_b32 v38, 0
    v_mov_b32 v39, 0
    v_lshlrev_b32 v29, 4, v0
    v_add_u32 v29, {L_LIST}, v29
    ds_write_b128 v29, v[36:39]
    ds_write_b128 v29, v[36:39] offset:16384
    ds_write_b128 v29, v[36:39] offset:32768
    ds_write_b128 v29, v[36:39] offset:49152
    s_waitcnt lgkmcnt(0)
    s_barrier
    s_mov_b32 s{T}, s{S_WAVE}
    v_lshrrev_b32 v28, 3, v{V_LANE}
    s_movk_i32 s{T+8}, {AUS}
    v_add_u32 v30, {L_LIST}, v{V_I0+1}
K2_SC:
    s_and_b32 s{T+1}, s{T}, 127
    s_lshl_b32 s{T+1}, s{T+1}, 3
    s_lshr_b32 s{T+2}, s{T}, 7
    s_lshl_b32 s{T+2}, s{T+2}, 2
    s_add_u32 s{T+1}, s{T+1}, s{T+2}
    s_lshl_b32 s{T+2}, s{S_BIN}, 10
    s_add_u32 s{T+1}, s{T+1}, s{T+2}
    s_add_u32 s{T+1}, s{T+1}, {WS_OFFS}
    v_mov_b32 v36, 0
    buffer_load_dword v37, v36, {srd(S_WS)}, s{T+1} offen
    s_waitcnt vmcnt(0)
    v_readfirstlane_b32 s{T+3}, v37
    s_lshr_b32 s{T+4}, s{T+3}, 16
    s_min_u32 s{T+4}, s{T+4}, {CHP//4}
    s_lshl_b32 s{T+4}, s{T+4}, 2
    s_and_b32 s{T+3}, s{T+3}, 0xffff
    s_lshl_b32 s{T+3}, s{T+3}, 2
    s_mul_i32 s{T+5}, s{T}, {CHP}
    s_add_u32 s{T+3}, s{T+3}, s{T+5}
    s_add_u32 s{T+6}, s{T+3}, {WS_LOC}
    s_lshl_b32 s{T+3}, s{T+3}, 2
    v_mov_b32 v31, v28
K2_SR:
    v_cmpx_gt_u32 vcc, s{T+4}, v31
    s_cbranch_execz K2_SN
    v_lshlrev_b32 v36, 2, v31
    buffer_load_dword v37, v36, {srd(S_WS)}, s{T+3} offen
    buffer_load_ubyte v38, v31, {srd(S_WS)}, s{T+6} offen
    s_waitcnt vmcnt(0)
    v_cmpx_gt_u32 vcc, {NPB}, v38
    s_cbranch_execz K2_SX
    v_and_b32 v{V_I0}, 0xffff, v37
    buffer_load_dwordx4 v[64:67], {vr(V_I0,2)}, {srd(S_TAB)}, 0 idxen offen
    v_mad_u32_u24 v36, v38, s{T+8}, v{V_AUC}
    ds_read_b128 v[68:71], v36
    v_and_b32 v37, s{S_MSK}, v37
    v_lshl_add_u32 v39, v38, 8, v30
    s_waitcnt vmcnt(0) lgkmcnt(0)
    """)
    for i in range(4):
        A(f"v_fma_f32 v{72+i}, v37, v{V_WC+i}, v{64+i}")
        A(f"v_add_f32 v{72+i}, v{72+i}, v{68+i}")
    for i in range(4): A(f"v_exp_f32 v{72+i}, v{72+i}")
    A("v_lshlrev_b64 v[64:65], 16, v[64:65]")
    A("v_lshlrev_b64 v[66:67], 16, v[66:67]")
    for i in range(4): A(f"v_add_f32 v{72+i}, s{S_C}, v{72+i}")
    for i in range(4): A(f"v_rcp_f32 v{72+i}, v{72+i}")
    for i in range(4): A(f"v_mul_f32 v{64+i}, v{64+i}, v{72+i}")
    for i in range(4):
        A(f"ds_add_f32 v39, v{64+i} offset:{4*i}")
        A(f"ds_add_f32 v39, v{72+i} offset:{128+4*i}")
    A(f"""
    s_waitcnt lgkmcnt(0)
K2_SX:
    s_mov_b64 exec, -1
    v_add_u32 v31, 8, v31
    s_branch K2_SR
K2_SN:
    s_mov_b64 exec, -1
    s_add_u32 s{T}, s{T}, 16
    s_cmp_lt_u32 s{T}, {NCH}
    s_cbranch_scc1 K2_SC
    s_waitcnt lgkmcnt(0)
    s_barrier
    v_lshrrev_b32 v{V_LC}, 3, v0
    """)
    for it in range(2):
        A(f"""
        v_min_u32 v36, 199, v{V_LC}
        v_mad_u32_u24 v37, v36, s{T+8}, v{V_AUC}
        ds_read_b128 {vr(V_UX,4)}, v37 offset:128
        v_lshl_add_u32 v39, v36, 8, v30
        ds_read_b128 {vr(V_NUM,4)}, v39
        ds_read_b128 {vr(V_DEN,4)}, v39 offset:128
        s_waitcnt lgkmcnt(0)
        v_mov_b32 v{V_X1}, v30
        """)
        finalize(A, V_NUM, V_DEN, V_UX, V_LC)
        A(f"v_mov_b32 v30, v{V_X1}")
        A(f"v_add_u32 v{V_LC}, 128, v{V_LC}")
    A("s_endpgm")

HEADER = open(f"cdna_kernels/{NAME}.s.ref").read().split("; Override")[0]

def build(diag=False):
    A = Asm()
    out = HEADER
    out += f"; @launch kernel=bin_kernel grid=({NCH+NTW+3},1,1) block=(448,1,1) lds={LDS1}\n"
    out += f"; @launch kernel=mpnn_kernel grid=(256,1,1) block=(1024,1,1) lds={LDS2}\n"
    out += '.amdgcn_target "amdgcn-amd-amdhsa--gfx950"\n.text\n'
    out += ".globl bin_kernel\n.p2align 8\n.type bin_kernel,@function\n"
    gen_k1(A, diag)
    out += A.text()
    A = Asm()
    out += ".globl mpnn_kernel\n.p2align 8\n.type mpnn_kernel,@function\n"
    gen_k2(A, diag)
    out += A.text()
    out += f""".section .rodata,"a"
.p2align 6
.amdhsa_kernel bin_kernel
  .amdhsa_next_free_vgpr 96
  .amdhsa_next_free_sgpr 72
  .amdhsa_accum_offset 96
  .amdhsa_group_segment_fixed_size 0
  .amdhsa_kernarg_size 96
  .amdhsa_user_sgpr_count 2
  .amdhsa_user_sgpr_kernarg_segment_ptr 1
  .amdhsa_system_sgpr_workgroup_id_x 1
  .amdhsa_float_denorm_mode_32 3
.end_amdhsa_kernel
.p2align 6
.amdhsa_kernel mpnn_kernel
  .amdhsa_next_free_vgpr 128
  .amdhsa_next_free_sgpr 96
  .amdhsa_accum_offset 128
  .amdhsa_group_segment_fixed_size 0
  .amdhsa_kernarg_size 96
  .amdhsa_user_sgpr_count 2
  .amdhsa_user_sgpr_kernarg_segment_ptr 1
  .amdhsa_system_sgpr_workgroup_id_x 1
  .amdhsa_float_denorm_mode_32 3
.end_amdhsa_kernel
"""
    return out

if __name__ == "__main__":
    diag = "--diag" in sys.argv
    path = sys.argv[1] if len(sys.argv) > 1 and not sys.argv[1].startswith("--") else f"cdna_kernels/{NAME}.s"
    open(path, "w").write(build(diag))
    print("wrote", path, "LDS2", LDS2)
```

```python
import sys, struct
sys.path.insert(0, "gen")
import hazard
VERBOSE = "--verbose" in sys.argv
def opt(name, default):
    if name in sys.argv: return type(default)(sys.argv[sys.argv.index(name)+1])
    return default

NAME = "standalone__edge_featured_mpnn_gatedgcn__graph"
N, E = 25000, 800000
CH = 3128
NT = CH // 8
NPB = 196
CHP = 3584
WS_REC  = 0
WS_LOC  = 0x380000
WS_OFFS = 0x460000
WS_TF   = 0x4A0000
WS_EP   = 0x4A1000
WS_STAMP = 0x4B0000
WS_TAB  = 0x600000
HS      = 0x320000
PADROW  = 25088
WS_SIZE = WS_TAB + 2*HS
assert 256*CHP*4 <= WS_LOC and WS_LOC + 256*CHP <= WS_OFFS
L_CNT, L_H2, L_LG, L_FLAG, L_ORD, L_BL = 0, 1024, 1280, 1408, 1536, 2560
L_C2, L_C3, L_CX, L_CP, L_CY, L_CE, L_CL = L_FLAG+8, L_FLAG+12, L_FLAG+16, L_FLAG+20, L_FLAG+24, L_FLAG+28, L_FLAG+32
L_HIST, L_OFF, L_LOC = 3072, 3584, 4096
L_AU   = L_LOC + CHP
AUS    = 272
L_WBV  = L_AU
L_REC  = L_AU + 16384
L_SIDE = L_AU + 200*AUS
L_XST  = L_SIDE
L_WAU  = L_SIDE + 25600
L_LIST = L_SIDE + 33792
LS     = 296
CAP    = 74
LDS    = L_LIST + 200*LS
assert LDS <= 163840 and L_SIDE % 128 == 0, (LDS, L_SIDE)
BLCAP  = 128
SH = 48
LOG2E = 1.4426950408889634
D = opt("--depth", 2)
R = D + 1
U = D * R
SPIN = opt("--spin", 30000)
FORCE_SLOW = "--slow" in sys.argv
PFA = opt("--pfa", 0)
PFAN = opt("--pfan", 1)
ENT = " nt" if "--nt" in sys.argv else ""
XNT = " nt" if "--xnt" in sys.argv else ""
RPF = "--rpf" in sys.argv

def f2u(x): return struct.unpack("<I", struct.pack("<f", x))[0]

class Asm:
    def __init__(self): self.l = []
    def __call__(self, s):
        for ln in s.strip("\n").split("\n"):
            t = ln.strip()
            if not t: continue
            self.l.append(t if t.endswith(":") else "    " + t)
    def label(self, n): self.l.append(n + ":")
    def text(self): return "\n".join(hazard.fix(self.l, VERBOSE)) + "\n"

def vr(a, n=1): return f"v{a}" if n == 1 else f"v[{a}:{a+n-1}]"
def sr(a, n=1): return f"s{a}" if n == 1 else f"s[{a}:{a+n-1}]"
def srd(b): return f"s[{b}:{b+3}]"
def mfma(d, a, b, c): return f"v_mfma_f32_32x32x16_bf16 {d}, {a}, {b}, {c}"

def scan(A, v, op="v_add_u32", upto=64):
    for sh in (1, 2, 4, 8):
        A(f"{op}_dpp v{v}, v{v}, v{v} row_shr:{sh} row_mask:0xf bank_mask:0xf")
    if upto >= 32:
        A(f"{op}_dpp v{v}, v{v}, v{v} row_bcast:15 row_mask:0xa bank_mask:0xf")
    if upto >= 64:
        A(f"{op}_dpp v{v}, v{v}, v{v} row_bcast:31 row_mask:0xc bank_mask:0xf")

V_LANE, V_P, V_NB, V_OA = 1, 2, 3, 4
V_AUC, V_OUTC = 5, 6
V_LC = 7
V_NUM, V_DEN = 8, 12
V_EA, V_WC = 16, 20
V_T, V_V, V_M = 24, 32, 40
V_I0, V_I1 = 44, 46
V_S, V_Q = 48, 52
V_UX = 56
V_LN = 60
V_HL = 61
V_X0, V_X1 = 62, 63
V_DAT = 64
V_E = 96
V_HD = 104
V_HUX = 112
V_AN = 116
V_DUMMY = 126
V_STAMP = 127
S_WS, S_TAB, S_OUT, S_X = 4, 8, 12, 16
S_A, S_B = 20, 24
S_C = 28
S_BIN, S_HALF, S_WAVE, S_WP = 30, 31, 32, 33
S_EV, S_EVC, S_FL, S_FF = 34, 36, 38, 40
S_N1, S_GC, S_GF, S_HEAD, S_U, S_TT, S_GS = 42, 43, 44, 45, 46, 47, 48
S_MSK = 49
S_RET, S_RET2 = 50, 52
S_EPS = 54
S_T0, S_T1 = 56, 57
S_PF = 58
S_NB = 59
S_T = 60
S_K = 76
KX, KE, KSRC, KDST, KWA, KWB, KWC, KWU, KWV, KOUT, KDBG, KWS = [S_K + 2*i for i in range(12)]

def stamp(A, idx, on):
    if on:
        A(f"s_memtime s[100:101]")
        A("s_waitcnt lgkmcnt(0)")
        A(f"v_writelane_b32 v{V_STAMP}, s100, {idx}")
        A(f"s_memrealtime s[100:101]")
        A("s_waitcnt lgkmcnt(0)")
        A(f"v_writelane_b32 v{V_STAMP}, s100, {idx+16}")

def mk_srd(A, d, ptr, nbytes):
    A(f"s_mov_b32 s{d}, s{ptr}")
    A(f"s_mov_b32 s{d+1}, s{ptr+1}")
    A(f"s_mov_b32 s{d+2}, {nbytes}")
    A(f"s_mov_b32 s{d+3}, 0x20000")

def ld_rows(d):
    b = V_DAT + 8*d
    return [f"buffer_load_dwordx4 {vr(b,4)}, {vr(V_I0,2)}, {srd(S_TAB)}, 0 idxen offen sc1",
            f"buffer_load_dwordx4 {vr(b+4,4)}, {vr(V_I1,2)}, {srd(S_TAB)}, 0 idxen offen sc1"]
def rd_rec(off, r):
    return [f"ds_read_u16 v{V_I0}, v{V_P} offset:{off}",
            f"ds_read_u16 v{V_I1}, v{V_P} offset:{off+4}",
            f"ds_read_u16_d16_hi v{V_E+2*r}, v{V_P} offset:{off+2}",
            f"ds_read_u16_d16_hi v{V_E+2*r+1}, v{V_P} offset:{off+6}"]
def c_head(d, r):
    b = V_DAT + 8*d; e = V_E + 2*r
    o = []
    for h in range(2):
        for k in range(2):
            sel = "op_sel_hi:[0,1,1]" if h == 0 else "op_sel:[1,0,0] op_sel_hi:[1,1,1]"
            o.append(f"v_pk_fma_f32 {vr(V_T+4*h+2*k,2)}, {vr(e,2)}, {vr(V_WC+2*k,2)}, {vr(b+4*h+2*k,2)} {sel}")
    for i in range(4): o.append(f"v_lshlrev_b64 {vr(V_V+2*i,2)}, 16, {vr(b+2*i,2)}")
    return o
def c_rest():
    o = []
    T, V, M, S, Q = V_T, V_V, V_M, V_S, V_Q
    for i in range(8): o.append(f"v_exp_f32 v{T+i}, v{T+i}")
    for i in range(4): o.append(f"v_pk_fma_f32 {vr(T+2*i,2)}, {vr(T+2*i,2)}, {vr(V_EA+2*(i%2),2)}, {sr(S_C,2)} clamp")
    for k in range(2): o.append(f"v_pk_mul_f32 {vr(M+2*k,2)}, {vr(T+2*k,2)}, {vr(T+4+2*k,2)}")
    for i in range(4): o.append(f"v_rcp_f32 v{M+i}, v{M+i}")
    for k in range(2): o.append(f"v_pk_add_f32 {vr(S+2*k,2)}, {vr(T+2*k,2)}, {vr(T+4+2*k,2)}")
    for k in range(2): o.append(f"v_pk_mul_f32 {vr(Q+2*k,2)}, {vr(V+2*k,2)}, {vr(T+4+2*k,2)}")
    for k in range(2): o.append(f"v_pk_fma_f32 {vr(Q+2*k,2)}, {vr(V+4+2*k,2)}, {vr(T+2*k,2)}, {vr(Q+2*k,2)}")
    for k in range(2): o.append(f"v_pk_fma_f32 {vr(V_DEN+2*k,2)}, {vr(S+2*k,2)}, {vr(M+2*k,2)}, {vr(V_DEN+2*k,2)}")
    for k in range(2): o.append(f"v_pk_fma_f32 {vr(V_NUM+2*k,2)}, {vr(Q+2*k,2)}, {vr(M+2*k,2)}, {vr(V_NUM+2*k,2)}")
    return o

def finalize(A, num, den, ux, loc):
    T, V = V_T, V_V
    for k in range(2): A(f"v_pk_add_f32 {vr(den+2*k,2)}, {vr(den+2*k,2)}, {sr(S_EPS,2)}")
    for i in range(4): A(f"v_rcp_f32 v{den+i}, v{den+i}")
    for i in range(4): A(f"v_and_b32 v{T+i}, s{S_MSK}, v{ux+i}")
    for i in range(4): A(f"v_lshlrev_b32 v{V+i}, 16, v{ux+i}")
    for k in range(2): A(f"v_pk_fma_f32 {vr(T+2*k,2)}, {vr(num+2*k,2)}, {vr(den+2*k,2)}, {vr(T+2*k,2)}")
    A(f"v_lshl_add_u32 v{T+4}, v{loc}, 7, v{V_OUTC}")
    A(f"v_cmp_gt_u32 vcc, {NPB}, v{loc}")
    for i in range(4): A(f"v_max_f32 v{T+i}, 0, v{T+i}")
    for k in range(2): A(f"v_pk_add_f32 {vr(T+2*k,2)}, {vr(T+2*k,2)}, {vr(V+2*k,2)}")
    A(f"v_cndmask_b32 v{T+4}, -1, v{T+4}, vcc")
    A(f"v_cvt_pk_bf16_f32 v{T+6}, v{T}, v{T+1}")
    A(f"v_cvt_pk_bf16_f32 v{T+7}, v{T+2}, v{T+3}")
    A(f"buffer_store_dwordx2 {vr(T+6,2)}, v{T+4}, {srd(S_OUT)}, 0 offen")

def arrive(A, addr, rtn=None):
    A(f"v_mov_b32 v120, {addr}")
    A("v_mov_b32 v121, 1")
    A("s_mov_b64 exec, 1")
    if rtn is None: A("ds_add_u32 v120, v121")
    else:
        A("ds_add_rtn_u32 v122, v120, v121")
        A("s_waitcnt lgkmcnt(0)")
        A(f"v_readfirstlane_b32 s{rtn}, v122")
    A("s_mov_b64 exec, -1")

def spin_lds(A, name, target):
    A(f"""
{name}:
    ds_read_b32 v122, v120
    s_waitcnt lgkmcnt(0)
    v_readfirstlane_b32 s{S_T}, v122
    s_cmp_lt_u32 s{S_T}, {target}
    s_cbranch_scc1 {name}
    """)

def gen(A, diag):
    T = S_T
    EARLY = "--early" in sys.argv
    st = lambda i: stamp(A, i, diag and not (EARLY and 2 <= i <= 7))
    se = lambda i: stamp(A, i, diag and EARLY)
    A.label(f"{NAME}_kernel")
    A(f"""
    s_cmp_ge_u32 s2, 256
    s_cbranch_scc1 K_END
    s_load_dwordx16 {sr(S_K,16)}, s[0:1], 0
    s_load_dwordx8 {sr(S_K+16,8)}, s[0:1], 64
    s_and_b32 s{S_HALF}, s2, 1
    s_bfe_u32 s{T}, s2, 0x20001
    s_lshr_b32 s{T+1}, s2, 3
    s_lshl_b32 s{S_BIN}, s{T}, 5
    s_add_u32 s{S_BIN}, s{S_BIN}, s{T+1}
    s_mul_i32 s{S_NB}, s{S_BIN}, {NPB}
    v_readfirstlane_b32 s{S_WAVE}, v0
    s_lshr_b32 s{S_WAVE}, s{S_WAVE}, 6
    v_and_b32 v{V_LANE}, 63, v0
    v_and_b32 v26, 7, v{V_LANE}
    v_lshrrev_b32 v27, 4, v{V_LANE}
    v_xor_b32 v27, v26, v27
    v_lshlrev_b32 v27, 4, v27
    v_lshrrev_b32 v28, 3, v{V_LANE}
    v_lshl_add_u32 v24, v28, 7, v27
    v_xor_b32 v25, 64, v24
    v_lshlrev_b32 v29, 4, v{V_LANE}
    s_lshl_b32 s{T+6}, s{S_HALF}, 6
    s_lshl_b32 s{T+7}, s{S_NB}, 7
    s_sub_u32 s{T+9}, s{S_WAVE}, 7
    s_mov_b32 s{T+8}, {WS_EP}
    """)
    if diag: A(f"v_mov_b32 v{V_STAMP}, 0")
    A(f"""
    s_cmp_ge_u32 s{S_WAVE}, 7
    s_cbranch_scc1 K_L1
    s_mul_i32 s{T+2}, s{S_HALF}, 12
    s_lshl_b32 s{T+3}, s{S_WAVE}, 1
    s_add_u32 s{T+2}, s{T+2}, s{T+3}
    s_cmp_eq_u32 s{S_WAVE}, 6
    s_cselect_b32 s{T+2}, 24, s{T+2}
    s_lshl_b32 s{T+2}, s{T+2}, 10
    s_add_u32 m0, s{T+2}, {L_XST}
    s_add_u32 s{T+2}, s{T+2}, s{T+7}
    s_lshl_b32 s{T+3}, s{S_WAVE}, 10
    s_waitcnt lgkmcnt(0)
    """)
    st(0)
    mk_srd(A, S_X, KX, N*128)
    mk_srd(A, S_A, KWB, 8192)
    mk_srd(A, S_B, KWV, 8192)
    A(f"""
    buffer_load_dwordx4 v24, {srd(S_X)}, s{T+2} offen lds
    s_cmp_eq_u32 s{S_WAVE}, 6
    s_cbranch_scc1 K_L0
    buffer_load_dwordx4 v25, {srd(S_X)}, s{T+2} offen offset:1024 lds
K_L0:
    s_add_u32 m0, s{T+3}, {L_WBV}
    s_nop 0
    buffer_load_dwordx4 v29, {srd(S_A)}, s{T+3} offen lds
    s_add_u32 m0, s{T+3}, {L_WBV+8192}
    s_cmp_eq_u32 s{S_WAVE}, 6
    buffer_load_dwordx4 v29, {srd(S_B)}, s{T+3} offen lds
    s_cbranch_scc0 K_L1
    buffer_load_dwordx4 v29, {srd(S_B)}, s{T+3} offen offset:1024 lds
    s_add_u32 m0, s{T+3}, {L_WBV}
    s_nop 0
    buffer_load_dwordx4 v29, {srd(S_A)}, s{T+3} offen offset:1024 lds
K_L1:
    v_mul_u32_u24 v30, {LS}, v0
    v_add_u32 v30, {L_LIST}, v30
    v_cmp_gt_u32 vcc, 200, v0
    v_mov_b32 v31, 0x40000000
    v_cndmask_b32 v30, v31, v30, vcc
    v_cmp_gt_u32 vcc, 256, v0
    v_subrev_u32 v32, 384, v0
    v_cndmask_b32 v30, 0, v30, vcc
    v_cmp_gt_u32 vcc, 256, v32
    v_mov_b32 v31, {NPB}
    v_cndmask_b32 v30, v30, v31, vcc
    v_lshlrev_b32 v31, 2, v0
    ds_write_b32 v31, v30
    v_subrev_u32 v34, 448, v0
    v_lshlrev_b32 v32, 4, v34
    v_lshlrev_b32 v33, 3, v34
    s_mul_i32 s{T+10}, s2, {CH*4}
    s_add_u32 s{T+11}, s{T+10}, {CH*2}
    s_lshr_b32 s{T+12}, s{T+10}, 1
    s_lshr_b32 s{T+13}, s{T+11}, 1
    s_waitcnt lgkmcnt(0)
    """)
    if diag:
        A(f"s_cmp_lt_u32 s{S_WAVE}, 7")
        A("s_cbranch_scc1 K_D0")
        st(0)
        A.label("K_D0")
    A(f"s_load_dwordx2 {sr(S_T0,2)}, {sr(KWS,2)}, s{T+8}")
    mk_srd(A, S_A, KDST, E*4)
    mk_srd(A, S_B, KSRC, E*4)
    mk_srd(A, S_WS, KE, E*2)
    mk_srd(A, S_X, KX, N*128)
    mk_srd(A, S_OUT, KWC, 128)
    DS_, SR_, EE_ = 64, 72, 80
    A(f"""
    v_lshlrev_b32 v27, 3, v26
    v_cmp_gt_u32 vcc, {NT}, v34
    v_mov_b32 v36, {PADROW}
    v_mov_b32 v37, {PADROW}
    v_mov_b32 v38, {PADROW}
    v_mov_b32 v39, {PADROW}
    v_lshlrev_b32 v30, 4, v0
    v_add_u32 v30, {L_LIST}, v30
    s_barrier
    buffer_load_dwordx2 {vr(V_WC+2,2)}, v27, {srd(S_OUT)}, s{T+6} offen
    s_cmp_ge_u32 s{T+9}, 7
    s_cbranch_scc1 K_NE0
    s_mov_b64 exec, vcc
    buffer_load_dwordx4 {vr(DS_,4)}, v32, {srd(S_A)}, s{T+10} offen{ENT}
    buffer_load_dwordx4 {vr(DS_+4,4)}, v32, {srd(S_A)}, s{T+11} offen{ENT}
    s_mov_b64 exec, -1
    v_mov_b32 v40, -1
    v_mov_b32 v41, -1
    ds_write_b64 v33, v[40:41] offset:{L_LOC}
K_NE0:
    ds_write_b128 v30, v[36:39]
    ds_write_b128 v30, v[36:39] offset:16384
    s_cbranch_scc1 K_NE
    s_mov_b64 exec, vcc
    buffer_load_dwordx4 {vr(SR_,4)}, v32, {srd(S_B)}, s{T+10} offen{ENT}
    buffer_load_dwordx4 {vr(SR_+4,4)}, v32, {srd(S_B)}, s{T+11} offen{ENT}
    buffer_load_dwordx2 {vr(EE_,2)}, v33, {srd(S_WS)}, s{T+12} offen{ENT}
    buffer_load_dwordx2 {vr(EE_+2,2)}, v33, {srd(S_WS)}, s{T+13} offen{ENT}
    s_mov_b64 exec, -1
K_NE:
    ds_write_b128 v30, v[36:39] offset:32768
    ds_write_b128 v30, v[36:39] offset:49152
    """)
    se(2)
    mk_srd(A, S_WS, KWS, WS_SIZE)
    mk_srd(A, S_OUT, KOUT, N*128)
    A(f"""
    s_mul_i32 s{T+2}, s{S_HALF}, {HS}
    s_add_u32 s{T+2}, s{T+2}, {WS_TAB}
    s_add_u32 s{S_TAB}, s{KWS}, s{T+2}
    s_addc_u32 s{S_TAB+1}, s{KWS+1}, 0
    s_or_b32 s{S_TAB+1}, s{S_TAB+1}, {128<<16}
    s_mov_b32 s{S_TAB+2}, {PADROW+1}
    s_mov_b32 s{S_TAB+3}, 0x20000
    s_mul_i32 s{S_PF}, s{T+1}, {784*128}
    s_add_u32 s{S_PF}, s{S_PF}, s{T+2}
    s_add_u32 s{T+3}, s{T+7}, s{T+6}
    v_add_u32 v{V_OUTC}, s{T+3}, v27
    v_lshlrev_b32 v{V_I0+1}, 4, v26
    v_mov_b32 v{V_I1+1}, v{V_I0+1}
    v_add_u32 v{V_AUC}, {L_AU}, v{V_I0+1}
    v_lshlrev_b32 v{V_OA}, 2, v28
    s_mov_b32 s{S_C}, 0x{f2u(2.0**-SH):08x}
    s_mov_b32 s{S_C+1}, 0x{f2u(2.0**-SH):08x}
    s_mov_b32 s{S_EPS}, 0x{f2u(1e-6*2.0**SH):08x}
    s_mov_b32 s{S_EPS+1}, 0x{f2u(1e-6*2.0**SH):08x}
    s_mov_b32 s{S_MSK}, 0xffff0000
    s_waitcnt lgkmcnt(0)
    s_add_u32 s{S_T1}, s{S_T1}, 1
    s_and_b32 s{S_T0}, s{S_T0}, 0xfff00000
    """)
    arrive(A, L_CE)
    se(3)
    A(f"""
    s_cmp_ge_u32 s{S_WAVE}, 14
    s_cbranch_scc1 K_HELP
    s_cmp_ge_u32 s{S_WAVE}, 7
    s_cbranch_scc1 K_BIN
    ; ---- table job: tile = 3*half + (w>>1), nt = w&1 ; wave 6: tile 6, nt = half
    s_mul_i32 s{T+10}, s{S_HALF}, 3
    s_lshr_b32 s{T+11}, s{S_WAVE}, 1
    s_add_u32 s{T+10}, s{T+10}, s{T+11}
    s_and_b32 s{T+11}, s{S_WAVE}, 1
    s_cmp_eq_u32 s{S_WAVE}, 6
    s_cselect_b32 s{T+10}, 6, s{T+10}
    s_cselect_b32 s{T+11}, s{S_HALF}, s{T+11}
    s_lshl_b32 s{T+12}, s{T+10}, 12
    s_mul_i32 s{T+13}, s{T+11}, {HS}
    s_add_u32 s{T+13}, s{T+13}, s{T+7}
    s_add_u32 s{T+13}, s{T+13}, {WS_TAB}
    s_add_u32 s{S_B}, s{KWS}, s{T+13}
    s_addc_u32 s{S_B+1}, s{KWS+1}, 0
    s_mov_b32 s{S_B+2}, {NPB*128}
    s_mov_b32 s{S_B+3}, 0x20000
    v_and_b32 v28, 31, v{V_LANE}
    v_lshrrev_b32 v29, 5, v{V_LANE}
    v_bfe_u32 v30, v28, 1, 3
    v_xor_b32 v30, v30, v29
    v_lshlrev_b32 v30, 4, v30
    v_lshl_add_u32 v24, v28, 7, v30
    s_add_u32 s{T+13}, s{T+12}, {L_XST}
    v_add_u32 v30, s{T+13}, v24
    v_bfe_u32 v25, v{V_LANE}, 2, 2
    v_lshl_add_u32 v25, v29, 3, v25
    v_lshlrev_b32 v34, 7, v25
    v_bfe_u32 v35, v{V_LANE}, 4, 1
    v_lshl_add_u32 v34, v35, 5, v34
    v_and_b32 v36, 3, v{V_LANE}
    v_lshl_add_u32 v34, v36, 3, v34
    s_lshl_b32 s{T+13}, s{T+11}, 6
    s_add_u32 s{T+13}, s{T+13}, {L_WBV}
    v_add_u32 v34, s{T+13}, v34
    v_and_b32 v32, 1, v{V_LANE}
    v_xor_b32 v32, 1, v32
    v_lshlrev_b32 v32, 15, v32
    v_lshlrev_b32 v33, 9, v29
    v_lshl_add_u32 v33, v28, 2, v33
    v_add_u32 v33, s{T+12}, v33
    s_mov_b32 s{T+13}, 0x{f2u(-LOG2E):08x}
    s_mov_b32 s{T+14}, 0x07060302
    s_waitcnt vmcnt(1)
    """)
    arrive(A, L_CX)
    spin_lds(A, "K_SPX", 7)
    st(1)
    XB = 84
    Wm1 = [36, 40, 116, 8]
    for u in range(4):
        A(f"v_xor_b32 v31, {32*u}, v30")
        A(f"ds_read_b128 {vr(XB+4*u,4)}, v31")
        for tt in range(2):
            A(f"ds_read_b64_tr_b16 {vr(100+4*u+2*tt,2)}, v34 offset:{(16*u+4*tt)*128}")
        for tt in range(2):
            A(f"ds_read_b64_tr_b16 {vr(Wm1[u]+2*tt,2)}, v34 offset:{8192+(16*u+4*tt)*128}")
    for u in range(4):
        A(f"s_waitcnt lgkmcnt({15-5*u})")
        A(mfma(vr(48,16), vr(XB+4*u,4), vr(100+4*u,4), "0" if u == 0 else vr(48,16)))
        A(mfma(vr(64,16), vr(XB+4*u,4), vr(Wm1[u],4), "0" if u == 0 else vr(64,16)))
    arrive(A, L_CY)
    for r in range(16): A(f"v_mul_f32 v{48+r}, s{T+13}, v{48+r}")
    for r in range(16):
        A(f"v_add_u32 v{64+r}, v32, v{64+r}")
        A(f"v_perm_b32 v{48+r}, v{48+r}, v{64+r}, s{T+14}")
        A(f"buffer_store_dword v{48+r}, v33, {srd(S_B)}, 0 offen offset:{(8*(r>>2)+(r&3))*128} sc1")
    st(2)
    A(f"""
    s_lshr_b32 s{T+12}, s2, 1
    s_or_b32 s{T+12}, s{T+12}, s{S_WAVE}
    s_cmp_lg_u32 s{T+12}, 0
    s_cbranch_scc1 K_NPAD
    v_lshlrev_b32 v32, 2, v{V_LANE}
    v_mov_b32 v33, 0x7f000000
    s_mul_i32 s{T+4}, s{S_HALF}, {HS}
    s_add_u32 s{T+4}, s{T+4}, {WS_TAB+PADROW*128}
    s_mov_b32 exec_hi, 0
    buffer_store_dword v33, v32, {srd(S_WS)}, s{T+4} offen sc1
    s_mov_b64 exec, -1
K_NPAD:
    s_waitcnt vmcnt(0)
    """)
    st(3)
    arrive(A, L_CP, rtn=T+3)
    A(f"""
    """)
    def pfa():
        A("v_lshlrev_b32 v31, 7, v0")
        A(f"buffer_load_ubyte v{V_DUMMY}, v31, {srd(S_WS)}, s{S_PF} offen sc1")
    if PFA == 1:
        A(f"v_mov_b32 v120, {L_C3}")
        spin_lds(A, "K_SPA", 7)
        pfa()
    A("s_branch K_PUBQ")
    BN, RK, TM = 48, 56, 84
    A(f"""
K_BIN:
    v_mov_b32 v31, v34
    s_mul_i32 s{T+10}, s2, {CH//4}
    v_add_u32 v32, s{T+10}, v31
    v_cmp_gt_u32 vcc, {NT}, v31
    s_mov_b32 s{T+11}, {E//4}
    v_cmp_gt_u32 {sr(T+4,2)}, s{T+11}, v32
    s_mov_b32 s{T+11}, {E//4 - NT}
    v_cmp_gt_u32 {sr(T+6,2)}, s{T+11}, v32
    s_and_b64 {sr(T+4,2)}, {sr(T+4,2)}, vcc
    s_and_b64 {sr(T+6,2)}, {sr(T+6,2)}, vcc
    s_mov_b32 s{T+8}, 42800
    s_movk_i32 s{T+9}, {NPB}
    v_mov_b32 v33, 1
    s_setprio 3
    """)
    for hlf in range(2):
        A(f"s_mov_b64 exec, {sr(T+4+2*hlf,2)}")
        A(f"s_waitcnt vmcnt({5-hlf})")
        ks = range(4*hlf, 4*hlf+4)
        for k in ks: A(f"v_mul_u32_u24 v{BN+k}, s{T+8}, v{DS_+k}")
        for k in ks: A(f"v_lshrrev_b32 v{BN+k}, 23, v{BN+k}")
        for k in ks:
            A(f"v_mul_u32_u24 v{TM+k}, s{T+9}, v{BN+k}")
            A(f"v_lshlrev_b32 v{BN+k}, 2, v{BN+k}")
            A(f"ds_add_rtn_u32 v{RK+k}, v{BN+k}, v33 offset:{L_HIST}")
        for k in ks: A(f"v_sub_u32 v{DS_+k}, v{DS_+k}, v{TM+k}")
    A("s_mov_b64 exec, -1")
    A(f"v_lshlrev_b32 v34, 3, v{V_LANE}")
    arrive(A, L_C2)
    st(3)
    spin_lds(A, "K_SP2", 7)
    st(4)
    A(f"""
    ds_read_b64 v[36:37], v34 offset:{L_HIST}
    s_waitcnt lgkmcnt(0)
    v_add_u32 v36, 3, v36
    v_add_u32 v37, 3, v37
    v_and_b32 v36, -4, v36
    v_and_b32 v37, -4, v37
    v_add_u32 v38, v36, v37
    v_mov_b32 v39, v38
    """)
    scan(A, 39)
    A(f"""
    v_sub_u32 v38, v39, v38
    v_add_u32 v39, v38, v36
    ds_write_b64 v34, v[38:39] offset:{L_OFF}
    """)
    for hlf in range(2):
        A(f"s_mov_b64 exec, {sr(T+4+2*hlf,2)}")
        for k in range(4*hlf, 4*hlf+4):
            A(f"ds_read_b32 v{TM+k}, v{BN+k} offset:{L_OFF}")
    A(f"""
    s_mov_b32 s{T+8}, 0x05040100
    s_mov_b32 s{T+9}, 0x07060100
    s_waitcnt lgkmcnt(0)
    """)
    for hlf in range(2):
        A(f"s_mov_b64 exec, {sr(T+4+2*hlf,2)}")
        for k in range(4*hlf, 4*hlf+4):
            A(f"v_add_u32 v{TM+k}, v{TM+k}, v{RK+k}")
            A(f"v_lshlrev_b32 v{RK+k}, 2, v{TM+k}")
            A(f"ds_write_b8 v{TM+k}, v{DS_+k} offset:{L_LOC}")
    A("s_mov_b64 exec, -1")
    st(5)
    for hlf in range(2):
        A(f"s_waitcnt vmcnt({1-hlf})")
        A(f"s_mov_b64 exec, {sr(T+4+2*hlf,2)}")
        for k in range(4*hlf, 4*hlf+4):
            A(f"v_perm_b32 v{SR_+k}, v{EE_+k//2}, v{SR_+k}, s{T+8+(k&1)}")
            A(f"ds_write_b32 v{RK+k}, v{SR_+k} offset:{L_REC}")
    A(f"""
    s_mov_b64 exec, -1
    v_lshlrev_b32 v32, 4, v31
    v_lshlrev_b32 v33, 3, v31
    s_mul_i32 s{T+10}, s2, {CHP*4}
    s_add_u32 s{T+11}, s{T+10}, {448*16}
    s_mul_i32 s{T+12}, s2, {CHP}
    s_add_u32 s{T+12}, s{T+12}, {WS_LOC}
    """)
    arrive(A, L_C3)
    spin_lds(A, "K_SP3", 7)
    st(6)
    A(f"""
    ds_read_b128 v[64:67], v32 offset:{L_REC}
    ds_read_b128 v[68:71], v32 offset:{L_REC+448*16}
    ds_read_b64 v[72:73], v33 offset:{L_LOC}
    s_waitcnt lgkmcnt(2)
    buffer_store_dwordx4 v[64:67], v32, {srd(S_WS)}, s{T+10} offen sc1
    s_waitcnt lgkmcnt(1)
    buffer_store_dwordx4 v[68:71], v32, {srd(S_WS)}, s{T+11} offen sc1
    s_waitcnt lgkmcnt(0)
    buffer_store_dwordx2 v[72:73], v33, {srd(S_WS)}, s{T+12} offen sc1
    """)
    arrive(A, L_CY)
    A("s_waitcnt vmcnt(0)")
    st(7)
    arrive(A, L_CP, rtn=T+3)
    A(f"""
    s_branch K_PUBQ
K_HELP:
    s_sub_u32 s{T+2}, s{S_WAVE}, 14
    s_xor_b32 s{T+3}, s{S_HALF}, 1
    s_lshl_b32 s{T+3}, s{T+3}, 1
    s_add_u32 s{T+3}, s{T+3}, s{T+2}
    s_mul_i32 s{T+3}, s{T+3}, 6144
    s_add_u32 m0, s{T+3}, {L_XST}
    s_add_u32 s{T+3}, s{T+3}, s{T+7}
    s_cmp_eq_u32 s{T+2}, 0
    s_cselect_b32 s{S_A}, s{KWA}, s{KWU}
    s_cselect_b32 s{S_A+1}, s{KWA+1}, s{KWU+1}
    s_mov_b32 s{S_A+2}, 8192
    s_mov_b32 s{S_A+3}, 0x20000
    """)
    spin_lds(A, "K_SPE", 16)
    mk_srd(A, S_B, KDBG, 256)
    A(f"""
    s_cmp_lg_u32 s{S_WAVE}, 15
    s_cbranch_scc1 K_HA
    v_mov_b32 v32, 0
    v_mov_b32 v125, 1
    s_mov_b64 exec, 1
    buffer_atomic_add v125, v32, {srd(S_B)}, 0 offen sc0 sc1
    s_mov_b64 exec, -1
K_HA:
    buffer_load_dwordx4 v24, {srd(S_X)}, s{T+3} offen lds
    buffer_load_dwordx4 v25, {srd(S_X)}, s{T+3} offen offset:1024 lds
    buffer_load_dwordx4 v24, {srd(S_X)}, s{T+3} offen offset:2048 lds
    buffer_load_dwordx4 v25, {srd(S_X)}, s{T+3} offen offset:3072 lds
    s_add_u32 m0, m0, 4096
    s_add_u32 s{T+3}, s{T+3}, 4096
    buffer_load_dwordx4 v24, {srd(S_X)}, s{T+3} offen lds
    buffer_load_dwordx4 v25, {srd(S_X)}, s{T+3} offen offset:1024 lds
    v_lshrrev_b32 v30, 2, v{V_LANE}
    v_lshlrev_b32 v30, 7, v30
    v_and_b32 v31, 3, v{V_LANE}
    v_lshl_add_u32 v30, v31, 4, v30
    s_lshl_b32 s{T+4}, s{T+2}, 12
    s_add_u32 m0, s{T+4}, {L_WAU}
    s_mov_b32 s{T+4}, s{T+6}
    """)
    for i4 in range(4):
        A(f"buffer_load_dwordx4 v30, {srd(S_A)}, s{T+4} offen offset:{1024*i4} lds")
        A(f"s_add_u32 s{T+4}, s{T+4}, 1024")
    A("s_waitcnt vmcnt(0)")
    st(2)
    arrive(A, L_CY)
    A(f"""
    s_branch K_JOIN
K_PUB:
    v_lshlrev_b32 v122, 3, v{V_LANE}
    ds_read_b64 v[36:37], v122 offset:{L_HIST}
    ds_read_b64 v[38:39], v122 offset:{L_OFF}
    s_lshl_b32 s{T+4}, s2, 10
    s_add_u32 s{T+4}, s{T+4}, {WS_OFFS}
    v_lshlrev_b32 v122, 4, v{V_LANE}
    v_mov_b32 v41, s{S_T1}
    v_mov_b32 v43, s{S_T1}
    s_waitcnt lgkmcnt(0)
    v_add_u32 v36, 3, v36
    v_add_u32 v37, 3, v37
    v_lshrrev_b32 v36, 2, v36
    v_lshrrev_b32 v37, 2, v37
    v_lshrrev_b32 v38, 2, v38
    v_lshrrev_b32 v39, 2, v39
    v_lshl_or_b32 v40, v36, 10, v38
    v_lshl_or_b32 v42, v37, 10, v39
    v_or_b32 v40, s{S_T0}, v40
    v_or_b32 v42, s{S_T0}, v42
    buffer_store_dwordx4 v[40:43], v122, {srd(S_WS)}, s{T+4} offen sc1
    s_nop 1
    s_setpc_b64 {sr(S_RET,2)}
K_PUBQ:
    s_cmp_lg_u32 s{T+3}, 13
    s_cbranch_scc1 K_JOIN
    s_call_b64 {sr(S_RET,2)}, K_PUB
K_JOIN:
    s_setprio 0
    v_lshrrev_b32 v28, 3, v0
    v_lshlrev_b32 v24, 10, v28
    v_and_b32 v26, 7, v{V_LANE}
    v_mul_u32_u24 v28, {CHP//4}, v28
    v_add_u32 v28, v28, v26
    s_lshl_b32 s{T+5}, s{S_BIN}, 3
    s_add_u32 s{T+5}, s{T+5}, {WS_OFFS}
    s_add_u32 s{T+14}, s{T+5}, {128*1024}
    s_mov_b32 s{T+2}, {128*CHP*4}
    s_mov_b32 s{T+3}, {WS_LOC}
    s_mov_b32 s{T+4}, {WS_LOC+128*CHP}
    v_mov_b32 v31, 0x04000000
    v_mov_b32 v38, 4
    s_mov_b32 s{T+12}, 0xfff00000
    s_mov_b32 s{T+13}, {SPIN}
    """)
    for i in range(2*R): A(f"v_mov_b32 v{V_E+i}, 0")
    if RPF:
        A(f"""
        s_bfe_u32 s{T}, s2, 0x20001
        s_lshr_b32 s{T+1}, s2, 3
        v_lshrrev_b32 v25, 5, v0
        v_mul_u32_u24 v25, {CHP*4}, v25
        v_and_b32 v27, 31, v0
        v_lshl_add_u32 v25, v27, 7, v25
        s_mul_i32 s{T+6}, s{T}, {26*128}
        s_sub_u32 s{T+6}, s{T+6}, 384
        s_max_i32 s{T+6}, s{T+6}, 0
        s_mul_i32 s{T+7}, s{T+1}, {8*CHP*4}
        s_add_u32 s{T+6}, s{T+6}, s{T+7}
        v_lshrrev_b32 v27, 3, v{V_LANE}
        v_mul_u32_u24 v27, {CHP}, v27
        v_lshl_add_u32 v27, v26, 7, v27
        s_mul_i32 s{T+8}, s{T}, 832
        s_sub_u32 s{T+8}, s{T+8}, 64
        s_max_i32 s{T+8}, s{T+8}, 0
        s_mul_i32 s{T+9}, s{T+1}, {8*CHP}
        s_add_u32 s{T+8}, s{T+8}, s{T+9}
        s_add_u32 s{T+8}, s{T+8}, {WS_LOC}
        s_cmp_eq_u32 s{S_WAVE}, 4
        s_cselect_b32 s{T+6}, s{T+8}, s{T+6}
        s_cselect_b64 vcc, -1, 0
        v_cndmask_b32 v25, v25, v27, vcc
        """)
    if "--nojoin" not in sys.argv:
        A("s_barrier")
    if RPF:
        A(f"""
        s_cmp_gt_u32 s{S_WAVE}, 4
        s_cbranch_scc1 K_NRPF
        buffer_load_ubyte v{V_DUMMY}, v25, {srd(S_WS)}, s{T+6} offen sc1
K_NRPF:
        """)
    st(8)
    A(f"""
K_POLL:
    buffer_load_dwordx2 v[32:33], v24, {srd(S_WS)}, s{T+5} offen sc1
    buffer_load_dwordx2 v[34:35], v24, {srd(S_WS)}, s{T+14} offen sc1
    s_waitcnt vmcnt(0)
    v_and_b32 v36, s{T+12}, v32
    v_and_b32 v37, s{T+12}, v34
    v_cmp_eq_u32 vcc, s{S_T1}, v33
    v_cmp_eq_u32 {sr(T+6,2)}, s{S_T1}, v35
    v_cmp_eq_u32 {sr(T+8,2)}, s{S_T0}, v36
    v_cmp_eq_u32 {sr(T+10,2)}, s{S_T0}, v37
    s_and_b64 vcc, vcc, {sr(T+6,2)}
    s_and_b64 {sr(T+8,2)}, {sr(T+8,2)}, {sr(T+10,2)}
    s_and_b64 vcc, vcc, {sr(T+8,2)}
    s_cmp_eq_u64 vcc, -1
    s_cbranch_scc1 K_GOT
    s_sleep {opt("--psleep", 2)}
    s_sub_u32 s{T+13}, s{T+13}, 1
    s_cmp_lg_u32 s{T+13}, 0
    s_cbranch_scc1 K_POLL
    v_mov_b32 v37, {L_FLAG}
    ds_write_b32 v37, v38
    v_mov_b32 v32, 0
    v_mov_b32 v34, 0
K_GOT:
    """)
    st(9)
    A(f"""
    v_bfe_u32 v40, v32, 10, 10
    v_bfe_u32 v41, v34, 10, 10
    v_and_b32 v32, 0x3ff, v32
    v_and_b32 v33, 0x3ff, v34
    v_cmp_lt_u32 {sr(T+6,2)}, v26, v40
    v_cmp_lt_u32 {sr(T+8,2)}, v26, v41
    v_add_u32 v32, v32, v28
    v_add_u32 v33, v33, v28
    v_cndmask_b32 v42, v31, v32, {sr(T+6,2)}
    v_cndmask_b32 v43, v31, v33, {sr(T+8,2)}
    v_lshlrev_b32 v36, 2, v42
    v_lshlrev_b32 v37, 2, v43
    v_lshlrev_b32 v42, 4, v42
    v_lshlrev_b32 v43, 4, v43
    buffer_load_dword v72, v36, {srd(S_WS)}, s{T+3} offen sc1
    buffer_load_dword v73, v37, {srd(S_WS)}, s{T+4} offen sc1
    buffer_load_dwordx4 v[64:67], v42, {srd(S_WS)}, 0 offen sc1
    buffer_load_dwordx4 v[68:71], v43, {srd(S_WS)}, s{T+2} offen sc1
    v_add_u32 v36, 8, v26
    v_add_u32 v33, {128*CHP//4}, v33
    v_mov_b32 v37, {L_FLAG+4}
    v_lshlrev_b32 v{V_WC}, 16, v{V_WC+2}
    v_and_b32 v{V_WC+1}, s{S_MSK}, v{V_WC+2}
    v_lshlrev_b32 v{V_WC+2}, 16, v{V_WC+3}
    v_and_b32 v{V_WC+3}, s{S_MSK}, v{V_WC+3}
    s_mov_b32 s{T}, 0x{f2u(-LOG2E):08x}
    v_mul_f32 v{V_WC}, s{T}, v{V_WC}
    v_mul_f32 v{V_WC+1}, s{T}, v{V_WC+1}
    v_mul_f32 v{V_WC+2}, s{T}, v{V_WC+2}
    v_mul_f32 v{V_WC+3}, s{T}, v{V_WC+3}
    """)
    for r in range(2):
        A(f"""
        v_cmpx_lt_u32 vcc, v36, v{40+r}
        s_cbranch_execz K_NOV{r}
        ds_add_rtn_u32 v39, v37, v38
        v_add_u32 v42, 8, v{32+r}
        s_waitcnt lgkmcnt(0)
        v_cmpx_gt_u32 vcc, {BLCAP*4}, v39
        ds_write_b32 v39, v42 offset:{L_BL}
K_NOV{r}:
        s_mov_b64 exec, -1
        """)
    A(f"""
    v_max_u32 v36, v40, v41
    v_mov_b32 v37, {L_FLAG}
    v_cmpx_lt_u32 vcc, {16 if not FORCE_SLOW else 0}, v36
    ds_write_b32 v37, v38
    s_mov_b64 exec, -1
    """)
    arrive(A, L_CL)
    A(f"""
    s_cmp_ge_u32 s{S_WAVE}, 7
    s_cbranch_scc1 K_INA
    ; ---- A / U job for tile = wave
    v_and_b32 v28, 31, v{V_LANE}
    v_lshrrev_b32 v29, 5, v{V_LANE}
    v_bfe_u32 v30, v28, 1, 3
    v_xor_b32 v30, v30, v29
    v_lshlrev_b32 v30, 4, v30
    v_lshl_add_u32 v30, v28, 7, v30
    s_lshl_b32 s{T+12}, s{S_HALF}, 6
    v_xor_b32 v30, s{T+12}, v30
    s_lshl_b32 s{T+12}, s{S_WAVE}, 12
    s_add_u32 s{T+12}, s{T+12}, {L_XST}
    v_add_u32 v30, s{T+12}, v30
    v_bfe_u32 v25, v{V_LANE}, 2, 2
    v_lshl_add_u32 v25, v29, 3, v25
    v_lshlrev_b32 v34, 6, v25
    v_bfe_u32 v35, v{V_LANE}, 4, 1
    v_lshl_add_u32 v34, v35, 5, v34
    v_and_b32 v36, 1, v{V_LANE}
    v_bfe_u32 v37, v{V_LANE}, 1, 1
    v_lshl_add_u32 v36, v36, 1, v37
    v_lshl_add_u32 v34, v36, 3, v34
    s_lshl_b32 s{T+12}, s{S_HALF}, 11
    v_add_u32 v34, s{T+12}, v34
    v_xor_b32 v35, 2048, v34
    v_add_u32 v34, {L_WAU}, v34
    v_add_u32 v35, {L_WAU}, v35
    v_mov_b32 v120, {L_CY}
    """)
    spin_lds(A, "K_SPY", 16)
    XA = 76
    Wu = [8, 12, 16, 40]
    for u in range(4):
        A(f"v_xor_b32 v31, {32*u}, v30")
        A(f"ds_read_b128 {vr(XA+4*u,4)}, v31")
        av = 34 if u < 2 else 35
        for tt in range(2):
            A(f"ds_read_b64_tr_b16 {vr(104+4*u+2*tt,2)}, v{av} offset:{((u&1)*16+4*tt)*64}")
        for tt in range(2):
            A(f"ds_read_b64_tr_b16 {vr(Wu[u]+2*tt,2)}, v{av} offset:{4096+((u&1)*16+4*tt)*64}")
    A(f"""
    s_lshl_b32 s{T+12}, s{S_WAVE}, 5
    v_add_u32 v28, s{T+12}, v28
    v_mul_u32_u24 v24, {AUS}, v28
    v_lshl_add_u32 v24, v29, 5, v24
    v_add_u32 v24, {L_AU}, v24
    """)
    for u in range(4):
        A(f"s_waitcnt lgkmcnt({15-5*u})")
        A(mfma(vr(48,16), vr(104+4*u,4), vr(XA+4*u,4), "0" if u == 0 else vr(48,16)))
    for u in range(4):
        A(mfma(vr(104,16), vr(Wu[u],4), vr(XA+4*u,4), "0" if u == 0 else vr(104,16)))
    A(f"""
    s_mov_b32 s{T+13}, 0x{f2u(-LOG2E):08x}
    v_mov_b32 v31, 0x{f2u(-float(SH)):08x}
    """)
    A(f"v_max3_f32 v32, |v48|, |v49|, |v50|")
    for i in range(3, 15, 2): A(f"v_max3_f32 v32, |v{48+i}|, |v{48+i+1}|, v32")
    A(f"v_max_f32 v32, |v63|, v32")
    for i in range(16): A(f"v_fma_f32 v{48+i}, v{48+i}, s{T+13}, v31")
    A(f"""
    s_mov_b32 s{T+12}, 0x05040100
    s_mov_b32 s{T+13}, 0x07060302
    v_mov_b32 v33, {L_FLAG}
    v_cmpx_gt_u32 vcc, 200, v28
    ds_write_b128 v24, v[48:51]
    ds_write_b128 v24, v[52:55] offset:16
    ds_write_b128 v24, v[56:59] offset:64
    ds_write_b128 v24, v[60:63] offset:80
    """)
    for i in range(8): A(f"v_cvt_pk_bf16_f32 v{8+i}, v{104+2*i}, v{105+2*i}")
    for i in range(8):
        A(f"v_perm_b32 v{104+2*i}, v{8+i}, v{XA+i}, s{T+12}")
        A(f"v_perm_b32 v{105+2*i}, v{8+i}, v{XA+i}, s{T+13}")
    A(f"""
    ds_write_b128 v24, v[104:107] offset:128
    ds_write_b128 v24, v[108:111] offset:144
    ds_write_b128 v24, v[112:115] offset:192
    ds_write_b128 v24, v[116:119] offset:208
    v_cmpx_gt_u32 vcc, {NPB}, v28
    v_cmpx_nge_f32 vcc, 0x{f2u(49.0):08x}, v32
    ds_write_b32 v33, v33
    s_mov_b64 exec, -1
    """)
    st(5)
    A(f"""
K_INA:
    v_mov_b32 v39, 2
    s_cmp_lt_u32 s{S_WAVE}, 14
    s_cbranch_scc1 K_INA2
    """)
    spin_lds(A, "K_SPL", 16)
    A(f"""
    v_mov_b32 v37, {L_FLAG+4}
    v_subrev_u32 v36, {14*64}, v0
    v_lshlrev_b32 v36, 2, v36
    ds_read_b32 v35, v37
    ds_read_b32 v42, v36 offset:{L_BL}
    v_mov_b32 v31, 0x10000000
    s_waitcnt lgkmcnt(0)
    v_cmp_lt_u32 {sr(T+10,2)}, v36, v35
    v_lshlrev_b32 v43, 4, v42
    v_lshlrev_b32 v42, 2, v42
    v_cndmask_b32 v43, v31, v43, {sr(T+10,2)}
    v_cndmask_b32 v42, v31, v42, {sr(T+10,2)}
    buffer_load_dword v74, v42, {srd(S_WS)}, s{T+3} offen sc1
    buffer_load_dwordx4 v[76:79], v43, {srd(S_WS)}, 0 offen sc1
    v_mov_b32 v37, {L_FLAG}
    v_cmpx_lt_u32 vcc, {BLCAP*4}, v35
    ds_write_b32 v37, v38
    s_mov_b64 exec, -1
    """)
    arrive(A, L_CL)
    A(f"""
    s_waitcnt vmcnt(4)
    s_branch K_INB
K_INA2:
    s_waitcnt vmcnt(2)
K_INB:
    """)
    st(10)
    def ins_atom(locw, a0):
        for k in range(4):
            A(f"v_lshlrev_b32_sdwa v{a0+k}, v39, v{locw} dst_sel:DWORD dst_unused:UNUSED_PAD src0_sel:DWORD src1_sel:BYTE_{k}")
            A(f"ds_add_rtn_u32 v{a0+k}, v{a0+k}, v38")
    def ins_write(a0, rec):
        for k in range(4):
            A(f"ds_write_b32 v{a0+k}, v{rec+k}")
    A(f"s_mov_b64 exec, {sr(T+6,2)}")
    ins_atom(72, 80)
    A(f"s_mov_b64 exec, {sr(T+8,2)}")
    ins_atom(73, 84)
    A(f"""
    s_cmp_lt_u32 s{S_WAVE}, 14
    s_cbranch_scc1 K_INC
    s_mov_b64 exec, {sr(T+10,2)}
    s_waitcnt vmcnt(0)
    """)
    ins_atom(74, 88)
    A("s_waitcnt lgkmcnt(0)")
    ins_write(88, 76)
    A(f"""
K_INC:
    s_mov_b64 exec, {sr(T+8,2)}
    s_waitcnt vmcnt(0) lgkmcnt(0)
    """)
    ins_write(84, 68)
    A(f"s_mov_b64 exec, {sr(T+6,2)}")
    ins_write(80, 64)
    A(f"""
    s_mov_b64 exec, -1
    s_cmp_ge_u32 s{S_WAVE}, 13
    s_cbranch_scc1 K_IND
    v_mov_b32 v120, {L_CL}
    v_min_u32 v30, 783, v0
    v_lshlrev_b32 v30, 7, v30
    """)
    spin_lds(A, "K_SPM", 18)
    A(f"""
    buffer_load_ubyte v{V_DUMMY}, v30, {srd(S_WS)}, s{S_PF} offen sc1
K_IND:
    s_cmp_lg_u32 s{S_WAVE}, 15
    s_cbranch_scc1 K_INE
    v_readfirstlane_b32 s{T}, v125
    s_cmp_lg_u32 s{T}, 255
    s_cbranch_scc1 K_INE
    v_mov_b32 v30, 0
    v_mov_b32 v125, s{S_T1}
    s_mov_b32 s{T}, {WS_EP+4}
    s_mov_b64 exec, 1
    buffer_store_dword v125, v30, {srd(S_WS)}, s{T} offen sc1
    s_mov_b64 exec, -1
K_INE:
    s_barrier
    """)
    st(11)
    A(f"""
    s_cmp_ge_u32 s{S_WAVE}, 4
    s_cbranch_scc1 K_S1
    s_setprio 3
    v_lshlrev_b32 v28, 2, v0
    ds_read_b32 v29, v28
    v_mul_u32_u24 v30, {LS}, v0
    v_add_u32 v30, {L_LIST-4}, v30
    v_cmp_gt_u32 vcc, 200, v0
    s_mov_b64 {sr(T+6,2)}, vcc
    v_cmp_gt_u32 vcc, {NPB}, v0
    v_mov_b32 v37, {L_FLAG}
    v_mov_b32 v36, 1
    s_waitcnt lgkmcnt(0)
    v_sub_u32 v29, v29, v30
    v_lshrrev_b32 v29, 3, v29
    v_max_u32 v31, 1, v29
    v_min_u32 v31, 63, v31
    v_cndmask_b32 v31, 0, v31, vcc
    v_lshlrev_b32 v32, 2, v31
    v_sub_u32 v32, 252, v32
    s_mov_b64 exec, {sr(T+6,2)}
    ds_add_rtn_u32 v33, v32, v36 offset:{L_H2}
    v_cmpx_lt_u32 vcc, {CAP//2}, v29
    ds_write_b32 v37, v38
    s_mov_b64 exec, -1
    v_lshlrev_b32 v34, 2, v{V_LANE}
    s_waitcnt lgkmcnt(0)
K_S1:
    s_barrier
    s_cmp_ge_u32 s{S_WAVE}, 4
    s_cbranch_scc1 K_S2
    ds_read_b32 v35, v34 offset:{L_H2}
    s_waitcnt lgkmcnt(0)
    v_mov_b32 v36, v35
    """)
    scan(A, 36)
    A(f"""
    v_sub_u32 v36, v36, v35
    ds_bpermute_b32 v36, v32, v36
    s_waitcnt lgkmcnt(0)
    v_add_u32 v33, v33, v36
    v_lshlrev_b32 v36, 2, v33
    v_and_b32 v35, 7, v33
    v_lshrrev_b32 v33, 1, v33
    s_mov_b64 exec, {sr(T+6,2)}
    ds_write_b32 v36, v0 offset:{L_ORD}
    v_cmpx_eq_u32 vcc, 0, v35
    ds_write_b32 v33, v31 offset:{L_LG}
    s_mov_b64 exec, -1
K_S2:
    v_and_b32 v34, 31, v{V_LANE}
    v_lshlrev_b32 v34, 2, v34
    v_mov_b32 v37, {L_FLAG}
    s_and_b32 s{S_WP}, s{S_WAVE}, 3
    s_lshl_b32 s{S_WP}, s{S_WP}, 2
    s_lshr_b32 s{T}, s{S_WAVE}, 2
    s_add_u32 s{S_WP}, s{S_WP}, s{T}
    s_waitcnt lgkmcnt(0)
    s_barrier
    """)
    st(12)
    A(f"""
    s_setprio 3
    ds_read_b32 v35, v34 offset:{L_LG}
    ds_read_b32 v38, v37
    s_waitcnt lgkmcnt(0)
    v_mov_b32 v36, v35
    v_readfirstlane_b32 s{T}, v38
    s_cmp_lg_u32 s{T}, 0
    s_cbranch_scc1 K_SLOW
    """)
    scan(A, 36, upto=32)
    A(f"""
    v_readlane_b32 s{S_TT}, v36, 31
    s_mul_i32 s{T+1}, s{S_WP}, s{S_TT}
    s_add_u32 s{T+2}, s{T+1}, s{S_TT}
    s_lshr_b32 s{T+1}, s{T+1}, 4
    s_lshr_b32 s{T+2}, s{T+2}, 4
    s_sub_u32 s{S_N1}, s{T+2}, s{T+1}
    s_sub_u32 s{S_N1}, s{S_N1}, 1
    s_min_u32 s{S_N1}, s{S_N1}, 58
    v_cmp_ge_u32 vcc, s{T+1}, v36
    s_bcnt1_i32_b32 s{S_GC}, vcc_lo
    s_lshl_b32 s{T+3}, s{S_GC}, 5
    v_add_u32 v{V_OA}, s{T+3}, v{V_OA}
    ds_read_b32 v{V_LC}, v{V_OA} offset:{L_ORD}
    ds_read_b32 v{V_LN}, v{V_OA} offset:{L_ORD+32}
    v_sub_u32 v35, v36, v35
    v_readlane_b32 s{S_GS}, v35, s{S_GC}
    s_mov_b32 s{S_GF}, s{S_GC}
    v_subrev_u32 v36, s{T+1}, v36
    v_subrev_u32 v36, 1, v36
    v_cmp_gt_u32 vcc, 64, v36
    v_mov_b32 v40, 1
    v_mov_b32 v41, 0
    v_lshlrev_b64 v[40:41], v36, v[40:41]
    v_cndmask_b32 v40, 0, v40, vcc
    v_cndmask_b32 v41, 0, v41, vcc
    """)
    for sh in (1, 2, 4, 8):
        for v in (40, 41):
            A(f"v_or_b32_dpp v{v}, v{v}, v{v} row_shr:{sh} row_mask:0xf bank_mask:0xf")
    for v in (40, 41):
        A(f"v_or_b32_dpp v{v}, v{v}, v{v} row_bcast:15 row_mask:0xa bank_mask:0xf")
    A(f"""
    v_readlane_b32 s{S_FL}, v40, 31
    v_readlane_b32 s{S_FL+1}, v41, 31
    s_sub_u32 s{T+4}, s{T+1}, s{S_GS}
    s_cmp_lg_u32 s{T+4}, 0
    s_cselect_b32 s{S_HEAD}, 1, 0
    s_lshl_b32 s{T+4}, s{T+4}, 3
    s_add_u32 s{T+4}, s{T+4}, {L_LIST}
    s_movk_i32 s{T+5}, {LS}
    v_mov_b32 v36, s{T+4}
    s_waitcnt lgkmcnt(0)
    v_mad_u32_u24 v{V_P}, v{V_LC}, s{T+5}, v36
    v_mov_b32 v{V_NB}, v{V_LN}
    """)
    for j in range(R):
        for x in rd_rec(0, j): A(x)
        if j == 0:
            A(f"""
            s_movk_i32 s{T+5}, {AUS}
            v_mad_u32_u24 v36, v{V_LC}, s{T+5}, v{V_AUC}
            ds_read_b128 {vr(V_EA,4)}, v36
            ds_read_b128 {vr(V_UX,4)}, v36 offset:128
            v_mad_u32_u24 v36, v{V_LN}, s{T+5}, v{V_AUC}
            ds_read_b128 {vr(V_AN,4)}, v36
            """)
        A(f"""
        v_add_u32 v{V_P}, 8, v{V_P}
        s_bitcmp1_b64 {sr(S_FL,2)}, {j}
        s_cbranch_scc0 K_PR{j}
        s_mov_b32 s{S_U}, -1
        s_call_b64 {sr(S_RET2,2)}, K_FETCH
K_PR{j}:
        """)
        if j < D:
            A("s_waitcnt lgkmcnt(0)")
            for x in ld_rows(j): A(x)
    A(f"""
    s_lshr_b64 {sr(S_FF,2)}, {sr(S_FL,2)}, {R}
    s_or_b64 {sr(S_EV,2)}, {sr(S_FL,2)}, {sr(S_FF,2)}
    s_lshl_b64 {sr(T,2)}, 1, s{S_N1}
    s_or_b64 {sr(S_EV,2)}, {sr(S_EV,2)}, {sr(T,2)}
    s_lshr_b64 {sr(T+2,2)}, {sr(T,2)}, 2
    s_or_b64 {sr(S_EV,2)}, {sr(S_EV,2)}, {sr(T+2,2)}
    s_lshr_b64 {sr(T+2,2)}, {sr(T,2)}, 4
    s_or_b64 {sr(S_EV,2)}, {sr(S_EV,2)}, {sr(T+2,2)}
    s_lshr_b64 {sr(T+2,2)}, {sr(T,2)}, 7
    s_or_b64 {sr(S_EV,2)}, {sr(S_EV,2)}, {sr(T+2,2)}
    s_mov_b64 {sr(S_EVC,2)}, {sr(S_EV,2)}
    """)
    for i in range(4): A(f"v_exp_f32 v{V_EA+i}, v{V_EA+i}")
    for i in range(8): A(f"v_mov_b32 v{V_NUM+i}, 0")
    st(13)
    A(".p2align 6")
    A.label("K_LOOP")
    for u in range(U):
        d, r = u % D, u % R
        A(f"s_waitcnt vmcnt({2*(D-1)}) lgkmcnt(0)")
        for x in c_head(d, r) + ld_rows(d) + rd_rec(8*u, r) + c_rest(): A(x)
        A(f"s_bitcmp1_b64 {sr(S_EV,2)}, {u}")
        A(f"s_cbranch_scc1 K_EV{u}")
        A.label(f"K_RT{u}")
    A(f"""
    v_add_u32 v{V_P}, {8*U}, v{V_P}
    s_lshr_b64 {sr(S_EV,2)}, {sr(S_EV,2)}, {U}
    s_cbranch_scc1 K_LOOP
    s_branch K_TAIL
    """)
    for u in range(U):
        A(f"""
K_EV{u}:
        s_mov_b32 s{S_U}, {u}
        s_call_b64 {sr(S_RET,2)}, K_EVENT
        s_branch K_RT{u}
        """)
    A(f"""
K_FETCH:
    s_add_u32 s{S_GF}, s{S_GF}, 1
    s_lshl_b32 s{T}, s{S_U}, 3
    s_sub_u32 s{T}, {L_LIST-8}, s{T}
    v_mov_b32 v{V_X0}, s{T}
    s_movk_i32 s{T+1}, {LS}
    v_mad_u32_u24 v{V_P}, v{V_NB}, s{T+1}, v{V_X0}
    s_sub_u32 s{T}, s{S_GF}, s{S_GC}
    s_lshl_b32 s{T}, s{T}, 5
    v_add_u32 v{V_X0}, s{T}, v{V_OA}
    ds_read_b32 v{V_NB}, v{V_X0} offset:{L_ORD+32}
    s_setpc_b64 {sr(S_RET2,2)}
K_EVENT:
    s_ff1_i32_b64 s{T+4}, {sr(S_EVC,2)}
    s_bitset0_b64 {sr(S_EVC,2)}, s{T+4}
    s_bitcmp1_b64 {sr(S_FF,2)}, s{T+4}
    s_cbranch_scc0 K_E1
    s_call_b64 {sr(S_RET2,2)}, K_FETCH
K_E1:
    s_bitcmp1_b64 {sr(S_FL,2)}, s{T+4}
    s_cbranch_scc0 K_E3
    s_cmp_eq_u32 s{S_HEAD}, 1
    s_cbranch_scc0 K_E2
    s_mov_b32 s{S_HEAD}, 2
    """)
    for i in range(8): A(f"v_mov_b32 v{V_HD+i}, v{V_NUM+i}")
    for i in range(4): A(f"v_mov_b32 v{V_HUX+i}, v{V_UX+i}")
    A(f"v_mov_b32 v{V_HL}, v{V_LC}")
    A("s_branch K_E2B")
    A.label("K_E2")
    finalize(A, V_NUM, V_DEN, V_UX, V_LC)
    A(f"""
K_E2B:
    s_cmp_eq_u32 s{T+4}, s{S_N1}
    s_cbranch_scc1 K_DONE
    s_add_u32 s{S_GC}, s{S_GC}, 1
    v_add_u32 v{V_OA}, 32, v{V_OA}
    v_mov_b32 v{V_LC}, v{V_LN}
    ds_read_b32 v{V_LN}, v{V_OA} offset:{L_ORD+32}
    s_movk_i32 s{T+1}, {AUS}
    v_mad_u32_u24 v{V_X0}, v{V_LC}, s{T+1}, v{V_AUC}
    ds_read_b128 {vr(V_UX,4)}, v{V_X0} offset:128
    """)
    for i in range(4): A(f"v_exp_f32 v{V_EA+i}, v{V_AN+i}")
    for i in range(8): A(f"v_mov_b32 v{V_NUM+i}, 0")
    A(f"""
    s_waitcnt lgkmcnt(1)
    v_mad_u32_u24 v{V_X0}, v{V_LN}, s{T+1}, v{V_AUC}
    ds_read_b128 {vr(V_AN,4)}, v{V_X0}
K_E3:
    s_sub_u32 s{T}, s{S_N1}, s{T+4}
    s_cmp_eq_u32 s{T}, 0
    s_cbranch_scc1 K_TAIL
    s_cmp_gt_u32 s{T}, 7
    s_cbranch_scc1 K_E4
    s_setprio 2
    s_cmp_gt_u32 s{T}, 4
    s_cbranch_scc1 K_E4
    s_setprio 1
    s_cmp_gt_u32 s{T}, 2
    s_cbranch_scc1 K_E4
    s_setprio 0
K_E4:
    s_setpc_b64 {sr(S_RET,2)}
K_TAIL:
    s_lshl_b32 s{T}, s{S_WP}, 11
    s_add_u32 s{T}, s{T}, {L_SIDE}
    v_lshl_add_u32 v{V_X0}, v{V_LANE}, 4, s{T}
    ds_write_b128 v{V_X0}, {vr(V_NUM,4)}
    ds_write_b128 v{V_X0}, {vr(V_DEN,4)} offset:1024
K_DONE:
    s_waitcnt lgkmcnt(0)
    """)
    st(14)
    A(f"""
    s_barrier
    s_cmp_eq_u32 s{S_HEAD}, 2
    s_cbranch_scc0 K_FIN
    v_lshlrev_b32 v{V_X1}, 4, v{V_LANE}
K_HL:
    s_sub_u32 s{S_WP}, s{S_WP}, 1
    s_lshl_b32 s{T}, s{S_WP}, 11
    s_add_u32 s{T}, s{T}, {L_SIDE}
    v_add_u32 v{V_X0}, s{T}, v{V_X1}
    ds_read_b128 {vr(V_NUM,4)}, v{V_X0}
    ds_read_b128 {vr(V_DEN,4)}, v{V_X0} offset:1024
    s_mul_i32 s{T}, s{S_WP}, s{S_TT}
    s_lshr_b32 s{T}, s{T}, 4
    s_waitcnt lgkmcnt(0)
    """)
    for k in range(4): A(f"v_pk_add_f32 {vr(V_HD+2*k,2)}, {vr(V_HD+2*k,2)}, {vr(V_NUM+2*k,2)}")
    A(f"""
    s_cmp_gt_u32 s{T}, s{S_GS}
    s_cselect_b32 s{T}, s{S_WP}, 0
    s_cmp_gt_i32 s{T}, 0
    s_cbranch_scc1 K_HL
    """)
    finalize(A, V_HD, V_HD+4, V_HUX, V_HL)
    A.label("K_FIN")
    if diag:
        A("s_waitcnt vmcnt(0)")
        st(15)
        A(f"""
        s_lshl_b32 s{T}, s2, 4
        s_add_u32 s{T}, s{T}, s{S_WAVE}
        s_lshl_b32 s{T}, s{T}, 7
        s_add_u32 s{T}, s{T}, {WS_STAMP}
        v_lshlrev_b32 v{V_X0}, 2, v{V_LANE}
        v_cmpx_gt_u32 vcc, 32, v{V_LANE}
        buffer_store_dword v{V_STAMP}, v{V_X0}, {srd(S_WS)}, s{T} offen
        """)
    A("""
K_END:
    s_endpgm
    """)
    WQ = 64
    A(f"""
K_SLOW:
    s_setprio 0
    s_waitcnt vmcnt(0)
    v_mov_b32 v36, 0
    v_mov_b32 v37, 0
    v_mov_b32 v38, 0
    v_mov_b32 v39, 0
    v_lshlrev_b32 v29, 4, v0
    v_add_u32 v29, {L_LIST}, v29
    ds_write_b128 v29, v[36:39]
    ds_write_b128 v29, v[36:39] offset:16384
    ds_write_b128 v29, v[36:39] offset:32768
    ds_write_b128 v29, v[36:39] offset:49152
    v_and_b32 v28, 31, v{V_LANE}
    v_lshlrev_b32 v30, 1, v28
    s_lshl_b32 s{T}, s{S_HALF}, 6
    """)
    mk_srd(A, S_A, KWB, 8192)
    mk_srd(A, S_B, KWV, 8192)
    A(f"s_mov_b32 s{T+1}, s{T}")
    for k2 in range(32):
        A(f"""
        s_mov_b32 exec_hi, 0
        buffer_load_ushort v32, v30, {srd(S_A)}, s{T+1} offen
        buffer_load_ushort v33, v30, {srd(S_A)}, s{T+1} offen offset:128
        s_not_b64 exec, exec
        buffer_load_ushort v32, v30, {srd(S_B)}, s{T+1} offen
        buffer_load_ushort v33, v30, {srd(S_B)}, s{T+1} offen offset:128
        s_mov_b64 exec, -1
        s_add_u32 s{T+1}, s{T+1}, 256
        s_waitcnt vmcnt(0)
        v_lshl_or_b32 v{WQ+k2}, v33, 16, v32
        """)
    mk_srd(A, S_A, KWC, 128)
    A(f"""
    buffer_load_ushort v34, v30, {srd(S_A)}, s{T} offen
    v_lshlrev_b32 v30, 2, v28
    v_lshrrev_b32 v31, 5, v{V_LANE}
    v_xor_b32 v31, 1, v31
    v_lshl_add_u32 v35, v31, 7, v30
    v_add_u32 v35, {L_LIST}, v35
    v_add_u32 v30, {L_AU}, v30
    v_lshlrev_b32 v31, 2, v28
    s_waitcnt vmcnt(0) lgkmcnt(0)
    v_lshlrev_b32 v34, 16, v34
    v_mul_f32 v34, 0x{f2u(-LOG2E):08x}, v34
    """)
    mk_srd(A, S_A, KDST, E*4)
    mk_srd(A, S_B, KSRC, E*4)
    mk_srd(A, S_TAB, KE, E*2)
    XS = 34
    A(f"""
    s_barrier
    v_mov_b32 v36, v0
    s_mov_b32 s{S_T0}, {E}
K_SB:
    v_lshlrev_b32 v37, 2, v36
    v_lshlrev_b32 v38, 1, v36
    buffer_load_dword v39, v37, {srd(S_A)}, 0 offen
    buffer_load_dword v40, v37, {srd(S_B)}, 0 offen
    buffer_load_ushort v41, v38, {srd(S_TAB)}, 0 offen
    v_cmp_gt_u32 {sr(52,2)}, s{S_T0}, v36
    s_waitcnt vmcnt(0)
    v_subrev_u32 v39, s{S_NB}, v39
    v_cmp_gt_u32 vcc, {NPB}, v39
    s_and_b64 {sr(52,2)}, {sr(52,2)}, vcc
K_SE:
    s_cmp_eq_u64 {sr(52,2)}, 0
    s_cbranch_scc1 K_SN
    s_ff1_i32_b64 s34, {sr(52,2)}
    s_bitset0_b64 {sr(52,2)}, s34
    v_readlane_b32 s35, v40, s34
    v_readlane_b32 s{S_T1}, v39, s34
    v_readlane_b32 s{S_PF}, v41, s34
    s_min_u32 s35, s35, {N-1}
    s_lshl_b32 s35, s35, 7
    s_load_dwordx16 s[36:51], {sr(KX,2)}, s35
    s_add_u32 s35, s35, 64
    s_load_dwordx16 s[60:75], {sr(KX,2)}, s35
    s_mul_i32 s34, s{S_T1}, {AUS}
    v_add_u32 v42, s34, v30
    ds_read_b32 v43, v42
    s_lshl_b32 s{S_PF}, s{S_PF}, 16
    s_lshl_b32 s{S_T1}, s{S_T1}, 8
    v_mov_b32 v48, 0
    v_mov_b32 v49, 0
    s_waitcnt lgkmcnt(0)
    """)
    for k2 in range(16):
        A(f"v_dot2_f32_bf16 v48, s{36+k2}, v{WQ+k2}, v48")
        A(f"v_dot2_f32_bf16 v49, s{60+k2}, v{WQ+16+k2}, v49")
    A(f"""
    s_nop 3
    v_add_f32 v48, v48, v49
    v_fma_f32 v43, s{S_PF}, v34, v43
    v_mul_f32 v49, 0x{f2u(-LOG2E):08x}, v48
    v_add_f32 v49, v49, v43
    v_exp_f32 v49, v49
    v_add_f32 v49, s{S_C}, v49
    v_rcp_f32 v49, v49
    s_nop 1
    ds_bpermute_b32 v49, v31, v49
    v_cmp_gt_u32 vcc, 32, v{V_LANE}
    v_cndmask_b32 v48, v48, 1.0, vcc
    v_add_u32 v42, s{S_T1}, v35
    s_waitcnt lgkmcnt(0)
    v_mul_f32 v49, v49, v48
    ds_add_f32 v42, v49
    s_branch K_SE
K_SN:
    v_add_u32 v36, 1024, v36
    v_readfirstlane_b32 s34, v36
    s_cmp_lt_u32 s34, {E}
    s_cbranch_scc1 K_SB
    s_mov_b32 s{S_MSK}, 0xffff0000
    s_movk_i32 s34, {AUS}
    s_waitcnt lgkmcnt(0)
    s_barrier
    v_lshrrev_b32 v{V_LC}, 3, v0
    v_add_u32 v{V_X1}, {L_LIST}, v{V_I0+1}
    """)
    for it in range(2):
        A(f"""
        v_min_u32 v36, 199, v{V_LC}
        v_mad_u32_u24 v37, v36, s34, v{V_AUC}
        ds_read_b128 {vr(V_UX,4)}, v37 offset:128
        v_lshl_add_u32 v39, v36, 8, v{V_X1}
        ds_read_b128 {vr(V_NUM,4)}, v39
        ds_read_b128 {vr(V_DEN,4)}, v39 offset:128
        s_waitcnt lgkmcnt(0)
        """)
        finalize(A, V_NUM, V_DEN, V_UX, V_LC)
        A(f"v_add_u32 v{V_LC}, 128, v{V_LC}")
    A("s_endpgm")

HEADER = open(f"cdna_kernels/{NAME}.s.ref").read().split("; Override")[0]

def build(diag=False):
    A = Asm()
    out = HEADER
    out += f"; @launch grid=(256,1,1) block=(1024,1,1) lds={LDS}\n"
    out += '.amdgcn_target "amdgcn-amd-amdhsa--gfx950"\n.text\n'
    out += f".globl {NAME}_kernel\n.p2align 8\n.type {NAME}_kernel,@function\n"
    gen(A, diag)
    out += A.text()
    out += f""".section .rodata,"a"
.p2align 6
.amdhsa_kernel {NAME}_kernel
  .amdhsa_next_free_vgpr 128
  .amdhsa_next_free_sgpr 102
  .amdhsa_accum_offset 128
  .amdhsa_group_segment_fixed_size 0
  .amdhsa_kernarg_size 96
  .amdhsa_user_sgpr_count 2
  .amdhsa_user_sgpr_kernarg_segment_ptr 1
  .amdhsa_system_sgpr_workgroup_id_x 1
  .amdhsa_float_denorm_mode_32 3
.end_amdhsa_kernel
"""
    return out

if __name__ == "__main__":
    diag = "--diag" in sys.argv
    path = sys.argv[1] if len(sys.argv) > 1 and not sys.argv[1].startswith("--") else f"cdna_kernels/{NAME}.s"
    open(path, "w").write(build(diag))
    print("wrote", path, "LDS", LDS)
```

```python
import sys, struct
sys.path.insert(0, "gen")
import hazard
VERBOSE = "--verbose" in sys.argv
def opt(name, default):
    if name in sys.argv: return type(default)(sys.argv[sys.argv.index(name)+1])
    return default

NAME = "standalone__edge_featured_mpnn_gatedgcn__graph"
N, E = 25000, 800000
CH = 3128
NT = CH // 8
NPB = 196
CHP = 3584
WS_REC  = 0
WS_LOC  = 0x380000
WS_OFFS = 0x460000
WS_TF   = 0x4A0000
WS_EP   = 0x4A1000
WS_STAMP = 0x4B0000
WS_TAB  = 0x600000
HS      = 0x320000
PADROW  = 25088
WS_SIZE = WS_TAB + 2*HS
assert 256*CHP*4 <= WS_LOC and WS_LOC + 256*CHP <= WS_OFFS
L_CNT, L_H2, L_LG, L_FLAG, L_ORD, L_BL = 0, 1024, 1280, 1408, 1536, 2560
L_C2, L_C3, L_CX, L_CP, L_CY, L_CE, L_CL = L_FLAG+8, L_FLAG+12, L_FLAG+16, L_FLAG+20, L_FLAG+24, L_FLAG+28, L_FLAG+32
L_HIST, L_OFF, L_LOC = 3072, 3584, 4096
L_AU   = L_LOC + CHP
AUS    = 272
L_WBV  = L_AU
L_REC  = L_AU + 16384
L_SIDE = L_AU + 200*AUS
L_XST  = L_SIDE
L_WAU  = L_SIDE + 25600
L_LIST = L_SIDE + 33792
LS     = 296
CAP    = 74
LDS    = L_LIST + 200*LS
assert LDS <= 163840 and L_SIDE % 128 == 0, (LDS, L_SIDE)
BLCAP  = 128
SH = 48
LOG2E = 1.4426950408889634
D = opt("--depth", 2)
R = D + 1
U = D * R
SPIN = opt("--spin", 30000)
FORCE_SLOW = "--slow" in sys.argv
PFA = opt("--pfa", 0)
PFAN = opt("--pfan", 1)
ENT = " nt" if "--nt" in sys.argv else ""
XNT = " nt" if "--xnt" in sys.argv else ""
RPF = "--rpf" in sys.argv

def f2u(x): return struct.unpack("<I", struct.pack("<f", x))[0]

class Asm:
    def __init__(self): self.l = []
    def __call__(self, s):
        for ln in s.strip("\n").split("\n"):
            t = ln.strip()
            if not t: continue
            self.l.append(t if t.endswith(":") else "    " + t)
    def label(self, n): self.l.append(n + ":")
    def text(self): return "\n".join(hazard.fix(self.l, VERBOSE)) + "\n"

def vr(a, n=1): return f"v{a}" if n == 1 else f"v[{a}:{a+n-1}]"
def sr(a, n=1): return f"s{a}" if n == 1 else f"s[{a}:{a+n-1}]"
def srd(b): return f"s[{b}:{b+3}]"
def mfma(d, a, b, c): return f"v_mfma_f32_32x32x16_bf16 {d}, {a}, {b}, {c}"

def scan(A, v, op="v_add_u32", upto=64):
    for sh in (1, 2, 4, 8):
        A(f"{op}_dpp v{v}, v{v}, v{v} row_shr:{sh} row_mask:0xf bank_mask:0xf")
    if upto >= 32:
        A(f"{op}_dpp v{v}, v{v}, v{v} row_bcast:15 row_mask:0xa bank_mask:0xf")
    if upto >= 64:
        A(f"{op}_dpp v{v}, v{v}, v{v} row_bcast:31 row_mask:0xc bank_mask:0xf")

V_LANE, V_P, V_NB, V_OA = 1, 2, 3, 4
V_AUC, V_OUTC = 5, 6
V_LC = 7
V_NUM, V_DEN = 8, 12
V_EA, V_WC = 16, 20
V_T, V_V, V_M = 24, 32, 40
V_I0, V_I1 = 44, 46
V_S, V_Q = 48, 52
V_UX = 56
V_LN = 60
V_HL = 61
V_X0, V_X1 = 62, 63
V_DAT = 64
V_E = 96
V_HD = 104
V_HUX = 112
V_AN = 116
V_DUMMY = 126
V_STAMP = 127
S_WS, S_TAB, S_OUT, S_X = 4, 8, 12, 16
S_A, S_B = 20, 24
S_C = 28
S_BIN, S_HALF, S_WAVE, S_WP = 30, 31, 32, 33
S_EV, S_EVC, S_FL, S_FF = 34, 36, 38, 40
S_N1, S_GC, S_GF, S_HEAD, S_U, S_TT, S_GS = 42, 43, 44, 45, 46, 47, 48
S_MSK = 49
S_RET, S_RET2 = 50, 52
S_EPS = 54
S_T0, S_T1 = 56, 57
S_PF = 58
S_NB = 59
S_T = 60
S_K = 76
KX, KE, KSRC, KDST, KWA, KWB, KWC, KWU, KWV, KOUT, KDBG, KWS = [S_K + 2*i for i in range(12)]

def stamp(A, idx, on):
    if on:
        A(f"s_memtime s[100:101]")
        A("s_waitcnt lgkmcnt(0)")
        A(f"v_writelane_b32 v{V_STAMP}, s100, {idx}")
        A(f"s_memrealtime s[100:101]")
        A("s_waitcnt lgkmcnt(0)")
        A(f"v_writelane_b32 v{V_STAMP}, s100, {idx+16}")

def mk_srd(A, d, ptr, nbytes):
    A(f"s_mov_b32 s{d}, s{ptr}")
    A(f"s_mov_b32 s{d+1}, s{ptr+1}")
    A(f"s_mov_b32 s{d+2}, {nbytes}")
    A(f"s_mov_b32 s{d+3}, 0x20000")

def ld_rows(d):
    b = V_DAT + 8*d
    return [f"buffer_load_dwordx4 {vr(b,4)}, {vr(V_I0,2)}, {srd(S_TAB)}, 0 idxen offen sc1",
            f"buffer_load_dwordx4 {vr(b+4,4)}, {vr(V_I1,2)}, {srd(S_TAB)}, 0 idxen offen sc1"]
def rd_rec(off, r):
    return [f"ds_read_u16 v{V_I0}, v{V_P} offset:{off}",
            f"ds_read_u16 v{V_I1}, v{V_P} offset:{off+4}",
            f"ds_read_u16_d16_hi v{V_E+2*r}, v{V_P} offset:{off+2}",
            f"ds_read_u16_d16_hi v{V_E+2*r+1}, v{V_P} offset:{off+6}"]
def c_head(d, r):
    b = V_DAT + 8*d; e = V_E + 2*r
    o = []
    for h in range(2):
        for k in range(2):
            sel = "op_sel_hi:[0,1,1]" if h == 0 else "op_sel:[1,0,0] op_sel_hi:[1,1,1]"
            o.append(f"v_pk_fma_f32 {vr(V_T+4*h+2*k,2)}, {vr(e,2)}, {vr(V_WC+2*k,2)}, {vr(b+4*h+2*k,2)} {sel}")
    for i in range(4): o.append(f"v_lshlrev_b64 {vr(V_V+2*i,2)}, 16, {vr(b+2*i,2)}")
    return o
def c_rest():
    o = []
    T, V, M, S, Q = V_T, V_V, V_M, V_S, V_Q
    for i in range(8): o.append(f"v_exp_f32 v{T+i}, v{T+i}")
    for i in range(4): o.append(f"v_pk_fma_f32 {vr(T+2*i,2)}, {vr(T+2*i,2)}, {vr(V_EA+2*(i%2),2)}, {sr(S_C,2)} clamp")
    for k in range(2): o.append(f"v_pk_mul_f32 {vr(M+2*k,2)}, {vr(T+2*k,2)}, {vr(T+4+2*k,2)}")
    for i in range(4): o.append(f"v_rcp_f32 v{M+i}, v{M+i}")
    for k in range(2): o.append(f"v_pk_add_f32 {vr(S+2*k,2)}, {vr(T+2*k,2)}, {vr(T+4+2*k,2)}")
    for k in range(2): o.append(f"v_pk_mul_f32 {vr(Q+2*k,2)}, {vr(V+2*k,2)}, {vr(T+4+2*k,2)}")
    for k in range(2): o.append(f"v_pk_fma_f32 {vr(Q+2*k,2)}, {vr(V+4+2*k,2)}, {vr(T+2*k,2)}, {vr(Q+2*k,2)}")
    for k in range(2): o.append(f"v_pk_fma_f32 {vr(V_DEN+2*k,2)}, {vr(S+2*k,2)}, {vr(M+2*k,2)}, {vr(V_DEN+2*k,2)}")
    for k in range(2): o.append(f"v_pk_fma_f32 {vr(V_NUM+2*k,2)}, {vr(Q+2*k,2)}, {vr(M+2*k,2)}, {vr(V_NUM+2*k,2)}")
    return o

def finalize(A, num, den, ux, loc):
    T, V = V_T, V_V
    for k in range(2): A(f"v_pk_add_f32 {vr(den+2*k,2)}, {vr(den+2*k,2)}, {sr(S_EPS,2)}")
    for i in range(4): A(f"v_rcp_f32 v{den+i}, v{den+i}")
    for i in range(4): A(f"v_and_b32 v{T+i}, s{S_MSK}, v{ux+i}")
    for i in range(4): A(f"v_lshlrev_b32 v{V+i}, 16, v{ux+i}")
    for k in range(2): A(f"v_pk_fma_f32 {vr(T+2*k,2)}, {vr(num+2*k,2)}, {vr(den+2*k,2)}, {vr(T+2*k,2)}")
    A(f"v_lshl_add_u32 v{T+4}, v{loc}, 7, v{V_OUTC}")
    A(f"v_cmp_gt_u32 vcc, {NPB}, v{loc}")
    for i in range(4): A(f"v_max_f32 v{T+i}, 0, v{T+i}")
    for k in range(2): A(f"v_pk_add_f32 {vr(T+2*k,2)}, {vr(T+2*k,2)}, {vr(V+2*k,2)}")
    A(f"v_cndmask_b32 v{T+4}, -1, v{T+4}, vcc")
    A(f"v_cvt_pk_bf16_f32 v{T+6}, v{T}, v{T+1}")
    A(f"v_cvt_pk_bf16_f32 v{T+7}, v{T+2}, v{T+3}")
    A(f"buffer_store_dwordx2 {vr(T+6,2)}, v{T+4}, {srd(S_OUT)}, 0 offen")

def arrive(A, addr, rtn=None):
    A(f"v_mov_b32 v120, {addr}")
    A("v_mov_b32 v121, 1")
    A("s_mov_b64 exec, 1")
    if rtn is None: A("ds_add_u32 v120, v121")
    else:
        A("ds_add_rtn_u32 v122, v120, v121")
        A("s_waitcnt lgkmcnt(0)")
        A(f"v_readfirstlane_b32 s{rtn}, v122")
    A("s_mov_b64 exec, -1")

def spin_lds(A, name, target):
    A(f"""
{name}:
    ds_read_b32 v122, v120
    s_waitcnt lgkmcnt(0)
    v_readfirstlane_b32 s{S_T}, v122
    s_cmp_lt_u32 s{S_T}, {target}
    s_cbranch_scc1 {name}
    """)

def gen(A, diag):
    T = S_T
    EARLY = "--early" in sys.argv
    st = lambda i: stamp(A, i, diag and not (EARLY and 2 <= i <= 7))
    se = lambda i: stamp(A, i, diag and EARLY)
    A.label(f"{NAME}_kernel")
    A(f"""
    s_cmp_ge_u32 s2, 256
    s_cbranch_scc1 K_END
    s_load_dwordx16 {sr(S_K,16)}, s[0:1], 0
    s_load_dwordx8 {sr(S_K+16,8)}, s[0:1], 64
    s_and_b32 s{S_HALF}, s2, 1
    s_bfe_u32 s{T}, s2, 0x20001
    s_lshr_b32 s{T+1}, s2, 3
    s_lshl_b32 s{S_BIN}, s{T}, 5
    s_add_u32 s{S_BIN}, s{S_BIN}, s{T+1}
    s_mul_i32 s{S_NB}, s{S_BIN}, {NPB}
    v_readfirstlane_b32 s{S_WAVE}, v0
    s_lshr_b32 s{S_WAVE}, s{S_WAVE}, 6
    v_and_b32 v{V_LANE}, 63, v0
    v_and_b32 v26, 7, v{V_LANE}
    v_lshrrev_b32 v27, 4, v{V_LANE}
    v_xor_b32 v27, v26, v27
    v_lshlrev_b32 v27, 4, v27
    v_lshrrev_b32 v28, 3, v{V_LANE}
    v_lshl_add_u32 v24, v28, 7, v27
    v_xor_b32 v25, 64, v24
    v_lshlrev_b32 v29, 4, v{V_LANE}
    s_lshl_b32 s{T+6}, s{S_HALF}, 6
    s_lshl_b32 s{T+7}, s{S_NB}, 7
    s_sub_u32 s{T+9}, s{S_WAVE}, 7
    s_mov_b32 s{T+8}, {WS_EP}
    """)
    if diag: A(f"v_mov_b32 v{V_STAMP}, 0")
    A(f"""
    s_cmp_ge_u32 s{S_WAVE}, 7
    s_cbranch_scc1 K_L1
    s_mul_i32 s{T+2}, s{S_HALF}, 12
    s_lshl_b32 s{T+3}, s{S_WAVE}, 1
    s_add_u32 s{T+2}, s{T+2}, s{T+3}
    s_cmp_eq_u32 s{S_WAVE}, 6
    s_cselect_b32 s{T+2}, 24, s{T+2}
    s_lshl_b32 s{T+2}, s{T+2}, 10
    s_add_u32 m0, s{T+2}, {L_XST}
    s_add_u32 s{T+2}, s{T+2}, s{T+7}
    s_lshl_b32 s{T+3}, s{S_WAVE}, 10
    s_waitcnt lgkmcnt(0)
    """)
    st(0)
    mk_srd(A, S_X, KX, N*128)
    mk_srd(A, S_A, KWB, 8192)
    mk_srd(A, S_B, KWV, 8192)
    A(f"""
    buffer_load_dwordx4 v24, {srd(S_X)}, s{T+2} offen lds
    s_cmp_eq_u32 s{S_WAVE}, 6
    s_cbranch_scc1 K_L0
    buffer_load_dwordx4 v25, {srd(S_X)}, s{T+2} offen offset:1024 lds
K_L0:
    s_add_u32 m0, s{T+3}, {L_WBV}
    s_nop 0
    buffer_load_dwordx4 v29, {srd(S_A)}, s{T+3} offen lds
    s_add_u32 m0, s{T+3}, {L_WBV+8192}
    s_cmp_eq_u32 s{S_WAVE}, 6
    buffer_load_dwordx4 v29, {srd(S_B)}, s{T+3} offen lds
    s_cbranch_scc0 K_L1
    buffer_load_dwordx4 v29, {srd(S_B)}, s{T+3} offen offset:1024 lds
    s_add_u32 m0, s{T+3}, {L_WBV}
    s_nop 0
    buffer_load_dwordx4 v29, {srd(S_A)}, s{T+3} offen offset:1024 lds
K_L1:
    v_mul_u32_u24 v30, {LS}, v0
    v_add_u32 v30, {L_LIST}, v30
    v_cmp_gt_u32 vcc, 200, v0
    v_mov_b32 v31, 0x40000000
    v_cndmask_b32 v30, v31, v30, vcc
    v_cmp_gt_u32 vcc, 256, v0
    v_subrev_u32 v32, 384, v0
    v_cndmask_b32 v30, 0, v30, vcc
    v_cmp_gt_u32 vcc, 256, v32
    v_mov_b32 v31, {NPB}
    v_cndmask_b32 v30, v30, v31, vcc
    v_lshlrev_b32 v31, 2, v0
    ds_write_b32 v31, v30
    v_subrev_u32 v34, 448, v0
    v_lshlrev_b32 v32, 4, v34
    v_lshlrev_b32 v33, 3, v34
    s_mul_i32 s{T+10}, s2, {CH*4}
    s_add_u32 s{T+11}, s{T+10}, {CH*2}
    s_lshr_b32 s{T+12}, s{T+10}, 1
    s_lshr_b32 s{T+13}, s{T+11}, 1
    s_waitcnt lgkmcnt(0)
    """)
    if diag:
        A(f"s_cmp_lt_u32 s{S_WAVE}, 7")
        A("s_cbranch_scc1 K_D0")
        st(0)
        A.label("K_D0")
    A(f"s_load_dwordx2 {sr(S_T0,2)}, {sr(KWS,2)}, s{T+8}")
    mk_srd(A, S_A, KDST, E*4)
    mk_srd(A, S_B, KSRC, E*4)
    mk_srd(A, S_WS, KE, E*2)
    mk_srd(A, S_X, KX, N*128)
    mk_srd(A, S_OUT, KWC, 128)
    DS_, SR_, EE_ = 64, 72, 80
    A(f"""
    v_lshlrev_b32 v27, 3, v26
    v_cmp_gt_u32 vcc, {NT}, v34
    v_mov_b32 v36, {PADROW}
    v_mov_b32 v37, {PADROW}
    v_mov_b32 v38, {PADROW}
    v_mov_b32 v39, {PADROW}
    v_lshlrev_b32 v30, 4, v0
    v_add_u32 v30, {L_LIST}, v30
    s_barrier
    buffer_load_dwordx2 {vr(V_WC+2,2)}, v27, {srd(S_OUT)}, s{T+6} offen
    s_cmp_ge_u32 s{T+9}, 7
    s_cbranch_scc1 K_NE0
    s_mov_b64 exec, vcc
    buffer_load_dwordx4 {vr(DS_,4)}, v32, {srd(S_A)}, s{T+10} offen{ENT}
    buffer_load_dwordx4 {vr(DS_+4,4)}, v32, {srd(S_A)}, s{T+11} offen{ENT}
    s_mov_b64 exec, -1
    v_mov_b32 v40, -1
    v_mov_b32 v41, -1
    ds_write_b64 v33, v[40:41] offset:{L_LOC}
K_NE0:
    ds_write_b128 v30, v[36:39]
    ds_write_b128 v30, v[36:39] offset:16384
    s_cbranch_scc1 K_NE
    s_mov_b64 exec, vcc
    buffer_load_dwordx4 {vr(SR_,4)}, v32, {srd(S_B)}, s{T+10} offen{ENT}
    buffer_load_dwordx4 {vr(SR_+4,4)}, v32, {srd(S_B)}, s{T+11} offen{ENT}
    buffer_load_dwordx2 {vr(EE_,2)}, v33, {srd(S_WS)}, s{T+12} offen{ENT}
    buffer_load_dwordx2 {vr(EE_+2,2)}, v33, {srd(S_WS)}, s{T+13} offen{ENT}
    s_mov_b64 exec, -1
K_NE:
    ds_write_b128 v30, v[36:39] offset:32768
    ds_write_b128 v30, v[36:39] offset:49152
    """)
    se(2)
    mk_srd(A, S_WS, KWS, WS_SIZE)
    mk_srd(A, S_OUT, KOUT, N*128)
    A(f"""
    s_mul_i32 s{T+2}, s{S_HALF}, {HS}
    s_add_u32 s{T+2}, s{T+2}, {WS_TAB}
    s_add_u32 s{S_TAB}, s{KWS}, s{T+2}
    s_addc_u32 s{S_TAB+1}, s{KWS+1}, 0
    s_or_b32 s{S_TAB+1}, s{S_TAB+1}, {128<<16}
    s_mov_b32 s{S_TAB+2}, {PADROW+1}
    s_mov_b32 s{S_TAB+3}, 0x20000
    s_mul_i32 s{S_PF}, s{T+1}, {784*128}
    s_add_u32 s{S_PF}, s{S_PF}, s{T+2}
    s_add_u32 s{T+3}, s{T+7}, s{T+6}
    v_add_u32 v{V_OUTC}, s{T+3}, v27
    v_lshlrev_b32 v{V_I0+1}, 4, v26
    v_mov_b32 v{V_I1+1}, v{V_I0+1}
    v_add_u32 v{V_AUC}, {L_AU}, v{V_I0+1}
    v_lshlrev_b32 v{V_OA}, 2, v28
    s_mov_b32 s{S_C}, 0x{f2u(2.0**-SH):08x}
    s_mov_b32 s{S_C+1}, 0x{f2u(2.0**-SH):08x}
    s_mov_b32 s{S_EPS}, 0x{f2u(1e-6*2.0**SH):08x}
    s_mov_b32 s{S_EPS+1}, 0x{f2u(1e-6*2.0**SH):08x}
    s_mov_b32 s{S_MSK}, 0xffff0000
    s_waitcnt lgkmcnt(0)
    s_add_u32 s{S_T1}, s{S_T1}, 1
    s_and_b32 s{S_T0}, s{S_T0}, 0xfff00000
    """)
    arrive(A, L_CE)
    se(3)
    A(f"""
    s_cmp_ge_u32 s{S_WAVE}, 14
    s_cbranch_scc1 K_HELP
    s_cmp_ge_u32 s{S_WAVE}, 7
    s_cbranch_scc1 K_BIN
    ; ---- table job: tile = 3*half + (w>>1), nt = w&1 ; wave 6: tile 6, nt = half
    s_mul_i32 s{T+10}, s{S_HALF}, 3
    s_lshr_b32 s{T+11}, s{S_WAVE}, 1
    s_add_u32 s{T+10}, s{T+10}, s{T+11}
    s_and_b32 s{T+11}, s{S_WAVE}, 1
    s_cmp_eq_u32 s{S_WAVE}, 6
    s_cselect_b32 s{T+10}, 6, s{T+10}
    s_cselect_b32 s{T+11}, s{S_HALF}, s{T+11}
    s_lshl_b32 s{T+12}, s{T+10}, 12
    s_mul_i32 s{T+13}, s{T+11}, {HS}
    s_add_u32 s{T+13}, s{T+13}, s{T+7}
    s_add_u32 s{T+13}, s{T+13}, {WS_TAB}
    s_add_u32 s{S_B}, s{KWS}, s{T+13}
    s_addc_u32 s{S_B+1}, s{KWS+1}, 0
    s_mov_b32 s{S_B+2}, {NPB*128}
    s_mov_b32 s{S_B+3}, 0x20000
    v_and_b32 v28, 31, v{V_LANE}
    v_lshrrev_b32 v29, 5, v{V_LANE}
    v_bfe_u32 v30, v28, 1, 3
    v_xor_b32 v30, v30, v29
    v_lshlrev_b32 v30, 4, v30
    v_lshl_add_u32 v24, v28, 7, v30
    s_add_u32 s{T+13}, s{T+12}, {L_XST}
    v_add_u32 v30, s{T+13}, v24
    v_bfe_u32 v25, v{V_LANE}, 2, 2
    v_lshl_add_u32 v25, v29, 3, v25
    v_lshlrev_b32 v34, 7, v25
    v_bfe_u32 v35, v{V_LANE}, 4, 1
    v_lshl_add_u32 v34, v35, 5, v34
    v_and_b32 v36, 3, v{V_LANE}
    v_lshl_add_u32 v34, v36, 3, v34
    s_lshl_b32 s{T+13}, s{T+11}, 6
    s_add_u32 s{T+13}, s{T+13}, {L_WBV}
    v_add_u32 v34, s{T+13}, v34
    v_and_b32 v32, 1, v{V_LANE}
    v_xor_b32 v32, 1, v32
    v_lshlrev_b32 v32, 15, v32
    v_lshlrev_b32 v33, 9, v29
    v_lshl_add_u32 v33, v28, 2, v33
    v_add_u32 v33, s{T+12}, v33
    s_mov_b32 s{T+13}, 0x{f2u(-LOG2E):08x}
    s_mov_b32 s{T+14}, 0x07060302
    s_waitcnt vmcnt(1)
    """)
    arrive(A, L_CX)
    spin_lds(A, "K_SPX", 7)
    st(1)
    XB = 84
    Wm1 = [36, 40, 116, 8]
    for u in range(4):
        A(f"v_xor_b32 v31, {32*u}, v30")
        A(f"ds_read_b128 {vr(XB+4*u,4)}, v31")
        for tt in range(2):
            A(f"ds_read_b64_tr_b16 {vr(100+4*u+2*tt,2)}, v34 offset:{(16*u+4*tt)*128}")
        for tt in range(2):
            A(f"ds_read_b64_tr_b16 {vr(Wm1[u]+2*tt,2)}, v34 offset:{8192+(16*u+4*tt)*128}")
    for u in range(4):
        A(f"s_waitcnt lgkmcnt({15-5*u})")
        A(mfma(vr(48,16), vr(XB+4*u,4), vr(100+4*u,4), "0" if u == 0 else vr(48,16)))
        A(mfma(vr(64,16), vr(XB+4*u,4), vr(Wm1[u],4), "0" if u == 0 else vr(64,16)))
    arrive(A, L_CY)
    for r in range(16): A(f"v_mul_f32 v{48+r}, s{T+13}, v{48+r}")
    for r in range(16):
        A(f"v_add_u32 v{64+r}, v32, v{64+r}")
        A(f"v_perm_b32 v{48+r}, v{48+r}, v{64+r}, s{T+14}")
        A(f"buffer_store_dword v{48+r}, v33, {srd(S_B)}, 0 offen offset:{(8*(r>>2)+(r&3))*128} sc1")
    st(2)
    A(f"""
    s_lshr_b32 s{T+12}, s2, 1
    s_or_b32 s{T+12}, s{T+12}, s{S_WAVE}
    s_cmp_lg_u32 s{T+12}, 0
    s_cbranch_scc1 K_NPAD
    v_lshlrev_b32 v32, 2, v{V_LANE}
    v_mov_b32 v33, 0x7f000000
    s_mul_i32 s{T+4}, s{S_HALF}, {HS}
    s_add_u32 s{T+4}, s{T+4}, {WS_TAB+PADROW*128}
    s_mov_b32 exec_hi, 0
    buffer_store_dword v33, v32, {srd(S_WS)}, s{T+4} offen sc1
    s_mov_b64 exec, -1
K_NPAD:
    s_waitcnt vmcnt(0)
    """)
    st(3)
    arrive(A, L_CP, rtn=T+3)
    A(f"""
    """)
    def pfa():
        A("v_lshlrev_b32 v31, 7, v0")
        A(f"buffer_load_ubyte v{V_DUMMY}, v31, {srd(S_WS)}, s{S_PF} offen sc1")
    if PFA == 1:
        A(f"v_mov_b32 v120, {L_C3}")
        spin_lds(A, "K_SPA", 7)
        pfa()
    A("s_branch K_PUBQ")
    BN, RK, TM = 48, 56, 84
    A(f"""
K_BIN:
    v_mov_b32 v31, v34
    s_mul_i32 s{T+10}, s2, {CH//4}
    v_add_u32 v32, s{T+10}, v31
    v_cmp_gt_u32 vcc, {NT}, v31
    s_mov_b32 s{T+11}, {E//4}
    v_cmp_gt_u32 {sr(T+4,2)}, s{T+11}, v32
    s_mov_b32 s{T+11}, {E//4 - NT}
    v_cmp_gt_u32 {sr(T+6,2)}, s{T+11}, v32
    s_and_b64 {sr(T+4,2)}, {sr(T+4,2)}, vcc
    s_and_b64 {sr(T+6,2)}, {sr(T+6,2)}, vcc
    s_mov_b32 s{T+8}, 42800
    s_movk_i32 s{T+9}, {NPB}
    v_mov_b32 v33, 1
    s_setprio 3
    """)
    for hlf in range(2):
        A(f"s_mov_b64 exec, {sr(T+4+2*hlf,2)}")
        A(f"s_waitcnt vmcnt({5-hlf})")
        ks = range(4*hlf, 4*hlf+4)
        for k in ks: A(f"v_mul_u32_u24 v{BN+k}, s{T+8}, v{DS_+k}")
        for k in ks: A(f"v_lshrrev_b32 v{BN+k}, 23, v{BN+k}")
        for k in ks:
            A(f"v_mul_u32_u24 v{TM+k}, s{T+9}, v{BN+k}")
            A(f"v_lshlrev_b32 v{BN+k}, 2, v{BN+k}")
            A(f"ds_add_rtn_u32 v{RK+k}, v{BN+k}, v33 offset:{L_HIST}")
        for k in ks: A(f"v_sub_u32 v{DS_+k}, v{DS_+k}, v{TM+k}")
    A("s_mov_b64 exec, -1")
    A(f"v_lshlrev_b32 v34, 3, v{V_LANE}")
    arrive(A, L_C2)
    st(3)
    spin_lds(A, "K_SP2", 7)
    st(4)
    A(f"""
    ds_read_b64 v[36:37], v34 offset:{L_HIST}
    s_waitcnt lgkmcnt(0)
    v_add_u32 v36, 3, v36
    v_add_u32 v37, 3, v37
    v_and_b32 v36, -4, v36
    v_and_b32 v37, -4, v37
    v_add_u32 v38, v36, v37
    v_mov_b32 v39, v38
    """)
    scan(A, 39)
    A(f"""
    v_sub_u32 v38, v39, v38
    v_add_u32 v39, v38, v36
    ds_write_b64 v34, v[38:39] offset:{L_OFF}
    """)
    for hlf in range(2):
        A(f"s_mov_b64 exec, {sr(T+4+2*hlf,2)}")
        for k in range(4*hlf, 4*hlf+4):
            A(f"ds_read_b32 v{TM+k}, v{BN+k} offset:{L_OFF}")
    A(f"""
    s_mov_b32 s{T+8}, 0x05040100
    s_mov_b32 s{T+9}, 0x07060100
    s_waitcnt lgkmcnt(0)
    """)
    for hlf in range(2):
        A(f"s_mov_b64 exec, {sr(T+4+2*hlf,2)}")
        for k in range(4*hlf, 4*hlf+4):
            A(f"v_add_u32 v{TM+k}, v{TM+k}, v{RK+k}")
            A(f"v_lshlrev_b32 v{RK+k}, 2, v{TM+k}")
            A(f"ds_write_b8 v{TM+k}, v{DS_+k} offset:{L_LOC}")
    A("s_mov_b64 exec, -1")
    st(5)
    for hlf in range(2):
        A(f"s_waitcnt vmcnt({1-hlf})")
        A(f"s_mov_b64 exec, {sr(T+4+2*hlf,2)}")
        for k in range(4*hlf, 4*hlf+4):
            A(f"v_perm_b32 v{SR_+k}, v{EE_+k//2}, v{SR_+k}, s{T+8+(k&1)}")
            A(f"ds_write_b32 v{RK+k}, v{SR_+k} offset:{L_REC}")
    A(f"""
    s_mov_b64 exec, -1
    v_lshlrev_b32 v32, 4, v31
    v_lshlrev_b32 v33, 3, v31
    s_mul_i32 s{T+10}, s2, {CHP*4}
    s_add_u32 s{T+11}, s{T+10}, {448*16}
    s_mul_i32 s{T+12}, s2, {CHP}
    s_add_u32 s{T+12}, s{T+12}, {WS_LOC}
    """)
    arrive(A, L_C3)
    spin_lds(A, "K_SP3", 7)
    st(6)
    A(f"""
    ds_read_b128 v[64:67], v32 offset:{L_REC}
    ds_read_b128 v[68:71], v32 offset:{L_REC+448*16}
    ds_read_b64 v[72:73], v33 offset:{L_LOC}
    s_waitcnt lgkmcnt(2)
    buffer_store_dwordx4 v[64:67], v32, {srd(S_WS)}, s{T+10} offen sc1
    s_waitcnt lgkmcnt(1)
    buffer_store_dwordx4 v[68:71], v32, {srd(S_WS)}, s{T+11} offen sc1
    s_waitcnt lgkmcnt(0)
    buffer_store_dwordx2 v[72:73], v33, {srd(S_WS)}, s{T+12} offen sc1
    """)
    arrive(A, L_CY)
    A("s_waitcnt vmcnt(0)")
    st(7)
    arrive(A, L_CP, rtn=T+3)
    A(f"""
    s_branch K_PUBQ
K_HELP:
    s_sub_u32 s{T+2}, s{S_WAVE}, 14
    s_xor_b32 s{T+3}, s{S_HALF}, 1
    s_lshl_b32 s{T+3}, s{T+3}, 1
    s_add_u32 s{T+3}, s{T+3}, s{T+2}
    s_mul_i32 s{T+3}, s{T+3}, 6144
    s_add_u32 m0, s{T+3}, {L_XST}
    s_add_u32 s{T+3}, s{T+3}, s{T+7}
    s_cmp_eq_u32 s{T+2}, 0
    s_cselect_b32 s{S_A}, s{KWA}, s{KWU}
    s_cselect_b32 s{S_A+1}, s{KWA+1}, s{KWU+1}
    s_mov_b32 s{S_A+2}, 8192
    s_mov_b32 s{S_A+3}, 0x20000
    """)
    spin_lds(A, "K_SPE", 16)
    mk_srd(A, S_B, KDBG, 256)
    A(f"""
    s_cmp_lg_u32 s{S_WAVE}, 15
    s_cbranch_scc1 K_HA
    v_mov_b32 v32, 0
    v_mov_b32 v125, 1
    s_mov_b64 exec, 1
    buffer_atomic_add v125, v32, {srd(S_B)}, 0 offen sc0 sc1
    s_mov_b64 exec, -1
K_HA:
    buffer_load_dwordx4 v24, {srd(S_X)}, s{T+3} offen lds
    buffer_load_dwordx4 v25, {srd(S_X)}, s{T+3} offen offset:1024 lds
    buffer_load_dwordx4 v24, {srd(S_X)}, s{T+3} offen offset:2048 lds
    buffer_load_dwordx4 v25, {srd(S_X)}, s{T+3} offen offset:3072 lds
    s_add_u32 m0, m0, 4096
    s_add_u32 s{T+3}, s{T+3}, 4096
    buffer_load_dwordx4 v24, {srd(S_X)}, s{T+3} offen lds
    buffer_load_dwordx4 v25, {srd(S_X)}, s{T+3} offen offset:1024 lds
    v_lshrrev_b32 v30, 2, v{V_LANE}
    v_lshlrev_b32 v30, 7, v30
    v_and_b32 v31, 3, v{V_LANE}
    v_lshl_add_u32 v30, v31, 4, v30
    s_lshl_b32 s{T+4}, s{T+2}, 12
    s_add_u32 m0, s{T+4}, {L_WAU}
    s_mov_b32 s{T+4}, s{T+6}
    """)
    for i4 in range(4):
        A(f"buffer_load_dwordx4 v30, {srd(S_A)}, s{T+4} offen offset:{1024*i4} lds")
        A(f"s_add_u32 s{T+4}, s{T+4}, 1024")
    A("s_waitcnt vmcnt(0)")
    st(2)
    arrive(A, L_CY)
    A(f"""
    s_branch K_JOIN
K_PUB:
    v_lshlrev_b32 v122, 3, v{V_LANE}
    ds_read_b64 v[36:37], v122 offset:{L_HIST}
    ds_read_b64 v[38:39], v122 offset:{L_OFF}
    s_lshl_b32 s{T+4}, s2, 10
    s_add_u32 s{T+4}, s{T+4}, {WS_OFFS}
    v_lshlrev_b32 v122, 4, v{V_LANE}
    v_mov_b32 v41, s{S_T1}
    v_mov_b32 v43, s{S_T1}
    s_waitcnt lgkmcnt(0)
    v_add_u32 v36, 3, v36
    v_add_u32 v37, 3, v37
    v_lshrrev_b32 v36, 2, v36
    v_lshrrev_b32 v37, 2, v37
    v_lshrrev_b32 v38, 2, v38
    v_lshrrev_b32 v39, 2, v39
    v_lshl_or_b32 v40, v36, 10, v38
    v_lshl_or_b32 v42, v37, 10, v39
    v_or_b32 v40, s{S_T0}, v40
    v_or_b32 v42, s{S_T0}, v42
    buffer_store_dwordx4 v[40:43], v122, {srd(S_WS)}, s{T+4} offen sc1
    s_nop 1
    s_setpc_b64 {sr(S_RET,2)}
K_PUBQ:
    s_cmp_lg_u32 s{T+3}, 13
    s_cbranch_scc1 K_JOIN
    s_call_b64 {sr(S_RET,2)}, K_PUB
K_JOIN:
    s_setprio 0
    v_lshrrev_b32 v28, 3, v0
    v_lshlrev_b32 v24, 10, v28
    v_and_b32 v26, 7, v{V_LANE}
    v_mul_u32_u24 v28, {CHP//4}, v28
    v_add_u32 v28, v28, v26
    s_lshl_b32 s{T+5}, s{S_BIN}, 3
    s_add_u32 s{T+5}, s{T+5}, {WS_OFFS}
    s_add_u32 s{T+14}, s{T+5}, {128*1024}
    s_mov_b32 s{T+2}, {128*CHP*4}
    s_mov_b32 s{T+3}, {WS_LOC}
    s_mov_b32 s{T+4}, {WS_LOC+128*CHP}
    v_mov_b32 v31, 0x04000000
    v_mov_b32 v38, 4
    s_mov_b32 s{T+12}, 0xfff00000
    s_mov_b32 s{T+13}, {SPIN}
    """)
    for i in range(2*R): A(f"v_mov_b32 v{V_E+i}, 0")
    if RPF:
        A(f"""
        s_bfe_u32 s{T}, s2, 0x20001
        s_lshr_b32 s{T+1}, s2, 3
        v_lshrrev_b32 v25, 5, v0
        v_mul_u32_u24 v25, {CHP*4}, v25
        v_and_b32 v27, 31, v0
        v_lshl_add_u32 v25, v27, 7, v25
        s_mul_i32 s{T+6}, s{T}, {26*128}
        s_sub_u32 s{T+6}, s{T+6}, 384
        s_max_i32 s{T+6}, s{T+6}, 0
        s_mul_i32 s{T+7}, s{T+1}, {8*CHP*4}
        s_add_u32 s{T+6}, s{T+6}, s{T+7}
        v_lshrrev_b32 v27, 3, v{V_LANE}
        v_mul_u32_u24 v27, {CHP}, v27
        v_lshl_add_u32 v27, v26, 7, v27
        s_mul_i32 s{T+8}, s{T}, 832
        s_sub_u32 s{T+8}, s{T+8}, 64
        s_max_i32 s{T+8}, s{T+8}, 0
        s_mul_i32 s{T+9}, s{T+1}, {8*CHP}
        s_add_u32 s{T+8}, s{T+8}, s{T+9}
        s_add_u32 s{T+8}, s{T+8}, {WS_LOC}
        s_cmp_eq_u32 s{S_WAVE}, 4
        s_cselect_b32 s{T+6}, s{T+8}, s{T+6}
        s_cselect_b64 vcc, -1, 0
        v_cndmask_b32 v25, v25, v27, vcc
        """)
    if "--nojoin" not in sys.argv:
        A("s_barrier")
    if RPF:
        A(f"""
        s_cmp_gt_u32 s{S_WAVE}, 4
        s_cbranch_scc1 K_NRPF
        buffer_load_ubyte v{V_DUMMY}, v25, {srd(S_WS)}, s{T+6} offen sc1
K_NRPF:
        """)
    st(8)
    A(f"""
K_POLL:
    buffer_load_dwordx2 v[32:33], v24, {srd(S_WS)}, s{T+5} offen sc1
    buffer_load_dwordx2 v[34:35], v24, {srd(S_WS)}, s{T+14} offen sc1
    s_waitcnt vmcnt(0)
    v_and_b32 v36, s{T+12}, v32
    v_and_b32 v37, s{T+12}, v34
    v_cmp_eq_u32 vcc, s{S_T1}, v33
    v_cmp_eq_u32 {sr(T+6,2)}, s{S_T1}, v35
    v_cmp_eq_u32 {sr(T+8,2)}, s{S_T0}, v36
    v_cmp_eq_u32 {sr(T+10,2)}, s{S_T0}, v37
    s_and_b64 vcc, vcc, {sr(T+6,2)}
    s_and_b64 {sr(T+8,2)}, {sr(T+8,2)}, {sr(T+10,2)}
    s_and_b64 vcc, vcc, {sr(T+8,2)}
    s_cmp_eq_u64 vcc, -1
    s_cbranch_scc1 K_GOT
    s_sleep {opt("--psleep", 2)}
    s_sub_u32 s{T+13}, s{T+13}, 1
    s_cmp_lg_u32 s{T+13}, 0
    s_cbranch_scc1 K_POLL
    v_mov_b32 v37, {L_FLAG}
    ds_write_b32 v37, v38
    v_mov_b32 v32, 0
    v_mov_b32 v34, 0
K_GOT:
    """)
    st(9)
    A(f"""
    v_bfe_u32 v40, v32, 10, 10
    v_bfe_u32 v41, v34, 10, 10
    v_and_b32 v32, 0x3ff, v32
    v_and_b32 v33, 0x3ff, v34
    v_cmp_lt_u32 {sr(T+6,2)}, v26, v40
    v_cmp_lt_u32 {sr(T+8,2)}, v26, v41
    v_add_u32 v32, v32, v28
    v_add_u32 v33, v33, v28
    v_cndmask_b32 v42, v31, v32, {sr(T+6,2)}
    v_cndmask_b32 v43, v31, v33, {sr(T+8,2)}
    v_lshlrev_b32 v36, 2, v42
    v_lshlrev_b32 v37, 2, v43
    v_lshlrev_b32 v42, 4, v42
    v_lshlrev_b32 v43, 4, v43
    buffer_load_dword v72, v36, {srd(S_WS)}, s{T+3} offen sc1
    buffer_load_dword v73, v37, {srd(S_WS)}, s{T+4} offen sc1
    buffer_load_dwordx4 v[64:67], v42, {srd(S_WS)}, 0 offen sc1
    buffer_load_dwordx4 v[68:71], v43, {srd(S_WS)}, s{T+2} offen sc1
    v_add_u32 v36, 8, v26
    v_add_u32 v33, {128*CHP//4}, v33
    v_mov_b32 v37, {L_FLAG+4}
    v_lshlrev_b32 v{V_WC}, 16, v{V_WC+2}
    v_and_b32 v{V_WC+1}, s{S_MSK}, v{V_WC+2}
    v_lshlrev_b32 v{V_WC+2}, 16, v{V_WC+3}
    v_and_b32 v{V_WC+3}, s{S_MSK}, v{V_WC+3}
    s_mov_b32 s{T}, 0x{f2u(-LOG2E):08x}
    v_mul_f32 v{V_WC}, s{T}, v{V_WC}
    v_mul_f32 v{V_WC+1}, s{T}, v{V_WC+1}
    v_mul_f32 v{V_WC+2}, s{T}, v{V_WC+2}
    v_mul_f32 v{V_WC+3}, s{T}, v{V_WC+3}
    """)
    for r in range(2):
        A(f"""
        v_cmpx_lt_u32 vcc, v36, v{40+r}
        s_cbranch_execz K_NOV{r}
        ds_add_rtn_u32 v39, v37, v38
        v_add_u32 v42, 8, v{32+r}
        s_waitcnt lgkmcnt(0)
        v_cmpx_gt_u32 vcc, {BLCAP*4}, v39
        ds_write_b32 v39, v42 offset:{L_BL}
K_NOV{r}:
        s_mov_b64 exec, -1
        """)
    A(f"""
    v_max_u32 v36, v40, v41
    v_mov_b32 v37, {L_FLAG}
    v_cmpx_lt_u32 vcc, {16 if not FORCE_SLOW else 0}, v36
    ds_write_b32 v37, v38
    s_mov_b64 exec, -1
    """)
    arrive(A, L_CL)
    A(f"""
    s_cmp_ge_u32 s{S_WAVE}, 7
    s_cbranch_scc1 K_INA
    ; ---- A / U job for tile = wave
    v_and_b32 v28, 31, v{V_LANE}
    v_lshrrev_b32 v29, 5, v{V_LANE}
    v_bfe_u32 v30, v28, 1, 3
    v_xor_b32 v30, v30, v29
    v_lshlrev_b32 v30, 4, v30
    v_lshl_add_u32 v30, v28, 7, v30
    s_lshl_b32 s{T+12}, s{S_HALF}, 6
    v_xor_b32 v30, s{T+12}, v30
    s_lshl_b32 s{T+12}, s{S_WAVE}, 12
    s_add_u32 s{T+12}, s{T+12}, {L_XST}
    v_add_u32 v30, s{T+12}, v30
    v_bfe_u32 v25, v{V_LANE}, 2, 2
    v_lshl_add_u32 v25, v29, 3, v25
    v_lshlrev_b32 v34, 6, v25
    v_bfe_u32 v35, v{V_LANE}, 4, 1
    v_lshl_add_u32 v34, v35, 5, v34
    v_and_b32 v36, 1, v{V_LANE}
    v_bfe_u32 v37, v{V_LANE}, 1, 1
    v_lshl_add_u32 v36, v36, 1, v37
    v_lshl_add_u32 v34, v36, 3, v34
    s_lshl_b32 s{T+12}, s{S_HALF}, 11
    v_add_u32 v34, s{T+12}, v34
    v_xor_b32 v35, 2048, v34
    v_add_u32 v34, {L_WAU}, v34
    v_add_u32 v35, {L_WAU}, v35
    v_mov_b32 v120, {L_CY}
    """)
    spin_lds(A, "K_SPY", 16)
    XA = 76
    Wu = [8, 12, 16, 40]
    for u in range(4):
        A(f"v_xor_b32 v31, {32*u}, v30")
        A(f"ds_read_b128 {vr(XA+4*u,4)}, v31")
        av = 34 if u < 2 else 35
        for tt in range(2):
            A(f"ds_read_b64_tr_b16 {vr(104+4*u+2*tt,2)}, v{av} offset:{((u&1)*16+4*tt)*64}")
        for tt in range(2):
            A(f"ds_read_b64_tr_b16 {vr(Wu[u]+2*tt,2)}, v{av} offset:{4096+((u&1)*16+4*tt)*64}")
    A(f"""
    s_lshl_b32 s{T+12}, s{S_WAVE}, 5
    v_add_u32 v28, s{T+12}, v28
    v_mul_u32_u24 v24, {AUS}, v28
    v_lshl_add_u32 v24, v29, 5, v24
    v_add_u32 v24, {L_AU}, v24
    """)
    for u in range(4):
        A(f"s_waitcnt lgkmcnt({15-5*u})")
        A(mfma(vr(48,16), vr(104+4*u,4), vr(XA+4*u,4), "0" if u == 0 else vr(48,16)))
    for u in range(4):
        A(mfma(vr(104,16), vr(Wu[u],4), vr(XA+4*u,4), "0" if u == 0 else vr(104,16)))
    A(f"""
    s_mov_b32 s{T+13}, 0x{f2u(-LOG2E):08x}
    v_mov_b32 v31, 0x{f2u(-float(SH)):08x}
    """)
    A(f"v_max3_f32 v32, |v48|, |v49|, |v50|")
    for i in range(3, 15, 2): A(f"v_max3_f32 v32, |v{48+i}|, |v{48+i+1}|, v32")
    A(f"v_max_f32 v32, |v63|, v32")
    for i in range(16): A(f"v_fma_f32 v{48+i}, v{48+i}, s{T+13}, v31")
    A(f"""
    s_mov_b32 s{T+12}, 0x05040100
    s_mov_b32 s{T+13}, 0x07060302
    v_mov_b32 v33, {L_FLAG}
    v_cmpx_gt_u32 vcc, 200, v28
    ds_write_b128 v24, v[48:51]
    ds_write_b128 v24, v[52:55] offset:16
    ds_write_b128 v24, v[56:59] offset:64
    ds_write_b128 v24, v[60:63] offset:80
    """)
    for i in range(8): A(f"v_cvt_pk_bf16_f32 v{8+i}, v{104+2*i}, v{105+2*i}")
    for i in range(8):
        A(f"v_perm_b32 v{104+2*i}, v{8+i}, v{XA+i}, s{T+12}")
        A(f"v_perm_b32 v{105+2*i}, v{8+i}, v{XA+i}, s{T+13}")
    A(f"""
    ds_write_b128 v24, v[104:107] offset:128
    ds_write_b128 v24, v[108:111] offset:144
    ds_write_b128 v24, v[112:115] offset:192
    ds_write_b128 v24, v[116:119] offset:208
    v_cmpx_gt_u32 vcc, {NPB}, v28
    v_cmpx_nge_f32 vcc, 0x{f2u(49.0):08x}, v32
    ds_write_b32 v33, v33
    s_mov_b64 exec, -1
    """)
    st(5)
    A(f"""
K_INA:
    v_mov_b32 v39, 2
    s_cmp_lt_u32 s{S_WAVE}, 14
    s_cbranch_scc1 K_INA2
    """)
    spin_lds(A, "K_SPL", 16)
    A(f"""
    v_mov_b32 v37, {L_FLAG+4}
    v_subrev_u32 v36, {14*64}, v0
    v_lshlrev_b32 v36, 2, v36
    ds_read_b32 v35, v37
    ds_read_b32 v42, v36 offset:{L_BL}
    v_mov_b32 v31, 0x10000000
    s_waitcnt lgkmcnt(0)
    v_cmp_lt_u32 {sr(T+10,2)}, v36, v35
    v_lshlrev_b32 v43, 4, v42
    v_lshlrev_b32 v42, 2, v42
    v_cndmask_b32 v43, v31, v43, {sr(T+10,2)}
    v_cndmask_b32 v42, v31, v42, {sr(T+10,2)}
    buffer_load_dword v74, v42, {srd(S_WS)}, s{T+3} offen sc1
    buffer_load_dwordx4 v[76:79], v43, {srd(S_WS)}, 0 offen sc1
    v_mov_b32 v37, {L_FLAG}
    v_cmpx_lt_u32 vcc, {BLCAP*4}, v35
    ds_write_b32 v37, v38
    s_mov_b64 exec, -1
    """)
    arrive(A, L_CL)
    A(f"""
    s_waitcnt vmcnt(4)
    s_branch K_INB
K_INA2:
    s_waitcnt vmcnt(2)
K_INB:
    """)
    st(10)
    def ins_atom(locw, a0):
        for k in range(4):
            A(f"v_lshlrev_b32_sdwa v{a0+k}, v39, v{locw} dst_sel:DWORD dst_unused:UNUSED_PAD src0_sel:DWORD src1_sel:BYTE_{k}")
            A(f"ds_add_rtn_u32 v{a0+k}, v{a0+k}, v38")
    def ins_write(a0, rec):
        for k in range(4):
            A(f"ds_write_b32 v{a0+k}, v{rec+k}")
    A(f"s_mov_b64 exec, {sr(T+6,2)}")
    ins_atom(72, 80)
    A(f"s_mov_b64 exec, {sr(T+8,2)}")
    ins_atom(73, 84)
    A(f"""
    s_cmp_lt_u32 s{S_WAVE}, 14
    s_cbranch_scc1 K_INC
    s_mov_b64 exec, {sr(T+10,2)}
    s_waitcnt vmcnt(0)
    """)
    ins_atom(74, 88)
    A("s_waitcnt lgkmcnt(0)")
    ins_write(88, 76)
    A(f"""
K_INC:
    s_mov_b64 exec, {sr(T+8,2)}
    s_waitcnt vmcnt(0) lgkmcnt(0)
    """)
    ins_write(84, 68)
    A(f"s_mov_b64 exec, {sr(T+6,2)}")
    ins_write(80, 64)
    A(f"""
    s_mov_b64 exec, -1
    s_cmp_ge_u32 s{S_WAVE}, 13
    s_cbranch_scc1 K_IND
    v_mov_b32 v120, {L_CL}
    v_min_u32 v30, 783, v0
    v_lshlrev_b32 v30, 7, v30
    """)
    spin_lds(A, "K_SPM", 18)
    A(f"""
    buffer_load_ubyte v{V_DUMMY}, v30, {srd(S_WS)}, s{S_PF} offen sc1
K_IND:
    s_cmp_lg_u32 s{S_WAVE}, 15
    s_cbranch_scc1 K_INE
    v_readfirstlane_b32 s{T}, v125
    s_cmp_lg_u32 s{T}, 255
    s_cbranch_scc1 K_INE
    v_mov_b32 v30, 0
    v_mov_b32 v125, s{S_T1}
    s_mov_b32 s{T}, {WS_EP+4}
    s_mov_b64 exec, 1
    buffer_store_dword v125, v30, {srd(S_WS)}, s{T} offen sc1
    s_mov_b64 exec, -1
K_INE:
    s_barrier
    """)
    st(11)
    A(f"""
    s_cmp_ge_u32 s{S_WAVE}, 4
    s_cbranch_scc1 K_S1
    s_setprio 3
    v_lshlrev_b32 v28, 2, v0
    ds_read_b32 v29, v28
    v_mul_u32_u24 v30, {LS}, v0
    v_add_u32 v30, {L_LIST-4}, v30
    v_cmp_gt_u32 vcc, 200, v0
    s_mov_b64 {sr(T+6,2)}, vcc
    v_cmp_gt_u32 vcc, {NPB}, v0
    v_mov_b32 v37, {L_FLAG}
    v_mov_b32 v36, 1
    s_waitcnt lgkmcnt(0)
    v_sub_u32 v29, v29, v30
    v_lshrrev_b32 v29, 3, v29
    v_max_u32 v31, 1, v29
    v_min_u32 v31, 63, v31
    v_cndmask_b32 v31, 0, v31, vcc
    v_lshlrev_b32 v32, 2, v31
    v_sub_u32 v32, 252, v32
    s_mov_b64 exec, {sr(T+6,2)}
    ds_add_rtn_u32 v33, v32, v36 offset:{L_H2}
    v_cmpx_lt_u32 vcc, {CAP//2}, v29
    ds_write_b32 v37, v38
    s_mov_b64 exec, -1
    v_lshlrev_b32 v34, 2, v{V_LANE}
    s_waitcnt lgkmcnt(0)
K_S1:
    s_barrier
    s_cmp_ge_u32 s{S_WAVE}, 4
    s_cbranch_scc1 K_S2
    ds_read_b32 v35, v34 offset:{L_H2}
    s_waitcnt lgkmcnt(0)
    v_mov_b32 v36, v35
    """)
    scan(A, 36)
    A(f"""
    v_sub_u32 v36, v36, v35
    ds_bpermute_b32 v36, v32, v36
    s_waitcnt lgkmcnt(0)
    v_add_u32 v33, v33, v36
    v_lshlrev_b32 v36, 2, v33
    v_and_b32 v35, 7, v33
    v_lshrrev_b32 v33, 1, v33
    s_mov_b64 exec, {sr(T+6,2)}
    ds_write_b32 v36, v0 offset:{L_ORD}
    v_cmpx_eq_u32 vcc, 0, v35
    ds_write_b32 v33, v31 offset:{L_LG}
    s_mov_b64 exec, -1
K_S2:
    v_and_b32 v34, 31, v{V_LANE}
    v_lshlrev_b32 v34, 2, v34
    v_mov_b32 v37, {L_FLAG}
    s_and_b32 s{S_WP}, s{S_WAVE}, 3
    s_lshl_b32 s{S_WP}, s{S_WP}, 2
    s_lshr_b32 s{T}, s{S_WAVE}, 2
    s_add_u32 s{S_WP}, s{S_WP}, s{T}
    s_waitcnt lgkmcnt(0)
    s_barrier
    """)
    st(12)
    A(f"""
    s_setprio 3
    ds_read_b32 v35, v34 offset:{L_LG}
    ds_read_b32 v38, v37
    s_waitcnt lgkmcnt(0)
    v_mov_b32 v36, v35
    v_readfirstlane_b32 s{T}, v38
    s_cmp_lg_u32 s{T}, 0
    s_cbranch_scc1 K_SLOW
    """)
    scan(A, 36, upto=32)
    A(f"""
    v_readlane_b32 s{S_TT}, v36, 31
    s_mul_i32 s{T+1}, s{S_WP}, s{S_TT}
    s_add_u32 s{T+2}, s{T+1}, s{S_TT}
    s_lshr_b32 s{T+1}, s{T+1}, 4
    s_lshr_b32 s{T+2}, s{T+2}, 4
    s_sub_u32 s{S_N1}, s{T+2}, s{T+1}
    s_sub_u32 s{S_N1}, s{S_N1}, 1
    s_min_u32 s{S_N1}, s{S_N1}, 58
    v_cmp_ge_u32 vcc, s{T+1}, v36
    s_bcnt1_i32_b32 s{S_GC}, vcc_lo
    s_lshl_b32 s{T+3}, s{S_GC}, 5
    v_add_u32 v{V_OA}, s{T+3}, v{V_OA}
    ds_read_b32 v{V_LC}, v{V_OA} offset:{L_ORD}
    ds_read_b32 v{V_LN}, v{V_OA} offset:{L_ORD+32}
    v_sub_u32 v35, v36, v35
    v_readlane_b32 s{S_GS}, v35, s{S_GC}
    s_mov_b32 s{S_GF}, s{S_GC}
    v_subrev_u32 v36, s{T+1}, v36
    v_subrev_u32 v36, 1, v36
    v_cmp_gt_u32 vcc, 64, v36
    v_mov_b32 v40, 1
    v_mov_b32 v41, 0
    v_lshlrev_b64 v[40:41], v36, v[40:41]
    v_cndmask_b32 v40, 0, v40, vcc
    v_cndmask_b32 v41, 0, v41, vcc
    """)
    for sh in (1, 2, 4, 8):
        for v in (40, 41):
            A(f"v_or_b32_dpp v{v}, v{v}, v{v} row_shr:{sh} row_mask:0xf bank_mask:0xf")
    for v in (40, 41):
        A(f"v_or_b32_dpp v{v}, v{v}, v{v} row_bcast:15 row_mask:0xa bank_mask:0xf")
    A(f"""
    v_readlane_b32 s{S_FL}, v40, 31
    v_readlane_b32 s{S_FL+1}, v41, 31
    s_sub_u32 s{T+4}, s{T+1}, s{S_GS}
    s_cmp_lg_u32 s{T+4}, 0
    s_cselect_b32 s{S_HEAD}, 1, 0
    s_lshl_b32 s{T+4}, s{T+4}, 3
    s_add_u32 s{T+4}, s{T+4}, {L_LIST}
    s_movk_i32 s{T+5}, {LS}
    v_mov_b32 v36, s{T+4}
    s_waitcnt lgkmcnt(0)
    v_mad_u32_u24 v{V_P}, v{V_LC}, s{T+5}, v36
    v_mov_b32 v{V_NB}, v{V_LN}
    """)
    for j in range(R):
        for x in rd_rec(0, j): A(x)
        if j == 0:
            A(f"""
            s_movk_i32 s{T+5}, {AUS}
            v_mad_u32_u24 v36, v{V_LC}, s{T+5}, v{V_AUC}
            ds_read_b128 {vr(V_EA,4)}, v36
            ds_read_b128 {vr(V_UX,4)}, v36 offset:128
            v_mad_u32_u24 v36, v{V_LN}, s{T+5}, v{V_AUC}
            ds_read_b128 {vr(V_AN,4)}, v36
            """)
        A(f"""
        v_add_u32 v{V_P}, 8, v{V_P}
        s_bitcmp1_b64 {sr(S_FL,2)}, {j}
        s_cbranch_scc0 K_PR{j}
        s_mov_b32 s{S_U}, -1
        s_call_b64 {sr(S_RET2,2)}, K_FETCH
K_PR{j}:
        """)
        if j < D:
            A("s_waitcnt lgkmcnt(0)")
            for x in ld_rows(j): A(x)
    A(f"""
    s_lshr_b64 {sr(S_FF,2)}, {sr(S_FL,2)}, {R}
    s_or_b64 {sr(S_EV,2)}, {sr(S_FL,2)}, {sr(S_FF,2)}
    s_lshl_b64 {sr(T,2)}, 1, s{S_N1}
    s_or_b64 {sr(S_EV,2)}, {sr(S_EV,2)}, {sr(T,2)}
    s_lshr_b64 {sr(T+2,2)}, {sr(T,2)}, 2
    s_or_b64 {sr(S_EV,2)}, {sr(S_EV,2)}, {sr(T+2,2)}
    s_lshr_b64 {sr(T+2,2)}, {sr(T,2)}, 4
    s_or_b64 {sr(S_EV,2)}, {sr(S_EV,2)}, {sr(T+2,2)}
    s_lshr_b64 {sr(T+2,2)}, {sr(T,2)}, 7
    s_or_b64 {sr(S_EV,2)}, {sr(S_EV,2)}, {sr(T+2,2)}
    s_mov_b64 {sr(S_EVC,2)}, {sr(S_EV,2)}
    """)
    for i in range(4): A(f"v_exp_f32 v{V_EA+i}, v{V_EA+i}")
    for i in range(8): A(f"v_mov_b32 v{V_NUM+i}, 0")
    st(13)
    A(".p2align 6")
    A.label("K_LOOP")
    for u in range(U):
        d, r = u % D, u % R
        A(f"s_waitcnt vmcnt({2*(D-1)}) lgkmcnt(0)")
        for x in c_head(d, r) + ld_rows(d) + rd_rec(8*u, r) + c_rest(): A(x)
        A(f"s_bitcmp1_b64 {sr(S_EV,2)}, {u}")
        A(f"s_cbranch_scc1 K_EV{u}")
        A.label(f"K_RT{u}")
    A(f"""
    v_add_u32 v{V_P}, {8*U}, v{V_P}
    s_lshr_b64 {sr(S_EV,2)}, {sr(S_EV,2)}, {U}
    s_cbranch_scc1 K_LOOP
    s_branch K_TAIL
    """)
    for u in range(U):
        A(f"""
K_EV{u}:
        s_mov_b32 s{S_U}, {u}
        s_call_b64 {sr(S_RET,2)}, K_EVENT
        s_branch K_RT{u}
        """)
    A(f"""
K_FETCH:
    s_add_u32 s{S_GF}, s{S_GF}, 1
    s_lshl_b32 s{T}, s{S_U}, 3
    s_sub_u32 s{T}, {L_LIST-8}, s{T}
    v_mov_b32 v{V_X0}, s{T}
    s_movk_i32 s{T+1}, {LS}
    v_mad_u32_u24 v{V_P}, v{V_NB}, s{T+1}, v{V_X0}
    s_sub_u32 s{T}, s{S_GF}, s{S_GC}
    s_lshl_b32 s{T}, s{T}, 5
    v_add_u32 v{V_X0}, s{T}, v{V_OA}
    ds_read_b32 v{V_NB}, v{V_X0} offset:{L_ORD+32}
    s_setpc_b64 {sr(S_RET2,2)}
K_EVENT:
    s_ff1_i32_b64 s{T+4}, {sr(S_EVC,2)}
    s_bitset0_b64 {sr(S_EVC,2)}, s{T+4}
    s_bitcmp1_b64 {sr(S_FF,2)}, s{T+4}
    s_cbranch_scc0 K_E1
    s_call_b64 {sr(S_RET2,2)}, K_FETCH
K_E1:
    s_bitcmp1_b64 {sr(S_FL,2)}, s{T+4}
    s_cbranch_scc0 K_E3
    s_cmp_eq_u32 s{S_HEAD}, 1
    s_cbranch_scc0 K_E2
    s_mov_b32 s{S_HEAD}, 2
    """)
    for i in range(8): A(f"v_mov_b32 v{V_HD+i}, v{V_NUM+i}")
    for i in range(4): A(f"v_mov_b32 v{V_HUX+i}, v{V_UX+i}")
    A(f"v_mov_b32 v{V_HL}, v{V_LC}")
    A("s_branch K_E2B")
    A.label("K_E2")
    finalize(A, V_NUM, V_DEN, V_UX, V_LC)
    A(f"""
K_E2B:
    s_cmp_eq_u32 s{T+4}, s{S_N1}
    s_cbranch_scc1 K_DONE
    s_add_u32 s{S_GC}, s{S_GC}, 1
    v_add_u32 v{V_OA}, 32, v{V_OA}
    v_mov_b32 v{V_LC}, v{V_LN}
    ds_read_b32 v{V_LN}, v{V_OA} offset:{L_ORD+32}
    s_movk_i32 s{T+1}, {AUS}
    v_mad_u32_u24 v{V_X0}, v{V_LC}, s{T+1}, v{V_AUC}
    ds_read_b128 {vr(V_UX,4)}, v{V_X0} offset:128
    """)
    for i in range(4): A(f"v_exp_f32 v{V_EA+i}, v{V_AN+i}")
    for i in range(8): A(f"v_mov_b32 v{V_NUM+i}, 0")
    A(f"""
    s_waitcnt lgkmcnt(1)
    v_mad_u32_u24 v{V_X0}, v{V_LN}, s{T+1}, v{V_AUC}
    ds_read_b128 {vr(V_AN,4)}, v{V_X0}
K_E3:
    s_sub_u32 s{T}, s{S_N1}, s{T+4}
    s_cmp_eq_u32 s{T}, 0
    s_cbranch_scc1 K_TAIL
    s_cmp_gt_u32 s{T}, 7
    s_cbranch_scc1 K_E4
    s_setprio 2
    s_cmp_gt_u32 s{T}, 4
    s_cbranch_scc1 K_E4
    s_setprio 1
    s_cmp_gt_u32 s{T}, 2
    s_cbranch_scc1 K_E4
    s_setprio 0
K_E4:
    s_setpc_b64 {sr(S_RET,2)}
K_TAIL:
    s_lshl_b32 s{T}, s{S_WP}, 11
    s_add_u32 s{T}, s{T}, {L_SIDE}
    v_lshl_add_u32 v{V_X0}, v{V_LANE}, 4, s{T}
    ds_write_b128 v{V_X0}, {vr(V_NUM,4)}
    ds_write_b128 v{V_X0}, {vr(V_DEN,4)} offset:1024
K_DONE:
    s_waitcnt lgkmcnt(0)
    """)
    st(14)
    A(f"""
    s_barrier
    s_cmp_eq_u32 s{S_HEAD}, 2
    s_cbranch_scc0 K_FIN
    v_lshlrev_b32 v{V_X1}, 4, v{V_LANE}
K_HL:
    s_sub_u32 s{S_WP}, s{S_WP}, 1
    s_lshl_b32 s{T}, s{S_WP}, 11
    s_add_u32 s{T}, s{T}, {L_SIDE}
    v_add_u32 v{V_X0}, s{T}, v{V_X1}
    ds_read_b128 {vr(V_NUM,4)}, v{V_X0}
    ds_read_b128 {vr(V_DEN,4)}, v{V_X0} offset:1024
    s_mul_i32 s{T}, s{S_WP}, s{S_TT}
    s_lshr_b32 s{T}, s{T}, 4
    s_waitcnt lgkmcnt(0)
    """)
    for k in range(4): A(f"v_pk_add_f32 {vr(V_HD+2*k,2)}, {vr(V_HD+2*k,2)}, {vr(V_NUM+2*k,2)}")
    A(f"""
    s_cmp_gt_u32 s{T}, s{S_GS}
    s_cselect_b32 s{T}, s{S_WP}, 0
    s_cmp_gt_i32 s{T}, 0
    s_cbranch_scc1 K_HL
    """)
    finalize(A, V_HD, V_HD+4, V_HUX, V_HL)
    A.label("K_FIN")
    if diag:
        A("s_waitcnt vmcnt(0)")
        st(15)
        A(f"""
        s_lshl_b32 s{T}, s2, 4
        s_add_u32 s{T}, s{T}, s{S_WAVE}
        s_lshl_b32 s{T}, s{T}, 7
        s_add_u32 s{T}, s{T}, {WS_STAMP}
        v_lshlrev_b32 v{V_X0}, 2, v{V_LANE}
        v_cmpx_gt_u32 vcc, 32, v{V_LANE}
        buffer_store_dword v{V_STAMP}, v{V_X0}, {srd(S_WS)}, s{T} offen
        """)
        if "--dbg" in sys.argv:
            mk_srd(A, S_B, KDBG, 256)
            sel = opt("--dbgwg", -1)
            if sel >= 0:
                A(f"s_cmp_lg_u32 s2, {sel}")
                A("s_cbranch_scc1 K_END")
            A(f"""
            s_mov_b64 exec, -1
            v_readlane_b32 s{T}, v{V_STAMP}, 16
            s_not_b32 s{T}, s{T}
            v_writelane_b32 v{V_STAMP}, s{T}, 20
            v_subrev_u32 v{V_X0}, 64, v{V_X0}
            s_mov_b32 exec_lo, 0xfffe0000
            s_mov_b32 exec_hi, 0
            buffer_atomic_umax v{V_STAMP}, v{V_X0}, {srd(S_B)}, 0 offen sc1
            """)
    A("""
K_END:
    s_endpgm
    """)
    WQ = 64
    A(f"""
K_SLOW:
    s_setprio 0
    s_waitcnt vmcnt(0)
    v_mov_b32 v36, 0
    v_mov_b32 v37, 0
    v_mov_b32 v38, 0
    v_mov_b32 v39, 0
    v_lshlrev_b32 v29, 4, v0
    v_add_u32 v29, {L_LIST}, v29
    ds_write_b128 v29, v[36:39]
    ds_write_b128 v29, v[36:39] offset:16384
    ds_write_b128 v29, v[36:39] offset:32768
    ds_write_b128 v29, v[36:39] offset:49152
    v_and_b32 v28, 31, v{V_LANE}
    v_lshlrev_b32 v30, 1, v28
    s_lshl_b32 s{T}, s{S_HALF}, 6
    """)
    mk_srd(A, S_A, KWB, 8192)
    mk_srd(A, S_B, KWV, 8192)
    A(f"s_mov_b32 s{T+1}, s{T}")
    for k2 in range(32):
        A(f"""
        s_mov_b32 exec_hi, 0
        buffer_load_ushort v32, v30, {srd(S_A)}, s{T+1} offen
        buffer_load_ushort v33, v30, {srd(S_A)}, s{T+1} offen offset:128
        s_not_b64 exec, exec
        buffer_load_ushort v32, v30, {srd(S_B)}, s{T+1} offen
        buffer_load_ushort v33, v30, {srd(S_B)}, s{T+1} offen offset:128
        s_mov_b64 exec, -1
        s_add_u32 s{T+1}, s{T+1}, 256
        s_waitcnt vmcnt(0)
        v_lshl_or_b32 v{WQ+k2}, v33, 16, v32
        """)
    mk_srd(A, S_A, KWC, 128)
    A(f"""
    buffer_load_ushort v34, v30, {srd(S_A)}, s{T} offen
    v_lshlrev_b32 v30, 2, v28
    v_lshrrev_b32 v31, 5, v{V_LANE}
    v_xor_b32 v31, 1, v31
    v_lshl_add_u32 v35, v31, 7, v30
    v_add_u32 v35, {L_LIST}, v35
    v_add_u32 v30, {L_AU}, v30
    v_lshlrev_b32 v31, 2, v28
    s_waitcnt vmcnt(0) lgkmcnt(0)
    v_lshlrev_b32 v34, 16, v34
    v_mul_f32 v34, 0x{f2u(-LOG2E):08x}, v34
    """)
    mk_srd(A, S_A, KDST, E*4)
    mk_srd(A, S_B, KSRC, E*4)
    mk_srd(A, S_TAB, KE, E*2)
    XS = 34
    A(f"""
    s_barrier
    v_mov_b32 v36, v0
    s_mov_b32 s{S_T0}, {E}
K_SB:
    v_lshlrev_b32 v37, 2, v36
    v_lshlrev_b32 v38, 1, v36
    buffer_load_dword v39, v37, {srd(S_A)}, 0 offen
    buffer_load_dword v40, v37, {srd(S_B)}, 0 offen
    buffer_load_ushort v41, v38, {srd(S_TAB)}, 0 offen
    v_cmp_gt_u32 {sr(52,2)}, s{S_T0}, v36
    s_waitcnt vmcnt(0)
    v_subrev_u32 v39, s{S_NB}, v39
    v_cmp_gt_u32 vcc, {NPB}, v39
    s_and_b64 {sr(52,2)}, {sr(52,2)}, vcc
K_SE:
    s_cmp_eq_u64 {sr(52,2)}, 0
    s_cbranch_scc1 K_SN
    s_ff1_i32_b64 s34, {sr(52,2)}
    s_bitset0_b64 {sr(52,2)}, s34
    v_readlane_b32 s35, v40, s34
    v_readlane_b32 s{S_T1}, v39, s34
    v_readlane_b32 s{S_PF}, v41, s34
    s_min_u32 s35, s35, {N-1}
    s_lshl_b32 s35, s35, 7
    s_load_dwordx16 s[36:51], {sr(KX,2)}, s35
    s_add_u32 s35, s35, 64
    s_load_dwordx16 s[60:75], {sr(KX,2)}, s35
    s_mul_i32 s34, s{S_T1}, {AUS}
    v_add_u32 v42, s34, v30
    ds_read_b32 v43, v42
    s_lshl_b32 s{S_PF}, s{S_PF}, 16
    s_lshl_b32 s{S_T1}, s{S_T1}, 8
    v_mov_b32 v48, 0
    v_mov_b32 v49, 0
    s_waitcnt lgkmcnt(0)
    """)
    for k2 in range(16):
        A(f"v_dot2_f32_bf16 v48, s{36+k2}, v{WQ+k2}, v48")
        A(f"v_dot2_f32_bf16 v49, s{60+k2}, v{WQ+16+k2}, v49")
    A(f"""
    s_nop 3
    v_add_f32 v48, v48, v49
    v_fma_f32 v43, s{S_PF}, v34, v43
    v_mul_f32 v49, 0x{f2u(-LOG2E):08x}, v48
    v_add_f32 v49, v49, v43
    v_exp_f32 v49, v49
    v_add_f32 v49, s{S_C}, v49
    v_rcp_f32 v49, v49
    s_nop 1
    ds_bpermute_b32 v49, v31, v49
    v_cmp_gt_u32 vcc, 32, v{V_LANE}
    v_cndmask_b32 v48, v48, 1.0, vcc
    v_add_u32 v42, s{S_T1}, v35
    s_waitcnt lgkmcnt(0)
    v_mul_f32 v49, v49, v48
    ds_add_f32 v42, v49
    s_branch K_SE
K_SN:
    v_add_u32 v36, 1024, v36
    v_readfirstlane_b32 s34, v36
    s_cmp_lt_u32 s34, {E}
    s_cbranch_scc1 K_SB
    s_mov_b32 s{S_MSK}, 0xffff0000
    s_movk_i32 s34, {AUS}
    s_waitcnt lgkmcnt(0)
    s_barrier
    v_lshrrev_b32 v{V_LC}, 3, v0
    v_add_u32 v{V_X1}, {L_LIST}, v{V_I0+1}
    """)
    for it in range(2):
        A(f"""
        v_min_u32 v36, 199, v{V_LC}
        v_mad_u32_u24 v37, v36, s34, v{V_AUC}
        ds_read_b128 {vr(V_UX,4)}, v37 offset:128
        v_lshl_add_u32 v39, v36, 8, v{V_X1}
        ds_read_b128 {vr(V_NUM,4)}, v39
        ds_read_b128 {vr(V_DEN,4)}, v39 offset:128
        s_waitcnt lgkmcnt(0)
        """)
        finalize(A, V_NUM, V_DEN, V_UX, V_LC)
        A(f"v_add_u32 v{V_LC}, 128, v{V_LC}")
    A("s_endpgm")

HEADER = open(f"cdna_kernels/{NAME}.s.ref").read().split("; Override")[0]

def build(diag=False):
    A = Asm()
    out = HEADER
    out += f"; @launch grid=(256,1,1) block=(1024,1,1) lds={LDS}\n"
    out += '.amdgcn_target "amdgcn-amd-amdhsa--gfx950"\n.text\n'
    out += f".globl {NAME}_kernel\n.p2align 8\n.type {NAME}_kernel,@function\n"
    gen(A, diag)
    out += A.text()
    out += f""".section .rodata,"a"
.p2align 6
.amdhsa_kernel {NAME}_kernel
  .amdhsa_next_free_vgpr 128
  .amdhsa_next_free_sgpr 102
  .amdhsa_accum_offset 128
  .amdhsa_group_segment_fixed_size 0
  .amdhsa_kernarg_size 96
  .amdhsa_user_sgpr_count 2
  .amdhsa_user_sgpr_kernarg_segment_ptr 1
  .amdhsa_system_sgpr_workgroup_id_x 1
  .amdhsa_float_denorm_mode_32 3
.end_amdhsa_kernel
"""
    return out

if __name__ == "__main__":
    diag = "--diag" in sys.argv
    path = sys.argv[1] if len(sys.argv) > 1 and not sys.argv[1].startswith("--") else f"cdna_kernels/{NAME}.s"
    open(path, "w").write(build(diag))
    print("wrote", path, "LDS", LDS)
```

```python
import sys, struct
sys.path.insert(0, "gen")
import hazard
VERBOSE = "--verbose" in sys.argv
def opt(name, default):
    if name in sys.argv: return type(default)(sys.argv[sys.argv.index(name)+1])
    return default

NAME = "standalone__edge_featured_mpnn_gatedgcn__graph"
N, E = 25000, 800000
CH = 3128
NT = CH // 8
NPB = 196
CHP = 3584
WS_REC  = 0
WS_LOC  = 0x380000
WS_OFFS = 0x460000
WS_TF   = 0x4A0000
WS_EP   = 0x4A1000
WS_STAMP = 0x4B0000
WS_TAB  = 0x600000
HS      = 0x320000
PADROW  = 25088
WS_SIZE = WS_TAB + 2*HS
assert 256*CHP*4 <= WS_LOC and WS_LOC + 256*CHP <= WS_OFFS
L_CNT, L_H2, L_LG, L_FLAG, L_ORD, L_BL = 0, 1024, 1280, 1408, 1536, 2560
L_C2, L_C3, L_CX, L_CP, L_CY, L_CE, L_CL = L_FLAG+8, L_FLAG+12, L_FLAG+16, L_FLAG+20, L_FLAG+24, L_FLAG+28, L_FLAG+32
L_HIST, L_OFF, L_LOC = 3072, 3584, 4096
L_AU   = L_LOC + CHP
AUS    = 272
L_WBV  = L_AU
L_REC  = L_AU + 16384
L_SIDE = L_AU + 200*AUS
L_XST  = L_SIDE
L_WAU  = L_SIDE + 25600
L_LIST = L_SIDE + 33792
LS     = 296
CAP    = 74
LDS    = L_LIST + 200*LS
assert LDS <= 163840 and L_SIDE % 128 == 0, (LDS, L_SIDE)
BLCAP  = 128
SH = 48
LOG2E = 1.4426950408889634
D = opt("--depth", 2)
R = D + 1
U = D * R
SPIN = opt("--spin", 30000)
FORCE_SLOW = "--slow" in sys.argv
PFA = opt("--pfa", 0)
PFAN = opt("--pfan", 1)
ENT = " nt" if "--nt" in sys.argv else ""
XNT = " nt" if "--xnt" in sys.argv else ""
RPF = "--rpf" in sys.argv

def f2u(x): return struct.unpack("<I", struct.pack("<f", x))[0]

class Asm:
    def __init__(self): self.l = []
    def __call__(self, s):
        for ln in s.strip("\n").split("\n"):
            t = ln.strip()
            if not t: continue
            self.l.append(t if t.endswith(":") else "    " + t)
    def label(self, n): self.l.append(n + ":")
    def text(self): return "\n".join(hazard.fix(self.l, VERBOSE)) + "\n"

def vr(a, n=1): return f"v{a}" if n == 1 else f"v[{a}:{a+n-1}]"
def sr(a, n=1): return f"s{a}" if n == 1 else f"s[{a}:{a+n-1}]"
def srd(b): return f"s[{b}:{b+3}]"
def mfma(d, a, b, c): return f"v_mfma_f32_32x32x16_bf16 {d}, {a}, {b}, {c}"

def scan(A, v, op="v_add_u32", upto=64):
    for sh in (1, 2, 4, 8):
        A(f"{op}_dpp v{v}, v{v}, v{v} row_shr:{sh} row_mask:0xf bank_mask:0xf")
    if upto >= 32:
        A(f"{op}_dpp v{v}, v{v}, v{v} row_bcast:15 row_mask:0xa bank_mask:0xf")
    if upto >= 64:
        A(f"{op}_dpp v{v}, v{v}, v{v} row_bcast:31 row_mask:0xc bank_mask:0xf")

V_LANE, V_P, V_NB, V_OA = 1, 2, 3, 4
V_AUC, V_OUTC = 5, 6
V_LC = 7
V_NUM, V_DEN = 8, 12
V_EA, V_WC = 16, 20
V_T, V_V, V_M = 24, 32, 40
V_I0, V_I1 = 44, 46
V_S, V_Q = 48, 52
V_UX = 56
V_LN = 60
V_HL = 61
V_X0, V_X1 = 62, 63
V_DAT = 64
V_E = 96
V_HD = 104
V_HUX = 112
V_AN = 116
V_DUMMY = 126
V_STAMP = 127
S_WS, S_TAB, S_OUT, S_X = 4, 8, 12, 16
S_A, S_B = 20, 24
S_C = 28
S_BIN, S_HALF, S_WAVE, S_WP = 30, 31, 32, 33
S_EV, S_EVC, S_FL, S_FF = 34, 36, 38, 40
S_N1, S_GC, S_GF, S_HEAD, S_U, S_TT, S_GS = 42, 43, 44, 45, 46, 47, 48
S_MSK = 49
S_RET, S_RET2 = 50, 52
S_EPS = 54
S_T0, S_T1 = 56, 57
S_PF = 58
S_NB = 59
S_T = 60
S_K = 76
KX, KE, KSRC, KDST, KWA, KWB, KWC, KWU, KWV, KOUT, KDBG, KWS = [S_K + 2*i for i in range(12)]

def stamp(A, idx, on):
    if on:
        A(f"s_memtime s[100:101]")
        A("s_waitcnt lgkmcnt(0)")
        A(f"v_writelane_b32 v{V_STAMP}, s100, {idx}")
        A(f"s_memrealtime s[100:101]")
        A("s_waitcnt lgkmcnt(0)")
        A(f"v_writelane_b32 v{V_STAMP}, s100, {idx+16}")

def mk_srd(A, d, ptr, nbytes):
    A(f"s_mov_b32 s{d}, s{ptr}")
    A(f"s_mov_b32 s{d+1}, s{ptr+1}")
    A(f"s_mov_b32 s{d+2}, {nbytes}")
    A(f"s_mov_b32 s{d+3}, 0x20000")

def ld_rows(d):
    b = V_DAT + 8*d
    return [f"buffer_load_dwordx4 {vr(b,4)}, {vr(V_I0,2)}, {srd(S_TAB)}, 0 idxen offen sc1",
            f"buffer_load_dwordx4 {vr(b+4,4)}, {vr(V_I1,2)}, {srd(S_TAB)}, 0 idxen offen sc1"]
def rd_rec(off, r):
    return [f"ds_read_u16 v{V_I0}, v{V_P} offset:{off}",
            f"ds_read_u16 v{V_I1}, v{V_P} offset:{off+4}",
            f"ds_read_u16_d16_hi v{V_E+2*r}, v{V_P} offset:{off+2}",
            f"ds_read_u16_d16_hi v{V_E+2*r+1}, v{V_P} offset:{off+6}"]
def c_head(d, r):
    b = V_DAT + 8*d; e = V_E + 2*r
    o = []
    for h in range(2):
        for k in range(2):
            sel = "op_sel_hi:[0,1,1]" if h == 0 else "op_sel:[1,0,0] op_sel_hi:[1,1,1]"
            o.append(f"v_pk_fma_f32 {vr(V_T+4*h+2*k,2)}, {vr(e,2)}, {vr(V_WC+2*k,2)}, {vr(b+4*h+2*k,2)} {sel}")
    for i in range(4): o.append(f"v_lshlrev_b64 {vr(V_V+2*i,2)}, 16, {vr(b+2*i,2)}")
    return o
def c_rest():
    o = []
    T, V, M, S, Q = V_T, V_V, V_M, V_S, V_Q
    for i in range(8): o.append(f"v_exp_f32 v{T+i}, v{T+i}")
    for i in range(4): o.append(f"v_pk_fma_f32 {vr(T+2*i,2)}, {vr(T+2*i,2)}, {vr(V_EA+2*(i%2),2)}, {sr(S_C,2)} clamp")
    for k in range(2): o.append(f"v_pk_mul_f32 {vr(M+2*k,2)}, {vr(T+2*k,2)}, {vr(T+4+2*k,2)}")
    for i in range(4): o.append(f"v_rcp_f32 v{M+i}, v{M+i}")
    for k in range(2): o.append(f"v_pk_add_f32 {vr(S+2*k,2)}, {vr(T+2*k,2)}, {vr(T+4+2*k,2)}")
    for k in range(2): o.append(f"v_pk_mul_f32 {vr(Q+2*k,2)}, {vr(V+2*k,2)}, {vr(T+4+2*k,2)}")
    for k in range(2): o.append(f"v_pk_fma_f32 {vr(Q+2*k,2)}, {vr(V+4+2*k,2)}, {vr(T+2*k,2)}, {vr(Q+2*k,2)}")
    for k in range(2): o.append(f"v_pk_fma_f32 {vr(V_DEN+2*k,2)}, {vr(S+2*k,2)}, {vr(M+2*k,2)}, {vr(V_DEN+2*k,2)}")
    for k in range(2): o.append(f"v_pk_fma_f32 {vr(V_NUM+2*k,2)}, {vr(Q+2*k,2)}, {vr(M+2*k,2)}, {vr(V_NUM+2*k,2)}")
    return o

def finalize(A, num, den, ux, loc):
    T, V = V_T, V_V
    for k in range(2): A(f"v_pk_add_f32 {vr(den+2*k,2)}, {vr(den+2*k,2)}, {sr(S_EPS,2)}")
    for i in range(4): A(f"v_rcp_f32 v{den+i}, v{den+i}")
    for i in range(4): A(f"v_and_b32 v{T+i}, s{S_MSK}, v{ux+i}")
    for i in range(4): A(f"v_lshlrev_b32 v{V+i}, 16, v{ux+i}")
    for k in range(2): A(f"v_pk_fma_f32 {vr(T+2*k,2)}, {vr(num+2*k,2)}, {vr(den+2*k,2)}, {vr(T+2*k,2)}")
    A(f"v_lshl_add_u32 v{T+4}, v{loc}, 7, v{V_OUTC}")
    A(f"v_cmp_gt_u32 vcc, {NPB}, v{loc}")
    for i in range(4): A(f"v_max_f32 v{T+i}, 0, v{T+i}")
    for k in range(2): A(f"v_pk_add_f32 {vr(T+2*k,2)}, {vr(T+2*k,2)}, {vr(V+2*k,2)}")
    A(f"v_cndmask_b32 v{T+4}, -1, v{T+4}, vcc")
    A(f"v_cvt_pk_bf16_f32 v{T+6}, v{T}, v{T+1}")
    A(f"v_cvt_pk_bf16_f32 v{T+7}, v{T+2}, v{T+3}")
    A(f"buffer_store_dwordx2 {vr(T+6,2)}, v{T+4}, {srd(S_OUT)}, 0 offen")

def arrive(A, addr, rtn=None):
    A(f"v_mov_b32 v120, {addr}")
    A("v_mov_b32 v121, 1")
    A("s_mov_b64 exec, 1")
    if rtn is None: A("ds_add_u32 v120, v121")
    else:
        A("ds_add_rtn_u32 v122, v120, v121")
        A("s_waitcnt lgkmcnt(0)")
        A(f"v_readfirstlane_b32 s{rtn}, v122")
    A("s_mov_b64 exec, -1")

def spin_lds(A, name, target):
    A(f"""
{name}:
    ds_read_b32 v122, v120
    s_waitcnt lgkmcnt(0)
    v_readfirstlane_b32 s{S_T}, v122
    s_cmp_lt_u32 s{S_T}, {target}
    s_cbranch_scc1 {name}
    """)

def gen(A, diag):
    T = S_T
    EARLY = "--early" in sys.argv
    st = lambda i: stamp(A, i, diag and not (EARLY and 2 <= i <= 7))
    se = lambda i: stamp(A, i, diag and EARLY)
    A.label(f"{NAME}_kernel")
    A(f"""
    s_cmp_ge_u32 s2, 256
    s_cbranch_scc1 K_END
    s_load_dwordx16 {sr(S_K,16)}, s[0:1], 0
    s_load_dwordx8 {sr(S_K+16,8)}, s[0:1], 64
    s_and_b32 s{S_HALF}, s2, 1
    s_bfe_u32 s{T}, s2, 0x20001
    s_lshr_b32 s{T+1}, s2, 3
    s_lshl_b32 s{S_BIN}, s{T}, 5
    s_add_u32 s{S_BIN}, s{S_BIN}, s{T+1}
    s_mul_i32 s{S_NB}, s{S_BIN}, {NPB}
    v_readfirstlane_b32 s{S_WAVE}, v0
    s_lshr_b32 s{S_WAVE}, s{S_WAVE}, 6
    v_and_b32 v{V_LANE}, 63, v0
    v_and_b32 v26, 7, v{V_LANE}
    v_lshrrev_b32 v27, 4, v{V_LANE}
    v_xor_b32 v27, v26, v27
    v_lshlrev_b32 v27, 4, v27
    v_lshrrev_b32 v28, 3, v{V_LANE}
    v_lshl_add_u32 v24, v28, 7, v27
    v_xor_b32 v25, 64, v24
    v_lshlrev_b32 v29, 4, v{V_LANE}
    s_lshl_b32 s{T+6}, s{S_HALF}, 6
    s_lshl_b32 s{T+7}, s{S_NB}, 7
    s_sub_u32 s{T+9}, s{S_WAVE}, 7
    s_mov_b32 s{T+8}, {WS_EP}
    """)
    if diag: A(f"v_mov_b32 v{V_STAMP}, 0")
    A(f"""
    s_cmp_ge_u32 s{S_WAVE}, 7
    s_cbranch_scc1 K_L1
    s_mul_i32 s{T+2}, s{S_HALF}, 12
    s_lshl_b32 s{T+3}, s{S_WAVE}, 1
    s_add_u32 s{T+2}, s{T+2}, s{T+3}
    s_cmp_eq_u32 s{S_WAVE}, 6
    s_cselect_b32 s{T+2}, 24, s{T+2}
    s_lshl_b32 s{T+2}, s{T+2}, 10
    s_add_u32 m0, s{T+2}, {L_XST}
    s_add_u32 s{T+2}, s{T+2}, s{T+7}
    s_lshl_b32 s{T+3}, s{S_WAVE}, 10
    s_waitcnt lgkmcnt(0)
    """)
    st(0)
    mk_srd(A, S_X, KX, N*128)
    mk_srd(A, S_A, KWB, 8192)
    mk_srd(A, S_B, KWV, 8192)
    A(f"""
    buffer_load_dwordx4 v24, {srd(S_X)}, s{T+2} offen lds
    s_cmp_eq_u32 s{S_WAVE}, 6
    s_cbranch_scc1 K_L0
    buffer_load_dwordx4 v25, {srd(S_X)}, s{T+2} offen offset:1024 lds
K_L0:
    s_add_u32 m0, s{T+3}, {L_WBV}
    s_nop 0
    buffer_load_dwordx4 v29, {srd(S_A)}, s{T+3} offen lds
    s_add_u32 m0, s{T+3}, {L_WBV+8192}
    s_cmp_eq_u32 s{S_WAVE}, 6
    buffer_load_dwordx4 v29, {srd(S_B)}, s{T+3} offen lds
    s_cbranch_scc0 K_L1
    buffer_load_dwordx4 v29, {srd(S_B)}, s{T+3} offen offset:1024 lds
    s_add_u32 m0, s{T+3}, {L_WBV}
    s_nop 0
    buffer_load_dwordx4 v29, {srd(S_A)}, s{T+3} offen offset:1024 lds
K_L1:
    v_mul_u32_u24 v30, {LS}, v0
    v_add_u32 v30, {L_LIST}, v30
    v_cmp_gt_u32 vcc, 200, v0
    v_mov_b32 v31, 0x40000000
    v_cndmask_b32 v30, v31, v30, vcc
    v_cmp_gt_u32 vcc, 256, v0
    v_subrev_u32 v32, 384, v0
    v_cndmask_b32 v30, 0, v30, vcc
    v_cmp_gt_u32 vcc, 256, v32
    v_mov_b32 v31, {NPB}
    v_cndmask_b32 v30, v30, v31, vcc
    v_lshlrev_b32 v31, 2, v0
    ds_write_b32 v31, v30
    v_subrev_u32 v34, 448, v0
    v_lshlrev_b32 v32, 4, v34
    v_lshlrev_b32 v33, 3, v34
    s_mul_i32 s{T+10}, s2, {CH*4}
    s_add_u32 s{T+11}, s{T+10}, {CH*2}
    s_lshr_b32 s{T+12}, s{T+10}, 1
    s_lshr_b32 s{T+13}, s{T+11}, 1
    s_waitcnt lgkmcnt(0)
    """)
    if diag:
        A(f"s_cmp_lt_u32 s{S_WAVE}, 7")
        A("s_cbranch_scc1 K_D0")
        st(0)
        A.label("K_D0")
    A(f"s_load_dwordx2 {sr(S_T0,2)}, {sr(KWS,2)}, s{T+8}")
    mk_srd(A, S_A, KDST, E*4)
    mk_srd(A, S_B, KSRC, E*4)
    mk_srd(A, S_WS, KE, E*2)
    mk_srd(A, S_X, KX, N*128)
    mk_srd(A, S_OUT, KWC, 128)
    DS_, SR_, EE_ = 64, 72, 80
    A(f"""
    v_lshlrev_b32 v27, 3, v26
    v_cmp_gt_u32 vcc, {NT}, v34
    v_mov_b32 v36, {PADROW}
    v_mov_b32 v37, {PADROW}
    v_mov_b32 v38, {PADROW}
    v_mov_b32 v39, {PADROW}
    v_lshlrev_b32 v30, 4, v0
    v_add_u32 v30, {L_LIST}, v30
    s_barrier
    buffer_load_dwordx2 {vr(V_WC+2,2)}, v27, {srd(S_OUT)}, s{T+6} offen
    s_cmp_ge_u32 s{T+9}, 7
    s_cbranch_scc1 K_NE0
    s_mov_b64 exec, vcc
    buffer_load_dwordx4 {vr(DS_,4)}, v32, {srd(S_A)}, s{T+10} offen{ENT}
    buffer_load_dwordx4 {vr(DS_+4,4)}, v32, {srd(S_A)}, s{T+11} offen{ENT}
    s_mov_b64 exec, -1
    v_mov_b32 v40, -1
    v_mov_b32 v41, -1
    ds_write_b64 v33, v[40:41] offset:{L_LOC}
K_NE0:
    ds_write_b128 v30, v[36:39]
    ds_write_b128 v30, v[36:39] offset:16384
    s_cbranch_scc1 K_NE
    s_mov_b64 exec, vcc
    buffer_load_dwordx4 {vr(SR_,4)}, v32, {srd(S_B)}, s{T+10} offen{ENT}
    buffer_load_dwordx4 {vr(SR_+4,4)}, v32, {srd(S_B)}, s{T+11} offen{ENT}
    buffer_load_dwordx2 {vr(EE_,2)}, v33, {srd(S_WS)}, s{T+12} offen{ENT}
    buffer_load_dwordx2 {vr(EE_+2,2)}, v33, {srd(S_WS)}, s{T+13} offen{ENT}
    s_mov_b64 exec, -1
K_NE:
    ds_write_b128 v30, v[36:39] offset:32768
    ds_write_b128 v30, v[36:39] offset:49152
    """)
    se(2)
    mk_srd(A, S_WS, KWS, WS_SIZE)
    mk_srd(A, S_OUT, KOUT, N*128)
    A(f"""
    s_mul_i32 s{T+2}, s{S_HALF}, {HS}
    s_add_u32 s{T+2}, s{T+2}, {WS_TAB}
    s_add_u32 s{S_TAB}, s{KWS}, s{T+2}
    s_addc_u32 s{S_TAB+1}, s{KWS+1}, 0
    s_or_b32 s{S_TAB+1}, s{S_TAB+1}, {128<<16}
    s_mov_b32 s{S_TAB+2}, {PADROW+1}
    s_mov_b32 s{S_TAB+3}, 0x20000
    s_mul_i32 s{S_PF}, s{T+1}, {784*128}
    s_add_u32 s{S_PF}, s{S_PF}, s{T+2}
    s_add_u32 s{T+3}, s{T+7}, s{T+6}
    v_add_u32 v{V_OUTC}, s{T+3}, v27
    v_lshlrev_b32 v{V_I0+1}, 4, v26
    v_mov_b32 v{V_I1+1}, v{V_I0+1}
    v_add_u32 v{V_AUC}, {L_AU}, v{V_I0+1}
    v_lshlrev_b32 v{V_OA}, 2, v28
    s_mov_b32 s{S_C}, 0x{f2u(2.0**-SH):08x}
    s_mov_b32 s{S_C+1}, 0x{f2u(2.0**-SH):08x}
    s_mov_b32 s{S_EPS}, 0x{f2u(1e-6*2.0**SH):08x}
    s_mov_b32 s{S_EPS+1}, 0x{f2u(1e-6*2.0**SH):08x}
    s_mov_b32 s{S_MSK}, 0xffff0000
    s_waitcnt lgkmcnt(0)
    s_add_u32 s{S_T1}, s{S_T1}, 1
    s_and_b32 s{S_T0}, s{S_T0}, 0xfff00000
    """)
    arrive(A, L_CE)
    se(3)
    A(f"""
    s_cmp_ge_u32 s{S_WAVE}, 14
    s_cbranch_scc1 K_HELP
    s_cmp_ge_u32 s{S_WAVE}, 7
    s_cbranch_scc1 K_BIN
    ; ---- table job: tile = 3*half + (w>>1), nt = w&1 ; wave 6: tile 6, nt = half
    s_mul_i32 s{T+10}, s{S_HALF}, 3
    s_lshr_b32 s{T+11}, s{S_WAVE}, 1
    s_add_u32 s{T+10}, s{T+10}, s{T+11}
    s_and_b32 s{T+11}, s{S_WAVE}, 1
    s_cmp_eq_u32 s{S_WAVE}, 6
    s_cselect_b32 s{T+10}, 6, s{T+10}
    s_cselect_b32 s{T+11}, s{S_HALF}, s{T+11}
    s_lshl_b32 s{T+12}, s{T+10}, 12
    s_mul_i32 s{T+13}, s{T+11}, {HS}
    s_add_u32 s{T+13}, s{T+13}, s{T+7}
    s_add_u32 s{T+13}, s{T+13}, {WS_TAB}
    s_add_u32 s{S_B}, s{KWS}, s{T+13}
    s_addc_u32 s{S_B+1}, s{KWS+1}, 0
    s_mov_b32 s{S_B+2}, {NPB*128}
    s_mov_b32 s{S_B+3}, 0x20000
    v_and_b32 v28, 31, v{V_LANE}
    v_lshrrev_b32 v29, 5, v{V_LANE}
    v_bfe_u32 v30, v28, 1, 3
    v_xor_b32 v30, v30, v29
    v_lshlrev_b32 v30, 4, v30
    v_lshl_add_u32 v24, v28, 7, v30
    s_add_u32 s{T+13}, s{T+12}, {L_XST}
    v_add_u32 v30, s{T+13}, v24
    v_bfe_u32 v25, v{V_LANE}, 2, 2
    v_lshl_add_u32 v25, v29, 3, v25
    v_lshlrev_b32 v34, 7, v25
    v_bfe_u32 v35, v{V_LANE}, 4, 1
    v_lshl_add_u32 v34, v35, 5, v34
    v_and_b32 v36, 3, v{V_LANE}
    v_lshl_add_u32 v34, v36, 3, v34
    s_lshl_b32 s{T+13}, s{T+11}, 6
    s_add_u32 s{T+13}, s{T+13}, {L_WBV}
    v_add_u32 v34, s{T+13}, v34
    v_and_b32 v32, 1, v{V_LANE}
    v_xor_b32 v32, 1, v32
    v_lshlrev_b32 v32, 15, v32
    v_lshlrev_b32 v33, 9, v29
    v_lshl_add_u32 v33, v28, 2, v33
    v_add_u32 v33, s{T+12}, v33
    s_mov_b32 s{T+13}, 0x{f2u(-LOG2E):08x}
    s_mov_b32 s{T+14}, 0x07060302
    s_waitcnt vmcnt(1)
    """)
    arrive(A, L_CX)
    spin_lds(A, "K_SPX", 7)
    st(1)
    XB = 84
    Wm1 = [36, 40, 116, 8]
    for u in range(4):
        A(f"v_xor_b32 v31, {32*u}, v30")
        A(f"ds_read_b128 {vr(XB+4*u,4)}, v31")
        for tt in range(2):
            A(f"ds_read_b64_tr_b16 {vr(100+4*u+2*tt,2)}, v34 offset:{(16*u+4*tt)*128}")
        for tt in range(2):
            A(f"ds_read_b64_tr_b16 {vr(Wm1[u]+2*tt,2)}, v34 offset:{8192+(16*u+4*tt)*128}")
    for u in range(4):
        A(f"s_waitcnt lgkmcnt({15-5*u})")
        A(mfma(vr(48,16), vr(XB+4*u,4), vr(100+4*u,4), "0" if u == 0 else vr(48,16)))
        A(mfma(vr(64,16), vr(XB+4*u,4), vr(Wm1[u],4), "0" if u == 0 else vr(64,16)))
    arrive(A, L_CY)
    for r in range(16): A(f"v_mul_f32 v{48+r}, s{T+13}, v{48+r}")
    for r in range(16):
        A(f"v_add_u32 v{64+r}, v32, v{64+r}")
        A(f"v_perm_b32 v{48+r}, v{48+r}, v{64+r}, s{T+14}")
        A(f"buffer_store_dword v{48+r}, v33, {srd(S_B)}, 0 offen offset:{(8*(r>>2)+(r&3))*128} sc1")
    st(2)
    A(f"""
    s_lshr_b32 s{T+12}, s2, 1
    s_or_b32 s{T+12}, s{T+12}, s{S_WAVE}
    s_cmp_lg_u32 s{T+12}, 0
    s_cbranch_scc1 K_NPAD
    v_lshlrev_b32 v32, 2, v{V_LANE}
    v_mov_b32 v33, 0x7f000000
    s_mul_i32 s{T+4}, s{S_HALF}, {HS}
    s_add_u32 s{T+4}, s{T+4}, {WS_TAB+PADROW*128}
    s_mov_b32 exec_hi, 0
    buffer_store_dword v33, v32, {srd(S_WS)}, s{T+4} offen sc1
    s_mov_b64 exec, -1
K_NPAD:
    s_waitcnt vmcnt(0)
    """)
    st(3)
    arrive(A, L_CP, rtn=T+3)
    A(f"""
    """)
    def pfa():
        A("v_lshlrev_b32 v31, 7, v0")
        A(f"buffer_load_ubyte v{V_DUMMY}, v31, {srd(S_WS)}, s{S_PF} offen sc1")
    if PFA == 1:
        A(f"v_mov_b32 v120, {L_C3}")
        spin_lds(A, "K_SPA", 7)
        pfa()
    A("s_branch K_PUBQ")
    BN, RK, TM = 48, 56, 84
    A(f"""
K_BIN:
    v_mov_b32 v31, v34
    s_mul_i32 s{T+10}, s2, {CH//4}
    v_add_u32 v32, s{T+10}, v31
    v_cmp_gt_u32 vcc, {NT}, v31
    s_mov_b32 s{T+11}, {E//4}
    v_cmp_gt_u32 {sr(T+4,2)}, s{T+11}, v32
    s_mov_b32 s{T+11}, {E//4 - NT}
    v_cmp_gt_u32 {sr(T+6,2)}, s{T+11}, v32
    s_and_b64 {sr(T+4,2)}, {sr(T+4,2)}, vcc
    s_and_b64 {sr(T+6,2)}, {sr(T+6,2)}, vcc
    s_mov_b32 s{T+8}, 42800
    s_movk_i32 s{T+9}, {NPB}
    v_mov_b32 v33, 1
    s_setprio 3
    """)
    for hlf in range(2):
        A(f"s_mov_b64 exec, {sr(T+4+2*hlf,2)}")
        A(f"s_waitcnt vmcnt({5-hlf})")
        ks = range(4*hlf, 4*hlf+4)
        for k in ks: A(f"v_mul_u32_u24 v{BN+k}, s{T+8}, v{DS_+k}")
        for k in ks: A(f"v_lshrrev_b32 v{BN+k}, 23, v{BN+k}")
        for k in ks:
            A(f"v_mul_u32_u24 v{TM+k}, s{T+9}, v{BN+k}")
            A(f"v_lshlrev_b32 v{BN+k}, 2, v{BN+k}")
            A(f"ds_add_rtn_u32 v{RK+k}, v{BN+k}, v33 offset:{L_HIST}")
        for k in ks: A(f"v_sub_u32 v{DS_+k}, v{DS_+k}, v{TM+k}")
    A("s_mov_b64 exec, -1")
    A(f"v_lshlrev_b32 v34, 3, v{V_LANE}")
    arrive(A, L_C2)
    st(3)
    spin_lds(A, "K_SP2", 7)
    st(4)
    A(f"""
    ds_read_b64 v[36:37], v34 offset:{L_HIST}
    s_waitcnt lgkmcnt(0)
    v_add_u32 v36, 3, v36
    v_add_u32 v37, 3, v37
    v_and_b32 v36, -4, v36
    v_and_b32 v37, -4, v37
    v_add_u32 v38, v36, v37
    v_mov_b32 v39, v38
    """)
    scan(A, 39)
    A(f"""
    v_sub_u32 v38, v39, v38
    v_add_u32 v39, v38, v36
    ds_write_b64 v34, v[38:39] offset:{L_OFF}
    """)
    for hlf in range(2):
        A(f"s_mov_b64 exec, {sr(T+4+2*hlf,2)}")
        for k in range(4*hlf, 4*hlf+4):
            A(f"ds_read_b32 v{TM+k}, v{BN+k} offset:{L_OFF}")
    A(f"""
    s_mov_b32 s{T+8}, 0x05040100
    s_mov_b32 s{T+9}, 0x07060100
    s_waitcnt lgkmcnt(0)
    """)
    for hlf in range(2):
        A(f"s_mov_b64 exec, {sr(T+4+2*hlf,2)}")
        for k in range(4*hlf, 4*hlf+4):
            A(f"v_add_u32 v{TM+k}, v{TM+k}, v{RK+k}")
            A(f"v_lshlrev_b32 v{RK+k}, 2, v{TM+k}")
            A(f"ds_write_b8 v{TM+k}, v{DS_+k} offset:{L_LOC}")
    A("s_mov_b64 exec, -1")
    st(5)
    for hlf in range(2):
        A(f"s_waitcnt vmcnt({1-hlf})")
        A(f"s_mov_b64 exec, {sr(T+4+2*hlf,2)}")
        for k in range(4*hlf, 4*hlf+4):
            A(f"v_perm_b32 v{SR_+k}, v{EE_+k//2}, v{SR_+k}, s{T+8+(k&1)}")
            A(f"ds_write_b32 v{RK+k}, v{SR_+k} offset:{L_REC}")
    A(f"""
    s_mov_b64 exec, -1
    v_lshlrev_b32 v32, 4, v31
    v_lshlrev_b32 v33, 3, v31
    s_mul_i32 s{T+10}, s2, {CHP*4}
    s_add_u32 s{T+11}, s{T+10}, {448*16}
    s_mul_i32 s{T+12}, s2, {CHP}
    s_add_u32 s{T+12}, s{T+12}, {WS_LOC}
    """)
    arrive(A, L_C3)
    spin_lds(A, "K_SP3", 7)
    st(6)
    A(f"""
    ds_read_b128 v[64:67], v32 offset:{L_REC}
    ds_read_b128 v[68:71], v32 offset:{L_REC+448*16}
    ds_read_b64 v[72:73], v33 offset:{L_LOC}
    s_waitcnt lgkmcnt(2)
    buffer_store_dwordx4 v[64:67], v32, {srd(S_WS)}, s{T+10} offen sc1
    s_waitcnt lgkmcnt(1)
    buffer_store_dwordx4 v[68:71], v32, {srd(S_WS)}, s{T+11} offen sc1
    s_waitcnt lgkmcnt(0)
    buffer_store_dwordx2 v[72:73], v33, {srd(S_WS)}, s{T+12} offen sc1
    """)
    arrive(A, L_CY)
    A("s_waitcnt vmcnt(0)")
    st(7)
    arrive(A, L_CP, rtn=T+3)
    A(f"""
    s_branch K_PUBQ
K_HELP:
    s_sub_u32 s{T+2}, s{S_WAVE}, 14
    s_xor_b32 s{T+3}, s{S_HALF}, 1
    s_lshl_b32 s{T+3}, s{T+3}, 1
    s_add_u32 s{T+3}, s{T+3}, s{T+2}
    s_mul_i32 s{T+3}, s{T+3}, 6144
    s_add_u32 m0, s{T+3}, {L_XST}
    s_add_u32 s{T+3}, s{T+3}, s{T+7}
    s_cmp_eq_u32 s{T+2}, 0
    s_cselect_b32 s{S_A}, s{KWA}, s{KWU}
    s_cselect_b32 s{S_A+1}, s{KWA+1}, s{KWU+1}
    s_mov_b32 s{S_A+2}, 8192
    s_mov_b32 s{S_A+3}, 0x20000
    """)
    spin_lds(A, "K_SPE", 16)
    mk_srd(A, S_B, KDBG, 256)
    A(f"""
    s_cmp_lg_u32 s{S_WAVE}, 15
    s_cbranch_scc1 K_HA
    v_mov_b32 v32, 0
    v_mov_b32 v125, 1
    s_mov_b64 exec, 1
    buffer_atomic_add v125, v32, {srd(S_B)}, 0 offen sc0 sc1
    s_mov_b64 exec, -1
K_HA:
    buffer_load_dwordx4 v24, {srd(S_X)}, s{T+3} offen lds
    buffer_load_dwordx4 v25, {srd(S_X)}, s{T+3} offen offset:1024 lds
    buffer_load_dwordx4 v24, {srd(S_X)}, s{T+3} offen offset:2048 lds
    buffer_load_dwordx4 v25, {srd(S_X)}, s{T+3} offen offset:3072 lds
    s_add_u32 m0, m0, 4096
    s_add_u32 s{T+3}, s{T+3}, 4096
    buffer_load_dwordx4 v24, {srd(S_X)}, s{T+3} offen lds
    buffer_load_dwordx4 v25, {srd(S_X)}, s{T+3} offen offset:1024 lds
    v_lshrrev_b32 v30, 2, v{V_LANE}
    v_lshlrev_b32 v30, 7, v30
    v_and_b32 v31, 3, v{V_LANE}
    v_lshl_add_u32 v30, v31, 4, v30
    s_lshl_b32 s{T+4}, s{T+2}, 12
    s_add_u32 m0, s{T+4}, {L_WAU}
    s_mov_b32 s{T+4}, s{T+6}
    """)
    for i4 in range(4):
        A(f"buffer_load_dwordx4 v30, {srd(S_A)}, s{T+4} offen offset:{1024*i4} lds")
        A(f"s_add_u32 s{T+4}, s{T+4}, 1024")
    A("s_waitcnt vmcnt(0)")
    st(2)
    arrive(A, L_CY)
    A(f"""
    s_branch K_JOIN
K_PUB:
    v_lshlrev_b32 v122, 3, v{V_LANE}
    ds_read_b64 v[36:37], v122 offset:{L_HIST}
    ds_read_b64 v[38:39], v122 offset:{L_OFF}
    s_lshl_b32 s{T+4}, s2, 10
    s_add_u32 s{T+4}, s{T+4}, {WS_OFFS}
    v_lshlrev_b32 v122, 4, v{V_LANE}
    v_mov_b32 v41, s{S_T1}
    v_mov_b32 v43, s{S_T1}
    s_waitcnt lgkmcnt(0)
    v_add_u32 v36, 3, v36
    v_add_u32 v37, 3, v37
    v_lshrrev_b32 v36, 2, v36
    v_lshrrev_b32 v37, 2, v37
    v_lshrrev_b32 v38, 2, v38
    v_lshrrev_b32 v39, 2, v39
    v_lshl_or_b32 v40, v36, 10, v38
    v_lshl_or_b32 v42, v37, 10, v39
    v_or_b32 v40, s{S_T0}, v40
    v_or_b32 v42, s{S_T0}, v42
    buffer_store_dwordx4 v[40:43], v122, {srd(S_WS)}, s{T+4} offen sc1
    s_nop 1
    s_setpc_b64 {sr(S_RET,2)}
K_PUBQ:
    s_cmp_lg_u32 s{T+3}, 13
    s_cbranch_scc1 K_JOIN
    s_call_b64 {sr(S_RET,2)}, K_PUB
K_JOIN:
    s_setprio 0
    v_lshrrev_b32 v28, 3, v0
    v_lshlrev_b32 v24, 10, v28
    v_and_b32 v26, 7, v{V_LANE}
    v_mul_u32_u24 v28, {CHP//4}, v28
    v_add_u32 v28, v28, v26
    s_lshl_b32 s{T+5}, s{S_BIN}, 3
    s_add_u32 s{T+5}, s{T+5}, {WS_OFFS}
    s_add_u32 s{T+14}, s{T+5}, {128*1024}
    s_mov_b32 s{T+2}, {128*CHP*4}
    s_mov_b32 s{T+3}, {WS_LOC}
    s_mov_b32 s{T+4}, {WS_LOC+128*CHP}
    v_mov_b32 v31, 0x04000000
    v_mov_b32 v38, 4
    s_mov_b32 s{T+12}, 0xfff00000
    s_mov_b32 s{T+13}, {SPIN}
    """)
    for i in range(2*R): A(f"v_mov_b32 v{V_E+i}, 0")
    if RPF:
        A(f"""
        s_bfe_u32 s{T}, s2, 0x20001
        s_lshr_b32 s{T+1}, s2, 3
        v_lshrrev_b32 v25, 5, v0
        v_mul_u32_u24 v25, {CHP*4}, v25
        v_and_b32 v27, 31, v0
        v_lshl_add_u32 v25, v27, 7, v25
        s_mul_i32 s{T+6}, s{T}, {26*128}
        s_sub_u32 s{T+6}, s{T+6}, 384
        s_max_i32 s{T+6}, s{T+6}, 0
        s_mul_i32 s{T+7}, s{T+1}, {8*CHP*4}
        s_add_u32 s{T+6}, s{T+6}, s{T+7}
        v_lshrrev_b32 v27, 3, v{V_LANE}
        v_mul_u32_u24 v27, {CHP}, v27
        v_lshl_add_u32 v27, v26, 7, v27
        s_mul_i32 s{T+8}, s{T}, 832
        s_sub_u32 s{T+8}, s{T+8}, 64
        s_max_i32 s{T+8}, s{T+8}, 0
        s_mul_i32 s{T+9}, s{T+1}, {8*CHP}
        s_add_u32 s{T+8}, s{T+8}, s{T+9}
        s_add_u32 s{T+8}, s{T+8}, {WS_LOC}
        s_cmp_eq_u32 s{S_WAVE}, 4
        s_cselect_b32 s{T+6}, s{T+8}, s{T+6}
        s_cselect_b64 vcc, -1, 0
        v_cndmask_b32 v25, v25, v27, vcc
        """)
    if "--nojoin" not in sys.argv:
        A("s_barrier")
    if RPF:
        A(f"""
        s_cmp_gt_u32 s{S_WAVE}, 4
        s_cbranch_scc1 K_NRPF
        buffer_load_ubyte v{V_DUMMY}, v25, {srd(S_WS)}, s{T+6} offen sc1
K_NRPF:
        """)
    st(8)
    A(f"""
K_POLL:
    buffer_load_dwordx2 v[32:33], v24, {srd(S_WS)}, s{T+5} offen sc1
    buffer_load_dwordx2 v[34:35], v24, {srd(S_WS)}, s{T+14} offen sc1
    s_waitcnt vmcnt(0)
    v_and_b32 v36, s{T+12}, v32
    v_and_b32 v37, s{T+12}, v34
    v_cmp_eq_u32 vcc, s{S_T1}, v33
    v_cmp_eq_u32 {sr(T+6,2)}, s{S_T1}, v35
    v_cmp_eq_u32 {sr(T+8,2)}, s{S_T0}, v36
    v_cmp_eq_u32 {sr(T+10,2)}, s{S_T0}, v37
    s_and_b64 vcc, vcc, {sr(T+6,2)}
    s_and_b64 {sr(T+8,2)}, {sr(T+8,2)}, {sr(T+10,2)}
    s_and_b64 vcc, vcc, {sr(T+8,2)}
    s_cmp_eq_u64 vcc, -1
    s_cbranch_scc1 K_GOT
    s_sleep {opt("--psleep", 2)}
    s_sub_u32 s{T+13}, s{T+13}, 1
    s_cmp_lg_u32 s{T+13}, 0
    s_cbranch_scc1 K_POLL
    v_mov_b32 v37, {L_FLAG}
    ds_write_b32 v37, v38
    v_mov_b32 v32, 0
    v_mov_b32 v34, 0
K_GOT:
    """)
    st(9)
    A(f"""
    v_bfe_u32 v40, v32, 10, 10
    v_bfe_u32 v41, v34, 10, 10
    v_and_b32 v32, 0x3ff, v32
    v_and_b32 v33, 0x3ff, v34
    v_cmp_lt_u32 {sr(T+6,2)}, v26, v40
    v_cmp_lt_u32 {sr(T+8,2)}, v26, v41
    v_add_u32 v32, v32, v28
    v_add_u32 v33, v33, v28
    v_cndmask_b32 v42, v31, v32, {sr(T+6,2)}
    v_cndmask_b32 v43, v31, v33, {sr(T+8,2)}
    v_lshlrev_b32 v36, 2, v42
    v_lshlrev_b32 v37, 2, v43
    v_lshlrev_b32 v42, 4, v42
    v_lshlrev_b32 v43, 4, v43
    buffer_load_dword v72, v36, {srd(S_WS)}, s{T+3} offen sc1
    buffer_load_dword v73, v37, {srd(S_WS)}, s{T+4} offen sc1
    buffer_load_dwordx4 v[64:67], v42, {srd(S_WS)}, 0 offen sc1
    buffer_load_dwordx4 v[68:71], v43, {srd(S_WS)}, s{T+2} offen sc1
    v_add_u32 v36, 8, v26
    v_add_u32 v33, {128*CHP//4}, v33
    v_mov_b32 v37, {L_FLAG+4}
    v_lshlrev_b32 v{V_WC}, 16, v{V_WC+2}
    v_and_b32 v{V_WC+1}, s{S_MSK}, v{V_WC+2}
    v_lshlrev_b32 v{V_WC+2}, 16, v{V_WC+3}
    v_and_b32 v{V_WC+3}, s{S_MSK}, v{V_WC+3}
    s_mov_b32 s{T}, 0x{f2u(-LOG2E):08x}
    v_mul_f32 v{V_WC}, s{T}, v{V_WC}
    v_mul_f32 v{V_WC+1}, s{T}, v{V_WC+1}
    v_mul_f32 v{V_WC+2}, s{T}, v{V_WC+2}
    v_mul_f32 v{V_WC+3}, s{T}, v{V_WC+3}
    """)
    for r in range(2):
        A(f"""
        v_cmpx_lt_u32 vcc, v36, v{40+r}
        s_cbranch_execz K_NOV{r}
        ds_add_rtn_u32 v39, v37, v38
        v_add_u32 v42, 8, v{32+r}
        s_waitcnt lgkmcnt(0)
        v_cmpx_gt_u32 vcc, {BLCAP*4}, v39
        ds_write_b32 v39, v42 offset:{L_BL}
K_NOV{r}:
        s_mov_b64 exec, -1
        """)
    A(f"""
    v_max_u32 v36, v40, v41
    v_mov_b32 v37, {L_FLAG}
    v_cmpx_lt_u32 vcc, {16 if not FORCE_SLOW else 0}, v36
    ds_write_b32 v37, v38
    s_mov_b64 exec, -1
    """)
    arrive(A, L_CL)
    A(f"""
    s_cmp_ge_u32 s{S_WAVE}, 7
    s_cbranch_scc1 K_INA
    ; ---- A / U job for tile = wave
    v_and_b32 v28, 31, v{V_LANE}
    v_lshrrev_b32 v29, 5, v{V_LANE}
    v_bfe_u32 v30, v28, 1, 3
    v_xor_b32 v30, v30, v29
    v_lshlrev_b32 v30, 4, v30
    v_lshl_add_u32 v30, v28, 7, v30
    s_lshl_b32 s{T+12}, s{S_HALF}, 6
    v_xor_b32 v30, s{T+12}, v30
    s_lshl_b32 s{T+12}, s{S_WAVE}, 12
    s_add_u32 s{T+12}, s{T+12}, {L_XST}
    v_add_u32 v30, s{T+12}, v30
    v_bfe_u32 v25, v{V_LANE}, 2, 2
    v_lshl_add_u32 v25, v29, 3, v25
    v_lshlrev_b32 v34, 6, v25
    v_bfe_u32 v35, v{V_LANE}, 4, 1
    v_lshl_add_u32 v34, v35, 5, v34
    v_and_b32 v36, 1, v{V_LANE}
    v_bfe_u32 v37, v{V_LANE}, 1, 1
    v_lshl_add_u32 v36, v36, 1, v37
    v_lshl_add_u32 v34, v36, 3, v34
    s_lshl_b32 s{T+12}, s{S_HALF}, 11
    v_add_u32 v34, s{T+12}, v34
    v_xor_b32 v35, 2048, v34
    v_add_u32 v34, {L_WAU}, v34
    v_add_u32 v35, {L_WAU}, v35
    v_mov_b32 v120, {L_CY}
    """)
    spin_lds(A, "K_SPY", 16)
    XA = 76
    Wu = [8, 12, 16, 40]
    for u in range(4):
        A(f"v_xor_b32 v31, {32*u}, v30")
        A(f"ds_read_b128 {vr(XA+4*u,4)}, v31")
        av = 34 if u < 2 else 35
        for tt in range(2):
            A(f"ds_read_b64_tr_b16 {vr(104+4*u+2*tt,2)}, v{av} offset:{((u&1)*16+4*tt)*64}")
        for tt in range(2):
            A(f"ds_read_b64_tr_b16 {vr(Wu[u]+2*tt,2)}, v{av} offset:{4096+((u&1)*16+4*tt)*64}")
    A(f"""
    s_lshl_b32 s{T+12}, s{S_WAVE}, 5
    v_add_u32 v28, s{T+12}, v28
    v_mul_u32_u24 v24, {AUS}, v28
    v_lshl_add_u32 v24, v29, 5, v24
    v_add_u32 v24, {L_AU}, v24
    """)
    for u in range(4):
        A(f"s_waitcnt lgkmcnt({15-5*u})")
        A(mfma(vr(48,16), vr(104+4*u,4), vr(XA+4*u,4), "0" if u == 0 else vr(48,16)))
    for u in range(4):
        A(mfma(vr(104,16), vr(Wu[u],4), vr(XA+4*u,4), "0" if u == 0 else vr(104,16)))
    A(f"""
    s_mov_b32 s{T+13}, 0x{f2u(-LOG2E):08x}
    v_mov_b32 v31, 0x{f2u(-float(SH)):08x}
    """)
    A(f"v_max3_f32 v32, |v48|, |v49|, |v50|")
    for i in range(3, 15, 2): A(f"v_max3_f32 v32, |v{48+i}|, |v{48+i+1}|, v32")
    A(f"v_max_f32 v32, |v63|, v32")
    for i in range(16): A(f"v_fma_f32 v{48+i}, v{48+i}, s{T+13}, v31")
    A(f"""
    s_mov_b32 s{T+12}, 0x05040100
    s_mov_b32 s{T+13}, 0x07060302
    v_mov_b32 v33, {L_FLAG}
    v_cmpx_gt_u32 vcc, 200, v28
    ds_write_b128 v24, v[48:51]
    ds_write_b128 v24, v[52:55] offset:16
    ds_write_b128 v24, v[56:59] offset:64
    ds_write_b128 v24, v[60:63] offset:80
    """)
    for i in range(8): A(f"v_cvt_pk_bf16_f32 v{8+i}, v{104+2*i}, v{105+2*i}")
    for i in range(8):
        A(f"v_perm_b32 v{104+2*i}, v{8+i}, v{XA+i}, s{T+12}")
        A(f"v_perm_b32 v{105+2*i}, v{8+i}, v{XA+i}, s{T+13}")
    A(f"""
    ds_write_b128 v24, v[104:107] offset:128
    ds_write_b128 v24, v[108:111] offset:144
    ds_write_b128 v24, v[112:115] offset:192
    ds_write_b128 v24, v[116:119] offset:208
    v_cmpx_gt_u32 vcc, {NPB}, v28
    v_cmpx_nge_f32 vcc, 0x{f2u(49.0):08x}, v32
    ds_write_b32 v33, v33
    s_mov_b64 exec, -1
    """)
    st(5)
    A(f"""
K_INA:
    v_mov_b32 v39, 2
    s_cmp_lt_u32 s{S_WAVE}, 14
    s_cbranch_scc1 K_INA2
    """)
    spin_lds(A, "K_SPL", 16)
    A(f"""
    v_mov_b32 v37, {L_FLAG+4}
    v_subrev_u32 v36, {14*64}, v0
    v_lshlrev_b32 v36, 2, v36
    ds_read_b32 v35, v37
    ds_read_b32 v42, v36 offset:{L_BL}
    v_mov_b32 v31, 0x10000000
    s_waitcnt lgkmcnt(0)
    v_cmp_lt_u32 {sr(T+10,2)}, v36, v35
    v_lshlrev_b32 v43, 4, v42
    v_lshlrev_b32 v42, 2, v42
    v_cndmask_b32 v43, v31, v43, {sr(T+10,2)}
    v_cndmask_b32 v42, v31, v42, {sr(T+10,2)}
    buffer_load_dword v74, v42, {srd(S_WS)}, s{T+3} offen sc1
    buffer_load_dwordx4 v[76:79], v43, {srd(S_WS)}, 0 offen sc1
    v_mov_b32 v37, {L_FLAG}
    v_cmpx_lt_u32 vcc, {BLCAP*4}, v35
    ds_write_b32 v37, v38
    s_mov_b64 exec, -1
    """)
    arrive(A, L_CL)
    A(f"""
    s_waitcnt vmcnt(4)
    s_branch K_INB
K_INA2:
    s_waitcnt vmcnt(2)
K_INB:
    """)
    st(10)
    def ins_atom(locw, a0):
        for k in range(4):
            A(f"v_lshlrev_b32_sdwa v{a0+k}, v39, v{locw} dst_sel:DWORD dst_unused:UNUSED_PAD src0_sel:DWORD src1_sel:BYTE_{k}")
            A(f"ds_add_rtn_u32 v{a0+k}, v{a0+k}, v38")
    def ins_write(a0, rec):
        for k in range(4):
            A(f"ds_write_b32 v{a0+k}, v{rec+k}")
    A(f"s_mov_b64 exec, {sr(T+6,2)}")
    ins_atom(72, 80)
    A(f"s_mov_b64 exec, {sr(T+8,2)}")
    ins_atom(73, 84)
    A(f"""
    s_cmp_lt_u32 s{S_WAVE}, 14
    s_cbranch_scc1 K_INC
    s_mov_b64 exec, {sr(T+10,2)}
    s_waitcnt vmcnt(0)
    """)
    ins_atom(74, 88)
    A("s_waitcnt lgkmcnt(0)")
    ins_write(88, 76)
    A(f"""
K_INC:
    s_mov_b64 exec, {sr(T+8,2)}
    s_waitcnt vmcnt(0) lgkmcnt(0)
    """)
    ins_write(84, 68)
    A(f"s_mov_b64 exec, {sr(T+6,2)}")
    ins_write(80, 64)
    A(f"""
    s_mov_b64 exec, -1
    s_cmp_ge_u32 s{S_WAVE}, 13
    s_cbranch_scc1 K_IND
    v_mov_b32 v120, {L_CL}
    v_min_u32 v30, 783, v0
    v_lshlrev_b32 v30, 7, v30
    """)
    spin_lds(A, "K_SPM", 18)
    A(f"""
    buffer_load_ubyte v{V_DUMMY}, v30, {srd(S_WS)}, s{S_PF} offen sc1
K_IND:
    s_cmp_lg_u32 s{S_WAVE}, 15
    s_cbranch_scc1 K_INE
    v_readfirstlane_b32 s{T}, v125
    s_cmp_lg_u32 s{T}, 255
    s_cbranch_scc1 K_INE
    v_mov_b32 v30, 0
    v_mov_b32 v125, s{S_T1}
    s_mov_b32 s{T}, {WS_EP+4}
    s_mov_b64 exec, 1
    buffer_store_dword v125, v30, {srd(S_WS)}, s{T} offen sc1
    s_mov_b64 exec, -1
K_INE:
    s_barrier
    """)
    st(11)
    A(f"""
    s_cmp_ge_u32 s{S_WAVE}, 4
    s_cbranch_scc1 K_S1
    s_setprio 3
    v_lshlrev_b32 v28, 2, v0
    ds_read_b32 v29, v28
    v_mul_u32_u24 v30, {LS}, v0
    v_add_u32 v30, {L_LIST-4}, v30
    v_cmp_gt_u32 vcc, 200, v0
    s_mov_b64 {sr(T+6,2)}, vcc
    v_cmp_gt_u32 vcc, {NPB}, v0
    v_mov_b32 v37, {L_FLAG}
    v_mov_b32 v36, 1
    s_waitcnt lgkmcnt(0)
    v_sub_u32 v29, v29, v30
    v_lshrrev_b32 v29, 3, v29
    v_max_u32 v31, 1, v29
    v_min_u32 v31, 63, v31
    v_cndmask_b32 v31, 0, v31, vcc
    v_lshlrev_b32 v32, 2, v31
    v_sub_u32 v32, 252, v32
    s_mov_b64 exec, {sr(T+6,2)}
    ds_add_rtn_u32 v33, v32, v36 offset:{L_H2}
    v_cmpx_lt_u32 vcc, {CAP//2}, v29
    ds_write_b32 v37, v38
    s_mov_b64 exec, -1
    v_lshlrev_b32 v34, 2, v{V_LANE}
    s_waitcnt lgkmcnt(0)
K_S1:
    s_barrier
    s_cmp_ge_u32 s{S_WAVE}, 4
    s_cbranch_scc1 K_S2
    ds_read_b32 v35, v34 offset:{L_H2}
    s_waitcnt lgkmcnt(0)
    v_mov_b32 v36, v35
    """)
    scan(A, 36)
    A(f"""
    v_sub_u32 v36, v36, v35
    ds_bpermute_b32 v36, v32, v36
    s_waitcnt lgkmcnt(0)
    v_add_u32 v33, v33, v36
    v_lshlrev_b32 v36, 2, v33
    v_and_b32 v35, 7, v33
    v_lshrrev_b32 v33, 1, v33
    s_mov_b64 exec, {sr(T+6,2)}
    ds_write_b32 v36, v0 offset:{L_ORD}
    v_cmpx_eq_u32 vcc, 0, v35
    ds_write_b32 v33, v31 offset:{L_LG}
    s_mov_b64 exec, -1
K_S2:
    v_and_b32 v34, 31, v{V_LANE}
    v_lshlrev_b32 v34, 2, v34
    v_mov_b32 v37, {L_FLAG}
    s_and_b32 s{S_WP}, s{S_WAVE}, 3
    s_lshl_b32 s{S_WP}, s{S_WP}, 2
    s_lshr_b32 s{T}, s{S_WAVE}, 2
    s_add_u32 s{S_WP}, s{S_WP}, s{T}
    s_waitcnt lgkmcnt(0)
    s_barrier
    """)
    st(12)
    A(f"""
    s_setprio 3
    ds_read_b32 v35, v34 offset:{L_LG}
    ds_read_b32 v38, v37
    s_waitcnt lgkmcnt(0)
    v_mov_b32 v36, v35
    v_readfirstlane_b32 s{T}, v38
    s_cmp_lg_u32 s{T}, 0
    s_cbranch_scc1 K_SLOW
    """)
    scan(A, 36, upto=32)
    A(f"""
    v_readlane_b32 s{S_TT}, v36, 31
    s_mul_i32 s{T+1}, s{S_WP}, s{S_TT}
    s_add_u32 s{T+2}, s{T+1}, s{S_TT}
    s_lshr_b32 s{T+1}, s{T+1}, 4
    s_lshr_b32 s{T+2}, s{T+2}, 4
    s_sub_u32 s{S_N1}, s{T+2}, s{T+1}
    s_sub_u32 s{S_N1}, s{S_N1}, 1
    s_min_u32 s{S_N1}, s{S_N1}, 58
    v_cmp_ge_u32 vcc, s{T+1}, v36
    s_bcnt1_i32_b32 s{S_GC}, vcc_lo
    s_lshl_b32 s{T+3}, s{S_GC}, 5
    v_add_u32 v{V_OA}, s{T+3}, v{V_OA}
    ds_read_b32 v{V_LC}, v{V_OA} offset:{L_ORD}
    ds_read_b32 v{V_LN}, v{V_OA} offset:{L_ORD+32}
    v_sub_u32 v35, v36, v35
    v_readlane_b32 s{S_GS}, v35, s{S_GC}
    s_mov_b32 s{S_GF}, s{S_GC}
    v_subrev_u32 v36, s{T+1}, v36
    v_subrev_u32 v36, 1, v36
    v_cmp_gt_u32 vcc, 64, v36
    v_mov_b32 v40, 1
    v_mov_b32 v41, 0
    v_lshlrev_b64 v[40:41], v36, v[40:41]
    v_cndmask_b32 v40, 0, v40, vcc
    v_cndmask_b32 v41, 0, v41, vcc
    """)
    for sh in (1, 2, 4, 8):
        for v in (40, 41):
            A(f"v_or_b32_dpp v{v}, v{v}, v{v} row_shr:{sh} row_mask:0xf bank_mask:0xf")
    for v in (40, 41):
        A(f"v_or_b32_dpp v{v}, v{v}, v{v} row_bcast:15 row_mask:0xa bank_mask:0xf")
    A(f"""
    v_readlane_b32 s{S_FL}, v40, 31
    v_readlane_b32 s{S_FL+1}, v41, 31
    s_sub_u32 s{T+4}, s{T+1}, s{S_GS}
    s_cmp_lg_u32 s{T+4}, 0
    s_cselect_b32 s{S_HEAD}, 1, 0
    s_lshl_b32 s{T+4}, s{T+4}, 3
    s_add_u32 s{T+4}, s{T+4}, {L_LIST}
    s_movk_i32 s{T+5}, {LS}
    v_mov_b32 v36, s{T+4}
    s_waitcnt lgkmcnt(0)
    v_mad_u32_u24 v{V_P}, v{V_LC}, s{T+5}, v36
    v_mov_b32 v{V_NB}, v{V_LN}
    """)
    for j in range(R):
        for x in rd_rec(0, j): A(x)
        if j == 0:
            A(f"""
            s_movk_i32 s{T+5}, {AUS}
            v_mad_u32_u24 v36, v{V_LC}, s{T+5}, v{V_AUC}
            ds_read_b128 {vr(V_EA,4)}, v36
            ds_read_b128 {vr(V_UX,4)}, v36 offset:128
            v_mad_u32_u24 v36, v{V_LN}, s{T+5}, v{V_AUC}
            ds_read_b128 {vr(V_AN,4)}, v36
            """)
        A(f"""
        v_add_u32 v{V_P}, 8, v{V_P}
        s_bitcmp1_b64 {sr(S_FL,2)}, {j}
        s_cbranch_scc0 K_PR{j}
        s_mov_b32 s{S_U}, -1
        s_call_b64 {sr(S_RET2,2)}, K_FETCH
K_PR{j}:
        """)
        if j < D:
            A("s_waitcnt lgkmcnt(0)")
            for x in ld_rows(j): A(x)
    A(f"""
    s_lshr_b64 {sr(S_FF,2)}, {sr(S_FL,2)}, {R}
    s_or_b64 {sr(S_EV,2)}, {sr(S_FL,2)}, {sr(S_FF,2)}
    s_lshl_b64 {sr(T,2)}, 1, s{S_N1}
    s_or_b64 {sr(S_EV,2)}, {sr(S_EV,2)}, {sr(T,2)}
    s_lshr_b64 {sr(T+2,2)}, {sr(T,2)}, 2
    s_or_b64 {sr(S_EV,2)}, {sr(S_EV,2)}, {sr(T+2,2)}
    s_lshr_b64 {sr(T+2,2)}, {sr(T,2)}, 4
    s_or_b64 {sr(S_EV,2)}, {sr(S_EV,2)}, {sr(T+2,2)}
    s_lshr_b64 {sr(T+2,2)}, {sr(T,2)}, 7
    s_or_b64 {sr(S_EV,2)}, {sr(S_EV,2)}, {sr(T+2,2)}
    s_mov_b64 {sr(S_EVC,2)}, {sr(S_EV,2)}
    """)
    for i in range(4): A(f"v_exp_f32 v{V_EA+i}, v{V_EA+i}")
    for i in range(8): A(f"v_mov_b32 v{V_NUM+i}, 0")
    st(13)
    A(".p2align 6")
    A.label("K_LOOP")
    for u in range(U):
        d, r = u % D, u % R
        A(f"s_waitcnt vmcnt({2*(D-1)}) lgkmcnt(0)")
        for x in c_head(d, r) + ld_rows(d) + rd_rec(8*u, r) + c_rest(): A(x)
        A(f"s_bitcmp1_b64 {sr(S_EV,2)}, {u}")
        A(f"s_cbranch_scc1 K_EV{u}")
        A.label(f"K_RT{u}")
    A(f"""
    v_add_u32 v{V_P}, {8*U}, v{V_P}
    s_lshr_b64 {sr(S_EV,2)}, {sr(S_EV,2)}, {U}
    s_cbranch_scc1 K_LOOP
    s_branch K_TAIL
    """)
    for u in range(U):
        A(f"""
K_EV{u}:
        s_mov_b32 s{S_U}, {u}
        s_call_b64 {sr(S_RET,2)}, K_EVENT
        s_branch K_RT{u}
        """)
    A(f"""
K_FETCH:
    s_add_u32 s{S_GF}, s{S_GF}, 1
    s_lshl_b32 s{T}, s{S_U}, 3
    s_sub_u32 s{T}, {L_LIST-8}, s{T}
    v_mov_b32 v{V_X0}, s{T}
    s_movk_i32 s{T+1}, {LS}
    v_mad_u32_u24 v{V_P}, v{V_NB}, s{T+1}, v{V_X0}
    s_sub_u32 s{T}, s{S_GF}, s{S_GC}
    s_lshl_b32 s{T}, s{T}, 5
    v_add_u32 v{V_X0}, s{T}, v{V_OA}
    ds_read_b32 v{V_NB}, v{V_X0} offset:{L_ORD+32}
    s_setpc_b64 {sr(S_RET2,2)}
K_EVENT:
    s_ff1_i32_b64 s{T+4}, {sr(S_EVC,2)}
    s_bitset0_b64 {sr(S_EVC,2)}, s{T+4}
    s_bitcmp1_b64 {sr(S_FF,2)}, s{T+4}
    s_cbranch_scc0 K_E1
    s_call_b64 {sr(S_RET2,2)}, K_FETCH
K_E1:
    s_bitcmp1_b64 {sr(S_FL,2)}, s{T+4}
    s_cbranch_scc0 K_E3
    s_cmp_eq_u32 s{S_HEAD}, 1
    s_cbranch_scc0 K_E2
    s_mov_b32 s{S_HEAD}, 2
    """)
    for i in range(8): A(f"v_mov_b32 v{V_HD+i}, v{V_NUM+i}")
    for i in range(4): A(f"v_mov_b32 v{V_HUX+i}, v{V_UX+i}")
    A(f"v_mov_b32 v{V_HL}, v{V_LC}")
    A("s_branch K_E2B")
    A.label("K_E2")
    finalize(A, V_NUM, V_DEN, V_UX, V_LC)
    A(f"""
K_E2B:
    s_cmp_eq_u32 s{T+4}, s{S_N1}
    s_cbranch_scc1 K_DONE
    s_add_u32 s{S_GC}, s{S_GC}, 1
    v_add_u32 v{V_OA}, 32, v{V_OA}
    v_mov_b32 v{V_LC}, v{V_LN}
    ds_read_b32 v{V_LN}, v{V_OA} offset:{L_ORD+32}
    s_movk_i32 s{T+1}, {AUS}
    v_mad_u32_u24 v{V_X0}, v{V_LC}, s{T+1}, v{V_AUC}
    ds_read_b128 {vr(V_UX,4)}, v{V_X0} offset:128
    """)
    for i in range(4): A(f"v_exp_f32 v{V_EA+i}, v{V_AN+i}")
    for i in range(8): A(f"v_mov_b32 v{V_NUM+i}, 0")
    A(f"""
    s_waitcnt lgkmcnt(1)
    v_mad_u32_u24 v{V_X0}, v{V_LN}, s{T+1}, v{V_AUC}
    ds_read_b128 {vr(V_AN,4)}, v{V_X0}
K_E3:
    s_sub_u32 s{T}, s{S_N1}, s{T+4}
    s_cmp_eq_u32 s{T}, 0
    s_cbranch_scc1 K_TAIL
    s_cmp_gt_u32 s{T}, 7
    s_cbranch_scc1 K_E4
    s_setprio 2
    s_cmp_gt_u32 s{T}, 4
    s_cbranch_scc1 K_E4
    s_setprio 1
    s_cmp_gt_u32 s{T}, 2
    s_cbranch_scc1 K_E4
    s_setprio 0
K_E4:
    s_setpc_b64 {sr(S_RET,2)}
K_TAIL:
    s_lshl_b32 s{T}, s{S_WP}, 11
    s_add_u32 s{T}, s{T}, {L_SIDE}
    v_lshl_add_u32 v{V_X0}, v{V_LANE}, 4, s{T}
    ds_write_b128 v{V_X0}, {vr(V_NUM,4)}
    ds_write_b128 v{V_X0}, {vr(V_DEN,4)} offset:1024
K_DONE:
    s_waitcnt lgkmcnt(0)
    """)
    st(14)
    A(f"""
    s_barrier
    s_cmp_eq_u32 s{S_HEAD}, 2
    s_cbranch_scc0 K_FIN
    v_lshlrev_b32 v{V_X1}, 4, v{V_LANE}
K_HL:
    s_sub_u32 s{S_WP}, s{S_WP}, 1
    s_lshl_b32 s{T}, s{S_WP}, 11
    s_add_u32 s{T}, s{T}, {L_SIDE}
    v_add_u32 v{V_X0}, s{T}, v{V_X1}
    ds_read_b128 {vr(V_NUM,4)}, v{V_X0}
    ds_read_b128 {vr(V_DEN,4)}, v{V_X0} offset:1024
    s_mul_i32 s{T}, s{S_WP}, s{S_TT}
    s_lshr_b32 s{T}, s{T}, 4
    s_waitcnt lgkmcnt(0)
    """)
    for k in range(4): A(f"v_pk_add_f32 {vr(V_HD+2*k,2)}, {vr(V_HD+2*k,2)}, {vr(V_NUM+2*k,2)}")
    A(f"""
    s_cmp_gt_u32 s{T}, s{S_GS}
    s_cselect_b32 s{T}, s{S_WP}, 0
    s_cmp_gt_i32 s{T}, 0
    s_cbranch_scc1 K_HL
    """)
    finalize(A, V_HD, V_HD+4, V_HUX, V_HL)
    A.label("K_FIN")
    if diag:
        A("s_waitcnt vmcnt(0)")
        st(15)
        A(f"""
        s_lshl_b32 s{T}, s2, 4
        s_add_u32 s{T}, s{T}, s{S_WAVE}
        s_lshl_b32 s{T}, s{T}, 7
        s_add_u32 s{T}, s{T}, {WS_STAMP}
        v_lshlrev_b32 v{V_X0}, 2, v{V_LANE}
        v_cmpx_gt_u32 vcc, 32, v{V_LANE}
        buffer_store_dword v{V_STAMP}, v{V_X0}, {srd(S_WS)}, s{T} offen
        """)
        if "--spink" in sys.argv:
            k = opt("--spink", 0); w = opt("--spinw", 7)
            A(f"""
            s_mov_b64 exec, -1
            s_cmp_lg_u32 s{S_WAVE}, {w}
            s_cbranch_scc1 K_END
            v_readlane_b32 s{T}, v{V_STAMP}, 16
            v_readlane_b32 s{T+1}, v{V_STAMP}, {16+k}
            s_sub_u32 s{T+1}, s{T+1}, s{T}
            s_mul_i32 s{T+1}, s{T+1}, 10
            s_add_u32 s{T+1}, s{T+1}, 6000
            s_min_u32 s{T+1}, s{T+1}, 100000
K_DSP:
            s_sleep 1
            s_memrealtime s[100:101]
            s_waitcnt lgkmcnt(0)
            s_sub_u32 s{T+2}, s100, s{T}
            s_cmp_lt_u32 s{T+2}, s{T+1}
            s_cbranch_scc1 K_DSP
            """)
        if "--dbg" in sys.argv:
            mk_srd(A, S_B, KDBG, 256)
            sel = opt("--dbgwg", -1)
            if sel >= 0:
                A(f"s_cmp_lg_u32 s2, {sel}")
                A("s_cbranch_scc1 K_END")
            A(f"""
            s_mov_b64 exec, -1
            v_readlane_b32 s{T}, v{V_STAMP}, 16
            s_not_b32 s{T}, s{T}
            v_writelane_b32 v{V_STAMP}, s{T}, 20
            v_subrev_u32 v{V_X0}, 64, v{V_X0}
            s_mov_b32 exec_lo, 0xfffe0000
            s_mov_b32 exec_hi, 0
            buffer_atomic_umax v{V_STAMP}, v{V_X0}, {srd(S_B)}, 0 offen sc1
            """)
    A("""
K_END:
    s_endpgm
    """)
    WQ = 64
    A(f"""
K_SLOW:
    s_setprio 0
    s_waitcnt vmcnt(0)
    v_mov_b32 v36, 0
    v_mov_b32 v37, 0
    v_mov_b32 v38, 0
    v_mov_b32 v39, 0
    v_lshlrev_b32 v29, 4, v0
    v_add_u32 v29, {L_LIST}, v29
    ds_write_b128 v29, v[36:39]
    ds_write_b128 v29, v[36:39] offset:16384
    ds_write_b128 v29, v[36:39] offset:32768
    ds_write_b128 v29, v[36:39] offset:49152
    v_and_b32 v28, 31, v{V_LANE}
    v_lshlrev_b32 v30, 1, v28
    s_lshl_b32 s{T}, s{S_HALF}, 6
    """)
    mk_srd(A, S_A, KWB, 8192)
    mk_srd(A, S_B, KWV, 8192)
    A(f"s_mov_b32 s{T+1}, s{T}")
    for k2 in range(32):
        A(f"""
        s_mov_b32 exec_hi, 0
        buffer_load_ushort v32, v30, {srd(S_A)}, s{T+1} offen
        buffer_load_ushort v33, v30, {srd(S_A)}, s{T+1} offen offset:128
        s_not_b64 exec, exec
        buffer_load_ushort v32, v30, {srd(S_B)}, s{T+1} offen
        buffer_load_ushort v33, v30, {srd(S_B)}, s{T+1} offen offset:128
        s_mov_b64 exec, -1
        s_add_u32 s{T+1}, s{T+1}, 256
        s_waitcnt vmcnt(0)
        v_lshl_or_b32 v{WQ+k2}, v33, 16, v32
        """)
    mk_srd(A, S_A, KWC, 128)
    A(f"""
    buffer_load_ushort v34, v30, {srd(S_A)}, s{T} offen
    v_lshlrev_b32 v30, 2, v28
    v_lshrrev_b32 v31, 5, v{V_LANE}
    v_xor_b32 v31, 1, v31
    v_lshl_add_u32 v35, v31, 7, v30
    v_add_u32 v35, {L_LIST}, v35
    v_add_u32 v30, {L_AU}, v30
    v_lshlrev_b32 v31, 2, v28
    s_waitcnt vmcnt(0) lgkmcnt(0)
    v_lshlrev_b32 v34, 16, v34
    v_mul_f32 v34, 0x{f2u(-LOG2E):08x}, v34
    """)
    mk_srd(A, S_A, KDST, E*4)
    mk_srd(A, S_B, KSRC, E*4)
    mk_srd(A, S_TAB, KE, E*2)
    XS = 34
    A(f"""
    s_barrier
    v_mov_b32 v36, v0
    s_mov_b32 s{S_T0}, {E}
K_SB:
    v_lshlrev_b32 v37, 2, v36
    v_lshlrev_b32 v38, 1, v36
    buffer_load_dword v39, v37, {srd(S_A)}, 0 offen
    buffer_load_dword v40, v37, {srd(S_B)}, 0 offen
    buffer_load_ushort v41, v38, {srd(S_TAB)}, 0 offen
    v_cmp_gt_u32 {sr(52,2)}, s{S_T0}, v36
    s_waitcnt vmcnt(0)
    v_subrev_u32 v39, s{S_NB}, v39
    v_cmp_gt_u32 vcc, {NPB}, v39
    s_and_b64 {sr(52,2)}, {sr(52,2)}, vcc
K_SE:
    s_cmp_eq_u64 {sr(52,2)}, 0
    s_cbranch_scc1 K_SN
    s_ff1_i32_b64 s34, {sr(52,2)}
    s_bitset0_b64 {sr(52,2)}, s34
    v_readlane_b32 s35, v40, s34
    v_readlane_b32 s{S_T1}, v39, s34
    v_readlane_b32 s{S_PF}, v41, s34
    s_min_u32 s35, s35, {N-1}
    s_lshl_b32 s35, s35, 7
    s_load_dwordx16 s[36:51], {sr(KX,2)}, s35
    s_add_u32 s35, s35, 64
    s_load_dwordx16 s[60:75], {sr(KX,2)}, s35
    s_mul_i32 s34, s{S_T1}, {AUS}
    v_add_u32 v42, s34, v30
    ds_read_b32 v43, v42
    s_lshl_b32 s{S_PF}, s{S_PF}, 16
    s_lshl_b32 s{S_T1}, s{S_T1}, 8
    v_mov_b32 v48, 0
    v_mov_b32 v49, 0
    s_waitcnt lgkmcnt(0)
    """)
    for k2 in range(16):
        A(f"v_dot2_f32_bf16 v48, s{36+k2}, v{WQ+k2}, v48")
        A(f"v_dot2_f32_bf16 v49, s{60+k2}, v{WQ+16+k2}, v49")
    A(f"""
    s_nop 3
    v_add_f32 v48, v48, v49
    v_fma_f32 v43, s{S_PF}, v34, v43
    v_mul_f32 v49, 0x{f2u(-LOG2E):08x}, v48
    v_add_f32 v49, v49, v43
    v_exp_f32 v49, v49
    v_add_f32 v49, s{S_C}, v49
    v_rcp_f32 v49, v49
    s_nop 1
    ds_bpermute_b32 v49, v31, v49
    v_cmp_gt_u32 vcc, 32, v{V_LANE}
    v_cndmask_b32 v48, v48, 1.0, vcc
    v_add_u32 v42, s{S_T1}, v35
    s_waitcnt lgkmcnt(0)
    v_mul_f32 v49, v49, v48
    ds_add_f32 v42, v49
    s_branch K_SE
K_SN:
    v_add_u32 v36, 1024, v36
    v_readfirstlane_b32 s34, v36
    s_cmp_lt_u32 s34, {E}
    s_cbranch_scc1 K_SB
    s_mov_b32 s{S_MSK}, 0xffff0000
    s_movk_i32 s34, {AUS}
    s_waitcnt lgkmcnt(0)
    s_barrier
    v_lshrrev_b32 v{V_LC}, 3, v0
    v_add_u32 v{V_X1}, {L_LIST}, v{V_I0+1}
    """)
    for it in range(2):
        A(f"""
        v_min_u32 v36, 199, v{V_LC}
        v_mad_u32_u24 v37, v36, s34, v{V_AUC}
        ds_read_b128 {vr(V_UX,4)}, v37 offset:128
        v_lshl_add_u32 v39, v36, 8, v{V_X1}
        ds_read_b128 {vr(V_NUM,4)}, v39
        ds_read_b128 {vr(V_DEN,4)}, v39 offset:128
        s_waitcnt lgkmcnt(0)
        """)
        finalize(A, V_NUM, V_DEN, V_UX, V_LC)
        A(f"v_add_u32 v{V_LC}, 128, v{V_LC}")
    A("s_endpgm")

HEADER = open(f"cdna_kernels/{NAME}.s.ref").read().split("; Override")[0]

def build(diag=False):
    A = Asm()
    out = HEADER
    out += f"; @launch grid=(256,1,1) block=(1024,1,1) lds={LDS}\n"
    out += '.amdgcn_target "amdgcn-amd-amdhsa--gfx950"\n.text\n'
    out += f".globl {NAME}_kernel\n.p2align 8\n.type {NAME}_kernel,@function\n"
    gen(A, diag)
    out += A.text()
    out += f""".section .rodata,"a"
.p2align 6
.amdhsa_kernel {NAME}_kernel
  .amdhsa_next_free_vgpr 128
  .amdhsa_next_free_sgpr 102
  .amdhsa_accum_offset 128
  .amdhsa_group_segment_fixed_size 0
  .amdhsa_kernarg_size 96
  .amdhsa_user_sgpr_count 2
  .amdhsa_user_sgpr_kernarg_segment_ptr 1
  .amdhsa_system_sgpr_workgroup_id_x 1
  .amdhsa_float_denorm_mode_32 3
.end_amdhsa_kernel
"""
    return out

if __name__ == "__main__":
    diag = "--diag" in sys.argv
    path = sys.argv[1] if len(sys.argv) > 1 and not sys.argv[1].startswith("--") else f"cdna_kernels/{NAME}.s"
    open(path, "w").write(build(diag))
    print("wrote", path, "LDS", LDS)
```

```python
import sys, struct
sys.path.insert(0, "gen")
import hazard
VERBOSE = "--verbose" in sys.argv
def opt(name, default):
    if name in sys.argv: return type(default)(sys.argv[sys.argv.index(name)+1])
    return default

NAME = "standalone__edge_featured_mpnn_gatedgcn__graph"
N, E = 25000, 800000
CH = 3128
NT = CH // 8
NPB = 196
CHP = 3584
WS_REC  = 0
WS_LOC  = 0x380000
WS_OFFS = 0x460000
WS_TF   = 0x4A0000
WS_EP   = 0x4A1000
WS_STAMP = 0x4B0000
WS_TAB  = 0x600000
HS      = 0x320000
PADROW  = 25088
WS_SIZE = WS_TAB + 2*HS
assert 256*CHP*4 <= WS_LOC and WS_LOC + 256*CHP <= WS_OFFS
L_CNT, L_H2, L_LG, L_FLAG, L_ORD, L_BL = 0, 1024, 1280, 1408, 1536, 2560
L_C2, L_C3, L_CX, L_CP, L_CY, L_CE, L_CL = L_FLAG+8, L_FLAG+12, L_FLAG+16, L_FLAG+20, L_FLAG+24, L_FLAG+28, L_FLAG+32
L_TAG = L_FLAG+40
L_HIST, L_OFF, L_LOC = 3072, 3584, 4096
L_AU   = L_LOC + CHP
AUS    = 272
L_WBV  = L_AU
L_REC  = L_AU + 16384
L_TST  = L_AU + 16384 + CHP*4
L_SIDE = L_AU + 200*AUS
L_XST  = L_SIDE
L_WAU  = L_SIDE + 25600
L_LIST = L_SIDE + 33792
LS     = 296
CAP    = 74
LDS    = L_LIST + 200*LS
assert LDS <= 163840 and L_SIDE % 128 == 0, (LDS, L_SIDE)
BLCAP  = 128
SH = 48
LOG2E = 1.4426950408889634
D = opt("--depth", 2)
R = D + 1
U = D * R
SPIN = opt("--spin", 30000)
FORCE_SLOW = "--slow" in sys.argv
PFA = opt("--pfa", 0)
PFAN = opt("--pfan", 1)
ENT = " nt" if "--nt" in sys.argv else ""
XNT = " nt" if "--xnt" in sys.argv else ""
RPF = "--rpf" in sys.argv
RS = opt("--recst", "sc1").replace("+", " ")
WSOFF = opt("--wsoff", 0)

def f2u(x): return struct.unpack("<I", struct.pack("<f", x))[0]

class Asm:
    def __init__(self): self.l = []
    def __call__(self, s):
        for ln in s.strip("\n").split("\n"):
            t = ln.strip()
            if not t: continue
            self.l.append(t if t.endswith(":") else "    " + t)
    def label(self, n): self.l.append(n + ":")
    def text(self): return "\n".join(hazard.fix(self.l, VERBOSE)) + "\n"

def vr(a, n=1): return f"v{a}" if n == 1 else f"v[{a}:{a+n-1}]"
def sr(a, n=1): return f"s{a}" if n == 1 else f"s[{a}:{a+n-1}]"
def srd(b): return f"s[{b}:{b+3}]"
def mfma(d, a, b, c): return f"v_mfma_f32_32x32x16_bf16 {d}, {a}, {b}, {c}"

def scan(A, v, op="v_add_u32", upto=64):
    for sh in (1, 2, 4, 8):
        A(f"{op}_dpp v{v}, v{v}, v{v} row_shr:{sh} row_mask:0xf bank_mask:0xf")
    if upto >= 32:
        A(f"{op}_dpp v{v}, v{v}, v{v} row_bcast:15 row_mask:0xa bank_mask:0xf")
    if upto >= 64:
        A(f"{op}_dpp v{v}, v{v}, v{v} row_bcast:31 row_mask:0xc bank_mask:0xf")

V_LANE, V_P, V_NB, V_OA = 1, 2, 3, 4
V_AUC, V_OUTC = 5, 6
V_LC = 7
V_NUM, V_DEN = 8, 12
V_EA, V_WC = 16, 20
V_T, V_V, V_M = 24, 32, 40
V_I0, V_I1 = 44, 46
V_S, V_Q = 48, 52
V_UX = 56
V_LN = 60
V_HL = 61
V_X0, V_X1 = 62, 63
V_DAT = 64
V_E = 96
V_HD = 104
V_HUX = 112
V_AN = 116
V_DUMMY = 126
V_STAMP = 127
S_WS, S_TAB, S_OUT, S_X = 4, 8, 12, 16
S_A, S_B = 20, 24
S_C = 28
S_BIN, S_HALF, S_WAVE, S_WP = 30, 31, 32, 33
S_EV, S_EVC, S_FL, S_FF = 34, 36, 38, 40
S_N1, S_GC, S_GF, S_HEAD, S_U, S_TT, S_GS = 42, 43, 44, 45, 46, 47, 48
S_MSK = 49
S_RET, S_RET2 = 50, 52
S_EPS = 54
S_T0, S_T1 = 56, 57
S_PF = 58
S_NB = 59
S_T = 60
S_K = 76
KX, KE, KSRC, KDST, KWA, KWB, KWC, KWU, KWV, KOUT, KDBG, KWS = [S_K + 2*i for i in range(12)]

def stamp(A, idx, on):
    if on:
        A(f"s_memtime s[100:101]")
        A("s_waitcnt lgkmcnt(0)")
        A(f"v_writelane_b32 v{V_STAMP}, s100, {idx}")
        A(f"s_memrealtime s[100:101]")
        A("s_waitcnt lgkmcnt(0)")
        A(f"v_writelane_b32 v{V_STAMP}, s100, {idx+16}")

def mk_srd(A, d, ptr, nbytes):
    A(f"s_mov_b32 s{d}, s{ptr}")
    A(f"s_mov_b32 s{d+1}, s{ptr+1}")
    A(f"s_mov_b32 s{d+2}, {nbytes}")
    A(f"s_mov_b32 s{d+3}, 0x20000")

def ld_rows(d):
    b = V_DAT + 8*d
    return [f"buffer_load_dwordx4 {vr(b,4)}, {vr(V_I0,2)}, {srd(S_TAB)}, 0 idxen offen sc1",
            f"buffer_load_dwordx4 {vr(b+4,4)}, {vr(V_I1,2)}, {srd(S_TAB)}, 0 idxen offen sc1"]
def rd_rec(off, r):
    return [f"ds_read_u16 v{V_I0}, v{V_P} offset:{off}",
            f"ds_read_u16 v{V_I1}, v{V_P} offset:{off+4}",
            f"ds_read_u16_d16_hi v{V_E+2*r}, v{V_P} offset:{off+2}",
            f"ds_read_u16_d16_hi v{V_E+2*r+1}, v{V_P} offset:{off+6}"]
def c_head(d, r):
    b = V_DAT + 8*d; e = V_E + 2*r
    o = []
    for h in range(2):
        for k in range(2):
            sel = "op_sel_hi:[0,1,1]" if h == 0 else "op_sel:[1,0,0] op_sel_hi:[1,1,1]"
            o.append(f"v_pk_fma_f32 {vr(V_T+4*h+2*k,2)}, {vr(e,2)}, {vr(V_WC+2*k,2)}, {vr(b+4*h+2*k,2)} {sel}")
    for i in range(4): o.append(f"v_lshlrev_b64 {vr(V_V+2*i,2)}, 16, {vr(b+2*i,2)}")
    return o
def c_rest():
    o = []
    T, V, M, S, Q = V_T, V_V, V_M, V_S, V_Q
    for i in range(8): o.append(f"v_exp_f32 v{T+i}, v{T+i}")
    for i in range(4): o.append(f"v_pk_fma_f32 {vr(T+2*i,2)}, {vr(T+2*i,2)}, {vr(V_EA+2*(i%2),2)}, {sr(S_C,2)} clamp")
    for k in range(2): o.append(f"v_pk_mul_f32 {vr(M+2*k,2)}, {vr(T+2*k,2)}, {vr(T+4+2*k,2)}")
    for i in range(4): o.append(f"v_rcp_f32 v{M+i}, v{M+i}")
    for k in range(2): o.append(f"v_pk_add_f32 {vr(S+2*k,2)}, {vr(T+2*k,2)}, {vr(T+4+2*k,2)}")
    for k in range(2): o.append(f"v_pk_mul_f32 {vr(Q+2*k,2)}, {vr(V+2*k,2)}, {vr(T+4+2*k,2)}")
    for k in range(2): o.append(f"v_pk_fma_f32 {vr(Q+2*k,2)}, {vr(V+4+2*k,2)}, {vr(T+2*k,2)}, {vr(Q+2*k,2)}")
    for k in range(2): o.append(f"v_pk_fma_f32 {vr(V_DEN+2*k,2)}, {vr(S+2*k,2)}, {vr(M+2*k,2)}, {vr(V_DEN+2*k,2)}")
    for k in range(2): o.append(f"v_pk_fma_f32 {vr(V_NUM+2*k,2)}, {vr(Q+2*k,2)}, {vr(M+2*k,2)}, {vr(V_NUM+2*k,2)}")
    return o

def finalize(A, num, den, ux, loc):
    T, V = V_T, V_V
    for k in range(2): A(f"v_pk_add_f32 {vr(den+2*k,2)}, {vr(den+2*k,2)}, {sr(S_EPS,2)}")
    for i in range(4): A(f"v_rcp_f32 v{den+i}, v{den+i}")
    for i in range(4): A(f"v_and_b32 v{T+i}, s{S_MSK}, v{ux+i}")
    for i in range(4): A(f"v_lshlrev_b32 v{V+i}, 16, v{ux+i}")
    for k in range(2): A(f"v_pk_fma_f32 {vr(T+2*k,2)}, {vr(num+2*k,2)}, {vr(den+2*k,2)}, {vr(T+2*k,2)}")
    A(f"v_lshl_add_u32 v{T+4}, v{loc}, 7, v{V_OUTC}")
    A(f"v_cmp_gt_u32 vcc, {NPB}, v{loc}")
    for i in range(4): A(f"v_max_f32 v{T+i}, 0, v{T+i}")
    for k in range(2): A(f"v_pk_add_f32 {vr(T+2*k,2)}, {vr(T+2*k,2)}, {vr(V+2*k,2)}")
    A(f"v_cndmask_b32 v{T+4}, -1, v{T+4}, vcc")
    A(f"v_cvt_pk_bf16_f32 v{T+6}, v{T}, v{T+1}")
    A(f"v_cvt_pk_bf16_f32 v{T+7}, v{T+2}, v{T+3}")
    A(f"buffer_store_dwordx2 {vr(T+6,2)}, v{T+4}, {srd(S_OUT)}, 0 offen")

def arrive(A, addr, rtn=None):
    A(f"v_mov_b32 v120, {addr}")
    A("v_mov_b32 v121, 1")
    A("s_mov_b64 exec, 1")
    if rtn is None: A("ds_add_u32 v120, v121")
    else:
        A("ds_add_rtn_u32 v122, v120, v121")
        A("s_waitcnt lgkmcnt(0)")
        A(f"v_readfirstlane_b32 s{rtn}, v122")
    A("s_mov_b64 exec, -1")

def spin_lds(A, name, target):
    A(f"""
{name}:
    ds_read_b32 v122, v120
    s_waitcnt lgkmcnt(0)
    v_readfirstlane_b32 s{S_T}, v122
    s_cmp_lt_u32 s{S_T}, {target}
    s_cbranch_scc1 {name}
    """)

def gen(A, diag):
    T = S_T
    EARLY = "--early" in sys.argv
    st = lambda i: stamp(A, i, diag and not (EARLY and 2 <= i <= 7))
    se = lambda i: stamp(A, i, diag and EARLY)
    A.label(f"{NAME}_kernel")
    A(f"""
    s_cmp_ge_u32 s2, 256
    s_cbranch_scc1 K_END
    s_load_dwordx16 {sr(S_K,16)}, s[0:1], 0
    s_load_dwordx8 {sr(S_K+16,8)}, s[0:1], 64
    s_and_b32 s{S_HALF}, s2, 1
    s_bfe_u32 s{T}, s2, 0x20001
    s_lshr_b32 s{T+1}, s2, 3
    s_lshl_b32 s{S_BIN}, s{T}, 5
    s_add_u32 s{S_BIN}, s{S_BIN}, s{T+1}
    s_mul_i32 s{S_NB}, s{S_BIN}, {NPB}
    v_readfirstlane_b32 s{S_WAVE}, v0
    s_lshr_b32 s{S_WAVE}, s{S_WAVE}, 6
    v_and_b32 v{V_LANE}, 63, v0
    v_and_b32 v26, 7, v{V_LANE}
    v_lshrrev_b32 v27, 4, v{V_LANE}
    v_xor_b32 v27, v26, v27
    v_lshlrev_b32 v27, 4, v27
    v_lshrrev_b32 v28, 3, v{V_LANE}
    v_lshl_add_u32 v24, v28, 7, v27
    v_xor_b32 v25, 64, v24
    v_lshlrev_b32 v29, 4, v{V_LANE}
    s_lshl_b32 s{T+6}, s{S_HALF}, 6
    s_lshl_b32 s{T+7}, s{S_NB}, 7
    s_sub_u32 s{T+9}, s{S_WAVE}, 7
    s_mov_b32 s{T+8}, {WS_EP}
    """)
    if diag: A(f"v_mov_b32 v{V_STAMP}, 0")
    A(f"""
    s_cmp_ge_u32 s{S_WAVE}, 7
    s_cbranch_scc1 K_L1
    s_mul_i32 s{T+2}, s{S_HALF}, 12
    s_lshl_b32 s{T+3}, s{S_WAVE}, 1
    s_add_u32 s{T+2}, s{T+2}, s{T+3}
    s_cmp_eq_u32 s{S_WAVE}, 6
    s_cselect_b32 s{T+2}, 24, s{T+2}
    s_lshl_b32 s{T+2}, s{T+2}, 10
    s_add_u32 m0, s{T+2}, {L_XST}
    s_add_u32 s{T+2}, s{T+2}, s{T+7}
    s_lshl_b32 s{T+3}, s{S_WAVE}, 10
    s_waitcnt lgkmcnt(0)
    """)
    st(0)
    mk_srd(A, S_X, KX, N*128)
    mk_srd(A, S_A, KWB, 8192)
    mk_srd(A, S_B, KWV, 8192)
    A(f"""
    buffer_load_dwordx4 v24, {srd(S_X)}, s{T+2} offen lds
    s_cmp_eq_u32 s{S_WAVE}, 6
    s_cbranch_scc1 K_L0
    buffer_load_dwordx4 v25, {srd(S_X)}, s{T+2} offen offset:1024 lds
K_L0:
    s_add_u32 m0, s{T+3}, {L_WBV}
    s_nop 0
    buffer_load_dwordx4 v29, {srd(S_A)}, s{T+3} offen lds
    s_add_u32 m0, s{T+3}, {L_WBV+8192}
    s_cmp_eq_u32 s{S_WAVE}, 6
    buffer_load_dwordx4 v29, {srd(S_B)}, s{T+3} offen lds
    s_cbranch_scc0 K_L1
    buffer_load_dwordx4 v29, {srd(S_B)}, s{T+3} offen offset:1024 lds
    s_add_u32 m0, s{T+3}, {L_WBV}
    s_nop 0
    buffer_load_dwordx4 v29, {srd(S_A)}, s{T+3} offen offset:1024 lds
K_L1:
    v_mul_u32_u24 v30, {LS}, v0
    v_add_u32 v30, {L_LIST}, v30
    v_cmp_gt_u32 vcc, 200, v0
    v_mov_b32 v31, 0x40000000
    v_cndmask_b32 v30, v31, v30, vcc
    v_cmp_gt_u32 vcc, 256, v0
    v_subrev_u32 v32, 384, v0
    v_cndmask_b32 v30, 0, v30, vcc
    v_cmp_gt_u32 vcc, 256, v32
    v_mov_b32 v31, {NPB}
    v_cndmask_b32 v30, v30, v31, vcc
    v_lshlrev_b32 v31, 2, v0
    ds_write_b32 v31, v30
    v_subrev_u32 v34, 448, v0
    v_lshlrev_b32 v32, 4, v34
    v_lshlrev_b32 v33, 3, v34
    s_mul_i32 s{T+10}, s2, {CH*4}
    s_add_u32 s{T+11}, s{T+10}, {CH*2}
    s_lshr_b32 s{T+12}, s{T+10}, 1
    s_lshr_b32 s{T+13}, s{T+11}, 1
    s_waitcnt lgkmcnt(0)
    """)
    if diag:
        A(f"s_cmp_lt_u32 s{S_WAVE}, 7")
        A("s_cbranch_scc1 K_D0")
        st(0)
        A.label("K_D0")
    if WSOFF:
        A(f"s_add_u32 s{KWS}, s{KWS}, {WSOFF<<20}")
        A(f"s_addc_u32 s{KWS+1}, s{KWS+1}, 0")
    A(f"""
    s_xor_b32 s{T+14}, s{S_WAVE}, 15
    s_or_b32 s{T+14}, s{T+14}, s2
    s_cmp_lg_u32 s{T+14}, 0
    s_cbranch_scc1 K_NEP
    s_load_dwordx2 {sr(S_T0,2)}, {sr(KWS,2)}, s{T+8}
K_NEP:
    """)
    mk_srd(A, S_A, KDST, E*4)
    mk_srd(A, S_B, KSRC, E*4)
    mk_srd(A, S_WS, KE, E*2)
    mk_srd(A, S_X, KX, N*128)
    mk_srd(A, S_OUT, KWC, 128)
    DS_, SR_, EE_ = 64, 72, 80
    A(f"""
    v_lshlrev_b32 v27, 3, v26
    v_cmp_gt_u32 vcc, {NT}, v34
    v_mov_b32 v36, {PADROW}
    v_mov_b32 v37, {PADROW}
    v_mov_b32 v38, {PADROW}
    v_mov_b32 v39, {PADROW}
    v_lshlrev_b32 v30, 4, v0
    v_add_u32 v30, {L_LIST}, v30
    s_barrier
    buffer_load_dwordx2 {vr(V_WC+2,2)}, v27, {srd(S_OUT)}, s{T+6} offen
    s_cmp_ge_u32 s{T+9}, 7
    s_cbranch_scc1 K_NE0
    s_mov_b64 exec, vcc
    buffer_load_dwordx4 {vr(DS_,4)}, v32, {srd(S_A)}, s{T+10} offen{ENT}
    buffer_load_dwordx4 {vr(DS_+4,4)}, v32, {srd(S_A)}, s{T+11} offen{ENT}
    s_mov_b64 exec, -1
    v_mov_b32 v40, -1
    v_mov_b32 v41, -1
    ds_write_b64 v33, v[40:41] offset:{L_LOC}
K_NE0:
    ds_write_b128 v30, v[36:39]
    ds_write_b128 v30, v[36:39] offset:16384
    s_cbranch_scc1 K_NE
    s_mov_b64 exec, vcc
    buffer_load_dwordx4 {vr(SR_,4)}, v32, {srd(S_B)}, s{T+10} offen{ENT}
    buffer_load_dwordx4 {vr(SR_+4,4)}, v32, {srd(S_B)}, s{T+11} offen{ENT}
    buffer_load_dwordx2 {vr(EE_,2)}, v33, {srd(S_WS)}, s{T+12} offen{ENT}
    buffer_load_dwordx2 {vr(EE_+2,2)}, v33, {srd(S_WS)}, s{T+13} offen{ENT}
    s_mov_b64 exec, -1
K_NE:
    ds_write_b128 v30, v[36:39] offset:32768
    ds_write_b128 v30, v[36:39] offset:49152
    """)
    se(2)
    mk_srd(A, S_WS, KWS, WS_SIZE)
    mk_srd(A, S_OUT, KOUT, N*128)
    A(f"""
    s_mul_i32 s{T+2}, s{S_HALF}, {HS}
    s_add_u32 s{T+2}, s{T+2}, {WS_TAB}
    s_add_u32 s{S_TAB}, s{KWS}, s{T+2}
    s_addc_u32 s{S_TAB+1}, s{KWS+1}, 0
    s_or_b32 s{S_TAB+1}, s{S_TAB+1}, {128<<16}
    s_mov_b32 s{S_TAB+2}, {PADROW+1}
    s_mov_b32 s{S_TAB+3}, 0x20000
    s_mul_i32 s{S_PF}, s{T+1}, {784*128}
    s_add_u32 s{S_PF}, s{S_PF}, s{T+2}
    s_add_u32 s{T+3}, s{T+7}, s{T+6}
    v_add_u32 v{V_OUTC}, s{T+3}, v27
    v_lshlrev_b32 v{V_I0+1}, 4, v26
    v_mov_b32 v{V_I1+1}, v{V_I0+1}
    v_add_u32 v{V_AUC}, {L_AU}, v{V_I0+1}
    v_lshlrev_b32 v{V_OA}, 2, v28
    s_mov_b32 s{S_C}, 0x{f2u(2.0**-SH):08x}
    s_mov_b32 s{S_C+1}, 0x{f2u(2.0**-SH):08x}
    s_mov_b32 s{S_EPS}, 0x{f2u(1e-6*2.0**SH):08x}
    s_mov_b32 s{S_EPS+1}, 0x{f2u(1e-6*2.0**SH):08x}
    s_mov_b32 s{S_MSK}, 0xffff0000
    """)
    arrive(A, L_CE)
    se(3)
    A(f"""
    s_cmp_ge_u32 s{S_WAVE}, 14
    s_cbranch_scc1 K_HELP
    s_cmp_ge_u32 s{S_WAVE}, 7
    s_cbranch_scc1 K_BIN
    ; ---- table job: tile = 3*half + (w>>1), nt = w&1 ; wave 6: tile 6, nt = half
    s_mul_i32 s{T+10}, s{S_HALF}, 3
    s_lshr_b32 s{T+11}, s{S_WAVE}, 1
    s_add_u32 s{T+10}, s{T+10}, s{T+11}
    s_and_b32 s{T+11}, s{S_WAVE}, 1
    s_cmp_eq_u32 s{S_WAVE}, 6
    s_cselect_b32 s{T+10}, 6, s{T+10}
    s_cselect_b32 s{T+11}, s{S_HALF}, s{T+11}
    s_lshl_b32 s{T+12}, s{T+10}, 12
    s_mul_i32 s{T+13}, s{T+11}, {HS}
    s_add_u32 s{T+13}, s{T+13}, s{T+7}
    s_add_u32 s{T+13}, s{T+13}, {WS_TAB}
    s_add_u32 s{S_B}, s{KWS}, s{T+13}
    s_addc_u32 s{S_B+1}, s{KWS+1}, 0
    s_mov_b32 s{S_B+2}, {NPB*128}
    s_mov_b32 s{S_B+3}, 0x20000
    v_and_b32 v28, 31, v{V_LANE}
    v_lshrrev_b32 v29, 5, v{V_LANE}
    v_bfe_u32 v30, v28, 1, 3
    v_xor_b32 v30, v30, v29
    v_lshlrev_b32 v30, 4, v30
    v_lshl_add_u32 v24, v28, 7, v30
    s_add_u32 s{T+13}, s{T+12}, {L_XST}
    v_add_u32 v30, s{T+13}, v24
    v_bfe_u32 v25, v{V_LANE}, 2, 2
    v_lshl_add_u32 v25, v29, 3, v25
    v_lshlrev_b32 v34, 7, v25
    v_bfe_u32 v35, v{V_LANE}, 4, 1
    v_lshl_add_u32 v34, v35, 5, v34
    v_and_b32 v36, 3, v{V_LANE}
    v_lshl_add_u32 v34, v36, 3, v34
    s_lshl_b32 s{T+13}, s{T+11}, 6
    s_add_u32 s{T+13}, s{T+13}, {L_WBV}
    v_add_u32 v34, s{T+13}, v34
    v_and_b32 v32, 1, v{V_LANE}
    v_xor_b32 v32, 1, v32
    v_lshlrev_b32 v32, 15, v32
    v_lshlrev_b32 v33, 9, v29
    v_lshl_add_u32 v33, v28, 2, v33
    v_add_u32 v33, s{T+12}, v33
    s_mov_b32 s{T+13}, 0x{f2u(-LOG2E):08x}
    s_mov_b32 s{T+14}, 0x07060302
    s_waitcnt vmcnt(1)
    """)
    arrive(A, L_CX)
    spin_lds(A, "K_SPX", 7)
    st(1)
    XB = 84
    Wm1 = [36, 40, 116, 8]
    for u in range(4):
        A(f"v_xor_b32 v31, {32*u}, v30")
        A(f"ds_read_b128 {vr(XB+4*u,4)}, v31")
        for tt in range(2):
            A(f"ds_read_b64_tr_b16 {vr(100+4*u+2*tt,2)}, v34 offset:{(16*u+4*tt)*128}")
        for tt in range(2):
            A(f"ds_read_b64_tr_b16 {vr(Wm1[u]+2*tt,2)}, v34 offset:{8192+(16*u+4*tt)*128}")
    for u in range(4):
        A(f"s_waitcnt lgkmcnt({15-5*u})")
        A(mfma(vr(48,16), vr(XB+4*u,4), vr(100+4*u,4), "0" if u == 0 else vr(48,16)))
        A(mfma(vr(64,16), vr(XB+4*u,4), vr(Wm1[u],4), "0" if u == 0 else vr(64,16)))
    TS = opt("--tabst", "sc1").replace("+", " ")
    if "--tabdw" in sys.argv:
        arrive(A, L_CY)
        for r in range(16): A(f"v_mul_f32 v{48+r}, s{T+13}, v{48+r}")
        for r in range(16):
            A(f"v_add_u32 v{64+r}, v32, v{64+r}")
            A(f"v_perm_b32 v{48+r}, v{48+r}, v{64+r}, s{T+14}")
            A(f"buffer_store_dword v{48+r}, v33, {srd(S_B)}, 0 offen offset:{(8*(r>>2)+(r&3))*128} {TS}")
    else:
        A(f"""
        s_lshl_b32 s{T+4}, s{S_WAVE}, 11
        s_add_u32 s{T+4}, s{T+4}, {L_TST}
        v_subrev_u32 v33, s{T+12}, v33
        v_add_u32 v33, s{T+4}, v33
        v_add_u32 v34, 128, v33
        v_lshlrev_b32 v35, 4, v{V_LANE}
        v_add_u32 v36, s{T+4}, v35
        v_add_u32 v35, s{T+12}, v35
        """)
        for hf in range(2):
            for r in range(8*hf, 8*hf+8): A(f"v_mul_f32 v{48+r}, s{T+13}, v{48+r}")
            for r in range(8*hf, 8*hf+8):
                A(f"v_add_u32 v{64+r}, v32, v{64+r}")
                A(f"v_perm_b32 v{48+r}, v{48+r}, v{64+r}, s{T+14}")
            for q in range(2):
                r = 8*hf + 4*q
                A(f"ds_write2st64_b32 v33, v{48+r}, v{50+r} offset0:{4*q} offset1:{4*q+1}")
                A(f"ds_write2st64_b32 v34, v{49+r}, v{51+r} offset0:{4*q} offset1:{4*q+1}")
            A(f"ds_read_b128 {vr(100+8*hf,4)}, v36")
            A(f"ds_read_b128 {vr(104+8*hf,4)}, v36 offset:1024")
            if hf == 1:
                A("s_waitcnt lgkmcnt(6)")
                A(f"buffer_store_dwordx4 v[100:103], v35, {srd(S_B)}, 0 offen {TS}")
                A(f"buffer_store_dwordx4 v[104:107], v35, {srd(S_B)}, 0 offen offset:1024 {TS}")
        A("s_waitcnt lgkmcnt(0)")
        A(f"buffer_store_dwordx4 v[108:111], v35, {srd(S_B)}, 0 offen offset:2048 {TS}")
        A(f"buffer_store_dwordx4 v[112:115], v35, {srd(S_B)}, 0 offen offset:3072 {TS}")
        arrive(A, L_CY)
    st(2)
    A(f"""
    s_lshr_b32 s{T+12}, s2, 1
    s_or_b32 s{T+12}, s{T+12}, s{S_WAVE}
    s_cmp_lg_u32 s{T+12}, 0
    s_cbranch_scc1 K_NPAD
    v_lshlrev_b32 v32, 2, v{V_LANE}
    v_mov_b32 v33, 0x7f000000
    s_mul_i32 s{T+4}, s{S_HALF}, {HS}
    s_add_u32 s{T+4}, s{T+4}, {WS_TAB+PADROW*128}
    s_mov_b32 exec_hi, 0
    buffer_store_dword v33, v32, {srd(S_WS)}, s{T+4} offen sc1
    s_mov_b64 exec, -1
K_NPAD:
    s_cmp_lg_u32 s{S_WAVE}, 0
    s_cbranch_scc1 K_NTG
    s_mov_b32 s{S_A}, s{KDBG}
    s_mov_b32 s{S_A+1}, s{KDBG+1}
    s_mov_b32 s{S_A+2}, 256
    s_mov_b32 s{S_A+3}, 0x20000
    v_mov_b32 v34, 0
    v_mov_b32 v35, {L_TAG}
    s_mov_b32 s{T+13}, {SPIN}
K_TG:
    buffer_load_dwordx2 v[32:33], v34, {srd(S_A)}, 0 offen sc1
    s_waitcnt vmcnt(0)
    v_readfirstlane_b32 s{T+4}, v32
    s_bitcmp1_b32 s{T+4}, 0
    s_cbranch_scc1 K_TG1
    s_sleep 2
    s_sub_u32 s{T+13}, s{T+13}, 1
    s_cmp_lg_u32 s{T+13}, 0
    s_cbranch_scc1 K_TG
K_TG1:
    ds_write_b64 v35, v[32:33]
K_NTG:
    s_waitcnt vmcnt(0)
    """)
    st(3)
    arrive(A, L_CP, rtn=T+3)
    A(f"""
    """)
    def pfa():
        A("v_lshlrev_b32 v31, 7, v0")
        A(f"buffer_load_ubyte v{V_DUMMY}, v31, {srd(S_WS)}, s{S_PF} offen sc1")
    if PFA == 1:
        A(f"v_mov_b32 v120, {L_C3}")
        spin_lds(A, "K_SPA", 7)
        pfa()
    A("s_branch K_PUBQ")
    BN, RK, TM = 48, 56, 84
    A(f"""
K_BIN:
    v_mov_b32 v31, v34
    s_mul_i32 s{T+10}, s2, {CH//4}
    v_add_u32 v32, s{T+10}, v31
    v_cmp_gt_u32 vcc, {NT}, v31
    s_mov_b32 s{T+11}, {E//4}
    v_cmp_gt_u32 {sr(T+4,2)}, s{T+11}, v32
    s_mov_b32 s{T+11}, {E//4 - NT}
    v_cmp_gt_u32 {sr(T+6,2)}, s{T+11}, v32
    s_and_b64 {sr(T+4,2)}, {sr(T+4,2)}, vcc
    s_and_b64 {sr(T+6,2)}, {sr(T+6,2)}, vcc
    s_mov_b32 s{T+8}, 42800
    s_movk_i32 s{T+9}, {NPB}
    v_mov_b32 v33, 1
    s_setprio 3
    """)
    for hlf in range(2):
        A(f"s_mov_b64 exec, {sr(T+4+2*hlf,2)}")
        A(f"s_waitcnt vmcnt({5-hlf})")
        ks = range(4*hlf, 4*hlf+4)
        for k in ks: A(f"v_mul_u32_u24 v{BN+k}, s{T+8}, v{DS_+k}")
        for k in ks: A(f"v_lshrrev_b32 v{BN+k}, 23, v{BN+k}")
        for k in ks:
            A(f"v_mul_u32_u24 v{TM+k}, s{T+9}, v{BN+k}")
            A(f"v_lshlrev_b32 v{BN+k}, 2, v{BN+k}")
            A(f"ds_add_rtn_u32 v{RK+k}, v{BN+k}, v33 offset:{L_HIST}")
        for k in ks: A(f"v_sub_u32 v{DS_+k}, v{DS_+k}, v{TM+k}")
    A("s_mov_b64 exec, -1")
    A(f"v_lshlrev_b32 v34, 3, v{V_LANE}")
    arrive(A, L_C2)
    st(3)
    spin_lds(A, "K_SP2", 7)
    st(4)
    A(f"""
    ds_read_b64 v[36:37], v34 offset:{L_HIST}
    s_waitcnt lgkmcnt(0)
    v_add_u32 v36, 3, v36
    v_add_u32 v37, 3, v37
    v_and_b32 v36, -4, v36
    v_and_b32 v37, -4, v37
    v_add_u32 v38, v36, v37
    v_mov_b32 v39, v38
    """)
    scan(A, 39)
    A(f"""
    v_sub_u32 v38, v39, v38
    v_add_u32 v39, v38, v36
    ds_write_b64 v34, v[38:39] offset:{L_OFF}
    """)
    for hlf in range(2):
        A(f"s_mov_b64 exec, {sr(T+4+2*hlf,2)}")
        for k in range(4*hlf, 4*hlf+4):
            A(f"ds_read_b32 v{TM+k}, v{BN+k} offset:{L_OFF}")
    A(f"""
    s_mov_b32 s{T+8}, 0x05040100
    s_mov_b32 s{T+9}, 0x07060100
    s_waitcnt lgkmcnt(0)
    """)
    for hlf in range(2):
        A(f"s_mov_b64 exec, {sr(T+4+2*hlf,2)}")
        for k in range(4*hlf, 4*hlf+4):
            A(f"v_add_u32 v{TM+k}, v{TM+k}, v{RK+k}")
            A(f"v_lshlrev_b32 v{RK+k}, 2, v{TM+k}")
            A(f"ds_write_b8 v{TM+k}, v{DS_+k} offset:{L_LOC}")
    A("s_mov_b64 exec, -1")
    st(5)
    for hlf in range(2):
        A(f"s_waitcnt vmcnt({1-hlf})")
        A(f"s_mov_b64 exec, {sr(T+4+2*hlf,2)}")
        for k in range(4*hlf, 4*hlf+4):
            A(f"v_perm_b32 v{SR_+k}, v{EE_+k//2}, v{SR_+k}, s{T+8+(k&1)}")
            A(f"ds_write_b32 v{RK+k}, v{SR_+k} offset:{L_REC}")
    A(f"""
    s_mov_b64 exec, -1
    v_lshlrev_b32 v32, 4, v31
    v_lshlrev_b32 v33, 3, v31
    s_mul_i32 s{T+10}, s2, {CHP*4}
    s_add_u32 s{T+11}, s{T+10}, {448*16}
    s_mul_i32 s{T+12}, s2, {CHP}
    s_add_u32 s{T+12}, s{T+12}, {WS_LOC}
    """)
    arrive(A, L_C3)
    spin_lds(A, "K_SP3", 7)
    st(6)
    A(f"""
    ds_read_b128 v[64:67], v32 offset:{L_REC}
    ds_read_b128 v[68:71], v32 offset:{L_REC+448*16}
    ds_read_b128 v[72:75], v32 offset:{L_LOC}
    v_cmp_gt_u32 vcc, {CHP//16}, v31
    s_waitcnt lgkmcnt(2)
    buffer_store_dwordx4 v[64:67], v32, {srd(S_WS)}, s{T+10} offen {RS}
    s_waitcnt lgkmcnt(1)
    buffer_store_dwordx4 v[68:71], v32, {srd(S_WS)}, s{T+11} offen {RS}
    s_waitcnt lgkmcnt(0)
    s_and_saveexec_b64 {sr(T+4,2)}, vcc
    s_cbranch_execz K_NLOC
    buffer_store_dwordx4 v[72:75], v32, {srd(S_WS)}, s{T+12} offen {RS}
K_NLOC:
    s_mov_b64 exec, -1
    """)
    arrive(A, L_CY)
    A("s_waitcnt vmcnt(0)")
    st(7)
    arrive(A, L_CP, rtn=T+3)
    A(f"""
    s_branch K_PUBQ
K_HELP:
    s_sub_u32 s{T+2}, s{S_WAVE}, 14
    s_xor_b32 s{T+3}, s{S_HALF}, 1
    s_lshl_b32 s{T+3}, s{T+3}, 1
    s_add_u32 s{T+3}, s{T+3}, s{T+2}
    s_mul_i32 s{T+3}, s{T+3}, 6144
    s_add_u32 m0, s{T+3}, {L_XST}
    s_add_u32 s{T+3}, s{T+3}, s{T+7}
    s_cmp_eq_u32 s{T+2}, 0
    s_cselect_b32 s{S_A}, s{KWA}, s{KWU}
    s_cselect_b32 s{S_A+1}, s{KWA+1}, s{KWU+1}
    s_mov_b32 s{S_A+2}, 8192
    s_mov_b32 s{S_A+3}, 0x20000
    s_cmp_lg_u32 s{T+14}, 0
    s_cbranch_scc1 K_NEP2
    s_mov_b32 s{S_B}, s{KDBG}
    s_mov_b32 s{S_B+1}, s{KDBG+1}
    s_mov_b32 s{S_B+2}, 256
    s_mov_b32 s{S_B+3}, 0x20000
    s_waitcnt lgkmcnt(0)
    s_add_u32 s{S_T1}, s{S_T1}, 1
    s_and_b32 s{S_T0}, s{S_T0}, 0xfff00000
    s_or_b32 s{S_T0}, s{S_T0}, 1
    v_mov_b32 v32, s{S_T0}
    v_mov_b32 v33, s{S_T1}
    v_mov_b32 v34, 0
    s_mov_b32 s{T+4}, {WS_EP+4}
    s_mov_b64 exec, 1
    buffer_store_dwordx2 v[32:33], v34, {srd(S_B)}, 0 offen sc1
    buffer_store_dword v33, v34, {srd(S_WS)}, s{T+4} offen sc1
    s_mov_b64 exec, -1
K_NEP2:
    """)
    spin_lds(A, "K_SPE", 16)
    A(f"""
    buffer_load_dwordx4 v24, {srd(S_X)}, s{T+3} offen lds
    buffer_load_dwordx4 v25, {srd(S_X)}, s{T+3} offen offset:1024 lds
    buffer_load_dwordx4 v24, {srd(S_X)}, s{T+3} offen offset:2048 lds
    buffer_load_dwordx4 v25, {srd(S_X)}, s{T+3} offen offset:3072 lds
    s_add_u32 m0, m0, 4096
    s_add_u32 s{T+3}, s{T+3}, 4096
    buffer_load_dwordx4 v24, {srd(S_X)}, s{T+3} offen lds
    buffer_load_dwordx4 v25, {srd(S_X)}, s{T+3} offen offset:1024 lds
    v_lshrrev_b32 v30, 2, v{V_LANE}
    v_lshlrev_b32 v30, 7, v30
    v_and_b32 v31, 3, v{V_LANE}
    v_lshl_add_u32 v30, v31, 4, v30
    s_lshl_b32 s{T+4}, s{T+2}, 12
    s_add_u32 m0, s{T+4}, {L_WAU}
    s_mov_b32 s{T+4}, s{T+6}
    """)
    for i4 in range(4):
        A(f"buffer_load_dwordx4 v30, {srd(S_A)}, s{T+4} offen offset:{1024*i4} lds")
        A(f"s_add_u32 s{T+4}, s{T+4}, 1024")
    A("s_waitcnt vmcnt(0)")
    st(2)
    arrive(A, L_CY)
    A(f"""
    s_branch K_JOIN
K_PUB:
    v_lshlrev_b32 v122, 3, v{V_LANE}
    ds_read_b64 v[36:37], v122 offset:{L_HIST}
    ds_read_b64 v[38:39], v122 offset:{L_OFF}
    v_mov_b32 v122, {L_TAG}
    ds_read_b64 v[40:41], v122
    s_lshl_b32 s{T+4}, s2, 10
    s_add_u32 s{T+4}, s{T+4}, {WS_OFFS}
    v_lshlrev_b32 v122, 4, v{V_LANE}
    s_waitcnt lgkmcnt(0)
    v_mov_b32 v43, v41
    v_and_b32 v121, -2, v40
    v_cmp_ne_u32 vcc, v121, v40
    v_add_u32 v36, 3, v36
    v_add_u32 v37, 3, v37
    v_lshrrev_b32 v36, 2, v36
    v_lshrrev_b32 v37, 2, v37
    v_lshrrev_b32 v38, 2, v38
    v_lshrrev_b32 v39, 2, v39
    v_lshl_or_b32 v40, v36, 10, v38
    v_lshl_or_b32 v42, v37, 10, v39
    v_or_b32 v40, v121, v40
    v_or_b32 v42, v121, v42
    s_cbranch_vccz K_PUB1
    buffer_store_dwordx4 v[40:43], v122, {srd(S_WS)}, s{T+4} offen sc1
K_PUB1:
    s_nop 1
    s_setpc_b64 {sr(S_RET,2)}
K_PUBQ:
    s_cmp_lg_u32 s{T+3}, 13
    s_cbranch_scc1 K_JOIN
    s_call_b64 {sr(S_RET,2)}, K_PUB
K_JOIN:
    s_setprio 0
    v_lshrrev_b32 v28, 3, v0
    v_lshlrev_b32 v24, 10, v28
    v_and_b32 v26, 7, v{V_LANE}
    v_mul_u32_u24 v28, {CHP//4}, v28
    v_add_u32 v28, v28, v26
    s_lshl_b32 s{T+5}, s{S_BIN}, 3
    s_add_u32 s{T+5}, s{T+5}, {WS_OFFS}
    s_add_u32 s{T+14}, s{T+5}, {128*1024}
    s_mov_b32 s{T+2}, {128*CHP*4}
    s_mov_b32 s{T+3}, {WS_LOC}
    s_mov_b32 s{T+4}, {WS_LOC+128*CHP}
    v_mov_b32 v31, 0x04000000
    v_mov_b32 v38, 4
    s_mov_b32 s{T+12}, 0xfff00000
    s_mov_b32 s{T+13}, {SPIN}
    """)
    for i in range(2*R): A(f"v_mov_b32 v{V_E+i}, 0")
    if RPF:
        A(f"""
        s_bfe_u32 s{T}, s2, 0x20001
        s_lshr_b32 s{T+1}, s2, 3
        v_lshrrev_b32 v25, 5, v0
        v_mul_u32_u24 v25, {CHP*4}, v25
        v_and_b32 v27, 31, v0
        v_lshl_add_u32 v25, v27, 7, v25
        s_mul_i32 s{T+6}, s{T}, {26*128}
        s_sub_u32 s{T+6}, s{T+6}, 384
        s_max_i32 s{T+6}, s{T+6}, 0
        s_mul_i32 s{T+7}, s{T+1}, {8*CHP*4}
        s_add_u32 s{T+6}, s{T+6}, s{T+7}
        v_lshrrev_b32 v27, 3, v{V_LANE}
        v_mul_u32_u24 v27, {CHP}, v27
        v_lshl_add_u32 v27, v26, 7, v27
        s_mul_i32 s{T+8}, s{T}, 832
        s_sub_u32 s{T+8}, s{T+8}, 64
        s_max_i32 s{T+8}, s{T+8}, 0
        s_mul_i32 s{T+9}, s{T+1}, {8*CHP}
        s_add_u32 s{T+8}, s{T+8}, s{T+9}
        s_add_u32 s{T+8}, s{T+8}, {WS_LOC}
        s_cmp_eq_u32 s{S_WAVE}, 4
        s_cselect_b32 s{T+6}, s{T+8}, s{T+6}
        s_cselect_b64 vcc, -1, 0
        v_cndmask_b32 v25, v25, v27, vcc
        """)
    A("s_waitcnt lgkmcnt(0)")
    A("s_barrier")
    if RPF:
        A(f"""
        s_cmp_gt_u32 s{S_WAVE}, 4
        s_cbranch_scc1 K_NRPF
        buffer_load_ubyte v{V_DUMMY}, v25, {srd(S_WS)}, s{T+6} offen sc1
K_NRPF:
        """)
    st(8)
    A(f"""
    v_mov_b32 v36, {L_TAG}
    ds_read_b64 v[36:37], v36
    buffer_load_dwordx2 v[32:33], v24, {srd(S_WS)}, s{T+5} offen sc1
    buffer_load_dwordx2 v[34:35], v24, {srd(S_WS)}, s{T+14} offen sc1
    s_waitcnt lgkmcnt(0)
    v_readfirstlane_b32 s{S_T0}, v36
    v_readfirstlane_b32 s{S_T1}, v37
    s_xor_b32 s{S_T0}, s{S_T0}, 1
    s_bitcmp1_b32 s{S_T0}, 0
    s_cselect_b32 s{T+13}, 1, s{T+13}
    s_branch K_POLL1
K_POLL:
    buffer_load_dwordx2 v[32:33], v24, {srd(S_WS)}, s{T+5} offen sc1
    buffer_load_dwordx2 v[34:35], v24, {srd(S_WS)}, s{T+14} offen sc1
K_POLL1:
    s_waitcnt vmcnt(0)
    v_and_b32 v36, s{T+12}, v32
    v_and_b32 v37, s{T+12}, v34
    v_cmp_eq_u32 vcc, s{S_T1}, v33
    v_cmp_eq_u32 {sr(T+6,2)}, s{S_T1}, v35
    v_cmp_eq_u32 {sr(T+8,2)}, s{S_T0}, v36
    v_cmp_eq_u32 {sr(T+10,2)}, s{S_T0}, v37
    s_and_b64 vcc, vcc, {sr(T+6,2)}
    s_and_b64 {sr(T+8,2)}, {sr(T+8,2)}, {sr(T+10,2)}
    s_and_b64 vcc, vcc, {sr(T+8,2)}
    s_cmp_eq_u64 vcc, -1
    s_cbranch_scc1 K_GOT
    s_sleep {opt("--psleep", 2)}
    s_sub_u32 s{T+13}, s{T+13}, 1
    s_cmp_lg_u32 s{T+13}, 0
    s_cbranch_scc1 K_POLL
    v_mov_b32 v37, {L_FLAG}
    ds_write_b32 v37, v38
    v_mov_b32 v32, 0
    v_mov_b32 v34, 0
K_GOT:
    """)
    st(9)
    A(f"""
    v_bfe_u32 v40, v32, 10, 10
    v_bfe_u32 v41, v34, 10, 10
    v_and_b32 v32, 0x3ff, v32
    v_and_b32 v33, 0x3ff, v34
    v_cmp_lt_u32 {sr(T+6,2)}, v26, v40
    v_cmp_lt_u32 {sr(T+8,2)}, v26, v41
    v_add_u32 v32, v32, v28
    v_add_u32 v33, v33, v28
    v_cndmask_b32 v42, v31, v32, {sr(T+6,2)}
    v_cndmask_b32 v43, v31, v33, {sr(T+8,2)}
    v_lshlrev_b32 v36, 2, v42
    v_lshlrev_b32 v37, 2, v43
    v_lshlrev_b32 v42, 4, v42
    v_lshlrev_b32 v43, 4, v43
    buffer_load_dword v72, v36, {srd(S_WS)}, s{T+3} offen sc1
    buffer_load_dword v73, v37, {srd(S_WS)}, s{T+4} offen sc1
    buffer_load_dwordx4 v[64:67], v42, {srd(S_WS)}, 0 offen sc1
    buffer_load_dwordx4 v[68:71], v43, {srd(S_WS)}, s{T+2} offen sc1
    v_add_u32 v36, 8, v26
    v_add_u32 v33, {128*CHP//4}, v33
    v_mov_b32 v37, {L_FLAG+4}
    v_lshlrev_b32 v{V_WC}, 16, v{V_WC+2}
    v_and_b32 v{V_WC+1}, s{S_MSK}, v{V_WC+2}
    v_lshlrev_b32 v{V_WC+2}, 16, v{V_WC+3}
    v_and_b32 v{V_WC+3}, s{S_MSK}, v{V_WC+3}
    s_mov_b32 s{T}, 0x{f2u(-LOG2E):08x}
    v_mul_f32 v{V_WC}, s{T}, v{V_WC}
    v_mul_f32 v{V_WC+1}, s{T}, v{V_WC+1}
    v_mul_f32 v{V_WC+2}, s{T}, v{V_WC+2}
    v_mul_f32 v{V_WC+3}, s{T}, v{V_WC+3}
    """)
    for r in range(2):
        A(f"""
        v_cmpx_lt_u32 vcc, v36, v{40+r}
        s_cbranch_execz K_NOV{r}
        ds_add_rtn_u32 v39, v37, v38
        v_add_u32 v42, 8, v{32+r}
        s_waitcnt lgkmcnt(0)
        v_cmpx_gt_u32 vcc, {BLCAP*4}, v39
        ds_write_b32 v39, v42 offset:{L_BL}
K_NOV{r}:
        s_mov_b64 exec, -1
        """)
    A(f"""
    v_max_u32 v36, v40, v41
    v_mov_b32 v37, {L_FLAG}
    v_cmpx_lt_u32 vcc, {16 if not FORCE_SLOW else 0}, v36
    ds_write_b32 v37, v38
    s_mov_b64 exec, -1
    """)
    arrive(A, L_CL)
    A(f"""
    s_cmp_ge_u32 s{S_WAVE}, 7
    s_cbranch_scc1 K_INA
    ; ---- A / U job for tile = wave
    v_and_b32 v28, 31, v{V_LANE}
    v_lshrrev_b32 v29, 5, v{V_LANE}
    v_bfe_u32 v30, v28, 1, 3
    v_xor_b32 v30, v30, v29
    v_lshlrev_b32 v30, 4, v30
    v_lshl_add_u32 v30, v28, 7, v30
    s_lshl_b32 s{T+12}, s{S_HALF}, 6
    v_xor_b32 v30, s{T+12}, v30
    s_lshl_b32 s{T+12}, s{S_WAVE}, 12
    s_add_u32 s{T+12}, s{T+12}, {L_XST}
    v_add_u32 v30, s{T+12}, v30
    v_bfe_u32 v25, v{V_LANE}, 2, 2
    v_lshl_add_u32 v25, v29, 3, v25
    v_lshlrev_b32 v34, 6, v25
    v_bfe_u32 v35, v{V_LANE}, 4, 1
    v_lshl_add_u32 v34, v35, 5, v34
    v_and_b32 v36, 1, v{V_LANE}
    v_bfe_u32 v37, v{V_LANE}, 1, 1
    v_lshl_add_u32 v36, v36, 1, v37
    v_lshl_add_u32 v34, v36, 3, v34
    s_lshl_b32 s{T+12}, s{S_HALF}, 11
    v_add_u32 v34, s{T+12}, v34
    v_xor_b32 v35, 2048, v34
    v_add_u32 v34, {L_WAU}, v34
    v_add_u32 v35, {L_WAU}, v35
    v_mov_b32 v120, {L_CY}
    """)
    spin_lds(A, "K_SPY", 16)
    XA = 76
    Wu = [8, 12, 16, 40]
    for u in range(4):
        A(f"v_xor_b32 v31, {32*u}, v30")
        A(f"ds_read_b128 {vr(XA+4*u,4)}, v31")
        av = 34 if u < 2 else 35
        for tt in range(2):
            A(f"ds_read_b64_tr_b16 {vr(104+4*u+2*tt,2)}, v{av} offset:{((u&1)*16+4*tt)*64}")
        for tt in range(2):
            A(f"ds_read_b64_tr_b16 {vr(Wu[u]+2*tt,2)}, v{av} offset:{4096+((u&1)*16+4*tt)*64}")
    A(f"""
    s_lshl_b32 s{T+12}, s{S_WAVE}, 5
    v_add_u32 v28, s{T+12}, v28
    v_mul_u32_u24 v24, {AUS}, v28
    v_lshl_add_u32 v24, v29, 5, v24
    v_add_u32 v24, {L_AU}, v24
    """)
    for u in range(4):
        A(f"s_waitcnt lgkmcnt({15-5*u})")
        A(mfma(vr(48,16), vr(104+4*u,4), vr(XA+4*u,4), "0" if u == 0 else vr(48,16)))
    for u in range(4):
        A(mfma(vr(104,16), vr(Wu[u],4), vr(XA+4*u,4), "0" if u == 0 else vr(104,16)))
    A(f"""
    s_mov_b32 s{T+13}, 0x{f2u(-LOG2E):08x}
    v_mov_b32 v31, 0x{f2u(-float(SH)):08x}
    """)
    A(f"v_max3_f32 v32, |v48|, |v49|, |v50|")
    for i in range(3, 15, 2): A(f"v_max3_f32 v32, |v{48+i}|, |v{48+i+1}|, v32")
    A(f"v_max_f32 v32, |v63|, v32")
    for i in range(16): A(f"v_fma_f32 v{48+i}, v{48+i}, s{T+13}, v31")
    A(f"""
    s_mov_b32 s{T+12}, 0x05040100
    s_mov_b32 s{T+13}, 0x07060302
    v_mov_b32 v33, {L_FLAG}
    v_cmpx_gt_u32 vcc, 200, v28
    ds_write_b128 v24, v[48:51]
    ds_write_b128 v24, v[52:55] offset:16
    ds_write_b128 v24, v[56:59] offset:64
    ds_write_b128 v24, v[60:63] offset:80
    """)
    for i in range(8): A(f"v_cvt_pk_bf16_f32 v{8+i}, v{104+2*i}, v{105+2*i}")
    for i in range(8):
        A(f"v_perm_b32 v{104+2*i}, v{8+i}, v{XA+i}, s{T+12}")
        A(f"v_perm_b32 v{105+2*i}, v{8+i}, v{XA+i}, s{T+13}")
    A(f"""
    ds_write_b128 v24, v[104:107] offset:128
    ds_write_b128 v24, v[108:111] offset:144
    ds_write_b128 v24, v[112:115] offset:192
    ds_write_b128 v24, v[116:119] offset:208
    v_cmpx_gt_u32 vcc, {NPB}, v28
    v_cmpx_nge_f32 vcc, 0x{f2u(49.0):08x}, v32
    ds_write_b32 v33, v33
    s_mov_b64 exec, -1
    """)
    st(5)
    A(f"""
K_INA:
    v_mov_b32 v39, 2
    s_cmp_lt_u32 s{S_WAVE}, 14
    s_cbranch_scc1 K_INA2
    """)
    spin_lds(A, "K_SPL", 16)
    A(f"""
    v_mov_b32 v37, {L_FLAG+4}
    v_subrev_u32 v36, {14*64}, v0
    v_lshlrev_b32 v36, 2, v36
    ds_read_b32 v35, v37
    ds_read_b32 v42, v36 offset:{L_BL}
    v_mov_b32 v31, 0x10000000
    s_waitcnt lgkmcnt(0)
    v_cmp_lt_u32 {sr(T+10,2)}, v36, v35
    v_lshlrev_b32 v43, 4, v42
    v_lshlrev_b32 v42, 2, v42
    v_cndmask_b32 v43, v31, v43, {sr(T+10,2)}
    v_cndmask_b32 v42, v31, v42, {sr(T+10,2)}
    buffer_load_dword v74, v42, {srd(S_WS)}, s{T+3} offen sc1
    buffer_load_dwordx4 v[76:79], v43, {srd(S_WS)}, 0 offen sc1
    v_mov_b32 v37, {L_FLAG}
    v_cmpx_lt_u32 vcc, {BLCAP*4}, v35
    ds_write_b32 v37, v38
    s_mov_b64 exec, -1
    """)
    arrive(A, L_CL)
    A(f"""
    s_waitcnt vmcnt(4)
    s_branch K_INB
K_INA2:
    s_waitcnt vmcnt(2)
K_INB:
    """)
    st(10)
    def ins_atom(locw, a0):
        for k in range(4):
            A(f"v_lshlrev_b32_sdwa v{a0+k}, v39, v{locw} dst_sel:DWORD dst_unused:UNUSED_PAD src0_sel:DWORD src1_sel:BYTE_{k}")
            A(f"ds_add_rtn_u32 v{a0+k}, v{a0+k}, v38")
    def ins_write(a0, rec):
        for k in range(4):
            A(f"ds_write_b32 v{a0+k}, v{rec+k}")
    A(f"s_mov_b64 exec, {sr(T+6,2)}")
    ins_atom(72, 80)
    A(f"s_mov_b64 exec, {sr(T+8,2)}")
    ins_atom(73, 84)
    A(f"""
    s_cmp_lt_u32 s{S_WAVE}, 14
    s_cbranch_scc1 K_INC
    s_mov_b64 exec, {sr(T+10,2)}
    s_waitcnt vmcnt(0)
    """)
    ins_atom(74, 88)
    A("s_waitcnt lgkmcnt(0)")
    ins_write(88, 76)
    A(f"""
K_INC:
    s_mov_b64 exec, {sr(T+8,2)}
    s_waitcnt vmcnt(0) lgkmcnt(0)
    """)
    ins_write(84, 68)
    A(f"s_mov_b64 exec, {sr(T+6,2)}")
    ins_write(80, 64)
    A(f"""
    s_mov_b64 exec, -1
    s_cmp_ge_u32 s{S_WAVE}, 13
    s_cbranch_scc1 K_IND
    v_mov_b32 v120, {L_CL}
    v_min_u32 v30, 783, v0
    v_lshlrev_b32 v30, 7, v30
    """)
    spin_lds(A, "K_SPM", 18)
    A(f"""
    buffer_load_ubyte v{V_DUMMY}, v30, {srd(S_WS)}, s{S_PF} offen sc1
K_IND:
    s_barrier
    """)
    st(11)
    A(f"""
    s_cmp_ge_u32 s{S_WAVE}, 4
    s_cbranch_scc1 K_S1
    s_setprio 3
    v_lshlrev_b32 v28, 2, v0
    ds_read_b32 v29, v28
    v_mul_u32_u24 v30, {LS}, v0
    v_add_u32 v30, {L_LIST-4}, v30
    v_cmp_gt_u32 vcc, 200, v0
    s_mov_b64 {sr(T+6,2)}, vcc
    v_cmp_gt_u32 vcc, {NPB}, v0
    v_mov_b32 v37, {L_FLAG}
    v_mov_b32 v36, 1
    s_waitcnt lgkmcnt(0)
    v_sub_u32 v29, v29, v30
    v_lshrrev_b32 v29, 3, v29
    v_max_u32 v31, 1, v29
    v_min_u32 v31, 63, v31
    v_cndmask_b32 v31, 0, v31, vcc
    v_lshlrev_b32 v32, 2, v31
    v_sub_u32 v32, 252, v32
    s_mov_b64 exec, {sr(T+6,2)}
    ds_add_rtn_u32 v33, v32, v36 offset:{L_H2}
    v_cmpx_lt_u32 vcc, {CAP//2}, v29
    ds_write_b32 v37, v38
    s_mov_b64 exec, -1
    v_lshlrev_b32 v34, 2, v{V_LANE}
    s_waitcnt lgkmcnt(0)
K_S1:
    s_barrier
    s_cmp_ge_u32 s{S_WAVE}, 4
    s_cbranch_scc1 K_S2
    ds_read_b32 v35, v34 offset:{L_H2}
    s_waitcnt lgkmcnt(0)
    v_mov_b32 v36, v35
    """)
    scan(A, 36)
    A(f"""
    v_sub_u32 v36, v36, v35
    ds_bpermute_b32 v36, v32, v36
    s_waitcnt lgkmcnt(0)
    v_add_u32 v33, v33, v36
    v_lshlrev_b32 v36, 2, v33
    v_and_b32 v35, 7, v33
    v_lshrrev_b32 v33, 1, v33
    s_mov_b64 exec, {sr(T+6,2)}
    ds_write_b32 v36, v0 offset:{L_ORD}
    v_cmpx_eq_u32 vcc, 0, v35
    ds_write_b32 v33, v31 offset:{L_LG}
    s_mov_b64 exec, -1
K_S2:
    v_and_b32 v34, 31, v{V_LANE}
    v_lshlrev_b32 v34, 2, v34
    v_mov_b32 v37, {L_FLAG}
    s_and_b32 s{S_WP}, s{S_WAVE}, 3
    s_lshl_b32 s{S_WP}, s{S_WP}, 2
    s_lshr_b32 s{T}, s{S_WAVE}, 2
    s_add_u32 s{S_WP}, s{S_WP}, s{T}
    s_waitcnt lgkmcnt(0)
    s_barrier
    """)
    st(12)
    A(f"""
    s_setprio 3
    ds_read_b32 v35, v34 offset:{L_LG}
    ds_read_b32 v38, v37
    s_waitcnt lgkmcnt(0)
    v_mov_b32 v36, v35
    v_readfirstlane_b32 s{T}, v38
    s_cmp_lg_u32 s{T}, 0
    s_cbranch_scc1 K_SLOW
    """)
    scan(A, 36, upto=32)
    A(f"""
    v_readlane_b32 s{S_TT}, v36, 31
    s_mul_i32 s{T+1}, s{S_WP}, s{S_TT}
    s_add_u32 s{T+2}, s{T+1}, s{S_TT}
    s_lshr_b32 s{T+1}, s{T+1}, 4
    s_lshr_b32 s{T+2}, s{T+2}, 4
    s_sub_u32 s{S_N1}, s{T+2}, s{T+1}
    s_sub_u32 s{S_N1}, s{S_N1}, 1
    s_min_u32 s{S_N1}, s{S_N1}, 58
    v_cmp_ge_u32 vcc, s{T+1}, v36
    s_bcnt1_i32_b32 s{S_GC}, vcc_lo
    s_lshl_b32 s{T+3}, s{S_GC}, 5
    v_add_u32 v{V_OA}, s{T+3}, v{V_OA}
    ds_read_b32 v{V_LC}, v{V_OA} offset:{L_ORD}
    ds_read_b32 v{V_LN}, v{V_OA} offset:{L_ORD+32}
    v_sub_u32 v35, v36, v35
    v_readlane_b32 s{S_GS}, v35, s{S_GC}
    s_mov_b32 s{S_GF}, s{S_GC}
    v_subrev_u32 v36, s{T+1}, v36
    v_subrev_u32 v36, 1, v36
    v_cmp_gt_u32 vcc, 64, v36
    v_mov_b32 v40, 1
    v_mov_b32 v41, 0
    v_lshlrev_b64 v[40:41], v36, v[40:41]
    v_cndmask_b32 v40, 0, v40, vcc
    v_cndmask_b32 v41, 0, v41, vcc
    """)
    for sh in (1, 2, 4, 8):
        for v in (40, 41):
            A(f"v_or_b32_dpp v{v}, v{v}, v{v} row_shr:{sh} row_mask:0xf bank_mask:0xf")
    for v in (40, 41):
        A(f"v_or_b32_dpp v{v}, v{v}, v{v} row_bcast:15 row_mask:0xa bank_mask:0xf")
    A(f"""
    v_readlane_b32 s{S_FL}, v40, 31
    v_readlane_b32 s{S_FL+1}, v41, 31
    s_sub_u32 s{T+4}, s{T+1}, s{S_GS}
    s_cmp_lg_u32 s{T+4}, 0
    s_cselect_b32 s{S_HEAD}, 1, 0
    s_lshl_b32 s{T+4}, s{T+4}, 3
    s_add_u32 s{T+4}, s{T+4}, {L_LIST}
    s_movk_i32 s{T+5}, {LS}
    v_mov_b32 v36, s{T+4}
    s_waitcnt lgkmcnt(0)
    v_mad_u32_u24 v{V_P}, v{V_LC}, s{T+5}, v36
    v_mov_b32 v{V_NB}, v{V_LN}
    """)
    for j in range(R):
        for x in rd_rec(0, j): A(x)
        if j == 0:
            A(f"""
            s_movk_i32 s{T+5}, {AUS}
            v_mad_u32_u24 v36, v{V_LC}, s{T+5}, v{V_AUC}
            ds_read_b128 {vr(V_EA,4)}, v36
            ds_read_b128 {vr(V_UX,4)}, v36 offset:128
            v_mad_u32_u24 v36, v{V_LN}, s{T+5}, v{V_AUC}
            ds_read_b128 {vr(V_AN,4)}, v36
            """)
        A(f"""
        v_add_u32 v{V_P}, 8, v{V_P}
        s_bitcmp1_b64 {sr(S_FL,2)}, {j}
        s_cbranch_scc0 K_PR{j}
        s_mov_b32 s{S_U}, -1
        s_call_b64 {sr(S_RET2,2)}, K_FETCH
K_PR{j}:
        """)
        if j < D:
            A("s_waitcnt lgkmcnt(0)")
            for x in ld_rows(j): A(x)
    A(f"""
    s_lshr_b64 {sr(S_FF,2)}, {sr(S_FL,2)}, {R}
    s_or_b64 {sr(S_EV,2)}, {sr(S_FL,2)}, {sr(S_FF,2)}
    s_lshl_b64 {sr(T,2)}, 1, s{S_N1}
    s_or_b64 {sr(S_EV,2)}, {sr(S_EV,2)}, {sr(T,2)}
    s_lshr_b64 {sr(T+2,2)}, {sr(T,2)}, 2
    s_or_b64 {sr(S_EV,2)}, {sr(S_EV,2)}, {sr(T+2,2)}
    s_lshr_b64 {sr(T+2,2)}, {sr(T,2)}, 4
    s_or_b64 {sr(S_EV,2)}, {sr(S_EV,2)}, {sr(T+2,2)}
    s_lshr_b64 {sr(T+2,2)}, {sr(T,2)}, 7
    s_or_b64 {sr(S_EV,2)}, {sr(S_EV,2)}, {sr(T+2,2)}
    s_mov_b64 {sr(S_EVC,2)}, {sr(S_EV,2)}
    """)
    for i in range(4): A(f"v_exp_f32 v{V_EA+i}, v{V_EA+i}")
    for i in range(8): A(f"v_mov_b32 v{V_NUM+i}, 0")
    st(13)
    A(".p2align 6")
    A.label("K_LOOP")
    for u in range(U):
        d, r = u % D, u % R
        A(f"s_waitcnt vmcnt({2*(D-1)}) lgkmcnt(0)")
        for x in c_head(d, r) + ld_rows(d) + rd_rec(8*u, r) + c_rest(): A(x)
        A(f"s_bitcmp1_b64 {sr(S_EV,2)}, {u}")
        A(f"s_cbranch_scc1 K_EV{u}")
        A.label(f"K_RT{u}")
    A(f"""
    v_add_u32 v{V_P}, {8*U}, v{V_P}
    s_lshr_b64 {sr(S_EV,2)}, {sr(S_EV,2)}, {U}
    s_cbranch_scc1 K_LOOP
    s_branch K_TAIL
    """)
    for u in range(U):
        A(f"""
K_EV{u}:
        s_mov_b32 s{S_U}, {u}
        s_call_b64 {sr(S_RET,2)}, K_EVENT
        s_branch K_RT{u}
        """)
    A(f"""
K_FETCH:
    s_add_u32 s{S_GF}, s{S_GF}, 1
    s_lshl_b32 s{T}, s{S_U}, 3
    s_sub_u32 s{T}, {L_LIST-8}, s{T}
    v_mov_b32 v{V_X0}, s{T}
    s_movk_i32 s{T+1}, {LS}
    v_mad_u32_u24 v{V_P}, v{V_NB}, s{T+1}, v{V_X0}
    s_sub_u32 s{T}, s{S_GF}, s{S_GC}
    s_lshl_b32 s{T}, s{T}, 5
    v_add_u32 v{V_X0}, s{T}, v{V_OA}
    ds_read_b32 v{V_NB}, v{V_X0} offset:{L_ORD+32}
    s_setpc_b64 {sr(S_RET2,2)}
K_EVENT:
    s_ff1_i32_b64 s{T+4}, {sr(S_EVC,2)}
    s_bitset0_b64 {sr(S_EVC,2)}, s{T+4}
    s_bitcmp1_b64 {sr(S_FF,2)}, s{T+4}
    s_cbranch_scc0 K_E1
    s_call_b64 {sr(S_RET2,2)}, K_FETCH
K_E1:
    s_bitcmp1_b64 {sr(S_FL,2)}, s{T+4}
    s_cbranch_scc0 K_E3
    s_cmp_eq_u32 s{S_HEAD}, 1
    s_cbranch_scc0 K_E2
    s_mov_b32 s{S_HEAD}, 2
    """)
    for i in range(8): A(f"v_mov_b32 v{V_HD+i}, v{V_NUM+i}")
    for i in range(4): A(f"v_mov_b32 v{V_HUX+i}, v{V_UX+i}")
    A(f"v_mov_b32 v{V_HL}, v{V_LC}")
    A("s_branch K_E2B")
    A.label("K_E2")
    finalize(A, V_NUM, V_DEN, V_UX, V_LC)
    A(f"""
K_E2B:
    s_cmp_eq_u32 s{T+4}, s{S_N1}
    s_cbranch_scc1 K_DONE
    s_add_u32 s{S_GC}, s{S_GC}, 1
    v_add_u32 v{V_OA}, 32, v{V_OA}
    v_mov_b32 v{V_LC}, v{V_LN}
    ds_read_b32 v{V_LN}, v{V_OA} offset:{L_ORD+32}
    s_movk_i32 s{T+1}, {AUS}
    v_mad_u32_u24 v{V_X0}, v{V_LC}, s{T+1}, v{V_AUC}
    ds_read_b128 {vr(V_UX,4)}, v{V_X0} offset:128
    """)
    for i in range(4): A(f"v_exp_f32 v{V_EA+i}, v{V_AN+i}")
    for i in range(8): A(f"v_mov_b32 v{V_NUM+i}, 0")
    A(f"""
    s_waitcnt lgkmcnt(1)
    v_mad_u32_u24 v{V_X0}, v{V_LN}, s{T+1}, v{V_AUC}
    ds_read_b128 {vr(V_AN,4)}, v{V_X0}
K_E3:
    s_sub_u32 s{T}, s{S_N1}, s{T+4}
    s_cmp_eq_u32 s{T}, 0
    s_cbranch_scc1 K_TAIL
    s_cmp_gt_u32 s{T}, 7
    s_cbranch_scc1 K_E4
    s_setprio 2
    s_cmp_gt_u32 s{T}, 4
    s_cbranch_scc1 K_E4
    s_setprio 1
    s_cmp_gt_u32 s{T}, 2
    s_cbranch_scc1 K_E4
    s_setprio 0
K_E4:
    s_setpc_b64 {sr(S_RET,2)}
K_TAIL:
    s_lshl_b32 s{T}, s{S_WP}, 11
    s_add_u32 s{T}, s{T}, {L_SIDE}
    v_lshl_add_u32 v{V_X0}, v{V_LANE}, 4, s{T}
    ds_write_b128 v{V_X0}, {vr(V_NUM,4)}
    ds_write_b128 v{V_X0}, {vr(V_DEN,4)} offset:1024
K_DONE:
    s_waitcnt lgkmcnt(0)
    """)
    st(14)
    A(f"""
    s_barrier
    s_cmp_eq_u32 s{S_HEAD}, 2
    s_cbranch_scc0 K_FIN
    v_lshlrev_b32 v{V_X1}, 4, v{V_LANE}
K_HL:
    s_sub_u32 s{S_WP}, s{S_WP}, 1
    s_lshl_b32 s{T}, s{S_WP}, 11
    s_add_u32 s{T}, s{T}, {L_SIDE}
    v_add_u32 v{V_X0}, s{T}, v{V_X1}
    ds_read_b128 {vr(V_NUM,4)}, v{V_X0}
    ds_read_b128 {vr(V_DEN,4)}, v{V_X0} offset:1024
    s_mul_i32 s{T}, s{S_WP}, s{S_TT}
    s_lshr_b32 s{T}, s{T}, 4
    s_waitcnt lgkmcnt(0)
    """)
    for k in range(4): A(f"v_pk_add_f32 {vr(V_HD+2*k,2)}, {vr(V_HD+2*k,2)}, {vr(V_NUM+2*k,2)}")
    A(f"""
    s_cmp_gt_u32 s{T}, s{S_GS}
    s_cselect_b32 s{T}, s{S_WP}, 0
    s_cmp_gt_i32 s{T}, 0
    s_cbranch_scc1 K_HL
    """)
    finalize(A, V_HD, V_HD+4, V_HUX, V_HL)
    A.label("K_FIN")
    if diag:
        A("s_waitcnt vmcnt(0)")
        st(15)
        A(f"""
        s_lshl_b32 s{T}, s2, 4
        s_add_u32 s{T}, s{T}, s{S_WAVE}
        s_lshl_b32 s{T}, s{T}, 7
        s_add_u32 s{T}, s{T}, {WS_STAMP}
        v_lshlrev_b32 v{V_X0}, 2, v{V_LANE}
        v_cmpx_gt_u32 vcc, 32, v{V_LANE}
        buffer_store_dword v{V_STAMP}, v{V_X0}, {srd(S_WS)}, s{T} offen
        """)
        if "--spink" in sys.argv:
            k = opt("--spink", 0); w = opt("--spinw", 7)
            A(f"""
            s_mov_b64 exec, -1
            s_cmp_lg_u32 s{S_WAVE}, {w}
            s_cbranch_scc1 K_END
            v_readlane_b32 s{T}, v{V_STAMP}, 16
            v_readlane_b32 s{T+1}, v{V_STAMP}, {16+k}
            s_sub_u32 s{T+1}, s{T+1}, s{T}
            s_mul_i32 s{T+1}, s{T+1}, 10
            s_add_u32 s{T+1}, s{T+1}, 6000
            s_min_u32 s{T+1}, s{T+1}, 100000
K_DSP:
            s_sleep 1
            s_memrealtime s[100:101]
            s_waitcnt lgkmcnt(0)
            s_sub_u32 s{T+2}, s100, s{T}
            s_cmp_lt_u32 s{T+2}, s{T+1}
            s_cbranch_scc1 K_DSP
            """)
        if "--dbg" in sys.argv:
            mk_srd(A, S_B, KDBG, 256)
            sel = opt("--dbgwg", -1)
            if sel >= 0:
                A(f"s_cmp_lg_u32 s2, {sel}")
                A("s_cbranch_scc1 K_END")
            A(f"""
            s_mov_b64 exec, -1
            v_readlane_b32 s{T}, v{V_STAMP}, 16
            s_not_b32 s{T}, s{T}
            v_writelane_b32 v{V_STAMP}, s{T}, 20
            v_subrev_u32 v{V_X0}, 64, v{V_X0}
            s_mov_b32 exec_lo, 0xfffe0000
            s_mov_b32 exec_hi, 0
            buffer_atomic_umax v{V_STAMP}, v{V_X0}, {srd(S_B)}, 0 offen sc1
            """)
    A("""
K_END:
    s_endpgm
    """)
    WQ = 64
    A(f"""
K_SLOW:
    s_setprio 0
    s_waitcnt vmcnt(0)
    v_mov_b32 v36, 0
    v_mov_b32 v37, 0
    v_mov_b32 v38, 0
    v_mov_b32 v39, 0
    v_lshlrev_b32 v29, 4, v0
    v_add_u32 v29, {L_LIST}, v29
    ds_write_b128 v29, v[36:39]
    ds_write_b128 v29, v[36:39] offset:16384
    ds_write_b128 v29, v[36:39] offset:32768
    ds_write_b128 v29, v[36:39] offset:49152
    v_and_b32 v28, 31, v{V_LANE}
    v_lshlrev_b32 v30, 1, v28
    s_lshl_b32 s{T}, s{S_HALF}, 6
    """)
    mk_srd(A, S_A, KWB, 8192)
    mk_srd(A, S_B, KWV, 8192)
    A(f"s_mov_b32 s{T+1}, s{T}")
    for k2 in range(32):
        A(f"""
        s_mov_b32 exec_hi, 0
        buffer_load_ushort v32, v30, {srd(S_A)}, s{T+1} offen
        buffer_load_ushort v33, v30, {srd(S_A)}, s{T+1} offen offset:128
        s_not_b64 exec, exec
        buffer_load_ushort v32, v30, {srd(S_B)}, s{T+1} offen
        buffer_load_ushort v33, v30, {srd(S_B)}, s{T+1} offen offset:128
        s_mov_b64 exec, -1
        s_add_u32 s{T+1}, s{T+1}, 256
        s_waitcnt vmcnt(0)
        v_lshl_or_b32 v{WQ+k2}, v33, 16, v32
        """)
    mk_srd(A, S_A, KWC, 128)
    A(f"""
    buffer_load_ushort v34, v30, {srd(S_A)}, s{T} offen
    v_lshlrev_b32 v30, 2, v28
    v_lshrrev_b32 v31, 5, v{V_LANE}
    v_xor_b32 v31, 1, v31
    v_lshl_add_u32 v35, v31, 7, v30
    v_add_u32 v35, {L_LIST}, v35
    v_add_u32 v30, {L_AU}, v30
    v_lshlrev_b32 v31, 2, v28
    s_waitcnt vmcnt(0) lgkmcnt(0)
    v_lshlrev_b32 v34, 16, v34
    v_mul_f32 v34, 0x{f2u(-LOG2E):08x}, v34
    """)
    mk_srd(A, S_A, KDST, E*4)
    mk_srd(A, S_B, KSRC, E*4)
    mk_srd(A, S_TAB, KE, E*2)
    XS = 34
    A(f"""
    s_barrier
    v_mov_b32 v36, v0
    s_mov_b32 s{S_T0}, {E}
K_SB:
    v_lshlrev_b32 v37, 2, v36
    v_lshlrev_b32 v38, 1, v36
    buffer_load_dword v39, v37, {srd(S_A)}, 0 offen
    buffer_load_dword v40, v37, {srd(S_B)}, 0 offen
    buffer_load_ushort v41, v38, {srd(S_TAB)}, 0 offen
    v_cmp_gt_u32 {sr(52,2)}, s{S_T0}, v36
    s_waitcnt vmcnt(0)
    v_subrev_u32 v39, s{S_NB}, v39
    v_cmp_gt_u32 vcc, {NPB}, v39
    s_and_b64 {sr(52,2)}, {sr(52,2)}, vcc
K_SE:
    s_cmp_eq_u64 {sr(52,2)}, 0
    s_cbranch_scc1 K_SN
    s_ff1_i32_b64 s34, {sr(52,2)}
    s_bitset0_b64 {sr(52,2)}, s34
    v_readlane_b32 s35, v40, s34
    v_readlane_b32 s{S_T1}, v39, s34
    v_readlane_b32 s{S_PF}, v41, s34
    s_min_u32 s35, s35, {N-1}
    s_lshl_b32 s35, s35, 7
    s_load_dwordx16 s[36:51], {sr(KX,2)}, s35
    s_add_u32 s35, s35, 64
    s_load_dwordx16 s[60:75], {sr(KX,2)}, s35
    s_mul_i32 s34, s{S_T1}, {AUS}
    v_add_u32 v42, s34, v30
    ds_read_b32 v43, v42
    s_lshl_b32 s{S_PF}, s{S_PF}, 16
    s_lshl_b32 s{S_T1}, s{S_T1}, 8
    v_mov_b32 v48, 0
    v_mov_b32 v49, 0
    s_waitcnt lgkmcnt(0)
    """)
    for k2 in range(16):
        A(f"v_dot2_f32_bf16 v48, s{36+k2}, v{WQ+k2}, v48")
        A(f"v_dot2_f32_bf16 v49, s{60+k2}, v{WQ+16+k2}, v49")
    A(f"""
    s_nop 3
    v_add_f32 v48, v48, v49
    v_fma_f32 v43, s{S_PF}, v34, v43
    v_mul_f32 v49, 0x{f2u(-LOG2E):08x}, v48
    v_add_f32 v49, v49, v43
    v_exp_f32 v49, v49
    v_add_f32 v49, s{S_C}, v49
    v_rcp_f32 v49, v49
    s_nop 1
    ds_bpermute_b32 v49, v31, v49
    v_cmp_gt_u32 vcc, 32, v{V_LANE}
    v_cndmask_b32 v48, v48, 1.0, vcc
    v_add_u32 v42, s{S_T1}, v35
    s_waitcnt lgkmcnt(0)
    v_mul_f32 v49, v49, v48
    ds_add_f32 v42, v49
    s_branch K_SE
K_SN:
    v_add_u32 v36, 1024, v36
    v_readfirstlane_b32 s34, v36
    s_cmp_lt_u32 s34, {E}
    s_cbranch_scc1 K_SB
    s_mov_b32 s{S_MSK}, 0xffff0000
    s_movk_i32 s34, {AUS}
    s_waitcnt lgkmcnt(0)
    s_barrier
    v_lshrrev_b32 v{V_LC}, 3, v0
    v_add_u32 v{V_X1}, {L_LIST}, v{V_I0+1}
    """)
    for it in range(2):
        A(f"""
        v_min_u32 v36, 199, v{V_LC}
        v_mad_u32_u24 v37, v36, s34, v{V_AUC}
        ds_read_b128 {vr(V_UX,4)}, v37 offset:128
        v_lshl_add_u32 v39, v36, 8, v{V_X1}
        ds_read_b128 {vr(V_NUM,4)}, v39
        ds_read_b128 {vr(V_DEN,4)}, v39 offset:128
        s_waitcnt lgkmcnt(0)
        """)
        finalize(A, V_NUM, V_DEN, V_UX, V_LC)
        A(f"v_add_u32 v{V_LC}, 128, v{V_LC}")
    A("s_endpgm")

HEADER = open(f"cdna_kernels/{NAME}.s.ref").read().split("; Override")[0]

def build(diag=False):
    A = Asm()
    out = HEADER
    out += f"; @launch grid=(256,1,1) block=(1024,1,1) lds={LDS}\n"
    out += '.amdgcn_target "amdgcn-amd-amdhsa--gfx950"\n.text\n'
    out += f".globl {NAME}_kernel\n.p2align 8\n.type {NAME}_kernel,@function\n"
    gen(A, diag)
    out += A.text()
    out += f""".section .rodata,"a"
.p2align 6
.amdhsa_kernel {NAME}_kernel
  .amdhsa_next_free_vgpr 128
  .amdhsa_next_free_sgpr 102
  .amdhsa_accum_offset 128
  .amdhsa_group_segment_fixed_size 0
  .amdhsa_kernarg_size 96
  .amdhsa_user_sgpr_count 2
  .amdhsa_user_sgpr_kernarg_segment_ptr 1
  .amdhsa_system_sgpr_workgroup_id_x 1
  .amdhsa_float_denorm_mode_32 3
.end_amdhsa_kernel
"""
    return out

if __name__ == "__main__":
    diag = "--diag" in sys.argv
    path = sys.argv[1] if len(sys.argv) > 1 and not sys.argv[1].startswith("--") else f"cdna_kernels/{NAME}.s"
    open(path, "w").write(build(diag))
    print("wrote", path, "LDS", LDS)
```

```python
import sys, struct
sys.path.insert(0, "gen")
import hazard
VERBOSE = "--verbose" in sys.argv
def opt(name, default):
    if name in sys.argv: return type(default)(sys.argv[sys.argv.index(name)+1])
    return default

NAME = "standalone__edge_featured_mpnn_gatedgcn__graph"
N, E = 25000, 800000
CH = 3128
NT = CH // 8
NPB = 196
CHP = 3584
WS_REC  = 0
WS_LOC  = 0x380000
WS_OFFS = 0x460000
WS_TF   = 0x4A0000
WS_EP   = 0x4A1000
WS_STAMP = 0x4B0000
WS_TAB  = 0x600000
HS      = 0x320000
PADROW  = 25088
WS_SIZE = WS_TAB + 2*HS
assert 256*CHP*4 <= WS_LOC and WS_LOC + 256*CHP <= WS_OFFS
L_CNT, L_H2, L_LG, L_FLAG, L_ORD, L_BL = 0, 1024, 1280, 1408, 1536, 2560
L_C2, L_C3, L_CX, L_CP, L_CY, L_CE, L_CL = L_FLAG+8, L_FLAG+12, L_FLAG+16, L_FLAG+20, L_FLAG+24, L_FLAG+28, L_FLAG+32
L_TAG = L_FLAG+40
L_HIST, L_OFF, L_LOC = 3072, 3584, 4096
L_AU   = L_LOC + CHP
AUS    = 272
L_WBV  = L_AU
L_REC  = L_AU + 16384
L_TST  = L_AU + 16384 + CHP*4
L_SIDE = L_AU + 200*AUS
L_XST  = L_SIDE
L_WAU  = L_SIDE + 25600
L_LIST = L_SIDE + 33792
LS     = 296
CAP    = 74
LDS    = L_LIST + 200*LS
assert LDS <= 163840 and L_SIDE % 128 == 0, (LDS, L_SIDE)
BLCAP  = 128
SH = 48
LOG2E = 1.4426950408889634
D = opt("--depth", 2)
R = D + 1
U = D * R
SPIN = opt("--spin", 30000)
FORCE_SLOW = "--slow" in sys.argv
PFA = opt("--pfa", 0)
PFAN = opt("--pfan", 1)
ENT = " nt" if "--nt" in sys.argv else ""
XNT = " nt" if "--xnt" in sys.argv else ""
RPF = "--rpf" in sys.argv
RS = opt("--recst", "sc1").replace("+", " ")
WSOFF = opt("--wsoff", 0)

def f2u(x): return struct.unpack("<I", struct.pack("<f", x))[0]

class Asm:
    def __init__(self): self.l = []
    def __call__(self, s):
        for ln in s.strip("\n").split("\n"):
            t = ln.strip()
            if not t: continue
            self.l.append(t if t.endswith(":") else "    " + t)
    def label(self, n): self.l.append(n + ":")
    def text(self): return "\n".join(hazard.fix(self.l, VERBOSE)) + "\n"

def vr(a, n=1): return f"v{a}" if n == 1 else f"v[{a}:{a+n-1}]"
def sr(a, n=1): return f"s{a}" if n == 1 else f"s[{a}:{a+n-1}]"
def srd(b): return f"s[{b}:{b+3}]"
def mfma(d, a, b, c): return f"v_mfma_f32_32x32x16_bf16 {d}, {a}, {b}, {c}"

def scan(A, v, op="v_add_u32", upto=64):
    for sh in (1, 2, 4, 8):
        A(f"{op}_dpp v{v}, v{v}, v{v} row_shr:{sh} row_mask:0xf bank_mask:0xf")
    if upto >= 32:
        A(f"{op}_dpp v{v}, v{v}, v{v} row_bcast:15 row_mask:0xa bank_mask:0xf")
    if upto >= 64:
        A(f"{op}_dpp v{v}, v{v}, v{v} row_bcast:31 row_mask:0xc bank_mask:0xf")

V_LANE, V_P, V_NB, V_OA = 1, 2, 3, 4
V_AUC, V_OUTC = 5, 6
V_LC = 7
V_NUM, V_DEN = 8, 12
V_EA, V_WC = 16, 20
V_T, V_V, V_M = 24, 32, 40
V_I0, V_I1 = 44, 46
V_S, V_Q = 48, 52
V_UX = 56
V_LN = 60
V_HL = 61
V_X0, V_X1 = 62, 63
V_DAT = 64
V_E = 96
V_HD = 104
V_HUX = 112
V_AN = 116
V_DUMMY = 126
V_STAMP = 127
S_WS, S_TAB, S_OUT, S_X = 4, 8, 12, 16
S_A, S_B = 20, 24
S_C = 28
S_BIN, S_HALF, S_WAVE, S_WP = 30, 31, 32, 33
S_EV, S_EVC, S_FL, S_FF = 34, 36, 38, 40
S_N1, S_GC, S_GF, S_HEAD, S_U, S_TT, S_GS = 42, 43, 44, 45, 46, 47, 48
S_MSK = 49
S_RET, S_RET2 = 50, 52
S_EPS = 54
S_T0, S_T1 = 56, 57
S_PF = 58
S_NB = 59
S_T = 60
S_K = 76
KX, KE, KSRC, KDST, KWA, KWB, KWC, KWU, KWV, KOUT, KDBG, KWS = [S_K + 2*i for i in range(12)]

def stamp(A, idx, on):
    if on:
        A(f"s_memtime s[100:101]")
        A("s_waitcnt lgkmcnt(0)")
        A(f"v_writelane_b32 v{V_STAMP}, s100, {idx}")
        A(f"s_memrealtime s[100:101]")
        A("s_waitcnt lgkmcnt(0)")
        A(f"v_writelane_b32 v{V_STAMP}, s100, {idx+16}")

def mk_srd(A, d, ptr, nbytes):
    A(f"s_mov_b32 s{d}, s{ptr}")
    A(f"s_mov_b32 s{d+1}, s{ptr+1}")
    A(f"s_mov_b32 s{d+2}, {nbytes}")
    A(f"s_mov_b32 s{d+3}, 0x20000")

def ld_rows(d):
    b = V_DAT + 8*d
    return [f"buffer_load_dwordx4 {vr(b,4)}, {vr(V_I0,2)}, {srd(S_TAB)}, 0 idxen offen sc1",
            f"buffer_load_dwordx4 {vr(b+4,4)}, {vr(V_I1,2)}, {srd(S_TAB)}, 0 idxen offen sc1"]
def rd_rec(off, r):
    return [f"ds_read_u16 v{V_I0}, v{V_P} offset:{off}",
            f"ds_read_u16 v{V_I1}, v{V_P} offset:{off+4}",
            f"ds_read_u16_d16_hi v{V_E+2*r}, v{V_P} offset:{off+2}",
            f"ds_read_u16_d16_hi v{V_E+2*r+1}, v{V_P} offset:{off+6}"]
def c_head(d, r):
    b = V_DAT + 8*d; e = V_E + 2*r
    o = []
    for h in range(2):
        for k in range(2):
            sel = "op_sel_hi:[0,1,1]" if h == 0 else "op_sel:[1,0,0] op_sel_hi:[1,1,1]"
            o.append(f"v_pk_fma_f32 {vr(V_T+4*h+2*k,2)}, {vr(e,2)}, {vr(V_WC+2*k,2)}, {vr(b+4*h+2*k,2)} {sel}")
    for i in range(4): o.append(f"v_lshlrev_b64 {vr(V_V+2*i,2)}, 16, {vr(b+2*i,2)}")
    return o
def c_rest():
    o = []
    T, V, M, S, Q = V_T, V_V, V_M, V_S, V_Q
    for i in range(8): o.append(f"v_exp_f32 v{T+i}, v{T+i}")
    for i in range(4): o.append(f"v_pk_fma_f32 {vr(T+2*i,2)}, {vr(T+2*i,2)}, {vr(V_EA+2*(i%2),2)}, {sr(S_C,2)} clamp")
    for k in range(2): o.append(f"v_pk_mul_f32 {vr(M+2*k,2)}, {vr(T+2*k,2)}, {vr(T+4+2*k,2)}")
    for i in range(4): o.append(f"v_rcp_f32 v{M+i}, v{M+i}")
    for k in range(2): o.append(f"v_pk_add_f32 {vr(S+2*k,2)}, {vr(T+2*k,2)}, {vr(T+4+2*k,2)}")
    for k in range(2): o.append(f"v_pk_mul_f32 {vr(Q+2*k,2)}, {vr(V+2*k,2)}, {vr(T+4+2*k,2)}")
    for k in range(2): o.append(f"v_pk_fma_f32 {vr(Q+2*k,2)}, {vr(V+4+2*k,2)}, {vr(T+2*k,2)}, {vr(Q+2*k,2)}")
    for k in range(2): o.append(f"v_pk_fma_f32 {vr(V_DEN+2*k,2)}, {vr(S+2*k,2)}, {vr(M+2*k,2)}, {vr(V_DEN+2*k,2)}")
    for k in range(2): o.append(f"v_pk_fma_f32 {vr(V_NUM+2*k,2)}, {vr(Q+2*k,2)}, {vr(M+2*k,2)}, {vr(V_NUM+2*k,2)}")
    return o

def finalize(A, num, den, ux, loc):
    T, V = V_T, V_V
    for k in range(2): A(f"v_pk_add_f32 {vr(den+2*k,2)}, {vr(den+2*k,2)}, {sr(S_EPS,2)}")
    for i in range(4): A(f"v_rcp_f32 v{den+i}, v{den+i}")
    for i in range(4): A(f"v_and_b32 v{T+i}, s{S_MSK}, v{ux+i}")
    for i in range(4): A(f"v_lshlrev_b32 v{V+i}, 16, v{ux+i}")
    for k in range(2): A(f"v_pk_fma_f32 {vr(T+2*k,2)}, {vr(num+2*k,2)}, {vr(den+2*k,2)}, {vr(T+2*k,2)}")
    A(f"v_lshl_add_u32 v{T+4}, v{loc}, 7, v{V_OUTC}")
    A(f"v_cmp_gt_u32 vcc, {NPB}, v{loc}")
    for i in range(4): A(f"v_max_f32 v{T+i}, 0, v{T+i}")
    for k in range(2): A(f"v_pk_add_f32 {vr(T+2*k,2)}, {vr(T+2*k,2)}, {vr(V+2*k,2)}")
    A(f"v_cndmask_b32 v{T+4}, -1, v{T+4}, vcc")
    A(f"v_cvt_pk_bf16_f32 v{T+6}, v{T}, v{T+1}")
    A(f"v_cvt_pk_bf16_f32 v{T+7}, v{T+2}, v{T+3}")
    A(f"buffer_store_dwordx2 {vr(T+6,2)}, v{T+4}, {srd(S_OUT)}, 0 offen")

def arrive(A, addr, rtn=None):
    A(f"v_mov_b32 v120, {addr}")
    A("v_mov_b32 v121, 1")
    A("s_mov_b64 exec, 1")
    if rtn is None: A("ds_add_u32 v120, v121")
    else:
        A("ds_add_rtn_u32 v122, v120, v121")
        A("s_waitcnt lgkmcnt(0)")
        A(f"v_readfirstlane_b32 s{rtn}, v122")
    A("s_mov_b64 exec, -1")

def spin_lds(A, name, target):
    A(f"""
{name}:
    ds_read_b32 v122, v120
    s_waitcnt lgkmcnt(0)
    v_readfirstlane_b32 s{S_T}, v122
    s_cmp_lt_u32 s{S_T}, {target}
    s_cbranch_scc1 {name}
    """)

def gen(A, diag):
    T = S_T
    EARLY = "--early" in sys.argv
    st = lambda i: stamp(A, i, diag and not (EARLY and 2 <= i <= 7))
    se = lambda i: stamp(A, i, diag and EARLY)
    A.label(f"{NAME}_kernel")
    A(f"""
    s_cmp_ge_u32 s2, 256
    s_cbranch_scc1 K_END
    s_load_dwordx16 {sr(S_K,16)}, s[0:1], 0
    s_load_dwordx8 {sr(S_K+16,8)}, s[0:1], 64
    s_and_b32 s{S_HALF}, s2, 1
    s_bfe_u32 s{T}, s2, 0x20001
    s_lshr_b32 s{T+1}, s2, 3
    s_lshl_b32 s{S_BIN}, s{T}, 5
    s_add_u32 s{S_BIN}, s{S_BIN}, s{T+1}
    s_mul_i32 s{S_NB}, s{S_BIN}, {NPB}
    v_readfirstlane_b32 s{S_WAVE}, v0
    s_lshr_b32 s{S_WAVE}, s{S_WAVE}, 6
    v_and_b32 v{V_LANE}, 63, v0
    v_and_b32 v26, 7, v{V_LANE}
    v_lshrrev_b32 v27, 4, v{V_LANE}
    v_xor_b32 v27, v26, v27
    v_lshlrev_b32 v27, 4, v27
    v_lshrrev_b32 v28, 3, v{V_LANE}
    v_lshl_add_u32 v24, v28, 7, v27
    v_xor_b32 v25, 64, v24
    v_lshlrev_b32 v29, 4, v{V_LANE}
    s_lshl_b32 s{T+6}, s{S_HALF}, 6
    s_lshl_b32 s{T+7}, s{S_NB}, 7
    s_sub_u32 s{T+9}, s{S_WAVE}, 7
    s_mov_b32 s{T+8}, {WS_EP}
    """)
    if diag: A(f"v_mov_b32 v{V_STAMP}, 0")
    A(f"""
    s_cmp_ge_u32 s{S_WAVE}, 7
    s_cbranch_scc1 K_L1
    s_mul_i32 s{T+2}, s{S_HALF}, 12
    s_lshl_b32 s{T+3}, s{S_WAVE}, 1
    s_add_u32 s{T+2}, s{T+2}, s{T+3}
    s_cmp_eq_u32 s{S_WAVE}, 6
    s_cselect_b32 s{T+2}, 24, s{T+2}
    s_lshl_b32 s{T+2}, s{T+2}, 10
    s_add_u32 m0, s{T+2}, {L_XST}
    s_add_u32 s{T+2}, s{T+2}, s{T+7}
    s_lshl_b32 s{T+3}, s{S_WAVE}, 10
    s_waitcnt lgkmcnt(0)
    """)
    st(0)
    mk_srd(A, S_X, KX, N*128)
    mk_srd(A, S_A, KWB, 8192)
    mk_srd(A, S_B, KWV, 8192)
    A(f"""
    buffer_load_dwordx4 v24, {srd(S_X)}, s{T+2} offen lds
    s_cmp_eq_u32 s{S_WAVE}, 6
    s_cbranch_scc1 K_L0
    buffer_load_dwordx4 v25, {srd(S_X)}, s{T+2} offen offset:1024 lds
K_L0:
    s_add_u32 m0, s{T+3}, {L_WBV}
    s_nop 0
    buffer_load_dwordx4 v29, {srd(S_A)}, s{T+3} offen lds
    s_add_u32 m0, s{T+3}, {L_WBV+8192}
    s_cmp_eq_u32 s{S_WAVE}, 6
    buffer_load_dwordx4 v29, {srd(S_B)}, s{T+3} offen lds
    s_cbranch_scc0 K_L1
    buffer_load_dwordx4 v29, {srd(S_B)}, s{T+3} offen offset:1024 lds
    s_add_u32 m0, s{T+3}, {L_WBV}
    s_nop 0
    buffer_load_dwordx4 v29, {srd(S_A)}, s{T+3} offen offset:1024 lds
K_L1:
    v_mul_u32_u24 v30, {LS}, v0
    v_add_u32 v30, {L_LIST}, v30
    v_cmp_gt_u32 vcc, 200, v0
    v_mov_b32 v31, 0x40000000
    v_cndmask_b32 v30, v31, v30, vcc
    v_cmp_gt_u32 vcc, 256, v0
    v_subrev_u32 v32, 384, v0
    v_cndmask_b32 v30, 0, v30, vcc
    v_cmp_gt_u32 vcc, 256, v32
    v_mov_b32 v31, {NPB}
    v_cndmask_b32 v30, v30, v31, vcc
    v_lshlrev_b32 v31, 2, v0
    ds_write_b32 v31, v30
    v_subrev_u32 v34, 448, v0
    v_lshlrev_b32 v32, 4, v34
    v_lshlrev_b32 v33, 3, v34
    s_mul_i32 s{T+10}, s2, {CH*4}
    s_add_u32 s{T+11}, s{T+10}, {CH*2}
    s_lshr_b32 s{T+12}, s{T+10}, 1
    s_lshr_b32 s{T+13}, s{T+11}, 1
    s_waitcnt lgkmcnt(0)
    """)
    if diag:
        A(f"s_cmp_lt_u32 s{S_WAVE}, 7")
        A("s_cbranch_scc1 K_D0")
        st(0)
        A.label("K_D0")
    if WSOFF:
        A(f"s_add_u32 s{KWS}, s{KWS}, {WSOFF<<20}")
        A(f"s_addc_u32 s{KWS+1}, s{KWS+1}, 0")
    A(f"""
    s_xor_b32 s{T+14}, s{S_WAVE}, 15
    s_or_b32 s{T+14}, s{T+14}, s2
    s_cmp_lg_u32 s{T+14}, 0
    s_cbranch_scc1 K_NEP
    s_load_dwordx2 {sr(S_T0,2)}, {sr(KWS,2)}, s{T+8}
K_NEP:
    """)
    mk_srd(A, S_A, KDST, E*4)
    mk_srd(A, S_B, KSRC, E*4)
    mk_srd(A, S_WS, KE, E*2)
    mk_srd(A, S_X, KX, N*128)
    mk_srd(A, S_OUT, KWC, 128)
    DS_, SR_, EE_ = 64, 72, 80
    A(f"""
    v_lshlrev_b32 v27, 3, v26
    v_cmp_gt_u32 vcc, {NT}, v34
    v_mov_b32 v36, {PADROW}
    v_mov_b32 v37, {PADROW}
    v_mov_b32 v38, {PADROW}
    v_mov_b32 v39, {PADROW}
    v_lshlrev_b32 v30, 4, v0
    v_add_u32 v30, {L_LIST}, v30
    s_barrier
    buffer_load_dwordx2 {vr(V_WC+2,2)}, v27, {srd(S_OUT)}, s{T+6} offen
    s_cmp_ge_u32 s{T+9}, 7
    s_cbranch_scc1 K_NE0
    s_mov_b64 exec, vcc
    buffer_load_dwordx4 {vr(DS_,4)}, v32, {srd(S_A)}, s{T+10} offen{ENT}
    buffer_load_dwordx4 {vr(DS_+4,4)}, v32, {srd(S_A)}, s{T+11} offen{ENT}
    s_mov_b64 exec, -1
    v_mov_b32 v40, -1
    v_mov_b32 v41, -1
    ds_write_b64 v33, v[40:41] offset:{L_LOC}
K_NE0:
    ds_write_b128 v30, v[36:39]
    ds_write_b128 v30, v[36:39] offset:16384
    s_cbranch_scc1 K_NE
    s_mov_b64 exec, vcc
    buffer_load_dwordx4 {vr(SR_,4)}, v32, {srd(S_B)}, s{T+10} offen{ENT}
    buffer_load_dwordx4 {vr(SR_+4,4)}, v32, {srd(S_B)}, s{T+11} offen{ENT}
    buffer_load_dwordx2 {vr(EE_,2)}, v33, {srd(S_WS)}, s{T+12} offen{ENT}
    buffer_load_dwordx2 {vr(EE_+2,2)}, v33, {srd(S_WS)}, s{T+13} offen{ENT}
    s_mov_b64 exec, -1
K_NE:
    ds_write_b128 v30, v[36:39] offset:32768
    ds_write_b128 v30, v[36:39] offset:49152
    """)
    se(2)
    mk_srd(A, S_WS, KWS, WS_SIZE)
    mk_srd(A, S_OUT, KOUT, N*128)
    A(f"""
    s_mul_i32 s{T+2}, s{S_HALF}, {HS}
    s_add_u32 s{T+2}, s{T+2}, {WS_TAB}
    s_add_u32 s{S_TAB}, s{KWS}, s{T+2}
    s_addc_u32 s{S_TAB+1}, s{KWS+1}, 0
    s_or_b32 s{S_TAB+1}, s{S_TAB+1}, {128<<16}
    s_mov_b32 s{S_TAB+2}, {PADROW+1}
    s_mov_b32 s{S_TAB+3}, 0x20000
    s_mul_i32 s{S_PF}, s{T+1}, {784*128}
    s_add_u32 s{S_PF}, s{S_PF}, s{T+2}
    s_add_u32 s{T+3}, s{T+7}, s{T+6}
    v_add_u32 v{V_OUTC}, s{T+3}, v27
    v_lshlrev_b32 v{V_I0+1}, 4, v26
    v_mov_b32 v{V_I1+1}, v{V_I0+1}
    v_add_u32 v{V_AUC}, {L_AU}, v{V_I0+1}
    v_lshlrev_b32 v{V_OA}, 2, v28
    s_mov_b32 s{S_C}, 0x{f2u(2.0**-SH):08x}
    s_mov_b32 s{S_C+1}, 0x{f2u(2.0**-SH):08x}
    s_mov_b32 s{S_EPS}, 0x{f2u(1e-6*2.0**SH):08x}
    s_mov_b32 s{S_EPS+1}, 0x{f2u(1e-6*2.0**SH):08x}
    s_mov_b32 s{S_MSK}, 0xffff0000
    """)
    arrive(A, L_CE)
    se(3)
    A(f"""
    s_cmp_ge_u32 s{S_WAVE}, 14
    s_cbranch_scc1 K_HELP
    s_cmp_ge_u32 s{S_WAVE}, 7
    s_cbranch_scc1 K_BIN
    ; ---- table job: tile = 3*half + (w>>1), nt = w&1 ; wave 6: tile 6, nt = half
    s_mul_i32 s{T+10}, s{S_HALF}, 3
    s_lshr_b32 s{T+11}, s{S_WAVE}, 1
    s_add_u32 s{T+10}, s{T+10}, s{T+11}
    s_and_b32 s{T+11}, s{S_WAVE}, 1
    s_cmp_eq_u32 s{S_WAVE}, 6
    s_cselect_b32 s{T+10}, 6, s{T+10}
    s_cselect_b32 s{T+11}, s{S_HALF}, s{T+11}
    s_lshl_b32 s{T+12}, s{T+10}, 12
    s_mul_i32 s{T+13}, s{T+11}, {HS}
    s_add_u32 s{T+13}, s{T+13}, s{T+7}
    s_add_u32 s{T+13}, s{T+13}, {WS_TAB}
    s_add_u32 s{S_B}, s{KWS}, s{T+13}
    s_addc_u32 s{S_B+1}, s{KWS+1}, 0
    s_mov_b32 s{S_B+2}, {NPB*128}
    s_mov_b32 s{S_B+3}, 0x20000
    v_and_b32 v28, 31, v{V_LANE}
    v_lshrrev_b32 v29, 5, v{V_LANE}
    v_bfe_u32 v30, v28, 1, 3
    v_xor_b32 v30, v30, v29
    v_lshlrev_b32 v30, 4, v30
    v_lshl_add_u32 v24, v28, 7, v30
    s_add_u32 s{T+13}, s{T+12}, {L_XST}
    v_add_u32 v30, s{T+13}, v24
    v_bfe_u32 v25, v{V_LANE}, 2, 2
    v_lshl_add_u32 v25, v29, 3, v25
    v_lshlrev_b32 v34, 7, v25
    v_bfe_u32 v35, v{V_LANE}, 4, 1
    v_lshl_add_u32 v34, v35, 5, v34
    v_and_b32 v36, 3, v{V_LANE}
    v_lshl_add_u32 v34, v36, 3, v34
    s_lshl_b32 s{T+13}, s{T+11}, 6
    s_add_u32 s{T+13}, s{T+13}, {L_WBV}
    v_add_u32 v34, s{T+13}, v34
    v_and_b32 v32, 1, v{V_LANE}
    v_xor_b32 v32, 1, v32
    v_lshlrev_b32 v32, 15, v32
    v_lshlrev_b32 v33, 9, v29
    v_lshl_add_u32 v33, v28, 2, v33
    v_add_u32 v33, s{T+12}, v33
    s_mov_b32 s{T+13}, 0x{f2u(-LOG2E):08x}
    s_mov_b32 s{T+14}, 0x07060302
    s_waitcnt vmcnt(1)
    """)
    arrive(A, L_CX)
    spin_lds(A, "K_SPX", 7)
    st(1)
    XB = 84
    Wm1 = [36, 40, 116, 8]
    for u in range(4):
        A(f"v_xor_b32 v31, {32*u}, v30")
        A(f"ds_read_b128 {vr(XB+4*u,4)}, v31")
        for tt in range(2):
            A(f"ds_read_b64_tr_b16 {vr(100+4*u+2*tt,2)}, v34 offset:{(16*u+4*tt)*128}")
        for tt in range(2):
            A(f"ds_read_b64_tr_b16 {vr(Wm1[u]+2*tt,2)}, v34 offset:{8192+(16*u+4*tt)*128}")
    for u in range(4):
        A(f"s_waitcnt lgkmcnt({15-5*u})")
        A(mfma(vr(48,16), vr(XB+4*u,4), vr(100+4*u,4), "0" if u == 0 else vr(48,16)))
        A(mfma(vr(64,16), vr(XB+4*u,4), vr(Wm1[u],4), "0" if u == 0 else vr(64,16)))
    TS = opt("--tabst", "sc1").replace("+", " ")
    if "--tabdw" in sys.argv:
        arrive(A, L_CY)
        for r in range(16): A(f"v_mul_f32 v{48+r}, s{T+13}, v{48+r}")
        for r in range(16):
            A(f"v_add_u32 v{64+r}, v32, v{64+r}")
            A(f"v_perm_b32 v{48+r}, v{48+r}, v{64+r}, s{T+14}")
            A(f"buffer_store_dword v{48+r}, v33, {srd(S_B)}, 0 offen offset:{(8*(r>>2)+(r&3))*128} {TS}")
    else:
        A(f"""
        s_lshl_b32 s{T+4}, s{S_WAVE}, 11
        s_add_u32 s{T+4}, s{T+4}, {L_TST}
        v_subrev_u32 v33, s{T+12}, v33
        v_add_u32 v33, s{T+4}, v33
        v_add_u32 v34, 128, v33
        v_lshlrev_b32 v35, 4, v{V_LANE}
        v_add_u32 v36, s{T+4}, v35
        v_add_u32 v35, s{T+12}, v35
        """)
        for hf in range(2):
            for r in range(8*hf, 8*hf+8): A(f"v_mul_f32 v{48+r}, s{T+13}, v{48+r}")
            for r in range(8*hf, 8*hf+8):
                A(f"v_add_u32 v{64+r}, v32, v{64+r}")
                A(f"v_perm_b32 v{48+r}, v{48+r}, v{64+r}, s{T+14}")
            for q in range(2):
                r = 8*hf + 4*q
                A(f"ds_write2st64_b32 v33, v{48+r}, v{50+r} offset0:{4*q} offset1:{4*q+1}")
                A(f"ds_write2st64_b32 v34, v{49+r}, v{51+r} offset0:{4*q} offset1:{4*q+1}")
            A(f"ds_read_b128 {vr(100+8*hf,4)}, v36")
            A(f"ds_read_b128 {vr(104+8*hf,4)}, v36 offset:1024")
            if hf == 1:
                A("s_waitcnt lgkmcnt(6)")
                A(f"buffer_store_dwordx4 v[100:103], v35, {srd(S_B)}, 0 offen {TS}")
                A(f"buffer_store_dwordx4 v[104:107], v35, {srd(S_B)}, 0 offen offset:1024 {TS}")
        A("s_waitcnt lgkmcnt(0)")
        A(f"buffer_store_dwordx4 v[108:111], v35, {srd(S_B)}, 0 offen offset:2048 {TS}")
        A(f"buffer_store_dwordx4 v[112:115], v35, {srd(S_B)}, 0 offen offset:3072 {TS}")
        arrive(A, L_CY)
    st(2)
    A(f"""
    s_lshr_b32 s{T+12}, s2, 1
    s_or_b32 s{T+12}, s{T+12}, s{S_WAVE}
    s_cmp_lg_u32 s{T+12}, 0
    s_cbranch_scc1 K_NPAD
    v_lshlrev_b32 v32, 2, v{V_LANE}
    v_mov_b32 v33, 0x7f000000
    s_mul_i32 s{T+4}, s{S_HALF}, {HS}
    s_add_u32 s{T+4}, s{T+4}, {WS_TAB+PADROW*128}
    s_mov_b32 exec_hi, 0
    buffer_store_dword v33, v32, {srd(S_WS)}, s{T+4} offen sc1
    s_mov_b64 exec, -1
K_NPAD:
    s_cmp_lg_u32 s{S_WAVE}, 0
    s_cbranch_scc1 K_NTG
    s_mov_b32 s{S_A}, s{KDBG}
    s_mov_b32 s{S_A+1}, s{KDBG+1}
    s_mov_b32 s{S_A+2}, 256
    s_mov_b32 s{S_A+3}, 0x20000
    v_mov_b32 v34, 0
    v_mov_b32 v35, {L_TAG}
    s_mov_b32 s{T+13}, {SPIN}
K_TG:
    buffer_load_dwordx2 v[32:33], v34, {srd(S_A)}, 0 offen sc1
    s_waitcnt vmcnt(0)
    v_readfirstlane_b32 s{T+4}, v32
    s_bitcmp1_b32 s{T+4}, 0
    s_cbranch_scc1 K_TG1
    s_sleep 2
    s_sub_u32 s{T+13}, s{T+13}, 1
    s_cmp_lg_u32 s{T+13}, 0
    s_cbranch_scc1 K_TG
K_TG1:
    ds_write_b64 v35, v[32:33]
K_NTG:
    s_waitcnt vmcnt(0)
    """)
    st(3)
    arrive(A, L_CP, rtn=T+3)
    A(f"""
    """)
    def pfa():
        A("v_lshlrev_b32 v31, 7, v0")
        A(f"buffer_load_ubyte v{V_DUMMY}, v31, {srd(S_WS)}, s{S_PF} offen sc1")
    if PFA == 1:
        A(f"v_mov_b32 v120, {L_C3}")
        spin_lds(A, "K_SPA", 7)
        pfa()
    A("s_branch K_PUBQ")
    BN, RK, TM = 48, 56, 84
    A(f"""
K_BIN:
    v_mov_b32 v31, v34
    s_mul_i32 s{T+10}, s2, {CH//4}
    v_add_u32 v32, s{T+10}, v31
    v_cmp_gt_u32 vcc, {NT}, v31
    s_mov_b32 s{T+11}, {E//4}
    v_cmp_gt_u32 {sr(T+4,2)}, s{T+11}, v32
    s_mov_b32 s{T+11}, {E//4 - NT}
    v_cmp_gt_u32 {sr(T+6,2)}, s{T+11}, v32
    s_and_b64 {sr(T+4,2)}, {sr(T+4,2)}, vcc
    s_and_b64 {sr(T+6,2)}, {sr(T+6,2)}, vcc
    s_mov_b32 s{T+8}, 42800
    s_movk_i32 s{T+9}, {NPB}
    v_mov_b32 v33, 1
    s_setprio 3
    """)
    for hlf in range(2):
        A(f"s_mov_b64 exec, {sr(T+4+2*hlf,2)}")
        A(f"s_waitcnt vmcnt({5-hlf})")
        ks = range(4*hlf, 4*hlf+4)
        for k in ks: A(f"v_mul_u32_u24 v{BN+k}, s{T+8}, v{DS_+k}")
        for k in ks: A(f"v_lshrrev_b32 v{BN+k}, 23, v{BN+k}")
        for k in ks:
            A(f"v_mul_u32_u24 v{TM+k}, s{T+9}, v{BN+k}")
            A(f"v_lshlrev_b32 v{BN+k}, 2, v{BN+k}")
            A(f"ds_add_rtn_u32 v{RK+k}, v{BN+k}, v33 offset:{L_HIST}")
        for k in ks: A(f"v_sub_u32 v{DS_+k}, v{DS_+k}, v{TM+k}")
    A("s_mov_b64 exec, -1")
    A(f"v_lshlrev_b32 v34, 3, v{V_LANE}")
    arrive(A, L_C2)
    st(3)
    spin_lds(A, "K_SP2", 7)
    st(4)
    A(f"""
    ds_read_b64 v[36:37], v34 offset:{L_HIST}
    s_waitcnt lgkmcnt(0)
    v_add_u32 v36, 3, v36
    v_add_u32 v37, 3, v37
    v_and_b32 v36, -4, v36
    v_and_b32 v37, -4, v37
    v_add_u32 v38, v36, v37
    v_mov_b32 v39, v38
    """)
    scan(A, 39)
    A(f"""
    v_sub_u32 v38, v39, v38
    v_add_u32 v39, v38, v36
    ds_write_b64 v34, v[38:39] offset:{L_OFF}
    """)
    for hlf in range(2):
        A(f"s_mov_b64 exec, {sr(T+4+2*hlf,2)}")
        for k in range(4*hlf, 4*hlf+4):
            A(f"ds_read_b32 v{TM+k}, v{BN+k} offset:{L_OFF}")
    A(f"""
    s_mov_b32 s{T+8}, 0x05040100
    s_mov_b32 s{T+9}, 0x07060100
    s_waitcnt lgkmcnt(0)
    """)
    for hlf in range(2):
        A(f"s_mov_b64 exec, {sr(T+4+2*hlf,2)}")
        for k in range(4*hlf, 4*hlf+4):
            A(f"v_add_u32 v{TM+k}, v{TM+k}, v{RK+k}")
            A(f"v_lshlrev_b32 v{RK+k}, 2, v{TM+k}")
            A(f"ds_write_b8 v{TM+k}, v{DS_+k} offset:{L_LOC}")
    A("s_mov_b64 exec, -1")
    st(5)
    for hlf in range(2):
        A(f"s_waitcnt vmcnt({1-hlf})")
        A(f"s_mov_b64 exec, {sr(T+4+2*hlf,2)}")
        for k in range(4*hlf, 4*hlf+4):
            A(f"v_perm_b32 v{SR_+k}, v{EE_+k//2}, v{SR_+k}, s{T+8+(k&1)}")
            A(f"ds_write_b32 v{RK+k}, v{SR_+k} offset:{L_REC}")
    A(f"""
    s_mov_b64 exec, -1
    v_lshlrev_b32 v32, 4, v31
    v_lshlrev_b32 v33, 3, v31
    s_mul_i32 s{T+10}, s2, {CHP*4}
    s_add_u32 s{T+11}, s{T+10}, {448*16}
    s_mul_i32 s{T+12}, s2, {CHP}
    s_add_u32 s{T+12}, s{T+12}, {WS_LOC}
    """)
    arrive(A, L_C3)
    spin_lds(A, "K_SP3", 7)
    st(6)
    A(f"""
    ds_read_b128 v[64:67], v32 offset:{L_REC}
    ds_read_b128 v[68:71], v32 offset:{L_REC+448*16}
    ds_read_b128 v[72:75], v32 offset:{L_LOC}
    v_cmp_gt_u32 vcc, {CHP//16}, v31
    s_waitcnt lgkmcnt(2)
    buffer_store_dwordx4 v[64:67], v32, {srd(S_WS)}, s{T+10} offen {RS}
    s_waitcnt lgkmcnt(1)
    buffer_store_dwordx4 v[68:71], v32, {srd(S_WS)}, s{T+11} offen {RS}
    s_waitcnt lgkmcnt(0)
    s_and_saveexec_b64 {sr(T+4,2)}, vcc
    s_cbranch_execz K_NLOC
    buffer_store_dwordx4 v[72:75], v32, {srd(S_WS)}, s{T+12} offen {RS}
K_NLOC:
    s_mov_b64 exec, -1
    """)
    arrive(A, L_CY)
    A("s_waitcnt vmcnt(0)")
    st(7)
    arrive(A, L_CP, rtn=T+3)
    A(f"""
    s_branch K_PUBQ
K_HELP:
    s_sub_u32 s{T+2}, s{S_WAVE}, 14
    s_xor_b32 s{T+3}, s{S_HALF}, 1
    s_lshl_b32 s{T+3}, s{T+3}, 1
    s_add_u32 s{T+3}, s{T+3}, s{T+2}
    s_mul_i32 s{T+3}, s{T+3}, 6144
    s_add_u32 m0, s{T+3}, {L_XST}
    s_add_u32 s{T+3}, s{T+3}, s{T+7}
    s_cmp_eq_u32 s{T+2}, 0
    s_cselect_b32 s{S_A}, s{KWA}, s{KWU}
    s_cselect_b32 s{S_A+1}, s{KWA+1}, s{KWU+1}
    s_mov_b32 s{S_A+2}, 8192
    s_mov_b32 s{S_A+3}, 0x20000
    s_cmp_lg_u32 s{T+14}, 0
    s_cbranch_scc1 K_NEP2
    s_mov_b32 s{S_B}, s{KDBG}
    s_mov_b32 s{S_B+1}, s{KDBG+1}
    s_mov_b32 s{S_B+2}, 256
    s_mov_b32 s{S_B+3}, 0x20000
    s_waitcnt lgkmcnt(0)
    s_add_u32 s{S_T1}, s{S_T1}, 1
    s_and_b32 s{S_T0}, s{S_T0}, 0xfff00000
    s_or_b32 s{S_T0}, s{S_T0}, 1
    v_mov_b32 v32, s{S_T0}
    v_mov_b32 v33, s{S_T1}
    v_mov_b32 v34, 0
    s_mov_b32 s{T+4}, {WS_EP+4}
    s_mov_b64 exec, 1
    buffer_store_dwordx2 v[32:33], v34, {srd(S_B)}, 0 offen sc1
    buffer_store_dword v33, v34, {srd(S_WS)}, s{T+4} offen sc1
    s_mov_b64 exec, -1
K_NEP2:
    """)
    spin_lds(A, "K_SPE", 16)
    A(f"""
    buffer_load_dwordx4 v24, {srd(S_X)}, s{T+3} offen lds
    buffer_load_dwordx4 v25, {srd(S_X)}, s{T+3} offen offset:1024 lds
    buffer_load_dwordx4 v24, {srd(S_X)}, s{T+3} offen offset:2048 lds
    buffer_load_dwordx4 v25, {srd(S_X)}, s{T+3} offen offset:3072 lds
    s_add_u32 m0, m0, 4096
    s_add_u32 s{T+3}, s{T+3}, 4096
    buffer_load_dwordx4 v24, {srd(S_X)}, s{T+3} offen lds
    buffer_load_dwordx4 v25, {srd(S_X)}, s{T+3} offen offset:1024 lds
    v_lshrrev_b32 v30, 2, v{V_LANE}
    v_lshlrev_b32 v30, 7, v30
    v_and_b32 v31, 3, v{V_LANE}
    v_lshl_add_u32 v30, v31, 4, v30
    s_lshl_b32 s{T+4}, s{T+2}, 12
    s_add_u32 m0, s{T+4}, {L_WAU}
    s_mov_b32 s{T+4}, s{T+6}
    """)
    for i4 in range(4):
        A(f"buffer_load_dwordx4 v30, {srd(S_A)}, s{T+4} offen offset:{1024*i4} lds")
        A(f"s_add_u32 s{T+4}, s{T+4}, 1024")
    A("s_waitcnt vmcnt(0)")
    st(2)
    arrive(A, L_CY)
    A(f"""
    s_branch K_JOIN
K_PUB:
    v_lshlrev_b32 v122, 3, v{V_LANE}
    ds_read_b64 v[36:37], v122 offset:{L_HIST}
    ds_read_b64 v[38:39], v122 offset:{L_OFF}
    v_mov_b32 v122, {L_TAG}
    ds_read_b64 v[40:41], v122
    s_lshl_b32 s{T+4}, s2, 10
    s_add_u32 s{T+4}, s{T+4}, {WS_OFFS}
    v_lshlrev_b32 v122, 4, v{V_LANE}
    s_waitcnt lgkmcnt(0)
    v_mov_b32 v43, v41
    v_and_b32 v121, -2, v40
    v_cmp_ne_u32 vcc, v121, v40
    v_add_u32 v36, 3, v36
    v_add_u32 v37, 3, v37
    v_lshrrev_b32 v36, 2, v36
    v_lshrrev_b32 v37, 2, v37
    v_lshrrev_b32 v38, 2, v38
    v_lshrrev_b32 v39, 2, v39
    v_lshl_or_b32 v40, v36, 10, v38
    v_lshl_or_b32 v42, v37, 10, v39
    v_or_b32 v40, v121, v40
    v_or_b32 v42, v121, v42
    s_cbranch_vccz K_PUB1
    buffer_store_dwordx4 v[40:43], v122, {srd(S_WS)}, s{T+4} offen sc1
K_PUB1:
    s_nop 1
    s_setpc_b64 {sr(S_RET,2)}
K_PUBQ:
    s_cmp_lg_u32 s{T+3}, 13
    s_cbranch_scc1 K_JOIN
    s_call_b64 {sr(S_RET,2)}, K_PUB
K_JOIN:
    s_setprio 0
    v_lshrrev_b32 v28, 3, v0
    v_lshlrev_b32 v24, 10, v28
    v_and_b32 v26, 7, v{V_LANE}
    v_mul_u32_u24 v28, {CHP//4}, v28
    v_add_u32 v28, v28, v26
    s_lshl_b32 s{T+5}, s{S_BIN}, 3
    s_add_u32 s{T+5}, s{T+5}, {WS_OFFS}
    s_add_u32 s{T+14}, s{T+5}, {128*1024}
    s_mov_b32 s{T+2}, {128*CHP*4}
    s_mov_b32 s{T+3}, {WS_LOC}
    s_mov_b32 s{T+4}, {WS_LOC+128*CHP}
    v_mov_b32 v31, 0x04000000
    v_mov_b32 v38, 4
    s_mov_b32 s{T+12}, 0xfff00000
    s_mov_b32 s{T+13}, {SPIN}
    """)
    for i in range(2*R): A(f"v_mov_b32 v{V_E+i}, 0")
    if RPF:
        A(f"""
        s_bfe_u32 s{T}, s2, 0x20001
        s_lshr_b32 s{T+1}, s2, 3
        v_lshrrev_b32 v25, 5, v0
        v_mul_u32_u24 v25, {CHP*4}, v25
        v_and_b32 v27, 31, v0
        v_lshl_add_u32 v25, v27, 7, v25
        s_mul_i32 s{T+6}, s{T}, {26*128}
        s_sub_u32 s{T+6}, s{T+6}, 384
        s_max_i32 s{T+6}, s{T+6}, 0
        s_mul_i32 s{T+7}, s{T+1}, {8*CHP*4}
        s_add_u32 s{T+6}, s{T+6}, s{T+7}
        v_lshrrev_b32 v27, 3, v{V_LANE}
        v_mul_u32_u24 v27, {CHP}, v27
        v_lshl_add_u32 v27, v26, 7, v27
        s_mul_i32 s{T+8}, s{T}, 832
        s_sub_u32 s{T+8}, s{T+8}, 64
        s_max_i32 s{T+8}, s{T+8}, 0
        s_mul_i32 s{T+9}, s{T+1}, {8*CHP}
        s_add_u32 s{T+8}, s{T+8}, s{T+9}
        s_add_u32 s{T+8}, s{T+8}, {WS_LOC}
        s_cmp_eq_u32 s{S_WAVE}, 4
        s_cselect_b32 s{T+6}, s{T+8}, s{T+6}
        s_cselect_b64 vcc, -1, 0
        v_cndmask_b32 v25, v25, v27, vcc
        """)
    A("s_waitcnt lgkmcnt(0)")
    A("s_barrier")
    if RPF:
        A(f"""
        s_cmp_gt_u32 s{S_WAVE}, 4
        s_cbranch_scc1 K_NRPF
        buffer_load_ubyte v{V_DUMMY}, v25, {srd(S_WS)}, s{T+6} offen sc1
K_NRPF:
        """)
    st(8)
    A(f"""
    v_mov_b32 v36, {L_TAG}
    ds_read_b64 v[36:37], v36
    buffer_load_dwordx2 v[32:33], v24, {srd(S_WS)}, s{T+5} offen sc1
    buffer_load_dwordx2 v[34:35], v24, {srd(S_WS)}, s{T+14} offen sc1
    s_waitcnt lgkmcnt(0)
    v_readfirstlane_b32 s{S_T0}, v36
    v_readfirstlane_b32 s{S_T1}, v37
    s_xor_b32 s{S_T0}, s{S_T0}, 1
    s_bitcmp1_b32 s{S_T0}, 0
    s_cselect_b32 s{T+13}, 1, s{T+13}
    s_branch K_POLL1
K_POLL:
    buffer_load_dwordx2 v[32:33], v24, {srd(S_WS)}, s{T+5} offen sc1
    buffer_load_dwordx2 v[34:35], v24, {srd(S_WS)}, s{T+14} offen sc1
K_POLL1:
    s_waitcnt vmcnt(0)
    v_and_b32 v36, s{T+12}, v32
    v_and_b32 v37, s{T+12}, v34
    v_cmp_eq_u32 vcc, s{S_T1}, v33
    v_cmp_eq_u32 {sr(T+6,2)}, s{S_T1}, v35
    v_cmp_eq_u32 {sr(T+8,2)}, s{S_T0}, v36
    v_cmp_eq_u32 {sr(T+10,2)}, s{S_T0}, v37
    s_and_b64 vcc, vcc, {sr(T+6,2)}
    s_and_b64 {sr(T+8,2)}, {sr(T+8,2)}, {sr(T+10,2)}
    s_and_b64 vcc, vcc, {sr(T+8,2)}
    s_cmp_eq_u64 vcc, -1
    s_cbranch_scc1 K_GOT
    s_sleep {opt("--psleep", 2)}
    s_sub_u32 s{T+13}, s{T+13}, 1
    s_cmp_lg_u32 s{T+13}, 0
    s_cbranch_scc1 K_POLL
    v_mov_b32 v37, {L_FLAG}
    ds_write_b32 v37, v38
    v_mov_b32 v32, 0
    v_mov_b32 v34, 0
K_GOT:
    """)
    st(9)
    A(f"""
    v_bfe_u32 v40, v32, 10, 10
    v_bfe_u32 v41, v34, 10, 10
    v_and_b32 v32, 0x3ff, v32
    v_and_b32 v33, 0x3ff, v34
    v_cmp_lt_u32 {sr(T+6,2)}, v26, v40
    v_cmp_lt_u32 {sr(T+8,2)}, v26, v41
    v_add_u32 v32, v32, v28
    v_add_u32 v33, v33, v28
    v_cndmask_b32 v42, v31, v32, {sr(T+6,2)}
    v_cndmask_b32 v43, v31, v33, {sr(T+8,2)}
    v_lshlrev_b32 v36, 2, v42
    v_lshlrev_b32 v37, 2, v43
    v_lshlrev_b32 v42, 4, v42
    v_lshlrev_b32 v43, 4, v43
    buffer_load_dword v72, v36, {srd(S_WS)}, s{T+3} offen sc1
    buffer_load_dword v73, v37, {srd(S_WS)}, s{T+4} offen sc1
    buffer_load_dwordx4 v[64:67], v42, {srd(S_WS)}, 0 offen sc1
    buffer_load_dwordx4 v[68:71], v43, {srd(S_WS)}, s{T+2} offen sc1
    v_add_u32 v36, 8, v26
    v_add_u32 v33, {128*CHP//4}, v33
    v_mov_b32 v37, {L_FLAG+4}
    v_lshlrev_b32 v{V_WC}, 16, v{V_WC+2}
    v_and_b32 v{V_WC+1}, s{S_MSK}, v{V_WC+2}
    v_lshlrev_b32 v{V_WC+2}, 16, v{V_WC+3}
    v_and_b32 v{V_WC+3}, s{S_MSK}, v{V_WC+3}
    s_mov_b32 s{T}, 0x{f2u(-LOG2E):08x}
    v_mul_f32 v{V_WC}, s{T}, v{V_WC}
    v_mul_f32 v{V_WC+1}, s{T}, v{V_WC+1}
    v_mul_f32 v{V_WC+2}, s{T}, v{V_WC+2}
    v_mul_f32 v{V_WC+3}, s{T}, v{V_WC+3}
    """)
    for r in range(2):
        A(f"""
        v_cmpx_lt_u32 vcc, v36, v{40+r}
        s_cbranch_execz K_NOV{r}
        ds_add_rtn_u32 v39, v37, v38
        v_add_u32 v42, 8, v{32+r}
        s_waitcnt lgkmcnt(0)
        v_cmpx_gt_u32 vcc, {BLCAP*4}, v39
        ds_write_b32 v39, v42 offset:{L_BL}
K_NOV{r}:
        s_mov_b64 exec, -1
        """)
    A(f"""
    v_max_u32 v36, v40, v41
    v_mov_b32 v37, {L_FLAG}
    v_cmpx_lt_u32 vcc, {16 if not FORCE_SLOW else 0}, v36
    ds_write_b32 v37, v38
    s_mov_b64 exec, -1
    """)
    arrive(A, L_CL)
    A(f"""
    s_cmp_ge_u32 s{S_WAVE}, 7
    s_cbranch_scc1 K_INA
    ; ---- A / U job for tile = wave
    v_and_b32 v28, 31, v{V_LANE}
    v_lshrrev_b32 v29, 5, v{V_LANE}
    v_bfe_u32 v30, v28, 1, 3
    v_xor_b32 v30, v30, v29
    v_lshlrev_b32 v30, 4, v30
    v_lshl_add_u32 v30, v28, 7, v30
    s_lshl_b32 s{T+12}, s{S_HALF}, 6
    v_xor_b32 v30, s{T+12}, v30
    s_lshl_b32 s{T+12}, s{S_WAVE}, 12
    s_add_u32 s{T+12}, s{T+12}, {L_XST}
    v_add_u32 v30, s{T+12}, v30
    v_bfe_u32 v25, v{V_LANE}, 2, 2
    v_lshl_add_u32 v25, v29, 3, v25
    v_lshlrev_b32 v34, 6, v25
    v_bfe_u32 v35, v{V_LANE}, 4, 1
    v_lshl_add_u32 v34, v35, 5, v34
    v_and_b32 v36, 1, v{V_LANE}
    v_bfe_u32 v37, v{V_LANE}, 1, 1
    v_lshl_add_u32 v36, v36, 1, v37
    v_lshl_add_u32 v34, v36, 3, v34
    s_lshl_b32 s{T+12}, s{S_HALF}, 11
    v_add_u32 v34, s{T+12}, v34
    v_xor_b32 v35, 2048, v34
    v_add_u32 v34, {L_WAU}, v34
    v_add_u32 v35, {L_WAU}, v35
    v_mov_b32 v120, {L_CY}
    """)
    spin_lds(A, "K_SPY", 16)
    XA = 76
    Wu = [8, 12, 16, 40]
    for u in range(4):
        A(f"v_xor_b32 v31, {32*u}, v30")
        A(f"ds_read_b128 {vr(XA+4*u,4)}, v31")
        av = 34 if u < 2 else 35
        for tt in range(2):
            A(f"ds_read_b64_tr_b16 {vr(104+4*u+2*tt,2)}, v{av} offset:{((u&1)*16+4*tt)*64}")
        for tt in range(2):
            A(f"ds_read_b64_tr_b16 {vr(Wu[u]+2*tt,2)}, v{av} offset:{4096+((u&1)*16+4*tt)*64}")
    A(f"""
    s_lshl_b32 s{T+12}, s{S_WAVE}, 5
    v_add_u32 v28, s{T+12}, v28
    v_mul_u32_u24 v24, {AUS}, v28
    v_lshl_add_u32 v24, v29, 5, v24
    v_add_u32 v24, {L_AU}, v24
    """)
    for u in range(4):
        A(f"s_waitcnt lgkmcnt({15-5*u})")
        A(mfma(vr(48,16), vr(104+4*u,4), vr(XA+4*u,4), "0" if u == 0 else vr(48,16)))
    for u in range(4):
        A(mfma(vr(104,16), vr(Wu[u],4), vr(XA+4*u,4), "0" if u == 0 else vr(104,16)))
    A(f"""
    s_mov_b32 s{T+13}, 0x{f2u(-LOG2E):08x}
    v_mov_b32 v31, 0x{f2u(-float(SH)):08x}
    """)
    A(f"v_max3_f32 v32, |v48|, |v49|, |v50|")
    for i in range(3, 15, 2): A(f"v_max3_f32 v32, |v{48+i}|, |v{48+i+1}|, v32")
    A(f"v_max_f32 v32, |v63|, v32")
    for i in range(16): A(f"v_fma_f32 v{48+i}, v{48+i}, s{T+13}, v31")
    A(f"""
    s_mov_b32 s{T+12}, 0x05040100
    s_mov_b32 s{T+13}, 0x07060302
    v_mov_b32 v33, {L_FLAG}
    v_cmpx_gt_u32 vcc, 200, v28
    ds_write_b128 v24, v[48:51]
    ds_write_b128 v24, v[52:55] offset:16
    ds_write_b128 v24, v[56:59] offset:64
    ds_write_b128 v24, v[60:63] offset:80
    """)
    for i in range(8): A(f"v_cvt_pk_bf16_f32 v{8+i}, v{104+2*i}, v{105+2*i}")
    for i in range(8):
        A(f"v_perm_b32 v{104+2*i}, v{8+i}, v{XA+i}, s{T+12}")
        A(f"v_perm_b32 v{105+2*i}, v{8+i}, v{XA+i}, s{T+13}")
    A(f"""
    ds_write_b128 v24, v[104:107] offset:128
    ds_write_b128 v24, v[108:111] offset:144
    ds_write_b128 v24, v[112:115] offset:192
    ds_write_b128 v24, v[116:119] offset:208
    v_cmpx_gt_u32 vcc, {NPB}, v28
    v_cmpx_nge_f32 vcc, 0x{f2u(49.0):08x}, v32
    ds_write_b32 v33, v33
    s_mov_b64 exec, -1
    """)
    st(5)
    A(f"""
K_INA:
    v_mov_b32 v39, 2
    s_cmp_lt_u32 s{S_WAVE}, 14
    s_cbranch_scc1 K_INA2
    """)
    spin_lds(A, "K_SPL", 16)
    A(f"""
    v_mov_b32 v37, {L_FLAG+4}
    v_subrev_u32 v36, {14*64}, v0
    v_lshlrev_b32 v36, 2, v36
    ds_read_b32 v35, v37
    ds_read_b32 v42, v36 offset:{L_BL}
    v_mov_b32 v31, 0x10000000
    s_waitcnt lgkmcnt(0)
    v_cmp_lt_u32 {sr(T+10,2)}, v36, v35
    v_lshlrev_b32 v43, 4, v42
    v_lshlrev_b32 v42, 2, v42
    v_cndmask_b32 v43, v31, v43, {sr(T+10,2)}
    v_cndmask_b32 v42, v31, v42, {sr(T+10,2)}
    buffer_load_dword v74, v42, {srd(S_WS)}, s{T+3} offen sc1
    buffer_load_dwordx4 v[76:79], v43, {srd(S_WS)}, 0 offen sc1
    v_mov_b32 v37, {L_FLAG}
    v_cmpx_lt_u32 vcc, {BLCAP*4}, v35
    ds_write_b32 v37, v38
    s_mov_b64 exec, -1
    """)
    arrive(A, L_CL)
    A(f"""
    s_waitcnt vmcnt(4)
    s_branch K_INB
K_INA2:
    s_waitcnt vmcnt(2)
K_INB:
    """)
    st(10)
    def ins_atom(locw, a0):
        for k in range(4):
            A(f"v_lshlrev_b32_sdwa v{a0+k}, v39, v{locw} dst_sel:DWORD dst_unused:UNUSED_PAD src0_sel:DWORD src1_sel:BYTE_{k}")
            A(f"ds_add_rtn_u32 v{a0+k}, v{a0+k}, v38")
    def ins_write(a0, rec):
        for k in range(4):
            A(f"ds_write_b32 v{a0+k}, v{rec+k}")
    A(f"s_mov_b64 exec, {sr(T+6,2)}")
    ins_atom(72, 80)
    A(f"s_mov_b64 exec, {sr(T+8,2)}")
    ins_atom(73, 84)
    A(f"""
    s_cmp_lt_u32 s{S_WAVE}, 14
    s_cbranch_scc1 K_INC
    s_mov_b64 exec, {sr(T+10,2)}
    s_waitcnt vmcnt(0)
    """)
    ins_atom(74, 88)
    A("s_waitcnt lgkmcnt(0)")
    ins_write(88, 76)
    A(f"""
K_INC:
    s_mov_b64 exec, {sr(T+8,2)}
    s_waitcnt vmcnt(0) lgkmcnt(0)
    """)
    ins_write(84, 68)
    A(f"s_mov_b64 exec, {sr(T+6,2)}")
    ins_write(80, 64)
    A(f"""
    s_mov_b64 exec, -1
    s_cmp_ge_u32 s{S_WAVE}, 13
    s_cbranch_scc1 K_IND
    v_mov_b32 v120, {L_CL}
    v_min_u32 v30, 783, v0
    v_lshlrev_b32 v30, 7, v30
    """)
    spin_lds(A, "K_SPM", 18)
    A(f"""
    buffer_load_ubyte v{V_DUMMY}, v30, {srd(S_WS)}, s{S_PF} offen sc1
K_IND:
    s_barrier
    """)
    st(11)
    A(f"""
    s_cmp_ge_u32 s{S_WAVE}, 4
    s_cbranch_scc1 K_S1
    s_setprio 3
    v_lshlrev_b32 v28, 2, v0
    ds_read_b32 v29, v28
    v_mul_u32_u24 v30, {LS}, v0
    v_add_u32 v30, {L_LIST-4}, v30
    v_cmp_gt_u32 vcc, 200, v0
    s_mov_b64 {sr(T+6,2)}, vcc
    v_cmp_gt_u32 vcc, {NPB}, v0
    v_mov_b32 v37, {L_FLAG}
    v_mov_b32 v36, 1
    s_waitcnt lgkmcnt(0)
    v_sub_u32 v29, v29, v30
    v_lshrrev_b32 v29, 3, v29
    v_max_u32 v31, 1, v29
    v_min_u32 v31, 63, v31
    v_cndmask_b32 v31, 0, v31, vcc
    v_lshlrev_b32 v32, 2, v31
    v_sub_u32 v32, 252, v32
    s_mov_b64 exec, {sr(T+6,2)}
    ds_add_rtn_u32 v33, v32, v36 offset:{L_H2}
    v_cmpx_lt_u32 vcc, {CAP//2}, v29
    ds_write_b32 v37, v38
    s_mov_b64 exec, -1
    v_lshlrev_b32 v34, 2, v{V_LANE}
    s_waitcnt lgkmcnt(0)
K_S1:
    s_barrier
    s_cmp_ge_u32 s{S_WAVE}, 4
    s_cbranch_scc1 K_S2
    ds_read_b32 v35, v34 offset:{L_H2}
    s_waitcnt lgkmcnt(0)
    v_mov_b32 v36, v35
    """)
    scan(A, 36)
    A(f"""
    v_sub_u32 v36, v36, v35
    ds_bpermute_b32 v36, v32, v36
    s_waitcnt lgkmcnt(0)
    v_add_u32 v33, v33, v36
    v_lshlrev_b32 v36, 2, v33
    v_and_b32 v35, 7, v33
    v_lshrrev_b32 v33, 1, v33
    s_mov_b64 exec, {sr(T+6,2)}
    ds_write_b32 v36, v0 offset:{L_ORD}
    v_cmpx_eq_u32 vcc, 0, v35
    ds_write_b32 v33, v31 offset:{L_LG}
    s_mov_b64 exec, -1
K_S2:
    v_and_b32 v34, 31, v{V_LANE}
    v_lshlrev_b32 v34, 2, v34
    v_mov_b32 v37, {L_FLAG}
    s_and_b32 s{S_WP}, s{S_WAVE}, 3
    s_lshl_b32 s{S_WP}, s{S_WP}, 2
    s_lshr_b32 s{T}, s{S_WAVE}, 2
    s_add_u32 s{S_WP}, s{S_WP}, s{T}
    s_waitcnt lgkmcnt(0)
    s_barrier
    """)
    st(12)
    A(f"""
    s_setprio 3
    ds_read_b32 v35, v34 offset:{L_LG}
    ds_read_b32 v38, v37
    s_waitcnt lgkmcnt(0)
    v_mov_b32 v36, v35
    v_readfirstlane_b32 s{T}, v38
    s_cmp_lg_u32 s{T}, 0
    s_cbranch_scc1 K_SLOW
    """)
    scan(A, 36, upto=32)
    A(f"""
    v_readlane_b32 s{S_TT}, v36, 31
    s_mul_i32 s{T+1}, s{S_WP}, s{S_TT}
    s_add_u32 s{T+2}, s{T+1}, s{S_TT}
    s_lshr_b32 s{T+1}, s{T+1}, 4
    s_lshr_b32 s{T+2}, s{T+2}, 4
    s_sub_u32 s{S_N1}, s{T+2}, s{T+1}
    s_sub_u32 s{S_N1}, s{S_N1}, 1
    s_min_u32 s{S_N1}, s{S_N1}, 58
    v_cmp_ge_u32 vcc, s{T+1}, v36
    s_bcnt1_i32_b32 s{S_GC}, vcc_lo
    s_lshl_b32 s{T+3}, s{S_GC}, 5
    v_add_u32 v{V_OA}, s{T+3}, v{V_OA}
    ds_read_b32 v{V_LC}, v{V_OA} offset:{L_ORD}
    ds_read_b32 v{V_LN}, v{V_OA} offset:{L_ORD+32}
    v_sub_u32 v35, v36, v35
    v_readlane_b32 s{S_GS}, v35, s{S_GC}
    s_mov_b32 s{S_GF}, s{S_GC}
    v_subrev_u32 v36, s{T+1}, v36
    v_subrev_u32 v36, 1, v36
    v_cmp_gt_u32 vcc, 64, v36
    v_mov_b32 v40, 1
    v_mov_b32 v41, 0
    v_lshlrev_b64 v[40:41], v36, v[40:41]
    v_cndmask_b32 v40, 0, v40, vcc
    v_cndmask_b32 v41, 0, v41, vcc
    """)
    for sh in (1, 2, 4, 8):
        for v in (40, 41):
            A(f"v_or_b32_dpp v{v}, v{v}, v{v} row_shr:{sh} row_mask:0xf bank_mask:0xf")
    for v in (40, 41):
        A(f"v_or_b32_dpp v{v}, v{v}, v{v} row_bcast:15 row_mask:0xa bank_mask:0xf")
    A(f"""
    v_readlane_b32 s{S_FL}, v40, 31
    v_readlane_b32 s{S_FL+1}, v41, 31
    s_sub_u32 s{T+4}, s{T+1}, s{S_GS}
    s_cmp_lg_u32 s{T+4}, 0
    s_cselect_b32 s{S_HEAD}, 1, 0
    s_lshl_b32 s{T+4}, s{T+4}, 3
    s_add_u32 s{T+4}, s{T+4}, {L_LIST}
    s_movk_i32 s{T+5}, {LS}
    v_mov_b32 v36, s{T+4}
    s_waitcnt lgkmcnt(0)
    v_mad_u32_u24 v{V_P}, v{V_LC}, s{T+5}, v36
    v_mov_b32 v{V_NB}, v{V_LN}
    """)
    for j in range(R):
        for x in rd_rec(0, j): A(x)
        if j == 0:
            A(f"""
            s_movk_i32 s{T+5}, {AUS}
            v_mad_u32_u24 v36, v{V_LC}, s{T+5}, v{V_AUC}
            ds_read_b128 {vr(V_EA,4)}, v36
            ds_read_b128 {vr(V_UX,4)}, v36 offset:128
            v_mad_u32_u24 v36, v{V_LN}, s{T+5}, v{V_AUC}
            ds_read_b128 {vr(V_AN,4)}, v36
            """)
        A(f"""
        v_add_u32 v{V_P}, 8, v{V_P}
        s_bitcmp1_b64 {sr(S_FL,2)}, {j}
        s_cbranch_scc0 K_PR{j}
        s_mov_b32 s{S_U}, -1
        s_call_b64 {sr(S_RET2,2)}, K_FETCH
K_PR{j}:
        """)
        if j < D:
            A("s_waitcnt lgkmcnt(0)")
            for x in ld_rows(j): A(x)
    A(f"""
    s_lshr_b64 {sr(S_FF,2)}, {sr(S_FL,2)}, {R}
    s_or_b64 {sr(S_EV,2)}, {sr(S_FL,2)}, {sr(S_FF,2)}
    s_lshl_b64 {sr(T,2)}, 1, s{S_N1}
    s_or_b64 {sr(S_EV,2)}, {sr(S_EV,2)}, {sr(T,2)}
    s_lshr_b64 {sr(T+2,2)}, {sr(T,2)}, 2
    s_or_b64 {sr(S_EV,2)}, {sr(S_EV,2)}, {sr(T+2,2)}
    s_lshr_b64 {sr(T+2,2)}, {sr(T,2)}, 4
    s_or_b64 {sr(S_EV,2)}, {sr(S_EV,2)}, {sr(T+2,2)}
    s_lshr_b64 {sr(T+2,2)}, {sr(T,2)}, 7
    s_or_b64 {sr(S_EV,2)}, {sr(S_EV,2)}, {sr(T+2,2)}
    s_mov_b64 {sr(S_EVC,2)}, {sr(S_EV,2)}
    """)
    for i in range(4): A(f"v_exp_f32 v{V_EA+i}, v{V_EA+i}")
    for i in range(8): A(f"v_mov_b32 v{V_NUM+i}, 0")
    st(13)
    A(".p2align 6")
    A.label("K_LOOP")
    for u in range(U):
        d, r = u % D, u % R
        A(f"s_waitcnt vmcnt({2*(D-1)}) lgkmcnt(0)")
        for x in c_head(d, r) + ld_rows(d) + rd_rec(8*u, r) + c_rest(): A(x)
        A(f"s_bitcmp1_b64 {sr(S_EV,2)}, {u}")
        A(f"s_cbranch_scc1 K_EV{u}")
        A.label(f"K_RT{u}")
    A(f"""
    v_add_u32 v{V_P}, {8*U}, v{V_P}
    s_lshr_b64 {sr(S_EV,2)}, {sr(S_EV,2)}, {U}
    s_cbranch_scc1 K_LOOP
    s_branch K_TAIL
    """)
    for u in range(U):
        A(f"""
K_EV{u}:
        s_mov_b32 s{S_U}, {u}
        s_call_b64 {sr(S_RET,2)}, K_EVENT
        s_branch K_RT{u}
        """)
    A(f"""
K_FETCH:
    s_add_u32 s{S_GF}, s{S_GF}, 1
    s_lshl_b32 s{T}, s{S_U}, 3
    s_sub_u32 s{T}, {L_LIST-8}, s{T}
    v_mov_b32 v{V_X0}, s{T}
    s_movk_i32 s{T+1}, {LS}
    v_mad_u32_u24 v{V_P}, v{V_NB}, s{T+1}, v{V_X0}
    s_sub_u32 s{T}, s{S_GF}, s{S_GC}
    s_lshl_b32 s{T}, s{T}, 5
    v_add_u32 v{V_X0}, s{T}, v{V_OA}
    ds_read_b32 v{V_NB}, v{V_X0} offset:{L_ORD+32}
    s_setpc_b64 {sr(S_RET2,2)}
K_EVENT:
    s_ff1_i32_b64 s{T+4}, {sr(S_EVC,2)}
    s_bitset0_b64 {sr(S_EVC,2)}, s{T+4}
    s_bitcmp1_b64 {sr(S_FF,2)}, s{T+4}
    s_cbranch_scc0 K_E1
    s_call_b64 {sr(S_RET2,2)}, K_FETCH
K_E1:
    s_bitcmp1_b64 {sr(S_FL,2)}, s{T+4}
    s_cbranch_scc0 K_E3
    s_cmp_eq_u32 s{S_HEAD}, 1
    s_cbranch_scc0 K_E2
    s_mov_b32 s{S_HEAD}, 2
    """)
    for i in range(8): A(f"v_mov_b32 v{V_HD+i}, v{V_NUM+i}")
    for i in range(4): A(f"v_mov_b32 v{V_HUX+i}, v{V_UX+i}")
    A(f"v_mov_b32 v{V_HL}, v{V_LC}")
    A("s_branch K_E2B")
    A.label("K_E2")
    finalize(A, V_NUM, V_DEN, V_UX, V_LC)
    A(f"""
K_E2B:
    s_cmp_eq_u32 s{T+4}, s{S_N1}
    s_cbranch_scc1 K_DONE
    s_add_u32 s{S_GC}, s{S_GC}, 1
    v_add_u32 v{V_OA}, 32, v{V_OA}
    v_mov_b32 v{V_LC}, v{V_LN}
    ds_read_b32 v{V_LN}, v{V_OA} offset:{L_ORD+32}
    s_movk_i32 s{T+1}, {AUS}
    v_mad_u32_u24 v{V_X0}, v{V_LC}, s{T+1}, v{V_AUC}
    ds_read_b128 {vr(V_UX,4)}, v{V_X0} offset:128
    """)
    for i in range(4): A(f"v_exp_f32 v{V_EA+i}, v{V_AN+i}")
    for i in range(8): A(f"v_mov_b32 v{V_NUM+i}, 0")
    A(f"""
    s_waitcnt lgkmcnt(1)
    v_mad_u32_u24 v{V_X0}, v{V_LN}, s{T+1}, v{V_AUC}
    ds_read_b128 {vr(V_AN,4)}, v{V_X0}
K_E3:
    s_sub_u32 s{T}, s{S_N1}, s{T+4}
    s_cmp_eq_u32 s{T}, 0
    s_cbranch_scc1 K_TAIL
    s_cmp_gt_u32 s{T}, 7
    s_cbranch_scc1 K_E4
    s_setprio 2
    s_cmp_gt_u32 s{T}, 4
    s_cbranch_scc1 K_E4
    s_setprio 1
    s_cmp_gt_u32 s{T}, 2
    s_cbranch_scc1 K_E4
    s_setprio 0
K_E4:
    s_setpc_b64 {sr(S_RET,2)}
K_TAIL:
    s_lshl_b32 s{T}, s{S_WP}, 11
    s_add_u32 s{T}, s{T}, {L_SIDE}
    v_lshl_add_u32 v{V_X0}, v{V_LANE}, 4, s{T}
    ds_write_b128 v{V_X0}, {vr(V_NUM,4)}
    ds_write_b128 v{V_X0}, {vr(V_DEN,4)} offset:1024
K_DONE:
    s_waitcnt lgkmcnt(0)
    """)
    st(14)
    A(f"""
    s_barrier
    s_cmp_eq_u32 s{S_HEAD}, 2
    s_cbranch_scc0 K_FIN
    v_lshlrev_b32 v{V_X1}, 4, v{V_LANE}
K_HL:
    s_sub_u32 s{S_WP}, s{S_WP}, 1
    s_lshl_b32 s{T}, s{S_WP}, 11
    s_add_u32 s{T}, s{T}, {L_SIDE}
    v_add_u32 v{V_X0}, s{T}, v{V_X1}
    ds_read_b128 {vr(V_NUM,4)}, v{V_X0}
    ds_read_b128 {vr(V_DEN,4)}, v{V_X0} offset:1024
    s_mul_i32 s{T}, s{S_WP}, s{S_TT}
    s_lshr_b32 s{T}, s{T}, 4
    s_waitcnt lgkmcnt(0)
    """)
    for k in range(4): A(f"v_pk_add_f32 {vr(V_HD+2*k,2)}, {vr(V_HD+2*k,2)}, {vr(V_NUM+2*k,2)}")
    A(f"""
    s_cmp_gt_u32 s{T}, s{S_GS}
    s_cselect_b32 s{T}, s{S_WP}, 0
    s_cmp_gt_i32 s{T}, 0
    s_cbranch_scc1 K_HL
    """)
    finalize(A, V_HD, V_HD+4, V_HUX, V_HL)
    A.label("K_FIN")
    if diag:
        A("s_waitcnt vmcnt(0)")
        st(15)
        A(f"""
        s_lshl_b32 s{T}, s2, 4
        s_add_u32 s{T}, s{T}, s{S_WAVE}
        s_lshl_b32 s{T}, s{T}, 7
        s_add_u32 s{T}, s{T}, {WS_STAMP}
        v_lshlrev_b32 v{V_X0}, 2, v{V_LANE}
        v_cmpx_gt_u32 vcc, 32, v{V_LANE}
        buffer_store_dword v{V_STAMP}, v{V_X0}, {srd(S_WS)}, s{T} offen
        """)
        if "--persist" in sys.argv:
            A(f"""
            s_mov_b64 exec, -1
            s_or_b32 s{T}, s2, s{S_WAVE}
            s_cmp_lg_u32 s{T}, 0
            s_cbranch_scc1 K_END
            v_mov_b32 v30, 0
            s_mov_b32 s{T+3}, {WS_EP+256}
            buffer_load_dword v31, v30, {srd(S_WS)}, s{T+3} offen sc1
            s_waitcnt vmcnt(0)
            v_readfirstlane_b32 s{T+4}, v31
            v_mov_b32 v31, 0x12345678
            buffer_store_dword v31, v30, {srd(S_WS)}, s{T+3} offen sc1
            v_readlane_b32 s{T}, v{V_STAMP}, 16
            s_cmp_eq_u32 s{T+4}, 0x12345678
            s_movk_i32 s{T+5}, 6000
            s_cselect_b32 s{T+1}, 10000, s{T+5}
K_DSP2:
            s_sleep 1
            s_memrealtime s[100:101]
            s_waitcnt lgkmcnt(0)
            s_sub_u32 s{T+2}, s100, s{T}
            s_cmp_lt_u32 s{T+2}, s{T+1}
            s_cbranch_scc1 K_DSP2
            """)
        if "--spink" in sys.argv:
            k = opt("--spink", 0); w = opt("--spinw", 7)
            A(f"""
            s_mov_b64 exec, -1
            s_cmp_lg_u32 s{S_WAVE}, {w}
            s_cbranch_scc1 K_END
            v_readlane_b32 s{T}, v{V_STAMP}, 16
            v_readlane_b32 s{T+1}, v{V_STAMP}, {16+k}
            s_sub_u32 s{T+1}, s{T+1}, s{T}
            s_mul_i32 s{T+1}, s{T+1}, 10
            s_add_u32 s{T+1}, s{T+1}, 6000
            s_min_u32 s{T+1}, s{T+1}, 100000
K_DSP:
            s_sleep 1
            s_memrealtime s[100:101]
            s_waitcnt lgkmcnt(0)
            s_sub_u32 s{T+2}, s100, s{T}
            s_cmp_lt_u32 s{T+2}, s{T+1}
            s_cbranch_scc1 K_DSP
            """)
        if "--dbg" in sys.argv:
            mk_srd(A, S_B, KDBG, 256)
            sel = opt("--dbgwg", -1)
            if sel >= 0:
                A(f"s_cmp_lg_u32 s2, {sel}")
                A("s_cbranch_scc1 K_END")
            A(f"""
            s_mov_b64 exec, -1
            v_readlane_b32 s{T}, v{V_STAMP}, 16
            s_not_b32 s{T}, s{T}
            v_writelane_b32 v{V_STAMP}, s{T}, 20
            v_subrev_u32 v{V_X0}, 64, v{V_X0}
            s_mov_b32 exec_lo, 0xfffe0000
            s_mov_b32 exec_hi, 0
            buffer_atomic_umax v{V_STAMP}, v{V_X0}, {srd(S_B)}, 0 offen sc1
            """)
    A("""
K_END:
    s_endpgm
    """)
    WQ = 64
    A(f"""
K_SLOW:
    s_setprio 0
    s_waitcnt vmcnt(0)
    v_mov_b32 v36, 0
    v_mov_b32 v37, 0
    v_mov_b32 v38, 0
    v_mov_b32 v39, 0
    v_lshlrev_b32 v29, 4, v0
    v_add_u32 v29, {L_LIST}, v29
    ds_write_b128 v29, v[36:39]
    ds_write_b128 v29, v[36:39] offset:16384
    ds_write_b128 v29, v[36:39] offset:32768
    ds_write_b128 v29, v[36:39] offset:49152
    v_and_b32 v28, 31, v{V_LANE}
    v_lshlrev_b32 v30, 1, v28
    s_lshl_b32 s{T}, s{S_HALF}, 6
    """)
    mk_srd(A, S_A, KWB, 8192)
    mk_srd(A, S_B, KWV, 8192)
    A(f"s_mov_b32 s{T+1}, s{T}")
    for k2 in range(32):
        A(f"""
        s_mov_b32 exec_hi, 0
        buffer_load_ushort v32, v30, {srd(S_A)}, s{T+1} offen
        buffer_load_ushort v33, v30, {srd(S_A)}, s{T+1} offen offset:128
        s_not_b64 exec, exec
        buffer_load_ushort v32, v30, {srd(S_B)}, s{T+1} offen
        buffer_load_ushort v33, v30, {srd(S_B)}, s{T+1} offen offset:128
        s_mov_b64 exec, -1
        s_add_u32 s{T+1}, s{T+1}, 256
        s_waitcnt vmcnt(0)
        v_lshl_or_b32 v{WQ+k2}, v33, 16, v32
        """)
    mk_srd(A, S_A, KWC, 128)
    A(f"""
    buffer_load_ushort v34, v30, {srd(S_A)}, s{T} offen
    v_lshlrev_b32 v30, 2, v28
    v_lshrrev_b32 v31, 5, v{V_LANE}
    v_xor_b32 v31, 1, v31
    v_lshl_add_u32 v35, v31, 7, v30
    v_add_u32 v35, {L_LIST}, v35
    v_add_u32 v30, {L_AU}, v30
    v_lshlrev_b32 v31, 2, v28
    s_waitcnt vmcnt(0) lgkmcnt(0)
    v_lshlrev_b32 v34, 16, v34
    v_mul_f32 v34, 0x{f2u(-LOG2E):08x}, v34
    """)
    mk_srd(A, S_A, KDST, E*4)
    mk_srd(A, S_B, KSRC, E*4)
    mk_srd(A, S_TAB, KE, E*2)
    XS = 34
    A(f"""
    s_barrier
    v_mov_b32 v36, v0
    s_mov_b32 s{S_T0}, {E}
K_SB:
    v_lshlrev_b32 v37, 2, v36
    v_lshlrev_b32 v38, 1, v36
    buffer_load_dword v39, v37, {srd(S_A)}, 0 offen
    buffer_load_dword v40, v37, {srd(S_B)}, 0 offen
    buffer_load_ushort v41, v38, {srd(S_TAB)}, 0 offen
    v_cmp_gt_u32 {sr(52,2)}, s{S_T0}, v36
    s_waitcnt vmcnt(0)
    v_subrev_u32 v39, s{S_NB}, v39
    v_cmp_gt_u32 vcc, {NPB}, v39
    s_and_b64 {sr(52,2)}, {sr(52,2)}, vcc
K_SE:
    s_cmp_eq_u64 {sr(52,2)}, 0
    s_cbranch_scc1 K_SN
    s_ff1_i32_b64 s34, {sr(52,2)}
    s_bitset0_b64 {sr(52,2)}, s34
    v_readlane_b32 s35, v40, s34
    v_readlane_b32 s{S_T1}, v39, s34
    v_readlane_b32 s{S_PF}, v41, s34
    s_min_u32 s35, s35, {N-1}
    s_lshl_b32 s35, s35, 7
    s_load_dwordx16 s[36:51], {sr(KX,2)}, s35
    s_add_u32 s35, s35, 64
    s_load_dwordx16 s[60:75], {sr(KX,2)}, s35
    s_mul_i32 s34, s{S_T1}, {AUS}
    v_add_u32 v42, s34, v30
    ds_read_b32 v43, v42
    s_lshl_b32 s{S_PF}, s{S_PF}, 16
    s_lshl_b32 s{S_T1}, s{S_T1}, 8
    v_mov_b32 v48, 0
    v_mov_b32 v49, 0
    s_waitcnt lgkmcnt(0)
    """)
    for k2 in range(16):
        A(f"v_dot2_f32_bf16 v48, s{36+k2}, v{WQ+k2}, v48")
        A(f"v_dot2_f32_bf16 v49, s{60+k2}, v{WQ+16+k2}, v49")
    A(f"""
    s_nop 3
    v_add_f32 v48, v48, v49
    v_fma_f32 v43, s{S_PF}, v34, v43
    v_mul_f32 v49, 0x{f2u(-LOG2E):08x}, v48
    v_add_f32 v49, v49, v43
    v_exp_f32 v49, v49
    v_add_f32 v49, s{S_C}, v49
    v_rcp_f32 v49, v49
    s_nop 1
    ds_bpermute_b32 v49, v31, v49
    v_cmp_gt_u32 vcc, 32, v{V_LANE}
    v_cndmask_b32 v48, v48, 1.0, vcc
    v_add_u32 v42, s{S_T1}, v35
    s_waitcnt lgkmcnt(0)
    v_mul_f32 v49, v49, v48
    ds_add_f32 v42, v49
    s_branch K_SE
K_SN:
    v_add_u32 v36, 1024, v36
    v_readfirstlane_b32 s34, v36
    s_cmp_lt_u32 s34, {E}
    s_cbranch_scc1 K_SB
    s_mov_b32 s{S_MSK}, 0xffff0000
    s_movk_i32 s34, {AUS}
    s_waitcnt lgkmcnt(0)
    s_barrier
    v_lshrrev_b32 v{V_LC}, 3, v0
    v_add_u32 v{V_X1}, {L_LIST}, v{V_I0+1}
    """)
    for it in range(2):
        A(f"""
        v_min_u32 v36, 199, v{V_LC}
        v_mad_u32_u24 v37, v36, s34, v{V_AUC}
        ds_read_b128 {vr(V_UX,4)}, v37 offset:128
        v_lshl_add_u32 v39, v36, 8, v{V_X1}
        ds_read_b128 {vr(V_NUM,4)}, v39
        ds_read_b128 {vr(V_DEN,4)}, v39 offset:128
        s_waitcnt lgkmcnt(0)
        """)
        finalize(A, V_NUM, V_DEN, V_UX, V_LC)
        A(f"v_add_u32 v{V_LC}, 128, v{V_LC}")
    A("s_endpgm")

HEADER = open(f"cdna_kernels/{NAME}.s.ref").read().split("; Override")[0]

def build(diag=False):
    A = Asm()
    out = HEADER
    out += f"; @launch grid=(256,1,1) block=(1024,1,1) lds={LDS}\n"
    out += '.amdgcn_target "amdgcn-amd-amdhsa--gfx950"\n.text\n'
    out += f".globl {NAME}_kernel\n.p2align 8\n.type {NAME}_kernel,@function\n"
    gen(A, diag)
    out += A.text()
    out += f""".section .rodata,"a"
.p2align 6
.amdhsa_kernel {NAME}_kernel
  .amdhsa_next_free_vgpr 128
  .amdhsa_next_free_sgpr 102
  .amdhsa_accum_offset 128
  .amdhsa_group_segment_fixed_size 0
  .amdhsa_kernarg_size 96
  .amdhsa_user_sgpr_count 2
  .amdhsa_user_sgpr_kernarg_segment_ptr 1
  .amdhsa_system_sgpr_workgroup_id_x 1
  .amdhsa_float_denorm_mode_32 3
.end_amdhsa_kernel
"""
    return out

if __name__ == "__main__":
    diag = "--diag" in sys.argv
    path = sys.argv[1] if len(sys.argv) > 1 and not sys.argv[1].startswith("--") else f"cdna_kernels/{NAME}.s"
    open(path, "w").write(build(diag))
    print("wrote", path, "LDS", LDS)
```

```python
import sys, struct
sys.path.insert(0, "gen")
import hazard
VERBOSE = "--verbose" in sys.argv
def opt(name, default):
    if name in sys.argv: return type(default)(sys.argv[sys.argv.index(name)+1])
    return default

NAME = "standalone__edge_featured_mpnn_gatedgcn__graph"
N, E = 25000, 800000
CH = 3128
NT = CH // 8
NPB = 196
CHP = 3584
WS_REC  = 0
WS_LOC  = 0x380000
WS_OFFS = 0x460000
WS_TF   = 0x4A0000
WS_EP   = 0x4A1000
WS_STAMP = 0x4B0000
WS_TAB  = 0x600000
HS      = 0x320000
PADROW  = 25088
WS_SIZE = WS_TAB + 2*HS
assert 256*CHP*4 <= WS_LOC and WS_LOC + 256*CHP <= WS_OFFS
L_CNT, L_H2, L_LG, L_FLAG, L_ORD, L_BL = 0, 1024, 1280, 1408, 1536, 2560
L_C2, L_C3, L_CX, L_CP, L_CY, L_CE, L_CL = L_FLAG+8, L_FLAG+12, L_FLAG+16, L_FLAG+20, L_FLAG+24, L_FLAG+28, L_FLAG+32
L_TAG = L_FLAG+40
L_HIST, L_OFF, L_LOC = 3072, 3584, 4096
L_AU   = L_LOC + CHP
AUS    = 272
L_WBV  = L_AU
L_REC  = L_AU + 16384
L_TST  = L_AU + 16384 + CHP*4
L_SIDE = L_AU + 200*AUS
L_XST  = L_SIDE
L_WAU  = L_SIDE + 25600
L_LIST = L_SIDE + 33792
LS     = 296
CAP    = 74
LDS    = L_LIST + 200*LS
assert LDS <= 163840 and L_SIDE % 128 == 0, (LDS, L_SIDE)
BLCAP  = 128
SH = 48
LOG2E = 1.4426950408889634
D = opt("--depth", 2)
R = D + 1
U = D * R
SPIN = opt("--spin", 30000)
FORCE_SLOW = "--slow" in sys.argv
PFA = opt("--pfa", 0)
PFAN = opt("--pfan", 1)
ENT = " nt" if "--nt" in sys.argv else ""
XNT = " nt" if "--xnt" in sys.argv else ""
RPF = "--rpf" in sys.argv
RS = opt("--recst", "sc1").replace("+", " ")
WSOFF = opt("--wsoff", 0)
GLD = opt("--gld", "sc1").replace("+", " ")

def f2u(x): return struct.unpack("<I", struct.pack("<f", x))[0]

class Asm:
    def __init__(self): self.l = []
    def __call__(self, s):
        for ln in s.strip("\n").split("\n"):
            t = ln.strip()
            if not t: continue
            self.l.append(t if t.endswith(":") else "    " + t)
    def label(self, n): self.l.append(n + ":")
    def text(self): return "\n".join(hazard.fix(self.l, VERBOSE)) + "\n"

def vr(a, n=1): return f"v{a}" if n == 1 else f"v[{a}:{a+n-1}]"
def sr(a, n=1): return f"s{a}" if n == 1 else f"s[{a}:{a+n-1}]"
def srd(b): return f"s[{b}:{b+3}]"
def mfma(d, a, b, c): return f"v_mfma_f32_32x32x16_bf16 {d}, {a}, {b}, {c}"

def scan(A, v, op="v_add_u32", upto=64):
    for sh in (1, 2, 4, 8):
        A(f"{op}_dpp v{v}, v{v}, v{v} row_shr:{sh} row_mask:0xf bank_mask:0xf")
    if upto >= 32:
        A(f"{op}_dpp v{v}, v{v}, v{v} row_bcast:15 row_mask:0xa bank_mask:0xf")
    if upto >= 64:
        A(f"{op}_dpp v{v}, v{v}, v{v} row_bcast:31 row_mask:0xc bank_mask:0xf")

V_LANE, V_P, V_NB, V_OA = 1, 2, 3, 4
V_AUC, V_OUTC = 5, 6
V_LC = 7
V_NUM, V_DEN = 8, 12
V_EA, V_WC = 16, 20
V_T, V_V, V_M = 24, 32, 40
V_I0, V_I1 = 44, 46
V_S, V_Q = 48, 52
V_UX = 56
V_LN = 60
V_HL = 61
V_X0, V_X1 = 62, 63
V_DAT = 64
V_E = 96
V_HD = 104
V_HUX = 112
V_AN = 116
V_DUMMY = 126
V_STAMP = 127
S_WS, S_TAB, S_OUT, S_X = 4, 8, 12, 16
S_A, S_B = 20, 24
S_C = 28
S_BIN, S_HALF, S_WAVE, S_WP = 30, 31, 32, 33
S_EV, S_EVC, S_FL, S_FF = 34, 36, 38, 40
S_N1, S_GC, S_GF, S_HEAD, S_U, S_TT, S_GS = 42, 43, 44, 45, 46, 47, 48
S_MSK = 49
S_RET, S_RET2 = 50, 52
S_EPS = 54
S_T0, S_T1 = 56, 57
S_PF = 58
S_NB = 59
S_T = 60
S_K = 76
KX, KE, KSRC, KDST, KWA, KWB, KWC, KWU, KWV, KOUT, KDBG, KWS = [S_K + 2*i for i in range(12)]

def stamp(A, idx, on):
    if on:
        A(f"s_memtime s[100:101]")
        A("s_waitcnt lgkmcnt(0)")
        A(f"v_writelane_b32 v{V_STAMP}, s100, {idx}")
        A(f"s_memrealtime s[100:101]")
        A("s_waitcnt lgkmcnt(0)")
        A(f"v_writelane_b32 v{V_STAMP}, s100, {idx+16}")

def mk_srd(A, d, ptr, nbytes):
    A(f"s_mov_b32 s{d}, s{ptr}")
    A(f"s_mov_b32 s{d+1}, s{ptr+1}")
    A(f"s_mov_b32 s{d+2}, {nbytes}")
    A(f"s_mov_b32 s{d+3}, 0x20000")

def ld_rows(d):
    b = V_DAT + 8*d
    return [f"buffer_load_dwordx4 {vr(b,4)}, {vr(V_I0,2)}, {srd(S_TAB)}, 0 idxen offen {GLD}",
            f"buffer_load_dwordx4 {vr(b+4,4)}, {vr(V_I1,2)}, {srd(S_TAB)}, 0 idxen offen {GLD}"]
def rd_rec(off, r):
    return [f"ds_read_u16 v{V_I0}, v{V_P} offset:{off}",
            f"ds_read_u16 v{V_I1}, v{V_P} offset:{off+4}",
            f"ds_read_u16_d16_hi v{V_E+2*r}, v{V_P} offset:{off+2}",
            f"ds_read_u16_d16_hi v{V_E+2*r+1}, v{V_P} offset:{off+6}"]
def c_head(d, r):
    b = V_DAT + 8*d; e = V_E + 2*r
    o = []
    for h in range(2):
        for k in range(2):
            sel = "op_sel_hi:[0,1,1]" if h == 0 else "op_sel:[1,0,0] op_sel_hi:[1,1,1]"
            o.append(f"v_pk_fma_f32 {vr(V_T+4*h+2*k,2)}, {vr(e,2)}, {vr(V_WC+2*k,2)}, {vr(b+4*h+2*k,2)} {sel}")
    for i in range(4): o.append(f"v_lshlrev_b64 {vr(V_V+2*i,2)}, 16, {vr(b+2*i,2)}")
    return o
def c_rest():
    o = []
    T, V, M, S, Q = V_T, V_V, V_M, V_S, V_Q
    for i in range(8): o.append(f"v_exp_f32 v{T+i}, v{T+i}")
    for i in range(4): o.append(f"v_pk_fma_f32 {vr(T+2*i,2)}, {vr(T+2*i,2)}, {vr(V_EA+2*(i%2),2)}, {sr(S_C,2)} clamp")
    for k in range(2): o.append(f"v_pk_mul_f32 {vr(M+2*k,2)}, {vr(T+2*k,2)}, {vr(T+4+2*k,2)}")
    for i in range(4): o.append(f"v_rcp_f32 v{M+i}, v{M+i}")
    for k in range(2): o.append(f"v_pk_add_f32 {vr(S+2*k,2)}, {vr(T+2*k,2)}, {vr(T+4+2*k,2)}")
    for k in range(2): o.append(f"v_pk_mul_f32 {vr(Q+2*k,2)}, {vr(V+2*k,2)}, {vr(T+4+2*k,2)}")
    for k in range(2): o.append(f"v_pk_fma_f32 {vr(Q+2*k,2)}, {vr(V+4+2*k,2)}, {vr(T+2*k,2)}, {vr(Q+2*k,2)}")
    for k in range(2): o.append(f"v_pk_fma_f32 {vr(V_DEN+2*k,2)}, {vr(S+2*k,2)}, {vr(M+2*k,2)}, {vr(V_DEN+2*k,2)}")
    for k in range(2): o.append(f"v_pk_fma_f32 {vr(V_NUM+2*k,2)}, {vr(Q+2*k,2)}, {vr(M+2*k,2)}, {vr(V_NUM+2*k,2)}")
    return o

def finalize(A, num, den, ux, loc):
    T, V = V_T, V_V
    for k in range(2): A(f"v_pk_add_f32 {vr(den+2*k,2)}, {vr(den+2*k,2)}, {sr(S_EPS,2)}")
    for i in range(4): A(f"v_rcp_f32 v{den+i}, v{den+i}")
    for i in range(4): A(f"v_and_b32 v{T+i}, s{S_MSK}, v{ux+i}")
    for i in range(4): A(f"v_lshlrev_b32 v{V+i}, 16, v{ux+i}")
    for k in range(2): A(f"v_pk_fma_f32 {vr(T+2*k,2)}, {vr(num+2*k,2)}, {vr(den+2*k,2)}, {vr(T+2*k,2)}")
    A(f"v_lshl_add_u32 v{T+4}, v{loc}, 7, v{V_OUTC}")
    A(f"v_cmp_gt_u32 vcc, {NPB}, v{loc}")
    for i in range(4): A(f"v_max_f32 v{T+i}, 0, v{T+i}")
    for k in range(2): A(f"v_pk_add_f32 {vr(T+2*k,2)}, {vr(T+2*k,2)}, {vr(V+2*k,2)}")
    A(f"v_cndmask_b32 v{T+4}, -1, v{T+4}, vcc")
    A(f"v_cvt_pk_bf16_f32 v{T+6}, v{T}, v{T+1}")
    A(f"v_cvt_pk_bf16_f32 v{T+7}, v{T+2}, v{T+3}")
    A(f"buffer_store_dwordx2 {vr(T+6,2)}, v{T+4}, {srd(S_OUT)}, 0 offen")

def arrive(A, addr, rtn=None):
    A(f"v_mov_b32 v120, {addr}")
    A("v_mov_b32 v121, 1")
    A("s_mov_b64 exec, 1")
    if rtn is None: A("ds_add_u32 v120, v121")
    else:
        A("ds_add_rtn_u32 v122, v120, v121")
        A("s_waitcnt lgkmcnt(0)")
        A(f"v_readfirstlane_b32 s{rtn}, v122")
    A("s_mov_b64 exec, -1")

def spin_lds(A, name, target):
    A(f"""
{name}:
    ds_read_b32 v122, v120
    s_waitcnt lgkmcnt(0)
    v_readfirstlane_b32 s{S_T}, v122
    s_cmp_lt_u32 s{S_T}, {target}
    s_cbranch_scc1 {name}
    """)

def gen(A, diag):
    T = S_T
    EARLY = "--early" in sys.argv
    st = lambda i: stamp(A, i, diag and not (EARLY and 2 <= i <= 7))
    se = lambda i: stamp(A, i, diag and EARLY)
    A.label(f"{NAME}_kernel")
    A(f"""
    s_cmp_ge_u32 s2, 256
    s_cbranch_scc1 K_END
    s_load_dwordx16 {sr(S_K,16)}, s[0:1], 0
    s_load_dwordx8 {sr(S_K+16,8)}, s[0:1], 64
    s_and_b32 s{S_HALF}, s2, 1
    s_bfe_u32 s{T}, s2, 0x20001
    s_lshr_b32 s{T+1}, s2, 3
    s_lshl_b32 s{S_BIN}, s{T}, 5
    s_add_u32 s{S_BIN}, s{S_BIN}, s{T+1}
    s_mul_i32 s{S_NB}, s{S_BIN}, {NPB}
    v_readfirstlane_b32 s{S_WAVE}, v0
    s_lshr_b32 s{S_WAVE}, s{S_WAVE}, 6
    v_and_b32 v{V_LANE}, 63, v0
    v_and_b32 v26, 7, v{V_LANE}
    v_lshrrev_b32 v27, 4, v{V_LANE}
    v_xor_b32 v27, v26, v27
    v_lshlrev_b32 v27, 4, v27
    v_lshrrev_b32 v28, 3, v{V_LANE}
    v_lshl_add_u32 v24, v28, 7, v27
    v_xor_b32 v25, 64, v24
    v_lshlrev_b32 v29, 4, v{V_LANE}
    s_lshl_b32 s{T+6}, s{S_HALF}, 6
    s_lshl_b32 s{T+7}, s{S_NB}, 7
    s_sub_u32 s{T+9}, s{S_WAVE}, 7
    s_mov_b32 s{T+8}, {WS_EP}
    """)
    if diag: A(f"v_mov_b32 v{V_STAMP}, 0")
    if "--inv" in sys.argv:
        A(f"s_cmp_lg_u32 s{S_WAVE}, 0")
        A("s_cbranch_scc1 K_NINV")
        A("buffer_inv " + opt("--inv", "").replace("+", " "))
        A.label("K_NINV")
    A(f"""
    s_cmp_ge_u32 s{S_WAVE}, 7
    s_cbranch_scc1 K_L1
    s_mul_i32 s{T+2}, s{S_HALF}, 12
    s_lshl_b32 s{T+3}, s{S_WAVE}, 1
    s_add_u32 s{T+2}, s{T+2}, s{T+3}
    s_cmp_eq_u32 s{S_WAVE}, 6
    s_cselect_b32 s{T+2}, 24, s{T+2}
    s_lshl_b32 s{T+2}, s{T+2}, 10
    s_add_u32 m0, s{T+2}, {L_XST}
    s_add_u32 s{T+2}, s{T+2}, s{T+7}
    s_lshl_b32 s{T+3}, s{S_WAVE}, 10
    s_waitcnt lgkmcnt(0)
    """)
    st(0)
    mk_srd(A, S_X, KX, N*128)
    mk_srd(A, S_A, KWB, 8192)
    mk_srd(A, S_B, KWV, 8192)
    A(f"""
    buffer_load_dwordx4 v24, {srd(S_X)}, s{T+2} offen lds
    s_cmp_eq_u32 s{S_WAVE}, 6
    s_cbranch_scc1 K_L0
    buffer_load_dwordx4 v25, {srd(S_X)}, s{T+2} offen offset:1024 lds
K_L0:
    s_add_u32 m0, s{T+3}, {L_WBV}
    s_nop 0
    buffer_load_dwordx4 v29, {srd(S_A)}, s{T+3} offen lds
    s_add_u32 m0, s{T+3}, {L_WBV+8192}
    s_cmp_eq_u32 s{S_WAVE}, 6
    buffer_load_dwordx4 v29, {srd(S_B)}, s{T+3} offen lds
    s_cbranch_scc0 K_L1
    buffer_load_dwordx4 v29, {srd(S_B)}, s{T+3} offen offset:1024 lds
    s_add_u32 m0, s{T+3}, {L_WBV}
    s_nop 0
    buffer_load_dwordx4 v29, {srd(S_A)}, s{T+3} offen offset:1024 lds
K_L1:
    v_mul_u32_u24 v30, {LS}, v0
    v_add_u32 v30, {L_LIST}, v30
    v_cmp_gt_u32 vcc, 200, v0
    v_mov_b32 v31, 0x40000000
    v_cndmask_b32 v30, v31, v30, vcc
    v_cmp_gt_u32 vcc, 256, v0
    v_subrev_u32 v32, 384, v0
    v_cndmask_b32 v30, 0, v30, vcc
    v_cmp_gt_u32 vcc, 256, v32
    v_mov_b32 v31, {NPB}
    v_cndmask_b32 v30, v30, v31, vcc
    v_lshlrev_b32 v31, 2, v0
    ds_write_b32 v31, v30
    v_subrev_u32 v34, 448, v0
    v_lshlrev_b32 v32, 4, v34
    v_lshlrev_b32 v33, 3, v34
    s_mul_i32 s{T+10}, s2, {CH*4}
    s_add_u32 s{T+11}, s{T+10}, {CH*2}
    s_lshr_b32 s{T+12}, s{T+10}, 1
    s_lshr_b32 s{T+13}, s{T+11}, 1
    s_waitcnt lgkmcnt(0)
    """)
    if diag:
        A(f"s_cmp_lt_u32 s{S_WAVE}, 7")
        A("s_cbranch_scc1 K_D0")
        st(0)
        A.label("K_D0")
    if WSOFF:
        A(f"s_add_u32 s{KWS}, s{KWS}, {WSOFF<<20}")
        A(f"s_addc_u32 s{KWS+1}, s{KWS+1}, 0")
    A(f"""
    s_xor_b32 s{T+14}, s{S_WAVE}, 15
    s_or_b32 s{T+14}, s{T+14}, s2
    s_cmp_lg_u32 s{T+14}, 0
    s_cbranch_scc1 K_NEP
    s_load_dwordx2 {sr(S_T0,2)}, {sr(KWS,2)}, s{T+8}
K_NEP:
    """)
    mk_srd(A, S_A, KDST, E*4)
    mk_srd(A, S_B, KSRC, E*4)
    mk_srd(A, S_WS, KE, E*2)
    mk_srd(A, S_X, KX, N*128)
    mk_srd(A, S_OUT, KWC, 128)
    DS_, SR_, EE_ = 64, 72, 80
    A(f"""
    v_lshlrev_b32 v27, 3, v26
    v_cmp_gt_u32 vcc, {NT}, v34
    v_mov_b32 v36, {PADROW}
    v_mov_b32 v37, {PADROW}
    v_mov_b32 v38, {PADROW}
    v_mov_b32 v39, {PADROW}
    v_lshlrev_b32 v30, 4, v0
    v_add_u32 v30, {L_LIST}, v30
    s_barrier
    buffer_load_dwordx2 {vr(V_WC+2,2)}, v27, {srd(S_OUT)}, s{T+6} offen
    s_cmp_ge_u32 s{T+9}, 7
    s_cbranch_scc1 K_NE0
    s_mov_b64 exec, vcc
    buffer_load_dwordx4 {vr(DS_,4)}, v32, {srd(S_A)}, s{T+10} offen{ENT}
    buffer_load_dwordx4 {vr(DS_+4,4)}, v32, {srd(S_A)}, s{T+11} offen{ENT}
    s_mov_b64 exec, -1
    v_mov_b32 v40, -1
    v_mov_b32 v41, -1
    ds_write_b64 v33, v[40:41] offset:{L_LOC}
K_NE0:
    ds_write_b128 v30, v[36:39]
    ds_write_b128 v30, v[36:39] offset:16384
    s_cbranch_scc1 K_NE
    s_mov_b64 exec, vcc
    buffer_load_dwordx4 {vr(SR_,4)}, v32, {srd(S_B)}, s{T+10} offen{ENT}
    buffer_load_dwordx4 {vr(SR_+4,4)}, v32, {srd(S_B)}, s{T+11} offen{ENT}
    buffer_load_dwordx2 {vr(EE_,2)}, v33, {srd(S_WS)}, s{T+12} offen{ENT}
    buffer_load_dwordx2 {vr(EE_+2,2)}, v33, {srd(S_WS)}, s{T+13} offen{ENT}
    s_mov_b64 exec, -1
K_NE:
    ds_write_b128 v30, v[36:39] offset:32768
    ds_write_b128 v30, v[36:39] offset:49152
    """)
    se(2)
    mk_srd(A, S_WS, KWS, WS_SIZE)
    mk_srd(A, S_OUT, KOUT, N*128)
    A(f"""
    s_mul_i32 s{T+2}, s{S_HALF}, {HS}
    s_add_u32 s{T+2}, s{T+2}, {WS_TAB}
    s_add_u32 s{S_TAB}, s{KWS}, s{T+2}
    s_addc_u32 s{S_TAB+1}, s{KWS+1}, 0
    s_or_b32 s{S_TAB+1}, s{S_TAB+1}, {128<<16}
    s_mov_b32 s{S_TAB+2}, {PADROW+1}
    s_mov_b32 s{S_TAB+3}, 0x20000
    s_mul_i32 s{S_PF}, s{T+1}, {784*128}
    s_add_u32 s{S_PF}, s{S_PF}, s{T+2}
    s_add_u32 s{T+3}, s{T+7}, s{T+6}
    v_add_u32 v{V_OUTC}, s{T+3}, v27
    v_lshlrev_b32 v{V_I0+1}, 4, v26
    v_mov_b32 v{V_I1+1}, v{V_I0+1}
    v_add_u32 v{V_AUC}, {L_AU}, v{V_I0+1}
    v_lshlrev_b32 v{V_OA}, 2, v28
    s_mov_b32 s{S_C}, 0x{f2u(2.0**-SH):08x}
    s_mov_b32 s{S_C+1}, 0x{f2u(2.0**-SH):08x}
    s_mov_b32 s{S_EPS}, 0x{f2u(1e-6*2.0**SH):08x}
    s_mov_b32 s{S_EPS+1}, 0x{f2u(1e-6*2.0**SH):08x}
    s_mov_b32 s{S_MSK}, 0xffff0000
    """)
    arrive(A, L_CE)
    se(3)
    A(f"""
    s_cmp_ge_u32 s{S_WAVE}, 14
    s_cbranch_scc1 K_HELP
    s_cmp_ge_u32 s{S_WAVE}, 7
    s_cbranch_scc1 K_BIN
    ; ---- table job: tile = 3*half + (w>>1), nt = w&1 ; wave 6: tile 6, nt = half
    s_mul_i32 s{T+10}, s{S_HALF}, 3
    s_lshr_b32 s{T+11}, s{S_WAVE}, 1
    s_add_u32 s{T+10}, s{T+10}, s{T+11}
    s_and_b32 s{T+11}, s{S_WAVE}, 1
    s_cmp_eq_u32 s{S_WAVE}, 6
    s_cselect_b32 s{T+10}, 6, s{T+10}
    s_cselect_b32 s{T+11}, s{S_HALF}, s{T+11}
    s_lshl_b32 s{T+12}, s{T+10}, 12
    s_mul_i32 s{T+13}, s{T+11}, {HS}
    s_add_u32 s{T+13}, s{T+13}, s{T+7}
    s_add_u32 s{T+13}, s{T+13}, {WS_TAB}
    s_add_u32 s{S_B}, s{KWS}, s{T+13}
    s_addc_u32 s{S_B+1}, s{KWS+1}, 0
    s_mov_b32 s{S_B+2}, {NPB*128}
    s_mov_b32 s{S_B+3}, 0x20000
    v_and_b32 v28, 31, v{V_LANE}
    v_lshrrev_b32 v29, 5, v{V_LANE}
    v_bfe_u32 v30, v28, 1, 3
    v_xor_b32 v30, v30, v29
    v_lshlrev_b32 v30, 4, v30
    v_lshl_add_u32 v24, v28, 7, v30
    s_add_u32 s{T+13}, s{T+12}, {L_XST}
    v_add_u32 v30, s{T+13}, v24
    v_bfe_u32 v25, v{V_LANE}, 2, 2
    v_lshl_add_u32 v25, v29, 3, v25
    v_lshlrev_b32 v34, 7, v25
    v_bfe_u32 v35, v{V_LANE}, 4, 1
    v_lshl_add_u32 v34, v35, 5, v34
    v_and_b32 v36, 3, v{V_LANE}
    v_lshl_add_u32 v34, v36, 3, v34
    s_lshl_b32 s{T+13}, s{T+11}, 6
    s_add_u32 s{T+13}, s{T+13}, {L_WBV}
    v_add_u32 v34, s{T+13}, v34
    v_and_b32 v32, 1, v{V_LANE}
    v_xor_b32 v32, 1, v32
    v_lshlrev_b32 v32, 15, v32
    v_lshlrev_b32 v33, 9, v29
    v_lshl_add_u32 v33, v28, 2, v33
    v_add_u32 v33, s{T+12}, v33
    s_mov_b32 s{T+13}, 0x{f2u(-LOG2E):08x}
    s_mov_b32 s{T+14}, 0x07060302
    s_waitcnt vmcnt(1)
    """)
    arrive(A, L_CX)
    spin_lds(A, "K_SPX", 7)
    st(1)
    XB = 84
    Wm1 = [36, 40, 116, 8]
    for u in range(4):
        A(f"v_xor_b32 v31, {32*u}, v30")
        A(f"ds_read_b128 {vr(XB+4*u,4)}, v31")
        for tt in range(2):
            A(f"ds_read_b64_tr_b16 {vr(100+4*u+2*tt,2)}, v34 offset:{(16*u+4*tt)*128}")
        for tt in range(2):
            A(f"ds_read_b64_tr_b16 {vr(Wm1[u]+2*tt,2)}, v34 offset:{8192+(16*u+4*tt)*128}")
    for u in range(4):
        A(f"s_waitcnt lgkmcnt({15-5*u})")
        A(mfma(vr(48,16), vr(XB+4*u,4), vr(100+4*u,4), "0" if u == 0 else vr(48,16)))
        A(mfma(vr(64,16), vr(XB+4*u,4), vr(Wm1[u],4), "0" if u == 0 else vr(64,16)))
    TS = opt("--tabst", "sc1").replace("+", " ")
    if "--tabdw" in sys.argv:
        arrive(A, L_CY)
        for r in range(16): A(f"v_mul_f32 v{48+r}, s{T+13}, v{48+r}")
        for r in range(16):
            A(f"v_add_u32 v{64+r}, v32, v{64+r}")
            A(f"v_perm_b32 v{48+r}, v{48+r}, v{64+r}, s{T+14}")
            A(f"buffer_store_dword v{48+r}, v33, {srd(S_B)}, 0 offen offset:{(8*(r>>2)+(r&3))*128} {TS}")
    else:
        A(f"""
        s_lshl_b32 s{T+4}, s{S_WAVE}, 11
        s_add_u32 s{T+4}, s{T+4}, {L_TST}
        v_subrev_u32 v33, s{T+12}, v33
        v_add_u32 v33, s{T+4}, v33
        v_add_u32 v34, 128, v33
        v_lshlrev_b32 v35, 4, v{V_LANE}
        v_add_u32 v36, s{T+4}, v35
        v_add_u32 v35, s{T+12}, v35
        """)
        for hf in range(2):
            for r in range(8*hf, 8*hf+8): A(f"v_mul_f32 v{48+r}, s{T+13}, v{48+r}")
            for r in range(8*hf, 8*hf+8):
                A(f"v_add_u32 v{64+r}, v32, v{64+r}")
                A(f"v_perm_b32 v{48+r}, v{48+r}, v{64+r}, s{T+14}")
            for q in range(2):
                r = 8*hf + 4*q
                A(f"ds_write2st64_b32 v33, v{48+r}, v{50+r} offset0:{4*q} offset1:{4*q+1}")
                A(f"ds_write2st64_b32 v34, v{49+r}, v{51+r} offset0:{4*q} offset1:{4*q+1}")
            A(f"ds_read_b128 {vr(100+8*hf,4)}, v36")
            A(f"ds_read_b128 {vr(104+8*hf,4)}, v36 offset:1024")
            if hf == 1:
                A("s_waitcnt lgkmcnt(6)")
                A(f"buffer_store_dwordx4 v[100:103], v35, {srd(S_B)}, 0 offen {TS}")
                A(f"buffer_store_dwordx4 v[104:107], v35, {srd(S_B)}, 0 offen offset:1024 {TS}")
        A("s_waitcnt lgkmcnt(0)")
        A(f"buffer_store_dwordx4 v[108:111], v35, {srd(S_B)}, 0 offen offset:2048 {TS}")
        A(f"buffer_store_dwordx4 v[112:115], v35, {srd(S_B)}, 0 offen offset:3072 {TS}")
        arrive(A, L_CY)
    st(2)
    A(f"""
    s_lshr_b32 s{T+12}, s2, 1
    s_or_b32 s{T+12}, s{T+12}, s{S_WAVE}
    s_cmp_lg_u32 s{T+12}, 0
    s_cbranch_scc1 K_NPAD
    v_lshlrev_b32 v32, 2, v{V_LANE}
    v_mov_b32 v33, 0x7f000000
    s_mul_i32 s{T+4}, s{S_HALF}, {HS}
    s_add_u32 s{T+4}, s{T+4}, {WS_TAB+PADROW*128}
    s_mov_b32 exec_hi, 0
    buffer_store_dword v33, v32, {srd(S_WS)}, s{T+4} offen sc1
    s_mov_b64 exec, -1
K_NPAD:
    s_cmp_lg_u32 s{S_WAVE}, 0
    s_cbranch_scc1 K_NTG
    s_mov_b32 s{S_A}, s{KDBG}
    s_mov_b32 s{S_A+1}, s{KDBG+1}
    s_mov_b32 s{S_A+2}, 256
    s_mov_b32 s{S_A+3}, 0x20000
    v_mov_b32 v34, 0
    v_mov_b32 v35, {L_TAG}
    s_mov_b32 s{T+13}, {SPIN}
K_TG:
    buffer_load_dwordx2 v[32:33], v34, {srd(S_A)}, 0 offen sc1
    s_waitcnt vmcnt(0)
    v_readfirstlane_b32 s{T+4}, v32
    s_bitcmp1_b32 s{T+4}, 0
    s_cbranch_scc1 K_TG1
    s_sleep 2
    s_sub_u32 s{T+13}, s{T+13}, 1
    s_cmp_lg_u32 s{T+13}, 0
    s_cbranch_scc1 K_TG
K_TG1:
    ds_write_b64 v35, v[32:33]
K_NTG:
    s_waitcnt vmcnt(0)
    """)
    st(3)
    arrive(A, L_CP, rtn=T+3)
    A(f"""
    """)
    def pfa():
        A("v_lshlrev_b32 v31, 7, v0")
        A(f"buffer_load_ubyte v{V_DUMMY}, v31, {srd(S_WS)}, s{S_PF} offen sc1")
    if PFA == 1:
        A(f"v_mov_b32 v120, {L_C3}")
        spin_lds(A, "K_SPA", 7)
        pfa()
    A("s_branch K_PUBQ")
    BN, RK, TM = 48, 56, 84
    A(f"""
K_BIN:
    v_mov_b32 v31, v34
    s_mul_i32 s{T+10}, s2, {CH//4}
    v_add_u32 v32, s{T+10}, v31
    v_cmp_gt_u32 vcc, {NT}, v31
    s_mov_b32 s{T+11}, {E//4}
    v_cmp_gt_u32 {sr(T+4,2)}, s{T+11}, v32
    s_mov_b32 s{T+11}, {E//4 - NT}
    v_cmp_gt_u32 {sr(T+6,2)}, s{T+11}, v32
    s_and_b64 {sr(T+4,2)}, {sr(T+4,2)}, vcc
    s_and_b64 {sr(T+6,2)}, {sr(T+6,2)}, vcc
    s_mov_b32 s{T+8}, 42800
    s_movk_i32 s{T+9}, {NPB}
    v_mov_b32 v33, 1
    s_setprio 3
    """)
    for hlf in range(2):
        A(f"s_mov_b64 exec, {sr(T+4+2*hlf,2)}")
        A(f"s_waitcnt vmcnt({5-hlf})")
        ks = range(4*hlf, 4*hlf+4)
        for k in ks: A(f"v_mul_u32_u24 v{BN+k}, s{T+8}, v{DS_+k}")
        for k in ks: A(f"v_lshrrev_b32 v{BN+k}, 23, v{BN+k}")
        for k in ks:
            A(f"v_mul_u32_u24 v{TM+k}, s{T+9}, v{BN+k}")
            A(f"v_lshlrev_b32 v{BN+k}, 2, v{BN+k}")
            A(f"ds_add_rtn_u32 v{RK+k}, v{BN+k}, v33 offset:{L_HIST}")
        for k in ks: A(f"v_sub_u32 v{DS_+k}, v{DS_+k}, v{TM+k}")
    A("s_mov_b64 exec, -1")
    A(f"v_lshlrev_b32 v34, 3, v{V_LANE}")
    arrive(A, L_C2)
    st(3)
    spin_lds(A, "K_SP2", 7)
    st(4)
    A(f"""
    ds_read_b64 v[36:37], v34 offset:{L_HIST}
    s_waitcnt lgkmcnt(0)
    v_add_u32 v36, 3, v36
    v_add_u32 v37, 3, v37
    v_and_b32 v36, -4, v36
    v_and_b32 v37, -4, v37
    v_add_u32 v38, v36, v37
    v_mov_b32 v39, v38
    """)
    scan(A, 39)
    A(f"""
    v_sub_u32 v38, v39, v38
    v_add_u32 v39, v38, v36
    ds_write_b64 v34, v[38:39] offset:{L_OFF}
    """)
    for hlf in range(2):
        A(f"s_mov_b64 exec, {sr(T+4+2*hlf,2)}")
        for k in range(4*hlf, 4*hlf+4):
            A(f"ds_read_b32 v{TM+k}, v{BN+k} offset:{L_OFF}")
    A(f"""
    s_mov_b32 s{T+8}, 0x05040100
    s_mov_b32 s{T+9}, 0x07060100
    s_waitcnt lgkmcnt(0)
    """)
    for hlf in range(2):
        A(f"s_mov_b64 exec, {sr(T+4+2*hlf,2)}")
        for k in range(4*hlf, 4*hlf+4):
            A(f"v_add_u32 v{TM+k}, v{TM+k}, v{RK+k}")
            A(f"v_lshlrev_b32 v{RK+k}, 2, v{TM+k}")
            A(f"ds_write_b8 v{TM+k}, v{DS_+k} offset:{L_LOC}")
    A("s_mov_b64 exec, -1")
    st(5)
    for hlf in range(2):
        A(f"s_waitcnt vmcnt({1-hlf})")
        A(f"s_mov_b64 exec, {sr(T+4+2*hlf,2)}")
        for k in range(4*hlf, 4*hlf+4):
            A(f"v_perm_b32 v{SR_+k}, v{EE_+k//2}, v{SR_+k}, s{T+8+(k&1)}")
            A(f"ds_write_b32 v{RK+k}, v{SR_+k} offset:{L_REC}")
    A(f"""
    s_mov_b64 exec, -1
    v_lshlrev_b32 v32, 4, v31
    v_lshlrev_b32 v33, 3, v31
    s_mul_i32 s{T+10}, s2, {CHP*4}
    s_add_u32 s{T+11}, s{T+10}, {448*16}
    s_mul_i32 s{T+12}, s2, {CHP}
    s_add_u32 s{T+12}, s{T+12}, {WS_LOC}
    """)
    arrive(A, L_C3)
    spin_lds(A, "K_SP3", 7)
    st(6)
    A(f"""
    ds_read_b128 v[64:67], v32 offset:{L_REC}
    ds_read_b128 v[68:71], v32 offset:{L_REC+448*16}
    ds_read_b128 v[72:75], v32 offset:{L_LOC}
    v_cmp_gt_u32 vcc, {CHP//16}, v31
    s_waitcnt lgkmcnt(2)
    buffer_store_dwordx4 v[64:67], v32, {srd(S_WS)}, s{T+10} offen {RS}
    s_waitcnt lgkmcnt(1)
    buffer_store_dwordx4 v[68:71], v32, {srd(S_WS)}, s{T+11} offen {RS}
    s_waitcnt lgkmcnt(0)
    s_and_saveexec_b64 {sr(T+4,2)}, vcc
    s_cbranch_execz K_NLOC
    buffer_store_dwordx4 v[72:75], v32, {srd(S_WS)}, s{T+12} offen {RS}
K_NLOC:
    s_mov_b64 exec, -1
    """)
    arrive(A, L_CY)
    A("s_waitcnt vmcnt(0)")
    st(7)
    arrive(A, L_CP, rtn=T+3)
    A(f"""
    s_branch K_PUBQ
K_HELP:
    s_sub_u32 s{T+2}, s{S_WAVE}, 14
    s_xor_b32 s{T+3}, s{S_HALF}, 1
    s_lshl_b32 s{T+3}, s{T+3}, 1
    s_add_u32 s{T+3}, s{T+3}, s{T+2}
    s_mul_i32 s{T+3}, s{T+3}, 6144
    s_add_u32 m0, s{T+3}, {L_XST}
    s_add_u32 s{T+3}, s{T+3}, s{T+7}
    s_cmp_eq_u32 s{T+2}, 0
    s_cselect_b32 s{S_A}, s{KWA}, s{KWU}
    s_cselect_b32 s{S_A+1}, s{KWA+1}, s{KWU+1}
    s_mov_b32 s{S_A+2}, 8192
    s_mov_b32 s{S_A+3}, 0x20000
    s_cmp_lg_u32 s{T+14}, 0
    s_cbranch_scc1 K_NEP2
    s_mov_b32 s{S_B}, s{KDBG}
    s_mov_b32 s{S_B+1}, s{KDBG+1}
    s_mov_b32 s{S_B+2}, 256
    s_mov_b32 s{S_B+3}, 0x20000
    s_waitcnt lgkmcnt(0)
    s_add_u32 s{S_T1}, s{S_T1}, 1
    s_and_b32 s{S_T0}, s{S_T0}, 0xfff00000
    s_or_b32 s{S_T0}, s{S_T0}, 1
    v_mov_b32 v32, s{S_T0}
    v_mov_b32 v33, s{S_T1}
    v_mov_b32 v34, 0
    s_mov_b32 s{T+4}, {WS_EP+4}
    s_mov_b64 exec, 1
    buffer_store_dwordx2 v[32:33], v34, {srd(S_B)}, 0 offen sc1
    buffer_store_dword v33, v34, {srd(S_WS)}, s{T+4} offen sc1
    s_mov_b64 exec, -1
K_NEP2:
    """)
    spin_lds(A, "K_SPE", 16)
    A(f"""
    buffer_load_dwordx4 v24, {srd(S_X)}, s{T+3} offen lds
    buffer_load_dwordx4 v25, {srd(S_X)}, s{T+3} offen offset:1024 lds
    buffer_load_dwordx4 v24, {srd(S_X)}, s{T+3} offen offset:2048 lds
    buffer_load_dwordx4 v25, {srd(S_X)}, s{T+3} offen offset:3072 lds
    s_add_u32 m0, m0, 4096
    s_add_u32 s{T+3}, s{T+3}, 4096
    buffer_load_dwordx4 v24, {srd(S_X)}, s{T+3} offen lds
    buffer_load_dwordx4 v25, {srd(S_X)}, s{T+3} offen offset:1024 lds
    v_lshrrev_b32 v30, 2, v{V_LANE}
    v_lshlrev_b32 v30, 7, v30
    v_and_b32 v31, 3, v{V_LANE}
    v_lshl_add_u32 v30, v31, 4, v30
    s_lshl_b32 s{T+4}, s{T+2}, 12
    s_add_u32 m0, s{T+4}, {L_WAU}
    s_mov_b32 s{T+4}, s{T+6}
    """)
    for i4 in range(4):
        A(f"buffer_load_dwordx4 v30, {srd(S_A)}, s{T+4} offen offset:{1024*i4} lds")
        A(f"s_add_u32 s{T+4}, s{T+4}, 1024")
    A("s_waitcnt vmcnt(0)")
    st(2)
    arrive(A, L_CY)
    A(f"""
    s_branch K_JOIN
K_PUB:
    v_lshlrev_b32 v122, 3, v{V_LANE}
    ds_read_b64 v[36:37], v122 offset:{L_HIST}
    ds_read_b64 v[38:39], v122 offset:{L_OFF}
    v_mov_b32 v122, {L_TAG}
    ds_read_b64 v[40:41], v122
    s_lshl_b32 s{T+4}, s2, 10
    s_add_u32 s{T+4}, s{T+4}, {WS_OFFS}
    v_lshlrev_b32 v122, 4, v{V_LANE}
    s_waitcnt lgkmcnt(0)
    v_mov_b32 v43, v41
    v_and_b32 v121, -2, v40
    v_cmp_ne_u32 vcc, v121, v40
    v_add_u32 v36, 3, v36
    v_add_u32 v37, 3, v37
    v_lshrrev_b32 v36, 2, v36
    v_lshrrev_b32 v37, 2, v37
    v_lshrrev_b32 v38, 2, v38
    v_lshrrev_b32 v39, 2, v39
    v_lshl_or_b32 v40, v36, 10, v38
    v_lshl_or_b32 v42, v37, 10, v39
    v_or_b32 v40, v121, v40
    v_or_b32 v42, v121, v42
    s_cbranch_vccz K_PUB1
    buffer_store_dwordx4 v[40:43], v122, {srd(S_WS)}, s{T+4} offen sc1
K_PUB1:
    s_nop 1
    s_setpc_b64 {sr(S_RET,2)}
K_PUBQ:
    s_cmp_lg_u32 s{T+3}, 13
    s_cbranch_scc1 K_JOIN
    s_call_b64 {sr(S_RET,2)}, K_PUB
K_JOIN:
    s_setprio 0
    v_lshrrev_b32 v28, 3, v0
    v_lshlrev_b32 v24, 10, v28
    v_and_b32 v26, 7, v{V_LANE}
    v_mul_u32_u24 v28, {CHP//4}, v28
    v_add_u32 v28, v28, v26
    s_lshl_b32 s{T+5}, s{S_BIN}, 3
    s_add_u32 s{T+5}, s{T+5}, {WS_OFFS}
    s_add_u32 s{T+14}, s{T+5}, {128*1024}
    s_mov_b32 s{T+2}, {128*CHP*4}
    s_mov_b32 s{T+3}, {WS_LOC}
    s_mov_b32 s{T+4}, {WS_LOC+128*CHP}
    v_mov_b32 v31, 0x04000000
    v_mov_b32 v38, 4
    s_mov_b32 s{T+12}, 0xfff00000
    s_mov_b32 s{T+13}, {SPIN}
    """)
    for i in range(2*R): A(f"v_mov_b32 v{V_E+i}, 0")
    if RPF:
        A(f"""
        s_bfe_u32 s{T}, s2, 0x20001
        s_lshr_b32 s{T+1}, s2, 3
        v_lshrrev_b32 v25, 5, v0
        v_mul_u32_u24 v25, {CHP*4}, v25
        v_and_b32 v27, 31, v0
        v_lshl_add_u32 v25, v27, 7, v25
        s_mul_i32 s{T+6}, s{T}, {26*128}
        s_sub_u32 s{T+6}, s{T+6}, 384
        s_max_i32 s{T+6}, s{T+6}, 0
        s_mul_i32 s{T+7}, s{T+1}, {8*CHP*4}
        s_add_u32 s{T+6}, s{T+6}, s{T+7}
        v_lshrrev_b32 v27, 3, v{V_LANE}
        v_mul_u32_u24 v27, {CHP}, v27
        v_lshl_add_u32 v27, v26, 7, v27
        s_mul_i32 s{T+8}, s{T}, 832
        s_sub_u32 s{T+8}, s{T+8}, 64
        s_max_i32 s{T+8}, s{T+8}, 0
        s_mul_i32 s{T+9}, s{T+1}, {8*CHP}
        s_add_u32 s{T+8}, s{T+8}, s{T+9}
        s_add_u32 s{T+8}, s{T+8}, {WS_LOC}
        s_cmp_eq_u32 s{S_WAVE}, 4
        s_cselect_b32 s{T+6}, s{T+8}, s{T+6}
        s_cselect_b64 vcc, -1, 0
        v_cndmask_b32 v25, v25, v27, vcc
        """)
    A("s_waitcnt lgkmcnt(0)")
    A("s_barrier")
    if RPF:
        A(f"""
        s_cmp_gt_u32 s{S_WAVE}, 4
        s_cbranch_scc1 K_NRPF
        buffer_load_ubyte v{V_DUMMY}, v25, {srd(S_WS)}, s{T+6} offen sc1
K_NRPF:
        """)
    st(8)
    A(f"""
    v_mov_b32 v36, {L_TAG}
    ds_read_b64 v[36:37], v36
    buffer_load_dwordx2 v[32:33], v24, {srd(S_WS)}, s{T+5} offen sc1
    buffer_load_dwordx2 v[34:35], v24, {srd(S_WS)}, s{T+14} offen sc1
    s_waitcnt lgkmcnt(0)
    v_readfirstlane_b32 s{S_T0}, v36
    v_readfirstlane_b32 s{S_T1}, v37
    s_xor_b32 s{S_T0}, s{S_T0}, 1
    s_bitcmp1_b32 s{S_T0}, 0
    s_cselect_b32 s{T+13}, 1, s{T+13}
    s_branch K_POLL1
K_POLL:
    buffer_load_dwordx2 v[32:33], v24, {srd(S_WS)}, s{T+5} offen sc1
    buffer_load_dwordx2 v[34:35], v24, {srd(S_WS)}, s{T+14} offen sc1
K_POLL1:
    s_waitcnt vmcnt(0)
    v_and_b32 v36, s{T+12}, v32
    v_and_b32 v37, s{T+12}, v34
    v_cmp_eq_u32 vcc, s{S_T1}, v33
    v_cmp_eq_u32 {sr(T+6,2)}, s{S_T1}, v35
    v_cmp_eq_u32 {sr(T+8,2)}, s{S_T0}, v36
    v_cmp_eq_u32 {sr(T+10,2)}, s{S_T0}, v37
    s_and_b64 vcc, vcc, {sr(T+6,2)}
    s_and_b64 {sr(T+8,2)}, {sr(T+8,2)}, {sr(T+10,2)}
    s_and_b64 vcc, vcc, {sr(T+8,2)}
    s_cmp_eq_u64 vcc, -1
    s_cbranch_scc1 K_GOT
    s_sleep {opt("--psleep", 2)}
    s_sub_u32 s{T+13}, s{T+13}, 1
    s_cmp_lg_u32 s{T+13}, 0
    s_cbranch_scc1 K_POLL
    v_mov_b32 v37, {L_FLAG}
    ds_write_b32 v37, v38
    v_mov_b32 v32, 0
    v_mov_b32 v34, 0
K_GOT:
    """)
    st(9)
    A(f"""
    v_bfe_u32 v40, v32, 10, 10
    v_bfe_u32 v41, v34, 10, 10
    v_and_b32 v32, 0x3ff, v32
    v_and_b32 v33, 0x3ff, v34
    v_cmp_lt_u32 {sr(T+6,2)}, v26, v40
    v_cmp_lt_u32 {sr(T+8,2)}, v26, v41
    v_add_u32 v32, v32, v28
    v_add_u32 v33, v33, v28
    v_cndmask_b32 v42, v31, v32, {sr(T+6,2)}
    v_cndmask_b32 v43, v31, v33, {sr(T+8,2)}
    v_lshlrev_b32 v36, 2, v42
    v_lshlrev_b32 v37, 2, v43
    v_lshlrev_b32 v42, 4, v42
    v_lshlrev_b32 v43, 4, v43
    buffer_load_dword v72, v36, {srd(S_WS)}, s{T+3} offen sc1
    buffer_load_dword v73, v37, {srd(S_WS)}, s{T+4} offen sc1
    buffer_load_dwordx4 v[64:67], v42, {srd(S_WS)}, 0 offen sc1
    buffer_load_dwordx4 v[68:71], v43, {srd(S_WS)}, s{T+2} offen sc1
    v_add_u32 v36, 8, v26
    v_add_u32 v33, {128*CHP//4}, v33
    v_mov_b32 v37, {L_FLAG+4}
    v_lshlrev_b32 v{V_WC}, 16, v{V_WC+2}
    v_and_b32 v{V_WC+1}, s{S_MSK}, v{V_WC+2}
    v_lshlrev_b32 v{V_WC+2}, 16, v{V_WC+3}
    v_and_b32 v{V_WC+3}, s{S_MSK}, v{V_WC+3}
    s_mov_b32 s{T}, 0x{f2u(-LOG2E):08x}
    v_mul_f32 v{V_WC}, s{T}, v{V_WC}
    v_mul_f32 v{V_WC+1}, s{T}, v{V_WC+1}
    v_mul_f32 v{V_WC+2}, s{T}, v{V_WC+2}
    v_mul_f32 v{V_WC+3}, s{T}, v{V_WC+3}
    """)
    for r in range(2):
        A(f"""
        v_cmpx_lt_u32 vcc, v36, v{40+r}
        s_cbranch_execz K_NOV{r}
        ds_add_rtn_u32 v39, v37, v38
        v_add_u32 v42, 8, v{32+r}
        s_waitcnt lgkmcnt(0)
        v_cmpx_gt_u32 vcc, {BLCAP*4}, v39
        ds_write_b32 v39, v42 offset:{L_BL}
K_NOV{r}:
        s_mov_b64 exec, -1
        """)
    A(f"""
    v_max_u32 v36, v40, v41
    v_mov_b32 v37, {L_FLAG}
    v_cmpx_lt_u32 vcc, {16 if not FORCE_SLOW else 0}, v36
    ds_write_b32 v37, v38
    s_mov_b64 exec, -1
    """)
    arrive(A, L_CL)
    A(f"""
    s_cmp_ge_u32 s{S_WAVE}, 7
    s_cbranch_scc1 K_INA
    ; ---- A / U job for tile = wave
    v_and_b32 v28, 31, v{V_LANE}
    v_lshrrev_b32 v29, 5, v{V_LANE}
    v_bfe_u32 v30, v28, 1, 3
    v_xor_b32 v30, v30, v29
    v_lshlrev_b32 v30, 4, v30
    v_lshl_add_u32 v30, v28, 7, v30
    s_lshl_b32 s{T+12}, s{S_HALF}, 6
    v_xor_b32 v30, s{T+12}, v30
    s_lshl_b32 s{T+12}, s{S_WAVE}, 12
    s_add_u32 s{T+12}, s{T+12}, {L_XST}
    v_add_u32 v30, s{T+12}, v30
    v_bfe_u32 v25, v{V_LANE}, 2, 2
    v_lshl_add_u32 v25, v29, 3, v25
    v_lshlrev_b32 v34, 6, v25
    v_bfe_u32 v35, v{V_LANE}, 4, 1
    v_lshl_add_u32 v34, v35, 5, v34
    v_and_b32 v36, 1, v{V_LANE}
    v_bfe_u32 v37, v{V_LANE}, 1, 1
    v_lshl_add_u32 v36, v36, 1, v37
    v_lshl_add_u32 v34, v36, 3, v34
    s_lshl_b32 s{T+12}, s{S_HALF}, 11
    v_add_u32 v34, s{T+12}, v34
    v_xor_b32 v35, 2048, v34
    v_add_u32 v34, {L_WAU}, v34
    v_add_u32 v35, {L_WAU}, v35
    v_mov_b32 v120, {L_CY}
    """)
    spin_lds(A, "K_SPY", 16)
    XA = 76
    Wu = [8, 12, 16, 40]
    for u in range(4):
        A(f"v_xor_b32 v31, {32*u}, v30")
        A(f"ds_read_b128 {vr(XA+4*u,4)}, v31")
        av = 34 if u < 2 else 35
        for tt in range(2):
            A(f"ds_read_b64_tr_b16 {vr(104+4*u+2*tt,2)}, v{av} offset:{((u&1)*16+4*tt)*64}")
        for tt in range(2):
            A(f"ds_read_b64_tr_b16 {vr(Wu[u]+2*tt,2)}, v{av} offset:{4096+((u&1)*16+4*tt)*64}")
    A(f"""
    s_lshl_b32 s{T+12}, s{S_WAVE}, 5
    v_add_u32 v28, s{T+12}, v28
    v_mul_u32_u24 v24, {AUS}, v28
    v_lshl_add_u32 v24, v29, 5, v24
    v_add_u32 v24, {L_AU}, v24
    """)
    for u in range(4):
        A(f"s_waitcnt lgkmcnt({15-5*u})")
        A(mfma(vr(48,16), vr(104+4*u,4), vr(XA+4*u,4), "0" if u == 0 else vr(48,16)))
    for u in range(4):
        A(mfma(vr(104,16), vr(Wu[u],4), vr(XA+4*u,4), "0" if u == 0 else vr(104,16)))
    A(f"""
    s_mov_b32 s{T+13}, 0x{f2u(-LOG2E):08x}
    v_mov_b32 v31, 0x{f2u(-float(SH)):08x}
    """)
    A(f"v_max3_f32 v32, |v48|, |v49|, |v50|")
    for i in range(3, 15, 2): A(f"v_max3_f32 v32, |v{48+i}|, |v{48+i+1}|, v32")
    A(f"v_max_f32 v32, |v63|, v32")
    for i in range(16): A(f"v_fma_f32 v{48+i}, v{48+i}, s{T+13}, v31")
    A(f"""
    s_mov_b32 s{T+12}, 0x05040100
    s_mov_b32 s{T+13}, 0x07060302
    v_mov_b32 v33, {L_FLAG}
    v_cmpx_gt_u32 vcc, 200, v28
    ds_write_b128 v24, v[48:51]
    ds_write_b128 v24, v[52:55] offset:16
    ds_write_b128 v24, v[56:59] offset:64
    ds_write_b128 v24, v[60:63] offset:80
    """)
    for i in range(8): A(f"v_cvt_pk_bf16_f32 v{8+i}, v{104+2*i}, v{105+2*i}")
    for i in range(8):
        A(f"v_perm_b32 v{104+2*i}, v{8+i}, v{XA+i}, s{T+12}")
        A(f"v_perm_b32 v{105+2*i}, v{8+i}, v{XA+i}, s{T+13}")
    A(f"""
    ds_write_b128 v24, v[104:107] offset:128
    ds_write_b128 v24, v[108:111] offset:144
    ds_write_b128 v24, v[112:115] offset:192
    ds_write_b128 v24, v[116:119] offset:208
    v_cmpx_gt_u32 vcc, {NPB}, v28
    v_cmpx_nge_f32 vcc, 0x{f2u(49.0):08x}, v32
    ds_write_b32 v33, v33
    s_mov_b64 exec, -1
    """)
    st(5)
    A(f"""
K_INA:
    v_mov_b32 v39, 2
    s_cmp_lt_u32 s{S_WAVE}, 14
    s_cbranch_scc1 K_INA2
    """)
    spin_lds(A, "K_SPL", 16)
    A(f"""
    v_mov_b32 v37, {L_FLAG+4}
    v_subrev_u32 v36, {14*64}, v0
    v_lshlrev_b32 v36, 2, v36
    ds_read_b32 v35, v37
    ds_read_b32 v42, v36 offset:{L_BL}
    v_mov_b32 v31, 0x10000000
    s_waitcnt lgkmcnt(0)
    v_cmp_lt_u32 {sr(T+10,2)}, v36, v35
    v_lshlrev_b32 v43, 4, v42
    v_lshlrev_b32 v42, 2, v42
    v_cndmask_b32 v43, v31, v43, {sr(T+10,2)}
    v_cndmask_b32 v42, v31, v42, {sr(T+10,2)}
    buffer_load_dword v74, v42, {srd(S_WS)}, s{T+3} offen sc1
    buffer_load_dwordx4 v[76:79], v43, {srd(S_WS)}, 0 offen sc1
    v_mov_b32 v37, {L_FLAG}
    v_cmpx_lt_u32 vcc, {BLCAP*4}, v35
    ds_write_b32 v37, v38
    s_mov_b64 exec, -1
    """)
    arrive(A, L_CL)
    A(f"""
    s_waitcnt vmcnt(4)
    s_branch K_INB
K_INA2:
    s_waitcnt vmcnt(2)
K_INB:
    """)
    st(10)
    def ins_atom(locw, a0):
        for k in range(4):
            A(f"v_lshlrev_b32_sdwa v{a0+k}, v39, v{locw} dst_sel:DWORD dst_unused:UNUSED_PAD src0_sel:DWORD src1_sel:BYTE_{k}")
            A(f"ds_add_rtn_u32 v{a0+k}, v{a0+k}, v38")
    def ins_write(a0, rec):
        for k in range(4):
            A(f"ds_write_b32 v{a0+k}, v{rec+k}")
    A(f"s_mov_b64 exec, {sr(T+6,2)}")
    ins_atom(72, 80)
    A(f"s_mov_b64 exec, {sr(T+8,2)}")
    ins_atom(73, 84)
    A(f"""
    s_cmp_lt_u32 s{S_WAVE}, 14
    s_cbranch_scc1 K_INC
    s_mov_b64 exec, {sr(T+10,2)}
    s_waitcnt vmcnt(0)
    """)
    ins_atom(74, 88)
    A("s_waitcnt lgkmcnt(0)")
    ins_write(88, 76)
    A(f"""
K_INC:
    s_mov_b64 exec, {sr(T+8,2)}
    s_waitcnt vmcnt(0) lgkmcnt(0)
    """)
    ins_write(84, 68)
    A(f"s_mov_b64 exec, {sr(T+6,2)}")
    ins_write(80, 64)
    A(f"""
    s_mov_b64 exec, -1
    s_cmp_ge_u32 s{S_WAVE}, 13
    s_cbranch_scc1 K_IND
    v_mov_b32 v120, {L_CL}
    v_min_u32 v30, 783, v0
    v_lshlrev_b32 v30, 7, v30
    """)
    spin_lds(A, "K_SPM", 18)
    A(f"""
    buffer_load_ubyte v{V_DUMMY}, v30, {srd(S_WS)}, s{S_PF} offen {GLD}
K_IND:
    s_barrier
    """)
    st(11)
    A(f"""
    s_cmp_ge_u32 s{S_WAVE}, 4
    s_cbranch_scc1 K_S1
    s_setprio 3
    v_lshlrev_b32 v28, 2, v0
    ds_read_b32 v29, v28
    v_mul_u32_u24 v30, {LS}, v0
    v_add_u32 v30, {L_LIST-4}, v30
    v_cmp_gt_u32 vcc, 200, v0
    s_mov_b64 {sr(T+6,2)}, vcc
    v_cmp_gt_u32 vcc, {NPB}, v0
    v_mov_b32 v37, {L_FLAG}
    v_mov_b32 v36, 1
    s_waitcnt lgkmcnt(0)
    v_sub_u32 v29, v29, v30
    v_lshrrev_b32 v29, 3, v29
    v_max_u32 v31, 1, v29
    v_min_u32 v31, 63, v31
    v_cndmask_b32 v31, 0, v31, vcc
    v_lshlrev_b32 v32, 2, v31
    v_sub_u32 v32, 252, v32
    s_mov_b64 exec, {sr(T+6,2)}
    ds_add_rtn_u32 v33, v32, v36 offset:{L_H2}
    v_cmpx_lt_u32 vcc, {CAP//2}, v29
    ds_write_b32 v37, v38
    s_mov_b64 exec, -1
    v_lshlrev_b32 v34, 2, v{V_LANE}
    s_waitcnt lgkmcnt(0)
K_S1:
    s_barrier
    s_cmp_ge_u32 s{S_WAVE}, 4
    s_cbranch_scc1 K_S2
    ds_read_b32 v35, v34 offset:{L_H2}
    s_waitcnt lgkmcnt(0)
    v_mov_b32 v36, v35
    """)
    scan(A, 36)
    A(f"""
    v_sub_u32 v36, v36, v35
    ds_bpermute_b32 v36, v32, v36
    s_waitcnt lgkmcnt(0)
    v_add_u32 v33, v33, v36
    v_lshlrev_b32 v36, 2, v33
    v_and_b32 v35, 7, v33
    v_lshrrev_b32 v33, 1, v33
    s_mov_b64 exec, {sr(T+6,2)}
    ds_write_b32 v36, v0 offset:{L_ORD}
    v_cmpx_eq_u32 vcc, 0, v35
    ds_write_b32 v33, v31 offset:{L_LG}
    s_mov_b64 exec, -1
K_S2:
    v_and_b32 v34, 31, v{V_LANE}
    v_lshlrev_b32 v34, 2, v34
    v_mov_b32 v37, {L_FLAG}
    s_and_b32 s{S_WP}, s{S_WAVE}, 3
    s_lshl_b32 s{S_WP}, s{S_WP}, 2
    s_lshr_b32 s{T}, s{S_WAVE}, 2
    s_add_u32 s{S_WP}, s{S_WP}, s{T}
    s_waitcnt lgkmcnt(0)
    s_barrier
    """)
    st(12)
    A(f"""
    s_setprio 3
    ds_read_b32 v35, v34 offset:{L_LG}
    ds_read_b32 v38, v37
    s_waitcnt lgkmcnt(0)
    v_mov_b32 v36, v35
    v_readfirstlane_b32 s{T}, v38
    s_cmp_lg_u32 s{T}, 0
    s_cbranch_scc1 K_SLOW
    """)
    scan(A, 36, upto=32)
    A(f"""
    v_readlane_b32 s{S_TT}, v36, 31
    s_mul_i32 s{T+1}, s{S_WP}, s{S_TT}
    s_add_u32 s{T+2}, s{T+1}, s{S_TT}
    s_lshr_b32 s{T+1}, s{T+1}, 4
    s_lshr_b32 s{T+2}, s{T+2}, 4
    s_sub_u32 s{S_N1}, s{T+2}, s{T+1}
    s_sub_u32 s{S_N1}, s{S_N1}, 1
    s_min_u32 s{S_N1}, s{S_N1}, 58
    v_cmp_ge_u32 vcc, s{T+1}, v36
    s_bcnt1_i32_b32 s{S_GC}, vcc_lo
    s_lshl_b32 s{T+3}, s{S_GC}, 5
    v_add_u32 v{V_OA}, s{T+3}, v{V_OA}
    ds_read_b32 v{V_LC}, v{V_OA} offset:{L_ORD}
    ds_read_b32 v{V_LN}, v{V_OA} offset:{L_ORD+32}
    v_sub_u32 v35, v36, v35
    v_readlane_b32 s{S_GS}, v35, s{S_GC}
    s_mov_b32 s{S_GF}, s{S_GC}
    v_subrev_u32 v36, s{T+1}, v36
    v_subrev_u32 v36, 1, v36
    v_cmp_gt_u32 vcc, 64, v36
    v_mov_b32 v40, 1
    v_mov_b32 v41, 0
    v_lshlrev_b64 v[40:41], v36, v[40:41]
    v_cndmask_b32 v40, 0, v40, vcc
    v_cndmask_b32 v41, 0, v41, vcc
    """)
    for sh in (1, 2, 4, 8):
        for v in (40, 41):
            A(f"v_or_b32_dpp v{v}, v{v}, v{v} row_shr:{sh} row_mask:0xf bank_mask:0xf")
    for v in (40, 41):
        A(f"v_or_b32_dpp v{v}, v{v}, v{v} row_bcast:15 row_mask:0xa bank_mask:0xf")
    A(f"""
    v_readlane_b32 s{S_FL}, v40, 31
    v_readlane_b32 s{S_FL+1}, v41, 31
    s_sub_u32 s{T+4}, s{T+1}, s{S_GS}
    s_cmp_lg_u32 s{T+4}, 0
    s_cselect_b32 s{S_HEAD}, 1, 0
    s_lshl_b32 s{T+4}, s{T+4}, 3
    s_add_u32 s{T+4}, s{T+4}, {L_LIST}
    s_movk_i32 s{T+5}, {LS}
    v_mov_b32 v36, s{T+4}
    s_waitcnt lgkmcnt(0)
    v_mad_u32_u24 v{V_P}, v{V_LC}, s{T+5}, v36
    v_mov_b32 v{V_NB}, v{V_LN}
    """)
    for j in range(R):
        for x in rd_rec(0, j): A(x)
        if j == 0:
            A(f"""
            s_movk_i32 s{T+5}, {AUS}
            v_mad_u32_u24 v36, v{V_LC}, s{T+5}, v{V_AUC}
            ds_read_b128 {vr(V_EA,4)}, v36
            ds_read_b128 {vr(V_UX,4)}, v36 offset:128
            v_mad_u32_u24 v36, v{V_LN}, s{T+5}, v{V_AUC}
            ds_read_b128 {vr(V_AN,4)}, v36
            """)
        A(f"""
        v_add_u32 v{V_P}, 8, v{V_P}
        s_bitcmp1_b64 {sr(S_FL,2)}, {j}
        s_cbranch_scc0 K_PR{j}
        s_mov_b32 s{S_U}, -1
        s_call_b64 {sr(S_RET2,2)}, K_FETCH
K_PR{j}:
        """)
        if j < D:
            A("s_waitcnt lgkmcnt(0)")
            for x in ld_rows(j): A(x)
    A(f"""
    s_lshr_b64 {sr(S_FF,2)}, {sr(S_FL,2)}, {R}
    s_or_b64 {sr(S_EV,2)}, {sr(S_FL,2)}, {sr(S_FF,2)}
    s_lshl_b64 {sr(T,2)}, 1, s{S_N1}
    s_or_b64 {sr(S_EV,2)}, {sr(S_EV,2)}, {sr(T,2)}
    s_lshr_b64 {sr(T+2,2)}, {sr(T,2)}, 2
    s_or_b64 {sr(S_EV,2)}, {sr(S_EV,2)}, {sr(T+2,2)}
    s_lshr_b64 {sr(T+2,2)}, {sr(T,2)}, 4
    s_or_b64 {sr(S_EV,2)}, {sr(S_EV,2)}, {sr(T+2,2)}
    s_lshr_b64 {sr(T+2,2)}, {sr(T,2)}, 7
    s_or_b64 {sr(S_EV,2)}, {sr(S_EV,2)}, {sr(T+2,2)}
    s_mov_b64 {sr(S_EVC,2)}, {sr(S_EV,2)}
    """)
    for i in range(4): A(f"v_exp_f32 v{V_EA+i}, v{V_EA+i}")
    for i in range(8): A(f"v_mov_b32 v{V_NUM+i}, 0")
    st(13)
    A(".p2align 6")
    A.label("K_LOOP")
    for u in range(U):
        d, r = u % D, u % R
        A(f"s_waitcnt vmcnt({2*(D-1)}) lgkmcnt(0)")
        for x in c_head(d, r) + ld_rows(d) + rd_rec(8*u, r) + c_rest(): A(x)
        A(f"s_bitcmp1_b64 {sr(S_EV,2)}, {u}")
        A(f"s_cbranch_scc1 K_EV{u}")
        A.label(f"K_RT{u}")
    A(f"""
    v_add_u32 v{V_P}, {8*U}, v{V_P}
    s_lshr_b64 {sr(S_EV,2)}, {sr(S_EV,2)}, {U}
    s_cbranch_scc1 K_LOOP
    s_branch K_TAIL
    """)
    for u in range(U):
        A(f"""
K_EV{u}:
        s_mov_b32 s{S_U}, {u}
        s_call_b64 {sr(S_RET,2)}, K_EVENT
        s_branch K_RT{u}
        """)
    A(f"""
K_FETCH:
    s_add_u32 s{S_GF}, s{S_GF}, 1
    s_lshl_b32 s{T}, s{S_U}, 3
    s_sub_u32 s{T}, {L_LIST-8}, s{T}
    v_mov_b32 v{V_X0}, s{T}
    s_movk_i32 s{T+1}, {LS}
    v_mad_u32_u24 v{V_P}, v{V_NB}, s{T+1}, v{V_X0}
    s_sub_u32 s{T}, s{S_GF}, s{S_GC}
    s_lshl_b32 s{T}, s{T}, 5
    v_add_u32 v{V_X0}, s{T}, v{V_OA}
    ds_read_b32 v{V_NB}, v{V_X0} offset:{L_ORD+32}
    s_setpc_b64 {sr(S_RET2,2)}
K_EVENT:
    s_ff1_i32_b64 s{T+4}, {sr(S_EVC,2)}
    s_bitset0_b64 {sr(S_EVC,2)}, s{T+4}
    s_bitcmp1_b64 {sr(S_FF,2)}, s{T+4}
    s_cbranch_scc0 K_E1
    s_call_b64 {sr(S_RET2,2)}, K_FETCH
K_E1:
    s_bitcmp1_b64 {sr(S_FL,2)}, s{T+4}
    s_cbranch_scc0 K_E3
    s_cmp_eq_u32 s{S_HEAD}, 1
    s_cbranch_scc0 K_E2
    s_mov_b32 s{S_HEAD}, 2
    """)
    for i in range(8): A(f"v_mov_b32 v{V_HD+i}, v{V_NUM+i}")
    for i in range(4): A(f"v_mov_b32 v{V_HUX+i}, v{V_UX+i}")
    A(f"v_mov_b32 v{V_HL}, v{V_LC}")
    A("s_branch K_E2B")
    A.label("K_E2")
    finalize(A, V_NUM, V_DEN, V_UX, V_LC)
    A(f"""
K_E2B:
    s_cmp_eq_u32 s{T+4}, s{S_N1}
    s_cbranch_scc1 K_DONE
    s_add_u32 s{S_GC}, s{S_GC}, 1
    v_add_u32 v{V_OA}, 32, v{V_OA}
    v_mov_b32 v{V_LC}, v{V_LN}
    ds_read_b32 v{V_LN}, v{V_OA} offset:{L_ORD+32}
    s_movk_i32 s{T+1}, {AUS}
    v_mad_u32_u24 v{V_X0}, v{V_LC}, s{T+1}, v{V_AUC}
    ds_read_b128 {vr(V_UX,4)}, v{V_X0} offset:128
    """)
    for i in range(4): A(f"v_exp_f32 v{V_EA+i}, v{V_AN+i}")
    for i in range(8): A(f"v_mov_b32 v{V_NUM+i}, 0")
    A(f"""
    s_waitcnt lgkmcnt(1)
    v_mad_u32_u24 v{V_X0}, v{V_LN}, s{T+1}, v{V_AUC}
    ds_read_b128 {vr(V_AN,4)}, v{V_X0}
K_E3:
    s_sub_u32 s{T}, s{S_N1}, s{T+4}
    s_cmp_eq_u32 s{T}, 0
    s_cbranch_scc1 K_TAIL
    s_cmp_gt_u32 s{T}, 7
    s_cbranch_scc1 K_E4
    s_setprio 2
    s_cmp_gt_u32 s{T}, 4
    s_cbranch_scc1 K_E4
    s_setprio 1
    s_cmp_gt_u32 s{T}, 2
    s_cbranch_scc1 K_E4
    s_setprio 0
K_E4:
    s_setpc_b64 {sr(S_RET,2)}
K_TAIL:
    s_lshl_b32 s{T}, s{S_WP}, 11
    s_add_u32 s{T}, s{T}, {L_SIDE}
    v_lshl_add_u32 v{V_X0}, v{V_LANE}, 4, s{T}
    ds_write_b128 v{V_X0}, {vr(V_NUM,4)}
    ds_write_b128 v{V_X0}, {vr(V_DEN,4)} offset:1024
K_DONE:
    s_waitcnt lgkmcnt(0)
    """)
    st(14)
    A(f"""
    s_barrier
    s_cmp_eq_u32 s{S_HEAD}, 2
    s_cbranch_scc0 K_FIN
    v_lshlrev_b32 v{V_X1}, 4, v{V_LANE}
K_HL:
    s_sub_u32 s{S_WP}, s{S_WP}, 1
    s_lshl_b32 s{T}, s{S_WP}, 11
    s_add_u32 s{T}, s{T}, {L_SIDE}
    v_add_u32 v{V_X0}, s{T}, v{V_X1}
    ds_read_b128 {vr(V_NUM,4)}, v{V_X0}
    ds_read_b128 {vr(V_DEN,4)}, v{V_X0} offset:1024
    s_mul_i32 s{T}, s{S_WP}, s{S_TT}
    s_lshr_b32 s{T}, s{T}, 4
    s_waitcnt lgkmcnt(0)
    """)
    for k in range(4): A(f"v_pk_add_f32 {vr(V_HD+2*k,2)}, {vr(V_HD+2*k,2)}, {vr(V_NUM+2*k,2)}")
    A(f"""
    s_cmp_gt_u32 s{T}, s{S_GS}
    s_cselect_b32 s{T}, s{S_WP}, 0
    s_cmp_gt_i32 s{T}, 0
    s_cbranch_scc1 K_HL
    """)
    finalize(A, V_HD, V_HD+4, V_HUX, V_HL)
    A.label("K_FIN")
    if diag:
        A("s_waitcnt vmcnt(0)")
        st(15)
        A(f"""
        s_lshl_b32 s{T}, s2, 4
        s_add_u32 s{T}, s{T}, s{S_WAVE}
        s_lshl_b32 s{T}, s{T}, 7
        s_add_u32 s{T}, s{T}, {WS_STAMP}
        v_lshlrev_b32 v{V_X0}, 2, v{V_LANE}
        v_cmpx_gt_u32 vcc, 32, v{V_LANE}
        buffer_store_dword v{V_STAMP}, v{V_X0}, {srd(S_WS)}, s{T} offen
        """)
        if "--persist" in sys.argv:
            A(f"""
            s_mov_b64 exec, -1
            s_or_b32 s{T}, s2, s{S_WAVE}
            s_cmp_lg_u32 s{T}, 0
            s_cbranch_scc1 K_END
            v_mov_b32 v30, 0
            s_mov_b32 s{T+3}, {WS_EP+256}
            buffer_load_dword v31, v30, {srd(S_WS)}, s{T+3} offen sc1
            s_waitcnt vmcnt(0)
            v_readfirstlane_b32 s{T+4}, v31
            v_mov_b32 v31, 0x12345678
            buffer_store_dword v31, v30, {srd(S_WS)}, s{T+3} offen sc1
            v_readlane_b32 s{T}, v{V_STAMP}, 16
            s_cmp_eq_u32 s{T+4}, 0x12345678
            s_movk_i32 s{T+5}, 6000
            s_cselect_b32 s{T+1}, 10000, s{T+5}
K_DSP2:
            s_sleep 1
            s_memrealtime s[100:101]
            s_waitcnt lgkmcnt(0)
            s_sub_u32 s{T+2}, s100, s{T}
            s_cmp_lt_u32 s{T+2}, s{T+1}
            s_cbranch_scc1 K_DSP2
            """)
        if "--spink" in sys.argv:
            k = opt("--spink", 0); w = opt("--spinw", 7)
            A(f"""
            s_mov_b64 exec, -1
            s_cmp_lg_u32 s{S_WAVE}, {w}
            s_cbranch_scc1 K_END
            """)
            if "--cond" in sys.argv:
                c = opt("--cond", "cold")
                A(f"""
                v_mov_b32 v30, 0
                s_lshl_b32 s{T+3}, s2, 7
                s_add_u32 s{T+3}, s{T+3}, {WS_EP+4096}
                buffer_load_dword v31, v30, {srd(S_WS)}, s{T+3} offen sc1
                s_waitcnt vmcnt(0)
                v_readfirstlane_b32 s{T+4}, v31
                v_mov_b32 v31, 0x12345678
                buffer_store_dword v31, v30, {srd(S_WS)}, s{T+3} offen sc1
                s_cmp_eq_u32 s{T+4}, 0x12345678
                s_cbranch_scc{1 if c == "cold" else 0} K_END
                """)
            A(f"""
            v_readlane_b32 s{T}, v{V_STAMP}, 16
            v_readlane_b32 s{T+1}, v{V_STAMP}, {16+k}
            s_sub_u32 s{T+1}, s{T+1}, s{T}
            s_mul_i32 s{T+1}, s{T+1}, 10
            s_add_u32 s{T+1}, s{T+1}, 6000
            s_min_u32 s{T+1}, s{T+1}, 100000
K_DSP:
            s_sleep 1
            s_memrealtime s[100:101]
            s_waitcnt lgkmcnt(0)
            s_sub_u32 s{T+2}, s100, s{T}
            s_cmp_lt_u32 s{T+2}, s{T+1}
            s_cbranch_scc1 K_DSP
            """)
        if "--dbg" in sys.argv:
            mk_srd(A, S_B, KDBG, 256)
            sel = opt("--dbgwg", -1)
            if sel >= 0:
                A(f"s_cmp_lg_u32 s2, {sel}")
                A("s_cbranch_scc1 K_END")
            A(f"""
            s_mov_b64 exec, -1
            v_readlane_b32 s{T}, v{V_STAMP}, 16
            s_not_b32 s{T}, s{T}
            v_writelane_b32 v{V_STAMP}, s{T}, 20
            v_subrev_u32 v{V_X0}, 64, v{V_X0}
            s_mov_b32 exec_lo, 0xfffe0000
            s_mov_b32 exec_hi, 0
            buffer_atomic_umax v{V_STAMP}, v{V_X0}, {srd(S_B)}, 0 offen sc1
            """)
    A("""
K_END:
    s_endpgm
    """)
    WQ = 64
    A(f"""
K_SLOW:
    s_setprio 0
    s_waitcnt vmcnt(0)
    v_mov_b32 v36, 0
    v_mov_b32 v37, 0
    v_mov_b32 v38, 0
    v_mov_b32 v39, 0
    v_lshlrev_b32 v29, 4, v0
    v_add_u32 v29, {L_LIST}, v29
    ds_write_b128 v29, v[36:39]
    ds_write_b128 v29, v[36:39] offset:16384
    ds_write_b128 v29, v[36:39] offset:32768
    ds_write_b128 v29, v[36:39] offset:49152
    v_and_b32 v28, 31, v{V_LANE}
    v_lshlrev_b32 v30, 1, v28
    s_lshl_b32 s{T}, s{S_HALF}, 6
    """)
    mk_srd(A, S_A, KWB, 8192)
    mk_srd(A, S_B, KWV, 8192)
    A(f"s_mov_b32 s{T+1}, s{T}")
    for k2 in range(32):
        A(f"""
        s_mov_b32 exec_hi, 0
        buffer_load_ushort v32, v30, {srd(S_A)}, s{T+1} offen
        buffer_load_ushort v33, v30, {srd(S_A)}, s{T+1} offen offset:128
        s_not_b64 exec, exec
        buffer_load_ushort v32, v30, {srd(S_B)}, s{T+1} offen
        buffer_load_ushort v33, v30, {srd(S_B)}, s{T+1} offen offset:128
        s_mov_b64 exec, -1
        s_add_u32 s{T+1}, s{T+1}, 256
        s_waitcnt vmcnt(0)
        v_lshl_or_b32 v{WQ+k2}, v33, 16, v32
        """)
    mk_srd(A, S_A, KWC, 128)
    A(f"""
    buffer_load_ushort v34, v30, {srd(S_A)}, s{T} offen
    v_lshlrev_b32 v30, 2, v28
    v_lshrrev_b32 v31, 5, v{V_LANE}
    v_xor_b32 v31, 1, v31
    v_lshl_add_u32 v35, v31, 7, v30
    v_add_u32 v35, {L_LIST}, v35
    v_add_u32 v30, {L_AU}, v30
    v_lshlrev_b32 v31, 2, v28
    s_waitcnt vmcnt(0) lgkmcnt(0)
    v_lshlrev_b32 v34, 16, v34
    v_mul_f32 v34, 0x{f2u(-LOG2E):08x}, v34
    """)
    mk_srd(A, S_A, KDST, E*4)
    mk_srd(A, S_B, KSRC, E*4)
    mk_srd(A, S_TAB, KE, E*2)
    XS = 34
    A(f"""
    s_barrier
    v_mov_b32 v36, v0
    s_mov_b32 s{S_T0}, {E}
K_SB:
    v_lshlrev_b32 v37, 2, v36
    v_lshlrev_b32 v38, 1, v36
    buffer_load_dword v39, v37, {srd(S_A)}, 0 offen
    buffer_load_dword v40, v37, {srd(S_B)}, 0 offen
    buffer_load_ushort v41, v38, {srd(S_TAB)}, 0 offen
    v_cmp_gt_u32 {sr(52,2)}, s{S_T0}, v36
    s_waitcnt vmcnt(0)
    v_subrev_u32 v39, s{S_NB}, v39
    v_cmp_gt_u32 vcc, {NPB}, v39
    s_and_b64 {sr(52,2)}, {sr(52,2)}, vcc
K_SE:
    s_cmp_eq_u64 {sr(52,2)}, 0
    s_cbranch_scc1 K_SN
    s_ff1_i32_b64 s34, {sr(52,2)}
    s_bitset0_b64 {sr(52,2)}, s34
    v_readlane_b32 s35, v40, s34
    v_readlane_b32 s{S_T1}, v39, s34
    v_readlane_b32 s{S_PF}, v41, s34
    s_min_u32 s35, s35, {N-1}
    s_lshl_b32 s35, s35, 7
    s_load_dwordx16 s[36:51], {sr(KX,2)}, s35
    s_add_u32 s35, s35, 64
    s_load_dwordx16 s[60:75], {sr(KX,2)}, s35
    s_mul_i32 s34, s{S_T1}, {AUS}
    v_add_u32 v42, s34, v30
    ds_read_b32 v43, v42
    s_lshl_b32 s{S_PF}, s{S_PF}, 16
    s_lshl_b32 s{S_T1}, s{S_T1}, 8
    v_mov_b32 v48, 0
    v_mov_b32 v49, 0
    s_waitcnt lgkmcnt(0)
    """)
    for k2 in range(16):
        A(f"v_dot2_f32_bf16 v48, s{36+k2}, v{WQ+k2}, v48")
        A(f"v_dot2_f32_bf16 v49, s{60+k2}, v{WQ+16+k2}, v49")
    A(f"""
    s_nop 3
    v_add_f32 v48, v48, v49
    v_fma_f32 v43, s{S_PF}, v34, v43
    v_mul_f32 v49, 0x{f2u(-LOG2E):08x}, v48
    v_add_f32 v49, v49, v43
    v_exp_f32 v49, v49
    v_add_f32 v49, s{S_C}, v49
    v_rcp_f32 v49, v49
    s_nop 1
    ds_bpermute_b32 v49, v31, v49
    v_cmp_gt_u32 vcc, 32, v{V_LANE}
    v_cndmask_b32 v48, v48, 1.0, vcc
    v_add_u32 v42, s{S_T1}, v35
    s_waitcnt lgkmcnt(0)
    v_mul_f32 v49, v49, v48
    ds_add_f32 v42, v49
    s_branch K_SE
K_SN:
    v_add_u32 v36, 1024, v36
    v_readfirstlane_b32 s34, v36
    s_cmp_lt_u32 s34, {E}
    s_cbranch_scc1 K_SB
    s_mov_b32 s{S_MSK}, 0xffff0000
    s_movk_i32 s34, {AUS}
    s_waitcnt lgkmcnt(0)
    s_barrier
    v_lshrrev_b32 v{V_LC}, 3, v0
    v_add_u32 v{V_X1}, {L_LIST}, v{V_I0+1}
    """)
    for it in range(2):
        A(f"""
        v_min_u32 v36, 199, v{V_LC}
        v_mad_u32_u24 v37, v36, s34, v{V_AUC}
        ds_read_b128 {vr(V_UX,4)}, v37 offset:128
        v_lshl_add_u32 v39, v36, 8, v{V_X1}
        ds_read_b128 {vr(V_NUM,4)}, v39
        ds_read_b128 {vr(V_DEN,4)}, v39 offset:128
        s_waitcnt lgkmcnt(0)
        """)
        finalize(A, V_NUM, V_DEN, V_UX, V_LC)
        A(f"v_add_u32 v{V_LC}, 128, v{V_LC}")
    A("s_endpgm")

HEADER = open(f"cdna_kernels/{NAME}.s.ref").read().split("; Override")[0]

def build(diag=False):
    A = Asm()
    out = HEADER
    out += f"; @launch grid=(256,1,1) block=(1024,1,1) lds={LDS}\n"
    out += '.amdgcn_target "amdgcn-amd-amdhsa--gfx950"\n.text\n'
    out += f".globl {NAME}_kernel\n.p2align 8\n.type {NAME}_kernel,@function\n"
    gen(A, diag)
    out += A.text()
    out += f""".section .rodata,"a"
.p2align 6
.amdhsa_kernel {NAME}_kernel
  .amdhsa_next_free_vgpr 128
  .amdhsa_next_free_sgpr 102
  .amdhsa_accum_offset 128
  .amdhsa_group_segment_fixed_size 0
  .amdhsa_kernarg_size 96
  .amdhsa_user_sgpr_count 2
  .amdhsa_user_sgpr_kernarg_segment_ptr 1
  .amdhsa_system_sgpr_workgroup_id_x 1
  .amdhsa_float_denorm_mode_32 3
.end_amdhsa_kernel
"""
    return out

if __name__ == "__main__":
    diag = "--diag" in sys.argv
    path = sys.argv[1] if len(sys.argv) > 1 and not sys.argv[1].startswith("--") else f"cdna_kernels/{NAME}.s"
    open(path, "w").write(build(diag))
    print("wrote", path, "LDS", LDS)
```

```python
import sys, struct
sys.path.insert(0, "gen")
import hazard
VERBOSE = "--verbose" in sys.argv
def opt(name, default):
    if name in sys.argv: return type(default)(sys.argv[sys.argv.index(name)+1])
    return default

NAME = "standalone__edge_featured_mpnn_gatedgcn__graph"
N, E = 25000, 800000
CH = 3128
NT = CH // 8
NPB = 196
CHP = 3584
WS_REC  = 0
WS_LOC  = 0x380000
WS_OFFS = 0x460000
WS_TF   = 0x4A0000
WS_EP   = 0x4A1000
WS_STAMP = 0x4B0000
WS_TAB  = 0x600000
HS      = 0x320000
PADROW  = 25088
WS_SIZE = WS_TAB + 2*HS
assert 256*CHP*4 <= WS_LOC and WS_LOC + 256*CHP <= WS_OFFS
L_CNT, L_H2, L_LG, L_FLAG, L_ORD, L_BL = 0, 1024, 1280, 1408, 1536, 2560
L_C2, L_C3, L_CX, L_CP, L_CY, L_CE, L_CL = L_FLAG+8, L_FLAG+12, L_FLAG+16, L_FLAG+20, L_FLAG+24, L_FLAG+28, L_FLAG+32
L_TAG = L_FLAG+40
L_HIST, L_OFF, L_LOC = 3072, 3584, 4096
L_AU   = L_LOC + CHP
AUS    = 272
L_WBV  = L_AU
L_REC  = L_AU + 16384
L_TST  = L_AU + 16384 + CHP*4
L_SIDE = L_AU + 200*AUS
L_XST  = L_SIDE
L_WAU  = L_SIDE + 25600
L_LIST = L_SIDE + 33792
LS     = 296
CAP    = 74
LDS    = L_LIST + 200*LS
assert LDS <= 163840 and L_SIDE % 128 == 0, (LDS, L_SIDE)
BLCAP  = 128
SH = 48
LOG2E = 1.4426950408889634
D = opt("--depth", 2)
R = D + 1
U = D * R
SPIN = opt("--spin", 30000)
FORCE_SLOW = "--slow" in sys.argv
PFA = opt("--pfa", 0)
PFAN = opt("--pfan", 1)
ENT = " nt" if "--nt" in sys.argv else ""
XNT = " nt" if "--xnt" in sys.argv else ""
RPF = "--rpf" in sys.argv
RS = opt("--recst", "sc1").replace("+", " ")
WSOFF = opt("--wsoff", 0)
GLD = opt("--gld", "sc1").replace("+", " ")

def f2u(x): return struct.unpack("<I", struct.pack("<f", x))[0]

class Asm:
    def __init__(self): self.l = []
    def __call__(self, s):
        for ln in s.strip("\n").split("\n"):
            t = ln.strip()
            if not t: continue
            self.l.append(t if t.endswith(":") else "    " + t)
    def label(self, n): self.l.append(n + ":")
    def text(self): return "\n".join(hazard.fix(self.l, VERBOSE)) + "\n"

def vr(a, n=1): return f"v{a}" if n == 1 else f"v[{a}:{a+n-1}]"
def sr(a, n=1): return f"s{a}" if n == 1 else f"s[{a}:{a+n-1}]"
def srd(b): return f"s[{b}:{b+3}]"
def mfma(d, a, b, c): return f"v_mfma_f32_32x32x16_bf16 {d}, {a}, {b}, {c}"

def scan(A, v, op="v_add_u32", upto=64):
    for sh in (1, 2, 4, 8):
        A(f"{op}_dpp v{v}, v{v}, v{v} row_shr:{sh} row_mask:0xf bank_mask:0xf")
    if upto >= 32:
        A(f"{op}_dpp v{v}, v{v}, v{v} row_bcast:15 row_mask:0xa bank_mask:0xf")
    if upto >= 64:
        A(f"{op}_dpp v{v}, v{v}, v{v} row_bcast:31 row_mask:0xc bank_mask:0xf")

V_LANE, V_P, V_NB, V_OA = 1, 2, 3, 4
V_AUC, V_OUTC = 5, 6
V_LC = 7
V_NUM, V_DEN = 8, 12
V_EA, V_WC = 16, 20
V_T, V_V, V_M = 24, 32, 40
V_I0, V_I1 = 44, 46
V_S, V_Q = 48, 52
V_UX = 56
V_LN = 60
V_HL = 61
V_X0, V_X1 = 62, 63
V_DAT = 64
V_E = 96
V_HD = 104
V_HUX = 112
V_AN = 116
V_DUMMY = 126
V_STAMP = 127
S_WS, S_TAB, S_OUT, S_X = 4, 8, 12, 16
S_A, S_B = 20, 24
S_C = 28
S_BIN, S_HALF, S_WAVE, S_WP = 30, 31, 32, 33
S_EV, S_EVC, S_FL, S_FF = 34, 36, 38, 40
S_N1, S_GC, S_GF, S_HEAD, S_U, S_TT, S_GS = 42, 43, 44, 45, 46, 47, 48
S_MSK = 49
S_RET, S_RET2 = 50, 52
S_EPS = 54
S_T0, S_T1 = 56, 57
S_PF = 58
S_NB = 59
S_T = 60
S_K = 76
KX, KE, KSRC, KDST, KWA, KWB, KWC, KWU, KWV, KOUT, KDBG, KWS = [S_K + 2*i for i in range(12)]

def stamp(A, idx, on):
    if on:
        A(f"s_memtime s[100:101]")
        A("s_waitcnt lgkmcnt(0)")
        A(f"v_writelane_b32 v{V_STAMP}, s100, {idx}")
        A(f"s_memrealtime s[100:101]")
        A("s_waitcnt lgkmcnt(0)")
        A(f"v_writelane_b32 v{V_STAMP}, s100, {idx+16}")

def mk_srd(A, d, ptr, nbytes):
    A(f"s_mov_b32 s{d}, s{ptr}")
    A(f"s_mov_b32 s{d+1}, s{ptr+1}")
    A(f"s_mov_b32 s{d+2}, {nbytes}")
    A(f"s_mov_b32 s{d+3}, 0x20000")

def ld_rows(d):
    b = V_DAT + 8*d
    return [f"buffer_load_dwordx4 {vr(b,4)}, {vr(V_I0,2)}, {srd(S_TAB)}, 0 idxen offen {GLD}",
            f"buffer_load_dwordx4 {vr(b+4,4)}, {vr(V_I1,2)}, {srd(S_TAB)}, 0 idxen offen {GLD}"]
def rd_rec(off, r):
    return [f"ds_read_u16 v{V_I0}, v{V_P} offset:{off}",
            f"ds_read_u16 v{V_I1}, v{V_P} offset:{off+4}",
            f"ds_read_u16_d16_hi v{V_E+2*r}, v{V_P} offset:{off+2}",
            f"ds_read_u16_d16_hi v{V_E+2*r+1}, v{V_P} offset:{off+6}"]
def c_head(d, r):
    b = V_DAT + 8*d; e = V_E + 2*r
    o = []
    for h in range(2):
        for k in range(2):
            sel = "op_sel_hi:[0,1,1]" if h == 0 else "op_sel:[1,0,0] op_sel_hi:[1,1,1]"
            o.append(f"v_pk_fma_f32 {vr(V_T+4*h+2*k,2)}, {vr(e,2)}, {vr(V_WC+2*k,2)}, {vr(b+4*h+2*k,2)} {sel}")
    for i in range(4): o.append(f"v_lshlrev_b64 {vr(V_V+2*i,2)}, 16, {vr(b+2*i,2)}")
    return o
def c_rest():
    o = []
    T, V, M, S, Q = V_T, V_V, V_M, V_S, V_Q
    for i in range(8): o.append(f"v_exp_f32 v{T+i}, v{T+i}")
    for i in range(4): o.append(f"v_pk_fma_f32 {vr(T+2*i,2)}, {vr(T+2*i,2)}, {vr(V_EA+2*(i%2),2)}, {sr(S_C,2)} clamp")
    for k in range(2): o.append(f"v_pk_mul_f32 {vr(M+2*k,2)}, {vr(T+2*k,2)}, {vr(T+4+2*k,2)}")
    for i in range(4): o.append(f"v_rcp_f32 v{M+i}, v{M+i}")
    for k in range(2): o.append(f"v_pk_add_f32 {vr(S+2*k,2)}, {vr(T+2*k,2)}, {vr(T+4+2*k,2)}")
    for k in range(2): o.append(f"v_pk_mul_f32 {vr(Q+2*k,2)}, {vr(V+2*k,2)}, {vr(T+4+2*k,2)}")
    for k in range(2): o.append(f"v_pk_fma_f32 {vr(Q+2*k,2)}, {vr(V+4+2*k,2)}, {vr(T+2*k,2)}, {vr(Q+2*k,2)}")
    for k in range(2): o.append(f"v_pk_fma_f32 {vr(V_DEN+2*k,2)}, {vr(S+2*k,2)}, {vr(M+2*k,2)}, {vr(V_DEN+2*k,2)}")
    for k in range(2): o.append(f"v_pk_fma_f32 {vr(V_NUM+2*k,2)}, {vr(Q+2*k,2)}, {vr(M+2*k,2)}, {vr(V_NUM+2*k,2)}")
    return o

def finalize(A, num, den, ux, loc):
    T, V = V_T, V_V
    for k in range(2): A(f"v_pk_add_f32 {vr(den+2*k,2)}, {vr(den+2*k,2)}, {sr(S_EPS,2)}")
    for i in range(4): A(f"v_rcp_f32 v{den+i}, v{den+i}")
    for i in range(4): A(f"v_and_b32 v{T+i}, s{S_MSK}, v{ux+i}")
    for i in range(4): A(f"v_lshlrev_b32 v{V+i}, 16, v{ux+i}")
    for k in range(2): A(f"v_pk_fma_f32 {vr(T+2*k,2)}, {vr(num+2*k,2)}, {vr(den+2*k,2)}, {vr(T+2*k,2)}")
    A(f"v_lshl_add_u32 v{T+4}, v{loc}, 7, v{V_OUTC}")
    A(f"v_cmp_gt_u32 vcc, {NPB}, v{loc}")
    for i in range(4): A(f"v_max_f32 v{T+i}, 0, v{T+i}")
    for k in range(2): A(f"v_pk_add_f32 {vr(T+2*k,2)}, {vr(T+2*k,2)}, {vr(V+2*k,2)}")
    A(f"v_cndmask_b32 v{T+4}, -1, v{T+4}, vcc")
    A(f"v_cvt_pk_bf16_f32 v{T+6}, v{T}, v{T+1}")
    A(f"v_cvt_pk_bf16_f32 v{T+7}, v{T+2}, v{T+3}")
    A(f"buffer_store_dwordx2 {vr(T+6,2)}, v{T+4}, {srd(S_OUT)}, 0 offen")

def arrive(A, addr, rtn=None):
    A(f"v_mov_b32 v120, {addr}")
    A("v_mov_b32 v121, 1")
    A("s_mov_b64 exec, 1")
    if rtn is None: A("ds_add_u32 v120, v121")
    else:
        A("ds_add_rtn_u32 v122, v120, v121")
        A("s_waitcnt lgkmcnt(0)")
        A(f"v_readfirstlane_b32 s{rtn}, v122")
    A("s_mov_b64 exec, -1")

def spin_lds(A, name, target):
    A(f"""
{name}:
    ds_read_b32 v122, v120
    s_waitcnt lgkmcnt(0)
    v_readfirstlane_b32 s{S_T}, v122
    s_cmp_lt_u32 s{S_T}, {target}
    s_cbranch_scc1 {name}
    """)

def get_tag(A, name):
    T = S_T
    A(f"""
    v_mov_b32 v120, {L_TAG}
{name}:
    ds_read_b64 v[122:123], v120
    s_waitcnt lgkmcnt(0)
    v_readfirstlane_b32 s{S_T0}, v122
    v_readfirstlane_b32 s{S_T1}, v123
    s_and_b32 s{T}, s{S_T0}, 3
    s_cbranch_scc0 {name}
    s_bfe_u32 s{T}, s{S_T0}, 0x40004
    s_lshl_b32 s{T}, s{T}, 24
    s_add_u32 s{S_WS}, s{KWS}, s{T}
    s_addc_u32 s{S_WS+1}, s{KWS+1}, 0
    s_mul_i32 s{T}, s{S_HALF}, {HS}
    s_add_u32 s{T}, s{T}, {WS_TAB}
    s_add_u32 s{S_TAB}, s{S_WS}, s{T}
    s_addc_u32 s{S_TAB+1}, s{S_WS+1}, 0
    s_or_b32 s{S_TAB+1}, s{S_TAB+1}, {128<<16}
    s_and_b32 s{S_T0}, s{S_T0}, 0xfff00002
    """)

def gen(A, diag):
    T = S_T
    EARLY = "--early" in sys.argv
    st = lambda i: stamp(A, i, diag and not (EARLY and 2 <= i <= 7))
    se = lambda i: stamp(A, i, diag and EARLY)
    A.label(f"{NAME}_kernel")
    A(f"""
    s_cmp_ge_u32 s2, 256
    s_cbranch_scc1 K_END
    s_load_dwordx16 {sr(S_K,16)}, s[0:1], 0
    s_load_dwordx8 {sr(S_K+16,8)}, s[0:1], 64
    s_and_b32 s{S_HALF}, s2, 1
    s_bfe_u32 s{T}, s2, 0x20001
    s_lshr_b32 s{T+1}, s2, 3
    s_lshl_b32 s{S_BIN}, s{T}, 5
    s_add_u32 s{S_BIN}, s{S_BIN}, s{T+1}
    s_mul_i32 s{S_NB}, s{S_BIN}, {NPB}
    v_readfirstlane_b32 s{S_WAVE}, v0
    s_lshr_b32 s{S_WAVE}, s{S_WAVE}, 6
    v_and_b32 v{V_LANE}, 63, v0
    v_and_b32 v26, 7, v{V_LANE}
    v_lshrrev_b32 v27, 4, v{V_LANE}
    v_xor_b32 v27, v26, v27
    v_lshlrev_b32 v27, 4, v27
    v_lshrrev_b32 v28, 3, v{V_LANE}
    v_lshl_add_u32 v24, v28, 7, v27
    v_xor_b32 v25, 64, v24
    v_lshlrev_b32 v29, 4, v{V_LANE}
    s_lshl_b32 s{T+6}, s{S_HALF}, 6
    s_lshl_b32 s{T+7}, s{S_NB}, 7
    s_sub_u32 s{T+9}, s{S_WAVE}, 7
    s_mov_b32 s{T+8}, {WS_EP}
    """)
    if diag: A(f"v_mov_b32 v{V_STAMP}, 0")
    if "--inv" in sys.argv:
        A(f"s_cmp_lg_u32 s{S_WAVE}, 0")
        A("s_cbranch_scc1 K_NINV")
        A("buffer_inv " + opt("--inv", "").replace("+", " "))
        A.label("K_NINV")
    A(f"""
    s_cmp_ge_u32 s{S_WAVE}, 7
    s_cbranch_scc1 K_L1
    s_mul_i32 s{T+2}, s{S_HALF}, 12
    s_lshl_b32 s{T+3}, s{S_WAVE}, 1
    s_add_u32 s{T+2}, s{T+2}, s{T+3}
    s_cmp_eq_u32 s{S_WAVE}, 6
    s_cselect_b32 s{T+2}, 24, s{T+2}
    s_lshl_b32 s{T+2}, s{T+2}, 10
    s_add_u32 m0, s{T+2}, {L_XST}
    s_add_u32 s{T+2}, s{T+2}, s{T+7}
    s_lshl_b32 s{T+3}, s{S_WAVE}, 10
    s_waitcnt lgkmcnt(0)
    """)
    st(0)
    A(f"""
    s_or_b32 s{T+14}, s2, s{S_WAVE}
    s_cmp_lg_u32 s{T+14}, 0
    s_cbranch_scc1 K_NEP
    s_memrealtime {sr(S_T0,2)}
    """)
    mk_srd(A, S_A, KDBG, 256)
    A(f"""
    v_lshlrev_b32 v34, 6, v{V_LANE}
    s_waitcnt lgkmcnt(0)
    s_lshl_b32 s{T+14}, s{S_T1}, 20
    s_mul_i32 s{T+15}, s{S_T0}, 0x9e3779b1
    s_lshr_b32 s{T+15}, s{T+15}, 28
    s_lshl_b32 s{T+15}, s{T+15}, 4
    s_and_b32 s{T+15}, s{T+15}, {0 if "--noreg" in sys.argv else 0xf0}
    s_or_b32 s{T+14}, s{T+14}, s{T+15}
    s_or_b32 s{T+14}, s{T+14}, 1
    v_mov_b32 v32, s{T+14}
    v_mov_b32 v33, s{S_T0}
    s_mov_b64 exec, 15
    buffer_store_dwordx2 v[32:33], v34, {srd(S_A)}, 0 offen sc1
    s_mov_b64 exec, -1
K_NEP:
    """)
    mk_srd(A, S_X, KX, N*128)
    mk_srd(A, S_A, KWB, 8192)
    mk_srd(A, S_B, KWV, 8192)
    A(f"""
    buffer_load_dwordx4 v24, {srd(S_X)}, s{T+2} offen lds
    s_cmp_eq_u32 s{S_WAVE}, 6
    s_cbranch_scc1 K_L0
    buffer_load_dwordx4 v25, {srd(S_X)}, s{T+2} offen offset:1024 lds
K_L0:
    s_add_u32 m0, s{T+3}, {L_WBV}
    s_nop 0
    buffer_load_dwordx4 v29, {srd(S_A)}, s{T+3} offen lds
    s_add_u32 m0, s{T+3}, {L_WBV+8192}
    s_cmp_eq_u32 s{S_WAVE}, 6
    buffer_load_dwordx4 v29, {srd(S_B)}, s{T+3} offen lds
    s_cbranch_scc0 K_L1
    buffer_load_dwordx4 v29, {srd(S_B)}, s{T+3} offen offset:1024 lds
    s_add_u32 m0, s{T+3}, {L_WBV}
    s_nop 0
    buffer_load_dwordx4 v29, {srd(S_A)}, s{T+3} offen offset:1024 lds
K_L1:
    v_mul_u32_u24 v30, {LS}, v0
    v_add_u32 v30, {L_LIST}, v30
    v_cmp_gt_u32 vcc, 200, v0
    v_mov_b32 v31, 0x40000000
    v_cndmask_b32 v30, v31, v30, vcc
    v_cmp_gt_u32 vcc, 256, v0
    v_subrev_u32 v32, 384, v0
    v_cndmask_b32 v30, 0, v30, vcc
    v_cmp_gt_u32 vcc, 256, v32
    v_mov_b32 v31, {NPB}
    v_cndmask_b32 v30, v30, v31, vcc
    v_lshlrev_b32 v31, 2, v0
    ds_write_b32 v31, v30
    v_subrev_u32 v34, 448, v0
    v_lshlrev_b32 v32, 4, v34
    v_lshlrev_b32 v33, 3, v34
    s_mul_i32 s{T+10}, s2, {CH*4}
    s_add_u32 s{T+11}, s{T+10}, {CH*2}
    s_lshr_b32 s{T+12}, s{T+10}, 1
    s_lshr_b32 s{T+13}, s{T+11}, 1
    s_waitcnt lgkmcnt(0)
    """)
    if diag:
        A(f"s_cmp_lt_u32 s{S_WAVE}, 7")
        A("s_cbranch_scc1 K_D0")
        st(0)
        A.label("K_D0")
    if WSOFF:
        A(f"s_add_u32 s{KWS}, s{KWS}, {WSOFF<<20}")
        A(f"s_addc_u32 s{KWS+1}, s{KWS+1}, 0")
    mk_srd(A, S_A, KDST, E*4)
    mk_srd(A, S_B, KSRC, E*4)
    mk_srd(A, S_WS, KE, E*2)
    mk_srd(A, S_X, KX, N*128)
    mk_srd(A, S_OUT, KWC, 128)
    DS_, SR_, EE_ = 64, 72, 80
    A(f"""
    v_lshlrev_b32 v27, 3, v26
    v_cmp_gt_u32 vcc, {NT}, v34
    v_mov_b32 v36, {PADROW}
    v_mov_b32 v37, {PADROW}
    v_mov_b32 v38, {PADROW}
    v_mov_b32 v39, {PADROW}
    v_lshlrev_b32 v30, 4, v0
    v_add_u32 v30, {L_LIST}, v30
    s_barrier
    buffer_load_dwordx2 {vr(V_WC+2,2)}, v27, {srd(S_OUT)}, s{T+6} offen
    s_cmp_ge_u32 s{T+9}, 7
    s_cbranch_scc1 K_NE0
    s_mov_b64 exec, vcc
    buffer_load_dwordx4 {vr(DS_,4)}, v32, {srd(S_A)}, s{T+10} offen{ENT}
    buffer_load_dwordx4 {vr(DS_+4,4)}, v32, {srd(S_A)}, s{T+11} offen{ENT}
    s_mov_b64 exec, -1
    v_mov_b32 v40, -1
    v_mov_b32 v41, -1
    ds_write_b64 v33, v[40:41] offset:{L_LOC}
K_NE0:
    ds_write_b128 v30, v[36:39]
    ds_write_b128 v30, v[36:39] offset:16384
    s_cbranch_scc1 K_NE
    s_mov_b64 exec, vcc
    buffer_load_dwordx4 {vr(SR_,4)}, v32, {srd(S_B)}, s{T+10} offen{ENT}
    buffer_load_dwordx4 {vr(SR_+4,4)}, v32, {srd(S_B)}, s{T+11} offen{ENT}
    buffer_load_dwordx2 {vr(EE_,2)}, v33, {srd(S_WS)}, s{T+12} offen{ENT}
    buffer_load_dwordx2 {vr(EE_+2,2)}, v33, {srd(S_WS)}, s{T+13} offen{ENT}
    s_mov_b64 exec, -1
K_NE:
    ds_write_b128 v30, v[36:39] offset:32768
    ds_write_b128 v30, v[36:39] offset:49152
    """)
    se(2)
    mk_srd(A, S_WS, KWS, WS_SIZE)
    mk_srd(A, S_OUT, KOUT, N*128)
    A(f"""
    s_mul_i32 s{T+2}, s{S_HALF}, {HS}
    s_add_u32 s{T+2}, s{T+2}, {WS_TAB}
    s_mov_b32 s{S_TAB+2}, {PADROW+1}
    s_mov_b32 s{S_TAB+3}, 0x20000
    s_mul_i32 s{S_PF}, s{T+1}, {784*128}
    s_add_u32 s{S_PF}, s{S_PF}, s{T+2}
    s_add_u32 s{T+3}, s{T+7}, s{T+6}
    v_add_u32 v{V_OUTC}, s{T+3}, v27
    v_lshlrev_b32 v{V_I0+1}, 4, v26
    v_mov_b32 v{V_I1+1}, v{V_I0+1}
    v_add_u32 v{V_AUC}, {L_AU}, v{V_I0+1}
    v_lshlrev_b32 v{V_OA}, 2, v28
    s_mov_b32 s{S_C}, 0x{f2u(2.0**-SH):08x}
    s_mov_b32 s{S_C+1}, 0x{f2u(2.0**-SH):08x}
    s_mov_b32 s{S_EPS}, 0x{f2u(1e-6*2.0**SH):08x}
    s_mov_b32 s{S_EPS+1}, 0x{f2u(1e-6*2.0**SH):08x}
    s_mov_b32 s{S_MSK}, 0xffff0000
    """)
    arrive(A, L_CE)
    se(3)
    A(f"""
    s_cmp_ge_u32 s{S_WAVE}, 14
    s_cbranch_scc1 K_HELP
    s_cmp_ge_u32 s{S_WAVE}, 7
    s_cbranch_scc1 K_BIN
    ; ---- table job: tile = 3*half + (w>>1), nt = w&1 ; wave 6: tile 6, nt = half
    s_mul_i32 s{T+10}, s{S_HALF}, 3
    s_lshr_b32 s{T+11}, s{S_WAVE}, 1
    s_add_u32 s{T+10}, s{T+10}, s{T+11}
    s_and_b32 s{T+11}, s{S_WAVE}, 1
    s_cmp_eq_u32 s{S_WAVE}, 6
    s_cselect_b32 s{T+10}, 6, s{T+10}
    s_cselect_b32 s{T+11}, s{S_HALF}, s{T+11}
    s_lshl_b32 s{T+12}, s{T+10}, 12
    s_mul_i32 s{T+13}, s{T+11}, {HS}
    s_add_u32 s{T+13}, s{T+13}, s{T+7}
    s_add_u32 s{T+15}, s{T+13}, {WS_TAB}
    s_mov_b32 s{S_B+2}, {NPB*128}
    s_mov_b32 s{S_B+3}, 0x20000
    v_and_b32 v28, 31, v{V_LANE}
    v_lshrrev_b32 v29, 5, v{V_LANE}
    v_bfe_u32 v30, v28, 1, 3
    v_xor_b32 v30, v30, v29
    v_lshlrev_b32 v30, 4, v30
    v_lshl_add_u32 v24, v28, 7, v30
    s_add_u32 s{T+13}, s{T+12}, {L_XST}
    v_add_u32 v30, s{T+13}, v24
    v_bfe_u32 v25, v{V_LANE}, 2, 2
    v_lshl_add_u32 v25, v29, 3, v25
    v_lshlrev_b32 v34, 7, v25
    v_bfe_u32 v35, v{V_LANE}, 4, 1
    v_lshl_add_u32 v34, v35, 5, v34
    v_and_b32 v36, 3, v{V_LANE}
    v_lshl_add_u32 v34, v36, 3, v34
    s_lshl_b32 s{T+13}, s{T+11}, 6
    s_add_u32 s{T+13}, s{T+13}, {L_WBV}
    v_add_u32 v34, s{T+13}, v34
    v_and_b32 v32, 1, v{V_LANE}
    v_xor_b32 v32, 1, v32
    v_lshlrev_b32 v32, 15, v32
    v_lshlrev_b32 v33, 9, v29
    v_lshl_add_u32 v33, v28, 2, v33
    v_add_u32 v33, s{T+12}, v33
    s_mov_b32 s{T+13}, 0x{f2u(-LOG2E):08x}
    s_mov_b32 s{T+14}, 0x07060302
    s_waitcnt vmcnt(1)
    """)
    arrive(A, L_CX)
    spin_lds(A, "K_SPX", 7)
    st(1)
    XB = 84
    Wm1 = [36, 40, 116, 8]
    for u in range(4):
        A(f"v_xor_b32 v31, {32*u}, v30")
        A(f"ds_read_b128 {vr(XB+4*u,4)}, v31")
        for tt in range(2):
            A(f"ds_read_b64_tr_b16 {vr(100+4*u+2*tt,2)}, v34 offset:{(16*u+4*tt)*128}")
        for tt in range(2):
            A(f"ds_read_b64_tr_b16 {vr(Wm1[u]+2*tt,2)}, v34 offset:{8192+(16*u+4*tt)*128}")
    for u in range(4):
        A(f"s_waitcnt lgkmcnt({15-5*u})")
        A(mfma(vr(48,16), vr(XB+4*u,4), vr(100+4*u,4), "0" if u == 0 else vr(48,16)))
        A(mfma(vr(64,16), vr(XB+4*u,4), vr(Wm1[u],4), "0" if u == 0 else vr(64,16)))
    TS = opt("--tabst", "sc1").replace("+", " ")
    get_tag(A, "K_GT0")
    A(f"s_add_u32 s{S_B}, s{S_WS}, s{T+15}")
    A(f"s_addc_u32 s{S_B+1}, s{S_WS+1}, 0")
    if "--tabdw" in sys.argv:
        arrive(A, L_CY)
        for r in range(16): A(f"v_mul_f32 v{48+r}, s{T+13}, v{48+r}")
        for r in range(16):
            A(f"v_add_u32 v{64+r}, v32, v{64+r}")
            A(f"v_perm_b32 v{48+r}, v{48+r}, v{64+r}, s{T+14}")
            A(f"buffer_store_dword v{48+r}, v33, {srd(S_B)}, 0 offen offset:{(8*(r>>2)+(r&3))*128} {TS}")
    else:
        A(f"""
        s_lshl_b32 s{T+4}, s{S_WAVE}, 11
        s_add_u32 s{T+4}, s{T+4}, {L_TST}
        v_subrev_u32 v33, s{T+12}, v33
        v_add_u32 v33, s{T+4}, v33
        v_add_u32 v34, 128, v33
        v_lshlrev_b32 v35, 4, v{V_LANE}
        v_add_u32 v36, s{T+4}, v35
        v_add_u32 v35, s{T+12}, v35
        """)
        for hf in range(2):
            for r in range(8*hf, 8*hf+8): A(f"v_mul_f32 v{48+r}, s{T+13}, v{48+r}")
            for r in range(8*hf, 8*hf+8):
                A(f"v_add_u32 v{64+r}, v32, v{64+r}")
                A(f"v_perm_b32 v{48+r}, v{48+r}, v{64+r}, s{T+14}")
            for q in range(2):
                r = 8*hf + 4*q
                A(f"ds_write2st64_b32 v33, v{48+r}, v{50+r} offset0:{4*q} offset1:{4*q+1}")
                A(f"ds_write2st64_b32 v34, v{49+r}, v{51+r} offset0:{4*q} offset1:{4*q+1}")
            A(f"ds_read_b128 {vr(100+8*hf,4)}, v36")
            A(f"ds_read_b128 {vr(104+8*hf,4)}, v36 offset:1024")
            if hf == 1:
                A("s_waitcnt lgkmcnt(6)")
                A(f"buffer_store_dwordx4 v[100:103], v35, {srd(S_B)}, 0 offen {TS}")
                A(f"buffer_store_dwordx4 v[104:107], v35, {srd(S_B)}, 0 offen offset:1024 {TS}")
        A("s_waitcnt lgkmcnt(0)")
        A(f"buffer_store_dwordx4 v[108:111], v35, {srd(S_B)}, 0 offen offset:2048 {TS}")
        A(f"buffer_store_dwordx4 v[112:115], v35, {srd(S_B)}, 0 offen offset:3072 {TS}")
        arrive(A, L_CY)
    st(2)
    A(f"""
    s_lshr_b32 s{T+12}, s2, 1
    s_or_b32 s{T+12}, s{T+12}, s{S_WAVE}
    s_cmp_lg_u32 s{T+12}, 0
    s_cbranch_scc1 K_NPAD
    v_lshlrev_b32 v32, 2, v{V_LANE}
    v_mov_b32 v33, 0x7f000000
    s_mul_i32 s{T+4}, s{S_HALF}, {HS}
    s_add_u32 s{T+4}, s{T+4}, {WS_TAB+PADROW*128}
    s_mov_b32 exec_hi, 0
    buffer_store_dword v33, v32, {srd(S_WS)}, s{T+4} offen sc1
    s_mov_b64 exec, -1
K_NPAD:
    s_waitcnt vmcnt(0)
    """)
    st(3)
    arrive(A, L_CP, rtn=T+3)
    A(f"""
    """)
    def pfa():
        A("v_lshlrev_b32 v31, 7, v0")
        A(f"buffer_load_ubyte v{V_DUMMY}, v31, {srd(S_WS)}, s{S_PF} offen sc1")
    if PFA == 1:
        A(f"v_mov_b32 v120, {L_C3}")
        spin_lds(A, "K_SPA", 7)
        pfa()
    A("s_branch K_PUBQ")
    BN, RK, TM = 48, 56, 84
    A(f"""
K_BIN:
    v_mov_b32 v31, v34
    s_mul_i32 s{T+10}, s2, {CH//4}
    v_add_u32 v32, s{T+10}, v31
    v_cmp_gt_u32 vcc, {NT}, v31
    s_mov_b32 s{T+11}, {E//4}
    v_cmp_gt_u32 {sr(T+4,2)}, s{T+11}, v32
    s_mov_b32 s{T+11}, {E//4 - NT}
    v_cmp_gt_u32 {sr(T+6,2)}, s{T+11}, v32
    s_and_b64 {sr(T+4,2)}, {sr(T+4,2)}, vcc
    s_and_b64 {sr(T+6,2)}, {sr(T+6,2)}, vcc
    s_mov_b32 s{T+8}, 42800
    s_movk_i32 s{T+9}, {NPB}
    v_mov_b32 v33, 1
    s_setprio 3
    """)
    for hlf in range(2):
        A(f"s_mov_b64 exec, {sr(T+4+2*hlf,2)}")
        A(f"s_waitcnt vmcnt({5-hlf})")
        ks = range(4*hlf, 4*hlf+4)
        for k in ks: A(f"v_mul_u32_u24 v{BN+k}, s{T+8}, v{DS_+k}")
        for k in ks: A(f"v_lshrrev_b32 v{BN+k}, 23, v{BN+k}")
        for k in ks:
            A(f"v_mul_u32_u24 v{TM+k}, s{T+9}, v{BN+k}")
            A(f"v_lshlrev_b32 v{BN+k}, 2, v{BN+k}")
            A(f"ds_add_rtn_u32 v{RK+k}, v{BN+k}, v33 offset:{L_HIST}")
        for k in ks: A(f"v_sub_u32 v{DS_+k}, v{DS_+k}, v{TM+k}")
    A("s_mov_b64 exec, -1")
    A(f"v_lshlrev_b32 v34, 3, v{V_LANE}")
    arrive(A, L_C2)
    st(3)
    spin_lds(A, "K_SP2", 7)
    st(4)
    A(f"""
    ds_read_b64 v[36:37], v34 offset:{L_HIST}
    s_waitcnt lgkmcnt(0)
    v_add_u32 v36, 3, v36
    v_add_u32 v37, 3, v37
    v_and_b32 v36, -4, v36
    v_and_b32 v37, -4, v37
    v_add_u32 v38, v36, v37
    v_mov_b32 v39, v38
    """)
    scan(A, 39)
    A(f"""
    v_sub_u32 v38, v39, v38
    v_add_u32 v39, v38, v36
    ds_write_b64 v34, v[38:39] offset:{L_OFF}
    """)
    for hlf in range(2):
        A(f"s_mov_b64 exec, {sr(T+4+2*hlf,2)}")
        for k in range(4*hlf, 4*hlf+4):
            A(f"ds_read_b32 v{TM+k}, v{BN+k} offset:{L_OFF}")
    A(f"""
    s_mov_b32 s{T+8}, 0x05040100
    s_mov_b32 s{T+9}, 0x07060100
    s_waitcnt lgkmcnt(0)
    """)
    for hlf in range(2):
        A(f"s_mov_b64 exec, {sr(T+4+2*hlf,2)}")
        for k in range(4*hlf, 4*hlf+4):
            A(f"v_add_u32 v{TM+k}, v{TM+k}, v{RK+k}")
            A(f"v_lshlrev_b32 v{RK+k}, 2, v{TM+k}")
            A(f"ds_write_b8 v{TM+k}, v{DS_+k} offset:{L_LOC}")
    A("s_mov_b64 exec, -1")
    get_tag(A, "K_GT1")
    st(5)
    for hlf in range(2):
        A(f"s_waitcnt vmcnt({1-hlf})")
        A(f"s_mov_b64 exec, {sr(T+4+2*hlf,2)}")
        for k in range(4*hlf, 4*hlf+4):
            A(f"v_perm_b32 v{SR_+k}, v{EE_+k//2}, v{SR_+k}, s{T+8+(k&1)}")
            A(f"ds_write_b32 v{RK+k}, v{SR_+k} offset:{L_REC}")
    A(f"""
    s_mov_b64 exec, -1
    v_lshlrev_b32 v32, 4, v31
    v_lshlrev_b32 v33, 3, v31
    s_mul_i32 s{T+10}, s2, {CHP*4}
    s_add_u32 s{T+11}, s{T+10}, {448*16}
    s_mul_i32 s{T+12}, s2, {CHP}
    s_add_u32 s{T+12}, s{T+12}, {WS_LOC}
    """)
    arrive(A, L_C3)
    spin_lds(A, "K_SP3", 7)
    st(6)
    A(f"""
    ds_read_b128 v[64:67], v32 offset:{L_REC}
    ds_read_b128 v[68:71], v32 offset:{L_REC+448*16}
    ds_read_b128 v[72:75], v32 offset:{L_LOC}
    v_cmp_gt_u32 vcc, {CHP//16}, v31
    s_waitcnt lgkmcnt(2)
    buffer_store_dwordx4 v[64:67], v32, {srd(S_WS)}, s{T+10} offen {RS}
    s_waitcnt lgkmcnt(1)
    buffer_store_dwordx4 v[68:71], v32, {srd(S_WS)}, s{T+11} offen {RS}
    s_waitcnt lgkmcnt(0)
    s_and_saveexec_b64 {sr(T+4,2)}, vcc
    s_cbranch_execz K_NLOC
    buffer_store_dwordx4 v[72:75], v32, {srd(S_WS)}, s{T+12} offen {RS}
K_NLOC:
    s_mov_b64 exec, -1
    """)
    arrive(A, L_CY)
    A("s_waitcnt vmcnt(0)")
    st(7)
    arrive(A, L_CP, rtn=T+3)
    A(f"""
    s_branch K_PUBQ
K_HELP:
    s_sub_u32 s{T+2}, s{S_WAVE}, 14
    s_xor_b32 s{T+3}, s{S_HALF}, 1
    s_lshl_b32 s{T+3}, s{T+3}, 1
    s_add_u32 s{T+3}, s{T+3}, s{T+2}
    s_mul_i32 s{T+3}, s{T+3}, 6144
    s_add_u32 m0, s{T+3}, {L_XST}
    s_add_u32 s{T+3}, s{T+3}, s{T+7}
    s_cmp_eq_u32 s{T+2}, 0
    s_cselect_b32 s{S_A}, s{KWA}, s{KWU}
    s_cselect_b32 s{S_A+1}, s{KWA+1}, s{KWU+1}
    s_mov_b32 s{S_A+2}, 8192
    s_mov_b32 s{S_A+3}, 0x20000
    s_cmp_lg_u32 s{S_WAVE}, 15
    s_cbranch_scc1 K_NTG
    """)
    for k in range(4):
        A(f"""
        s_load_dwordx2 {sr(S_T0,2)}, {sr(KDBG,2)}, {64*k}
        s_waitcnt lgkmcnt(0)
        s_bitcmp1_b32 s{S_T0}, 0
        s_cbranch_scc1 K_TG2
        s_sleep {opt("--tsleep", 4)}
        """)
    mk_srd(A, S_B, KDBG, 256)
    A(f"""
    v_mov_b32 v34, 0
    s_mov_b32 s{T+13}, {SPIN}
K_TG:
    buffer_load_dwordx2 v[32:33], v34, {srd(S_B)}, 0 offen sc1
    s_waitcnt vmcnt(0)
    v_readfirstlane_b32 s{S_T0}, v32
    v_readfirstlane_b32 s{S_T1}, v33
    s_bitcmp1_b32 s{S_T0}, 0
    s_cbranch_scc1 K_TG2
    s_sleep 2
    s_sub_u32 s{T+13}, s{T+13}, 1
    s_cmp_lg_u32 s{T+13}, 0
    s_cbranch_scc1 K_TG
    s_mov_b32 s{S_T0}, 2
K_TG2:
    v_mov_b32 v32, s{S_T0}
    v_mov_b32 v33, s{S_T1}
    v_mov_b32 v35, {L_TAG}
    ds_write_b64 v35, v[32:33]
    """)
    st(1)
    A(f"""
K_NTG:
    """)
    spin_lds(A, "K_SPE", 16)
    A(f"""
    buffer_load_dwordx4 v24, {srd(S_X)}, s{T+3} offen lds
    buffer_load_dwordx4 v25, {srd(S_X)}, s{T+3} offen offset:1024 lds
    buffer_load_dwordx4 v24, {srd(S_X)}, s{T+3} offen offset:2048 lds
    buffer_load_dwordx4 v25, {srd(S_X)}, s{T+3} offen offset:3072 lds
    s_add_u32 m0, m0, 4096
    s_add_u32 s{T+3}, s{T+3}, 4096
    buffer_load_dwordx4 v24, {srd(S_X)}, s{T+3} offen lds
    buffer_load_dwordx4 v25, {srd(S_X)}, s{T+3} offen offset:1024 lds
    v_lshrrev_b32 v30, 2, v{V_LANE}
    v_lshlrev_b32 v30, 7, v30
    v_and_b32 v31, 3, v{V_LANE}
    v_lshl_add_u32 v30, v31, 4, v30
    s_lshl_b32 s{T+4}, s{T+2}, 12
    s_add_u32 m0, s{T+4}, {L_WAU}
    s_mov_b32 s{T+4}, s{T+6}
    """)
    for i4 in range(4):
        A(f"buffer_load_dwordx4 v30, {srd(S_A)}, s{T+4} offen offset:{1024*i4} lds")
        A(f"s_add_u32 s{T+4}, s{T+4}, 1024")
    get_tag(A, "K_GT2")
    A("s_waitcnt vmcnt(0)")
    st(2)
    arrive(A, L_CY)
    A(f"""
    s_branch K_JOIN
K_PUB:
    v_lshlrev_b32 v122, 3, v{V_LANE}
    ds_read_b64 v[36:37], v122 offset:{L_HIST}
    ds_read_b64 v[38:39], v122 offset:{L_OFF}
    s_lshl_b32 s{T+4}, s2, 10
    s_add_u32 s{T+4}, s{T+4}, {WS_OFFS}
    v_lshlrev_b32 v122, 4, v{V_LANE}
    v_mov_b32 v41, s{S_T1}
    v_mov_b32 v43, s{S_T1}
    s_waitcnt lgkmcnt(0)
    v_add_u32 v36, 3, v36
    v_add_u32 v37, 3, v37
    v_lshrrev_b32 v36, 2, v36
    v_lshrrev_b32 v37, 2, v37
    v_lshrrev_b32 v38, 2, v38
    v_lshrrev_b32 v39, 2, v39
    v_lshl_or_b32 v40, v36, 10, v38
    v_lshl_or_b32 v42, v37, 10, v39
    v_or_b32 v40, s{S_T0}, v40
    v_or_b32 v42, s{S_T0}, v42
    s_bitcmp1_b32 s{S_T0}, 1
    s_cbranch_scc1 K_PUB1
    buffer_store_dwordx4 v[40:43], v122, {srd(S_WS)}, s{T+4} offen sc1
K_PUB1:
    s_nop 1
    s_setpc_b64 {sr(S_RET,2)}
K_PUBQ:
    s_cmp_lg_u32 s{T+3}, 13
    s_cbranch_scc1 K_JOIN
    s_call_b64 {sr(S_RET,2)}, K_PUB
K_JOIN:
    s_setprio 0
    v_lshrrev_b32 v28, 3, v0
    v_lshlrev_b32 v24, 10, v28
    v_and_b32 v26, 7, v{V_LANE}
    v_mul_u32_u24 v28, {CHP//4}, v28
    v_add_u32 v28, v28, v26
    s_lshl_b32 s{T+5}, s{S_BIN}, 3
    s_add_u32 s{T+5}, s{T+5}, {WS_OFFS}
    s_add_u32 s{T+14}, s{T+5}, {128*1024}
    s_mov_b32 s{T+2}, {128*CHP*4}
    s_mov_b32 s{T+3}, {WS_LOC}
    s_mov_b32 s{T+4}, {WS_LOC+128*CHP}
    v_mov_b32 v31, 0x04000000
    v_mov_b32 v38, 4
    s_mov_b32 s{T+12}, 0xfff00000
    s_mov_b32 s{T+13}, {SPIN}
    """)
    for i in range(2*R): A(f"v_mov_b32 v{V_E+i}, 0")
    if RPF:
        A(f"""
        s_bfe_u32 s{T}, s2, 0x20001
        s_lshr_b32 s{T+1}, s2, 3
        v_lshrrev_b32 v25, 5, v0
        v_mul_u32_u24 v25, {CHP*4}, v25
        v_and_b32 v27, 31, v0
        v_lshl_add_u32 v25, v27, 7, v25
        s_mul_i32 s{T+6}, s{T}, {26*128}
        s_sub_u32 s{T+6}, s{T+6}, 384
        s_max_i32 s{T+6}, s{T+6}, 0
        s_mul_i32 s{T+7}, s{T+1}, {8*CHP*4}
        s_add_u32 s{T+6}, s{T+6}, s{T+7}
        v_lshrrev_b32 v27, 3, v{V_LANE}
        v_mul_u32_u24 v27, {CHP}, v27
        v_lshl_add_u32 v27, v26, 7, v27
        s_mul_i32 s{T+8}, s{T}, 832
        s_sub_u32 s{T+8}, s{T+8}, 64
        s_max_i32 s{T+8}, s{T+8}, 0
        s_mul_i32 s{T+9}, s{T+1}, {8*CHP}
        s_add_u32 s{T+8}, s{T+8}, s{T+9}
        s_add_u32 s{T+8}, s{T+8}, {WS_LOC}
        s_cmp_eq_u32 s{S_WAVE}, 4
        s_cselect_b32 s{T+6}, s{T+8}, s{T+6}
        s_cselect_b64 vcc, -1, 0
        v_cndmask_b32 v25, v25, v27, vcc
        """)
    A("s_waitcnt lgkmcnt(0)")
    A("s_barrier")
    if RPF:
        A(f"""
        s_cmp_gt_u32 s{S_WAVE}, 4
        s_cbranch_scc1 K_NRPF
        buffer_load_ubyte v{V_DUMMY}, v25, {srd(S_WS)}, s{T+6} offen sc1
K_NRPF:
        """)
    st(8)
    A(f"""
    s_bitcmp1_b32 s{S_T0}, 1
    s_cselect_b32 s{T+13}, 1, s{T+13}
K_POLL:
    buffer_load_dwordx2 v[32:33], v24, {srd(S_WS)}, s{T+5} offen sc1
    buffer_load_dwordx2 v[34:35], v24, {srd(S_WS)}, s{T+14} offen sc1
    s_waitcnt vmcnt(0)
    v_and_b32 v36, s{T+12}, v32
    v_and_b32 v37, s{T+12}, v34
    v_cmp_eq_u32 vcc, s{S_T1}, v33
    v_cmp_eq_u32 {sr(T+6,2)}, s{S_T1}, v35
    v_cmp_eq_u32 {sr(T+8,2)}, s{S_T0}, v36
    v_cmp_eq_u32 {sr(T+10,2)}, s{S_T0}, v37
    s_and_b64 vcc, vcc, {sr(T+6,2)}
    s_and_b64 {sr(T+8,2)}, {sr(T+8,2)}, {sr(T+10,2)}
    s_and_b64 vcc, vcc, {sr(T+8,2)}
    s_cmp_eq_u64 vcc, -1
    s_cbranch_scc1 K_GOT
    s_sleep {opt("--psleep", 2)}
    s_sub_u32 s{T+13}, s{T+13}, 1
    s_cmp_lg_u32 s{T+13}, 0
    s_cbranch_scc1 K_POLL
    v_mov_b32 v37, {L_FLAG}
    ds_write_b32 v37, v38
    v_mov_b32 v32, 0
    v_mov_b32 v34, 0
K_GOT:
    """)
    st(9)
    A(f"""
    v_bfe_u32 v40, v32, 10, 10
    v_bfe_u32 v41, v34, 10, 10
    v_and_b32 v32, 0x3ff, v32
    v_and_b32 v33, 0x3ff, v34
    v_cmp_lt_u32 {sr(T+6,2)}, v26, v40
    v_cmp_lt_u32 {sr(T+8,2)}, v26, v41
    v_add_u32 v32, v32, v28
    v_add_u32 v33, v33, v28
    v_cndmask_b32 v42, v31, v32, {sr(T+6,2)}
    v_cndmask_b32 v43, v31, v33, {sr(T+8,2)}
    v_lshlrev_b32 v36, 2, v42
    v_lshlrev_b32 v37, 2, v43
    v_lshlrev_b32 v42, 4, v42
    v_lshlrev_b32 v43, 4, v43
    buffer_load_dword v72, v36, {srd(S_WS)}, s{T+3} offen sc1
    buffer_load_dword v73, v37, {srd(S_WS)}, s{T+4} offen sc1
    buffer_load_dwordx4 v[64:67], v42, {srd(S_WS)}, 0 offen sc1
    buffer_load_dwordx4 v[68:71], v43, {srd(S_WS)}, s{T+2} offen sc1
    v_add_u32 v36, 8, v26
    v_add_u32 v33, {128*CHP//4}, v33
    v_mov_b32 v37, {L_FLAG+4}
    v_lshlrev_b32 v{V_WC}, 16, v{V_WC+2}
    v_and_b32 v{V_WC+1}, s{S_MSK}, v{V_WC+2}
    v_lshlrev_b32 v{V_WC+2}, 16, v{V_WC+3}
    v_and_b32 v{V_WC+3}, s{S_MSK}, v{V_WC+3}
    s_mov_b32 s{T}, 0x{f2u(-LOG2E):08x}
    v_mul_f32 v{V_WC}, s{T}, v{V_WC}
    v_mul_f32 v{V_WC+1}, s{T}, v{V_WC+1}
    v_mul_f32 v{V_WC+2}, s{T}, v{V_WC+2}
    v_mul_f32 v{V_WC+3}, s{T}, v{V_WC+3}
    """)
    for r in range(2):
        A(f"""
        v_cmpx_lt_u32 vcc, v36, v{40+r}
        s_cbranch_execz K_NOV{r}
        ds_add_rtn_u32 v39, v37, v38
        v_add_u32 v42, 8, v{32+r}
        s_waitcnt lgkmcnt(0)
        v_cmpx_gt_u32 vcc, {BLCAP*4}, v39
        ds_write_b32 v39, v42 offset:{L_BL}
K_NOV{r}:
        s_mov_b64 exec, -1
        """)
    A(f"""
    v_max_u32 v36, v40, v41
    v_mov_b32 v37, {L_FLAG}
    v_cmpx_lt_u32 vcc, {16 if not FORCE_SLOW else 0}, v36
    ds_write_b32 v37, v38
    s_mov_b64 exec, -1
    """)
    arrive(A, L_CL)
    A(f"""
    s_cmp_ge_u32 s{S_WAVE}, 7
    s_cbranch_scc1 K_INA
    ; ---- A / U job for tile = wave
    v_and_b32 v28, 31, v{V_LANE}
    v_lshrrev_b32 v29, 5, v{V_LANE}
    v_bfe_u32 v30, v28, 1, 3
    v_xor_b32 v30, v30, v29
    v_lshlrev_b32 v30, 4, v30
    v_lshl_add_u32 v30, v28, 7, v30
    s_lshl_b32 s{T+12}, s{S_HALF}, 6
    v_xor_b32 v30, s{T+12}, v30
    s_lshl_b32 s{T+12}, s{S_WAVE}, 12
    s_add_u32 s{T+12}, s{T+12}, {L_XST}
    v_add_u32 v30, s{T+12}, v30
    v_bfe_u32 v25, v{V_LANE}, 2, 2
    v_lshl_add_u32 v25, v29, 3, v25
    v_lshlrev_b32 v34, 6, v25
    v_bfe_u32 v35, v{V_LANE}, 4, 1
    v_lshl_add_u32 v34, v35, 5, v34
    v_and_b32 v36, 1, v{V_LANE}
    v_bfe_u32 v37, v{V_LANE}, 1, 1
    v_lshl_add_u32 v36, v36, 1, v37
    v_lshl_add_u32 v34, v36, 3, v34
    s_lshl_b32 s{T+12}, s{S_HALF}, 11
    v_add_u32 v34, s{T+12}, v34
    v_xor_b32 v35, 2048, v34
    v_add_u32 v34, {L_WAU}, v34
    v_add_u32 v35, {L_WAU}, v35
    v_mov_b32 v120, {L_CY}
    """)
    spin_lds(A, "K_SPY", 16)
    XA = 76
    Wu = [8, 12, 16, 40]
    for u in range(4):
        A(f"v_xor_b32 v31, {32*u}, v30")
        A(f"ds_read_b128 {vr(XA+4*u,4)}, v31")
        av = 34 if u < 2 else 35
        for tt in range(2):
            A(f"ds_read_b64_tr_b16 {vr(104+4*u+2*tt,2)}, v{av} offset:{((u&1)*16+4*tt)*64}")
        for tt in range(2):
            A(f"ds_read_b64_tr_b16 {vr(Wu[u]+2*tt,2)}, v{av} offset:{4096+((u&1)*16+4*tt)*64}")
    A(f"""
    s_lshl_b32 s{T+12}, s{S_WAVE}, 5
    v_add_u32 v28, s{T+12}, v28
    v_mul_u32_u24 v24, {AUS}, v28
    v_lshl_add_u32 v24, v29, 5, v24
    v_add_u32 v24, {L_AU}, v24
    """)
    for u in range(4):
        A(f"s_waitcnt lgkmcnt({15-5*u})")
        A(mfma(vr(48,16), vr(104+4*u,4), vr(XA+4*u,4), "0" if u == 0 else vr(48,16)))
    for u in range(4):
        A(mfma(vr(104,16), vr(Wu[u],4), vr(XA+4*u,4), "0" if u == 0 else vr(104,16)))
    A(f"""
    s_mov_b32 s{T+13}, 0x{f2u(-LOG2E):08x}
    v_mov_b32 v31, 0x{f2u(-float(SH)):08x}
    """)
    A(f"v_max3_f32 v32, |v48|, |v49|, |v50|")
    for i in range(3, 15, 2): A(f"v_max3_f32 v32, |v{48+i}|, |v{48+i+1}|, v32")
    A(f"v_max_f32 v32, |v63|, v32")
    for i in range(16): A(f"v_fma_f32 v{48+i}, v{48+i}, s{T+13}, v31")
    A(f"""
    s_mov_b32 s{T+12}, 0x05040100
    s_mov_b32 s{T+13}, 0x07060302
    v_mov_b32 v33, {L_FLAG}
    v_cmpx_gt_u32 vcc, 200, v28
    ds_write_b128 v24, v[48:51]
    ds_write_b128 v24, v[52:55] offset:16
    ds_write_b128 v24, v[56:59] offset:64
    ds_write_b128 v24, v[60:63] offset:80
    """)
    for i in range(8): A(f"v_cvt_pk_bf16_f32 v{8+i}, v{104+2*i}, v{105+2*i}")
    for i in range(8):
        A(f"v_perm_b32 v{104+2*i}, v{8+i}, v{XA+i}, s{T+12}")
        A(f"v_perm_b32 v{105+2*i}, v{8+i}, v{XA+i}, s{T+13}")
    A(f"""
    ds_write_b128 v24, v[104:107] offset:128
    ds_write_b128 v24, v[108:111] offset:144
    ds_write_b128 v24, v[112:115] offset:192
    ds_write_b128 v24, v[116:119] offset:208
    v_cmpx_gt_u32 vcc, {NPB}, v28
    v_cmpx_nge_f32 vcc, 0x{f2u(49.0):08x}, v32
    ds_write_b32 v33, v33
    s_mov_b64 exec, -1
    """)
    st(5)
    A(f"""
K_INA:
    v_mov_b32 v39, 2
    s_cmp_lt_u32 s{S_WAVE}, 14
    s_cbranch_scc1 K_INA2
    """)
    spin_lds(A, "K_SPL", 16)
    A(f"""
    v_mov_b32 v37, {L_FLAG+4}
    v_subrev_u32 v36, {14*64}, v0
    v_lshlrev_b32 v36, 2, v36
    ds_read_b32 v35, v37
    ds_read_b32 v42, v36 offset:{L_BL}
    v_mov_b32 v31, 0x10000000
    s_waitcnt lgkmcnt(0)
    v_cmp_lt_u32 {sr(T+10,2)}, v36, v35
    v_lshlrev_b32 v43, 4, v42
    v_lshlrev_b32 v42, 2, v42
    v_cndmask_b32 v43, v31, v43, {sr(T+10,2)}
    v_cndmask_b32 v42, v31, v42, {sr(T+10,2)}
    buffer_load_dword v74, v42, {srd(S_WS)}, s{T+3} offen sc1
    buffer_load_dwordx4 v[76:79], v43, {srd(S_WS)}, 0 offen sc1
    v_mov_b32 v37, {L_FLAG}
    v_cmpx_lt_u32 vcc, {BLCAP*4}, v35
    ds_write_b32 v37, v38
    s_mov_b64 exec, -1
    """)
    arrive(A, L_CL)
    A(f"""
    s_waitcnt vmcnt(4)
    s_branch K_INB
K_INA2:
    s_waitcnt vmcnt(2)
K_INB:
    """)
    st(10)
    def ins_atom(locw, a0):
        for k in range(4):
            A(f"v_lshlrev_b32_sdwa v{a0+k}, v39, v{locw} dst_sel:DWORD dst_unused:UNUSED_PAD src0_sel:DWORD src1_sel:BYTE_{k}")
            A(f"ds_add_rtn_u32 v{a0+k}, v{a0+k}, v38")
    def ins_write(a0, rec):
        for k in range(4):
            A(f"ds_write_b32 v{a0+k}, v{rec+k}")
    A(f"s_mov_b64 exec, {sr(T+6,2)}")
    ins_atom(72, 80)
    A(f"s_mov_b64 exec, {sr(T+8,2)}")
    ins_atom(73, 84)
    A(f"""
    s_cmp_lt_u32 s{S_WAVE}, 14
    s_cbranch_scc1 K_INC
    s_mov_b64 exec, {sr(T+10,2)}
    s_waitcnt vmcnt(0)
    """)
    ins_atom(74, 88)
    A("s_waitcnt lgkmcnt(0)")
    ins_write(88, 76)
    A(f"""
K_INC:
    s_mov_b64 exec, {sr(T+8,2)}
    s_waitcnt vmcnt(0) lgkmcnt(0)
    """)
    ins_write(84, 68)
    A(f"s_mov_b64 exec, {sr(T+6,2)}")
    ins_write(80, 64)
    A(f"""
    s_mov_b64 exec, -1
    s_cmp_ge_u32 s{S_WAVE}, 13
    s_cbranch_scc1 K_IND
    v_mov_b32 v120, {L_CL}
    v_min_u32 v30, 783, v0
    v_lshlrev_b32 v30, 7, v30
    """)
    spin_lds(A, "K_SPM", 18)
    A(f"""
    buffer_load_ubyte v{V_DUMMY}, v30, {srd(S_WS)}, s{S_PF} offen {GLD}
K_IND:
    s_barrier
    """)
    st(11)
    A(f"""
    s_cmp_ge_u32 s{S_WAVE}, 4
    s_cbranch_scc1 K_S1
    s_setprio 3
    v_lshlrev_b32 v28, 2, v0
    ds_read_b32 v29, v28
    v_mul_u32_u24 v30, {LS}, v0
    v_add_u32 v30, {L_LIST-4}, v30
    v_cmp_gt_u32 vcc, 200, v0
    s_mov_b64 {sr(T+6,2)}, vcc
    v_cmp_gt_u32 vcc, {NPB}, v0
    v_mov_b32 v37, {L_FLAG}
    v_mov_b32 v36, 1
    s_waitcnt lgkmcnt(0)
    v_sub_u32 v29, v29, v30
    v_lshrrev_b32 v29, 3, v29
    v_max_u32 v31, 1, v29
    v_min_u32 v31, 63, v31
    v_cndmask_b32 v31, 0, v31, vcc
    v_lshlrev_b32 v32, 2, v31
    v_sub_u32 v32, 252, v32
    s_mov_b64 exec, {sr(T+6,2)}
    ds_add_rtn_u32 v33, v32, v36 offset:{L_H2}
    v_cmpx_lt_u32 vcc, {CAP//2}, v29
    ds_write_b32 v37, v38
    s_mov_b64 exec, -1
    v_lshlrev_b32 v34, 2, v{V_LANE}
    s_waitcnt lgkmcnt(0)
K_S1:
    s_barrier
    s_cmp_ge_u32 s{S_WAVE}, 4
    s_cbranch_scc1 K_S2
    ds_read_b32 v35, v34 offset:{L_H2}
    s_waitcnt lgkmcnt(0)
    v_mov_b32 v36, v35
    """)
    scan(A, 36)
    A(f"""
    v_sub_u32 v36, v36, v35
    ds_bpermute_b32 v36, v32, v36
    s_waitcnt lgkmcnt(0)
    v_add_u32 v33, v33, v36
    v_lshlrev_b32 v36, 2, v33
    v_and_b32 v35, 7, v33
    v_lshrrev_b32 v33, 1, v33
    s_mov_b64 exec, {sr(T+6,2)}
    ds_write_b32 v36, v0 offset:{L_ORD}
    v_cmpx_eq_u32 vcc, 0, v35
    ds_write_b32 v33, v31 offset:{L_LG}
    s_mov_b64 exec, -1
K_S2:
    v_and_b32 v34, 31, v{V_LANE}
    v_lshlrev_b32 v34, 2, v34
    v_mov_b32 v37, {L_FLAG}
    s_and_b32 s{S_WP}, s{S_WAVE}, 3
    s_lshl_b32 s{S_WP}, s{S_WP}, 2
    s_lshr_b32 s{T}, s{S_WAVE}, 2
    s_add_u32 s{S_WP}, s{S_WP}, s{T}
    s_waitcnt lgkmcnt(0)
    s_barrier
    """)
    st(12)
    A(f"""
    s_setprio 3
    ds_read_b32 v35, v34 offset:{L_LG}
    ds_read_b32 v38, v37
    s_waitcnt lgkmcnt(0)
    v_mov_b32 v36, v35
    v_readfirstlane_b32 s{T}, v38
    s_cmp_lg_u32 s{T}, 0
    s_cbranch_scc1 K_SLOW
    """)
    scan(A, 36, upto=32)
    A(f"""
    v_readlane_b32 s{S_TT}, v36, 31
    s_mul_i32 s{T+1}, s{S_WP}, s{S_TT}
    s_add_u32 s{T+2}, s{T+1}, s{S_TT}
    s_lshr_b32 s{T+1}, s{T+1}, 4
    s_lshr_b32 s{T+2}, s{T+2}, 4
    s_sub_u32 s{S_N1}, s{T+2}, s{T+1}
    s_sub_u32 s{S_N1}, s{S_N1}, 1
    s_min_u32 s{S_N1}, s{S_N1}, 58
    v_cmp_ge_u32 vcc, s{T+1}, v36
    s_bcnt1_i32_b32 s{S_GC}, vcc_lo
    s_lshl_b32 s{T+3}, s{S_GC}, 5
    v_add_u32 v{V_OA}, s{T+3}, v{V_OA}
    ds_read_b32 v{V_LC}, v{V_OA} offset:{L_ORD}
    ds_read_b32 v{V_LN}, v{V_OA} offset:{L_ORD+32}
    v_sub_u32 v35, v36, v35
    v_readlane_b32 s{S_GS}, v35, s{S_GC}
    s_mov_b32 s{S_GF}, s{S_GC}
    v_subrev_u32 v36, s{T+1}, v36
    v_subrev_u32 v36, 1, v36
    v_cmp_gt_u32 vcc, 64, v36
    v_mov_b32 v40, 1
    v_mov_b32 v41, 0
    v_lshlrev_b64 v[40:41], v36, v[40:41]
    v_cndmask_b32 v40, 0, v40, vcc
    v_cndmask_b32 v41, 0, v41, vcc
    """)
    for sh in (1, 2, 4, 8):
        for v in (40, 41):
            A(f"v_or_b32_dpp v{v}, v{v}, v{v} row_shr:{sh} row_mask:0xf bank_mask:0xf")
    for v in (40, 41):
        A(f"v_or_b32_dpp v{v}, v{v}, v{v} row_bcast:15 row_mask:0xa bank_mask:0xf")
    A(f"""
    v_readlane_b32 s{S_FL}, v40, 31
    v_readlane_b32 s{S_FL+1}, v41, 31
    s_sub_u32 s{T+4}, s{T+1}, s{S_GS}
    s_cmp_lg_u32 s{T+4}, 0
    s_cselect_b32 s{S_HEAD}, 1, 0
    s_lshl_b32 s{T+4}, s{T+4}, 3
    s_add_u32 s{T+4}, s{T+4}, {L_LIST}
    s_movk_i32 s{T+5}, {LS}
    v_mov_b32 v36, s{T+4}
    s_waitcnt lgkmcnt(0)
    v_mad_u32_u24 v{V_P}, v{V_LC}, s{T+5}, v36
    v_mov_b32 v{V_NB}, v{V_LN}
    """)
    for j in range(R):
        for x in rd_rec(0, j): A(x)
        if j == 0:
            A(f"""
            s_movk_i32 s{T+5}, {AUS}
            v_mad_u32_u24 v36, v{V_LC}, s{T+5}, v{V_AUC}
            ds_read_b128 {vr(V_EA,4)}, v36
            ds_read_b128 {vr(V_UX,4)}, v36 offset:128
            v_mad_u32_u24 v36, v{V_LN}, s{T+5}, v{V_AUC}
            ds_read_b128 {vr(V_AN,4)}, v36
            """)
        A(f"""
        v_add_u32 v{V_P}, 8, v{V_P}
        s_bitcmp1_b64 {sr(S_FL,2)}, {j}
        s_cbranch_scc0 K_PR{j}
        s_mov_b32 s{S_U}, -1
        s_call_b64 {sr(S_RET2,2)}, K_FETCH
K_PR{j}:
        """)
        if j < D:
            A("s_waitcnt lgkmcnt(0)")
            for x in ld_rows(j): A(x)
    A(f"""
    s_lshr_b64 {sr(S_FF,2)}, {sr(S_FL,2)}, {R}
    s_or_b64 {sr(S_EV,2)}, {sr(S_FL,2)}, {sr(S_FF,2)}
    s_lshl_b64 {sr(T,2)}, 1, s{S_N1}
    s_or_b64 {sr(S_EV,2)}, {sr(S_EV,2)}, {sr(T,2)}
    s_lshr_b64 {sr(T+2,2)}, {sr(T,2)}, 2
    s_or_b64 {sr(S_EV,2)}, {sr(S_EV,2)}, {sr(T+2,2)}
    s_lshr_b64 {sr(T+2,2)}, {sr(T,2)}, 4
    s_or_b64 {sr(S_EV,2)}, {sr(S_EV,2)}, {sr(T+2,2)}
    s_lshr_b64 {sr(T+2,2)}, {sr(T,2)}, 7
    s_or_b64 {sr(S_EV,2)}, {sr(S_EV,2)}, {sr(T+2,2)}
    s_mov_b64 {sr(S_EVC,2)}, {sr(S_EV,2)}
    """)
    for i in range(4): A(f"v_exp_f32 v{V_EA+i}, v{V_EA+i}")
    for i in range(8): A(f"v_mov_b32 v{V_NUM+i}, 0")
    st(13)
    A(".p2align 6")
    A.label("K_LOOP")
    for u in range(U):
        d, r = u % D, u % R
        A(f"s_waitcnt vmcnt({2*(D-1)}) lgkmcnt(0)")
        for x in c_head(d, r) + ld_rows(d) + rd_rec(8*u, r) + c_rest(): A(x)
        A(f"s_bitcmp1_b64 {sr(S_EV,2)}, {u}")
        A(f"s_cbranch_scc1 K_EV{u}")
        A.label(f"K_RT{u}")
    A(f"""
    v_add_u32 v{V_P}, {8*U}, v{V_P}
    s_lshr_b64 {sr(S_EV,2)}, {sr(S_EV,2)}, {U}
    s_cbranch_scc1 K_LOOP
    s_branch K_TAIL
    """)
    for u in range(U):
        A(f"""
K_EV{u}:
        s_mov_b32 s{S_U}, {u}
        s_call_b64 {sr(S_RET,2)}, K_EVENT
        s_branch K_RT{u}
        """)
    A(f"""
K_FETCH:
    s_add_u32 s{S_GF}, s{S_GF}, 1
    s_lshl_b32 s{T}, s{S_U}, 3
    s_sub_u32 s{T}, {L_LIST-8}, s{T}
    v_mov_b32 v{V_X0}, s{T}
    s_movk_i32 s{T+1}, {LS}
    v_mad_u32_u24 v{V_P}, v{V_NB}, s{T+1}, v{V_X0}
    s_sub_u32 s{T}, s{S_GF}, s{S_GC}
    s_lshl_b32 s{T}, s{T}, 5
    v_add_u32 v{V_X0}, s{T}, v{V_OA}
    ds_read_b32 v{V_NB}, v{V_X0} offset:{L_ORD+32}
    s_setpc_b64 {sr(S_RET2,2)}
K_EVENT:
    s_ff1_i32_b64 s{T+4}, {sr(S_EVC,2)}
    s_bitset0_b64 {sr(S_EVC,2)}, s{T+4}
    s_bitcmp1_b64 {sr(S_FF,2)}, s{T+4}
    s_cbranch_scc0 K_E1
    s_call_b64 {sr(S_RET2,2)}, K_FETCH
K_E1:
    s_bitcmp1_b64 {sr(S_FL,2)}, s{T+4}
    s_cbranch_scc0 K_E3
    s_cmp_eq_u32 s{S_HEAD}, 1
    s_cbranch_scc0 K_E2
    s_mov_b32 s{S_HEAD}, 2
    """)
    for i in range(8): A(f"v_mov_b32 v{V_HD+i}, v{V_NUM+i}")
    for i in range(4): A(f"v_mov_b32 v{V_HUX+i}, v{V_UX+i}")
    A(f"v_mov_b32 v{V_HL}, v{V_LC}")
    A("s_branch K_E2B")
    A.label("K_E2")
    finalize(A, V_NUM, V_DEN, V_UX, V_LC)
    A(f"""
K_E2B:
    s_cmp_eq_u32 s{T+4}, s{S_N1}
    s_cbranch_scc1 K_DONE
    s_add_u32 s{S_GC}, s{S_GC}, 1
    v_add_u32 v{V_OA}, 32, v{V_OA}
    v_mov_b32 v{V_LC}, v{V_LN}
    ds_read_b32 v{V_LN}, v{V_OA} offset:{L_ORD+32}
    s_movk_i32 s{T+1}, {AUS}
    v_mad_u32_u24 v{V_X0}, v{V_LC}, s{T+1}, v{V_AUC}
    ds_read_b128 {vr(V_UX,4)}, v{V_X0} offset:128
    """)
    for i in range(4): A(f"v_exp_f32 v{V_EA+i}, v{V_AN+i}")
    for i in range(8): A(f"v_mov_b32 v{V_NUM+i}, 0")
    A(f"""
    s_waitcnt lgkmcnt(1)
    v_mad_u32_u24 v{V_X0}, v{V_LN}, s{T+1}, v{V_AUC}
    ds_read_b128 {vr(V_AN,4)}, v{V_X0}
K_E3:
    s_sub_u32 s{T}, s{S_N1}, s{T+4}
    s_cmp_eq_u32 s{T}, 0
    s_cbranch_scc1 K_TAIL
    s_cmp_gt_u32 s{T}, 7
    s_cbranch_scc1 K_E4
    s_setprio 2
    s_cmp_gt_u32 s{T}, 4
    s_cbranch_scc1 K_E4
    s_setprio 1
    s_cmp_gt_u32 s{T}, 2
    s_cbranch_scc1 K_E4
    s_setprio 0
K_E4:
    s_setpc_b64 {sr(S_RET,2)}
K_TAIL:
    s_lshl_b32 s{T}, s{S_WP}, 11
    s_add_u32 s{T}, s{T}, {L_SIDE}
    v_lshl_add_u32 v{V_X0}, v{V_LANE}, 4, s{T}
    ds_write_b128 v{V_X0}, {vr(V_NUM,4)}
    ds_write_b128 v{V_X0}, {vr(V_DEN,4)} offset:1024
K_DONE:
    s_waitcnt lgkmcnt(0)
    """)
    st(14)
    A(f"""
    s_barrier
    s_cmp_eq_u32 s{S_HEAD}, 2
    s_cbranch_scc0 K_FIN
    v_lshlrev_b32 v{V_X1}, 4, v{V_LANE}
K_HL:
    s_sub_u32 s{S_WP}, s{S_WP}, 1
    s_lshl_b32 s{T}, s{S_WP}, 11
    s_add_u32 s{T}, s{T}, {L_SIDE}
    v_add_u32 v{V_X0}, s{T}, v{V_X1}
    ds_read_b128 {vr(V_NUM,4)}, v{V_X0}
    ds_read_b128 {vr(V_DEN,4)}, v{V_X0} offset:1024
    s_mul_i32 s{T}, s{S_WP}, s{S_TT}
    s_lshr_b32 s{T}, s{T}, 4
    s_waitcnt lgkmcnt(0)
    """)
    for k in range(4): A(f"v_pk_add_f32 {vr(V_HD+2*k,2)}, {vr(V_HD+2*k,2)}, {vr(V_NUM+2*k,2)}")
    A(f"""
    s_cmp_gt_u32 s{T}, s{S_GS}
    s_cselect_b32 s{T}, s{S_WP}, 0
    s_cmp_gt_i32 s{T}, 0
    s_cbranch_scc1 K_HL
    """)
    finalize(A, V_HD, V_HD+4, V_HUX, V_HL)
    A.label("K_FIN")
    if diag:
        A("s_waitcnt vmcnt(0)")
        st(15)
        A(f"s_mov_b32 s{S_WS}, s{KWS}")
        A(f"s_mov_b32 s{S_WS+1}, s{KWS+1}")
        A(f"""
        s_lshl_b32 s{T}, s2, 4
        s_add_u32 s{T}, s{T}, s{S_WAVE}
        s_lshl_b32 s{T}, s{T}, 7
        s_add_u32 s{T}, s{T}, {WS_STAMP}
        v_lshlrev_b32 v{V_X0}, 2, v{V_LANE}
        v_cmpx_gt_u32 vcc, 32, v{V_LANE}
        buffer_store_dword v{V_STAMP}, v{V_X0}, {srd(S_WS)}, s{T} offen
        """)
        if "--persist" in sys.argv:
            A(f"""
            s_mov_b64 exec, -1
            s_or_b32 s{T}, s2, s{S_WAVE}
            s_cmp_lg_u32 s{T}, 0
            s_cbranch_scc1 K_END
            v_mov_b32 v30, 0
            s_mov_b32 s{T+3}, {WS_EP+256}
            buffer_load_dword v31, v30, {srd(S_WS)}, s{T+3} offen sc1
            s_waitcnt vmcnt(0)
            v_readfirstlane_b32 s{T+4}, v31
            v_mov_b32 v31, 0x12345678
            buffer_store_dword v31, v30, {srd(S_WS)}, s{T+3} offen sc1
            v_readlane_b32 s{T}, v{V_STAMP}, 16
            s_cmp_eq_u32 s{T+4}, 0x12345678
            s_movk_i32 s{T+5}, 6000
            s_cselect_b32 s{T+1}, 10000, s{T+5}
K_DSP2:
            s_sleep 1
            s_memrealtime s[100:101]
            s_waitcnt lgkmcnt(0)
            s_sub_u32 s{T+2}, s100, s{T}
            s_cmp_lt_u32 s{T+2}, s{T+1}
            s_cbranch_scc1 K_DSP2
            """)
        if "--spink" in sys.argv:
            k = opt("--spink", 0); w = opt("--spinw", 7)
            A(f"""
            s_mov_b64 exec, -1
            s_cmp_lg_u32 s{S_WAVE}, {w}
            s_cbranch_scc1 K_END
            """)
            if "--cond" in sys.argv:
                c = opt("--cond", "cold")
                A(f"""
                v_mov_b32 v30, 0
                s_lshl_b32 s{T+3}, s2, 7
                s_add_u32 s{T+3}, s{T+3}, {WS_EP+4096}
                buffer_load_dword v31, v30, {srd(S_WS)}, s{T+3} offen sc1
                s_waitcnt vmcnt(0)
                v_readfirstlane_b32 s{T+4}, v31
                v_mov_b32 v31, 0x12345678
                buffer_store_dword v31, v30, {srd(S_WS)}, s{T+3} offen sc1
                s_cmp_eq_u32 s{T+4}, 0x12345678
                s_cbranch_scc{1 if c == "cold" else 0} K_END
                """)
            A(f"""
            v_readlane_b32 s{T}, v{V_STAMP}, 16
            v_readlane_b32 s{T+1}, v{V_STAMP}, {16+k}
            s_sub_u32 s{T+1}, s{T+1}, s{T}
            s_mul_i32 s{T+1}, s{T+1}, 10
            s_add_u32 s{T+1}, s{T+1}, 6000
            s_min_u32 s{T+1}, s{T+1}, 100000
K_DSP:
            s_sleep 1
            s_memrealtime s[100:101]
            s_waitcnt lgkmcnt(0)
            s_sub_u32 s{T+2}, s100, s{T}
            s_cmp_lt_u32 s{T+2}, s{T+1}
            s_cbranch_scc1 K_DSP
            """)
        if "--dbg" in sys.argv:
            mk_srd(A, S_B, KDBG, 256)
            sel = opt("--dbgwg", -1)
            if sel >= 0:
                A(f"s_cmp_lg_u32 s2, {sel}")
                A("s_cbranch_scc1 K_END")
            A(f"""
            s_mov_b64 exec, -1
            v_readlane_b32 s{T}, v{V_STAMP}, 16
            s_not_b32 s{T}, s{T}
            v_writelane_b32 v{V_STAMP}, s{T}, 20
            v_subrev_u32 v{V_X0}, 64, v{V_X0}
            s_mov_b32 exec_lo, 0xfffe0000
            s_mov_b32 exec_hi, 0
            buffer_atomic_umax v{V_STAMP}, v{V_X0}, {srd(S_B)}, 0 offen sc1
            """)
    A("""
K_END:
    s_endpgm
    """)
    WQ = 64
    A(f"""
K_SLOW:
    s_setprio 0
    s_waitcnt vmcnt(0)
    v_mov_b32 v36, 0
    v_mov_b32 v37, 0
    v_mov_b32 v38, 0
    v_mov_b32 v39, 0
    v_lshlrev_b32 v29, 4, v0
    v_add_u32 v29, {L_LIST}, v29
    ds_write_b128 v29, v[36:39]
    ds_write_b128 v29, v[36:39] offset:16384
    ds_write_b128 v29, v[36:39] offset:32768
    ds_write_b128 v29, v[36:39] offset:49152
    v_and_b32 v28, 31, v{V_LANE}
    v_lshlrev_b32 v30, 1, v28
    s_lshl_b32 s{T}, s{S_HALF}, 6
    """)
    mk_srd(A, S_A, KWB, 8192)
    mk_srd(A, S_B, KWV, 8192)
    A(f"s_mov_b32 s{T+1}, s{T}")
    for k2 in range(32):
        A(f"""
        s_mov_b32 exec_hi, 0
        buffer_load_ushort v32, v30, {srd(S_A)}, s{T+1} offen
        buffer_load_ushort v33, v30, {srd(S_A)}, s{T+1} offen offset:128
        s_not_b64 exec, exec
        buffer_load_ushort v32, v30, {srd(S_B)}, s{T+1} offen
        buffer_load_ushort v33, v30, {srd(S_B)}, s{T+1} offen offset:128
        s_mov_b64 exec, -1
        s_add_u32 s{T+1}, s{T+1}, 256
        s_waitcnt vmcnt(0)
        v_lshl_or_b32 v{WQ+k2}, v33, 16, v32
        """)
    mk_srd(A, S_A, KWC, 128)
    A(f"""
    buffer_load_ushort v34, v30, {srd(S_A)}, s{T} offen
    v_lshlrev_b32 v30, 2, v28
    v_lshrrev_b32 v31, 5, v{V_LANE}
    v_xor_b32 v31, 1, v31
    v_lshl_add_u32 v35, v31, 7, v30
    v_add_u32 v35, {L_LIST}, v35
    v_add_u32 v30, {L_AU}, v30
    v_lshlrev_b32 v31, 2, v28
    s_waitcnt vmcnt(0) lgkmcnt(0)
    v_lshlrev_b32 v34, 16, v34
    v_mul_f32 v34, 0x{f2u(-LOG2E):08x}, v34
    """)
    mk_srd(A, S_A, KDST, E*4)
    mk_srd(A, S_B, KSRC, E*4)
    mk_srd(A, S_TAB, KE, E*2)
    XS = 34
    A(f"""
    s_barrier
    v_mov_b32 v36, v0
    s_mov_b32 s{S_T0}, {E}
K_SB:
    v_lshlrev_b32 v37, 2, v36
    v_lshlrev_b32 v38, 1, v36
    buffer_load_dword v39, v37, {srd(S_A)}, 0 offen
    buffer_load_dword v40, v37, {srd(S_B)}, 0 offen
    buffer_load_ushort v41, v38, {srd(S_TAB)}, 0 offen
    v_cmp_gt_u32 {sr(52,2)}, s{S_T0}, v36
    s_waitcnt vmcnt(0)
    v_subrev_u32 v39, s{S_NB}, v39
    v_cmp_gt_u32 vcc, {NPB}, v39
    s_and_b64 {sr(52,2)}, {sr(52,2)}, vcc
K_SE:
    s_cmp_eq_u64 {sr(52,2)}, 0
    s_cbranch_scc1 K_SN
    s_ff1_i32_b64 s34, {sr(52,2)}
    s_bitset0_b64 {sr(52,2)}, s34
    v_readlane_b32 s35, v40, s34
    v_readlane_b32 s{S_T1}, v39, s34
    v_readlane_b32 s{S_PF}, v41, s34
    s_min_u32 s35, s35, {N-1}
    s_lshl_b32 s35, s35, 7
    s_load_dwordx16 s[36:51], {sr(KX,2)}, s35
    s_add_u32 s35, s35, 64
    s_load_dwordx16 s[60:75], {sr(KX,2)}, s35
    s_mul_i32 s34, s{S_T1}, {AUS}
    v_add_u32 v42, s34, v30
    ds_read_b32 v43, v42
    s_lshl_b32 s{S_PF}, s{S_PF}, 16
    s_lshl_b32 s{S_T1}, s{S_T1}, 8
    v_mov_b32 v48, 0
    v_mov_b32 v49, 0
    s_waitcnt lgkmcnt(0)
    """)
    for k2 in range(16):
        A(f"v_dot2_f32_bf16 v48, s{36+k2}, v{WQ+k2}, v48")
        A(f"v_dot2_f32_bf16 v49, s{60+k2}, v{WQ+16+k2}, v49")
    A(f"""
    s_nop 3
    v_add_f32 v48, v48, v49
    v_fma_f32 v43, s{S_PF}, v34, v43
    v_mul_f32 v49, 0x{f2u(-LOG2E):08x}, v48
    v_add_f32 v49, v49, v43
    v_exp_f32 v49, v49
    v_add_f32 v49, s{S_C}, v49
    v_rcp_f32 v49, v49
    s_nop 1
    ds_bpermute_b32 v49, v31, v49
    v_cmp_gt_u32 vcc, 32, v{V_LANE}
    v_cndmask_b32 v48, v48, 1.0, vcc
    v_add_u32 v42, s{S_T1}, v35
    s_waitcnt lgkmcnt(0)
    v_mul_f32 v49, v49, v48
    ds_add_f32 v42, v49
    s_branch K_SE
K_SN:
    v_add_u32 v36, 1024, v36
    v_readfirstlane_b32 s34, v36
    s_cmp_lt_u32 s34, {E}
    s_cbranch_scc1 K_SB
    s_mov_b32 s{S_MSK}, 0xffff0000
    s_movk_i32 s34, {AUS}
    s_waitcnt lgkmcnt(0)
    s_barrier
    v_lshrrev_b32 v{V_LC}, 3, v0
    v_add_u32 v{V_X1}, {L_LIST}, v{V_I0+1}
    """)
    for it in range(2):
        A(f"""
        v_min_u32 v36, 199, v{V_LC}
        v_mad_u32_u24 v37, v36, s34, v{V_AUC}
        ds_read_b128 {vr(V_UX,4)}, v37 offset:128
        v_lshl_add_u32 v39, v36, 8, v{V_X1}
        ds_read_b128 {vr(V_NUM,4)}, v39
        ds_read_b128 {vr(V_DEN,4)}, v39 offset:128
        s_waitcnt lgkmcnt(0)
        """)
        finalize(A, V_NUM, V_DEN, V_UX, V_LC)
        A(f"v_add_u32 v{V_LC}, 128, v{V_LC}")
    A("s_endpgm")

HEADER = open(f"cdna_kernels/{NAME}.s.ref").read().split("; Override")[0]

def build(diag=False):
    A = Asm()
    out = HEADER
    out += f"; @launch grid=(256,1,1) block=(1024,1,1) lds={LDS}\n"
    out += '.amdgcn_target "amdgcn-amd-amdhsa--gfx950"\n.text\n'
    out += f".globl {NAME}_kernel\n.p2align 8\n.type {NAME}_kernel,@function\n"
    gen(A, diag)
    out += A.text()
    out += f""".section .rodata,"a"
.p2align 6
.amdhsa_kernel {NAME}_kernel
  .amdhsa_next_free_vgpr 128
  .amdhsa_next_free_sgpr 102
  .amdhsa_accum_offset 128
  .amdhsa_group_segment_fixed_size 0
  .amdhsa_kernarg_size 96
  .amdhsa_user_sgpr_count 2
  .amdhsa_user_sgpr_kernarg_segment_ptr 1
  .amdhsa_system_sgpr_workgroup_id_x 1
  .amdhsa_float_denorm_mode_32 3
.end_amdhsa_kernel
"""
    return out

if __name__ == "__main__":
    diag = "--diag" in sys.argv
    path = sys.argv[1] if len(sys.argv) > 1 and not sys.argv[1].startswith("--") else f"cdna_kernels/{NAME}.s"
    open(path, "w").write(build(diag))
    print("wrote", path, "LDS", LDS)
```

```python
import sys, struct
sys.path.insert(0, "gen")
import hazard
VERBOSE = "--verbose" in sys.argv
def opt(name, default):
    if name in sys.argv: return type(default)(sys.argv[sys.argv.index(name)+1])
    return default

NAME = "standalone__edge_featured_mpnn_gatedgcn__graph"
N, E = 25000, 800000
CH = 3128
NT = CH // 8
NPB = 196
CHP = 3584
WS_REC  = 0
WS_LOC  = 0x380000
WS_OFFS = 0x460000
WS_TF   = 0x4A0000
WS_EP   = 0x4A1000
WS_STAMP = 0x4B0000
WS_TAB  = 0x600000
HS      = 0x320000
PADROW  = 25088
WS_SIZE = WS_TAB + 2*HS
assert 256*CHP*4 <= WS_LOC and WS_LOC + 256*CHP <= WS_OFFS
L_CNT, L_H2, L_LG, L_FLAG, L_ORD, L_BL = 0, 1024, 1280, 1408, 1536, 2560
L_C2, L_C3, L_CX, L_CP, L_CY, L_CE, L_CL = L_FLAG+8, L_FLAG+12, L_FLAG+16, L_FLAG+20, L_FLAG+24, L_FLAG+28, L_FLAG+32
L_TAG = L_FLAG+40
L_HF = L_FLAG+64
L_HIST, L_OFF, L_LOC = 3072, 3584, 4096
L_AU   = L_LOC + CHP
AUS    = 272
L_WBV  = L_AU
L_TST  = L_AU + 16384
L_SIDE = L_AU + 200*AUS
L_XST  = L_SIDE
L_WAU  = L_SIDE + 25600
L_LIST = L_SIDE + 33792
L_REC  = L_LIST
LS     = 296
CAP    = 74
LDS    = L_LIST + 200*LS
assert LDS <= 163840 and L_SIDE % 128 == 0, (LDS, L_SIDE)
BLCAP  = 128
SH = 48
LOG2E = 1.4426950408889634
D = opt("--depth", 2)
R = D + 1
U = D * R
SPIN = opt("--spin", 30000)
FORCE_SLOW = "--slow" in sys.argv
PFA = opt("--pfa", 0)
PFAN = opt("--pfan", 1)
ENT = " nt" if "--nt" in sys.argv else ""
XNT = " nt" if "--xnt" in sys.argv else ""
RPF = "--rpf" in sys.argv
RS = opt("--recst", "sc1").replace("+", " ")
WSOFF = opt("--wsoff", 0)
OST = opt("--ost", "").replace("+", " ")
GLD = opt("--gld", "sc1").replace("+", " ")

def f2u(x): return struct.unpack("<I", struct.pack("<f", x))[0]

class Asm:
    def __init__(self): self.l = []
    def __call__(self, s):
        for ln in s.strip("\n").split("\n"):
            t = ln.strip()
            if not t: continue
            self.l.append(t if t.endswith(":") else "    " + t)
    def label(self, n): self.l.append(n + ":")
    def text(self): return "\n".join(hazard.fix(self.l, VERBOSE)) + "\n"

def vr(a, n=1): return f"v{a}" if n == 1 else f"v[{a}:{a+n-1}]"
def sr(a, n=1): return f"s{a}" if n == 1 else f"s[{a}:{a+n-1}]"
def srd(b): return f"s[{b}:{b+3}]"
def mfma(d, a, b, c): return f"v_mfma_f32_32x32x16_bf16 {d}, {a}, {b}, {c}"

def scan(A, v, op="v_add_u32", upto=64):
    for sh in (1, 2, 4, 8):
        A(f"{op}_dpp v{v}, v{v}, v{v} row_shr:{sh} row_mask:0xf bank_mask:0xf")
    if upto >= 32:
        A(f"{op}_dpp v{v}, v{v}, v{v} row_bcast:15 row_mask:0xa bank_mask:0xf")
    if upto >= 64:
        A(f"{op}_dpp v{v}, v{v}, v{v} row_bcast:31 row_mask:0xc bank_mask:0xf")

V_LANE, V_P, V_NB, V_OA = 1, 2, 3, 4
V_AUC, V_OUTC = 5, 6
V_LC = 7
V_NUM, V_DEN = 8, 12
V_EA, V_WC = 16, 20
V_T, V_V, V_M = 24, 32, 40
V_I0, V_I1 = 44, 46
V_S, V_Q = 48, 52
V_UX = 56
V_LN = 60
V_HL = 61
V_X0, V_X1 = 62, 63
V_DAT = 64
V_E = 96
V_HD = 104
V_HUX = 112
V_AN = 116
V_DUMMY = 126
V_STAMP = 127
S_WS, S_TAB, S_OUT, S_X = 4, 8, 12, 16
S_A, S_B = 20, 24
S_C = 28
S_BIN, S_HALF, S_WAVE, S_WP = 30, 31, 32, 33
S_EV, S_EVC, S_FL, S_FF = 34, 36, 38, 40
S_N1, S_GC, S_GF, S_HEAD, S_U, S_TT, S_GS = 42, 43, 44, 45, 46, 47, 48
S_MSK = 49
S_RET, S_RET2 = 50, 52
S_EPS = 54
S_T0, S_T1 = 56, 57
S_PF = 58
S_NB = 59
S_T = 60
S_K = 76
KX, KE, KSRC, KDST, KWA, KWB, KWC, KWU, KWV, KOUT, KDBG, KWS = [S_K + 2*i for i in range(12)]

def stamp(A, idx, on):
    if on:
        A(f"s_memtime s[100:101]")
        A("s_waitcnt lgkmcnt(0)")
        A(f"v_writelane_b32 v{V_STAMP}, s100, {idx}")
        A(f"s_memrealtime s[100:101]")
        A("s_waitcnt lgkmcnt(0)")
        A(f"v_writelane_b32 v{V_STAMP}, s100, {idx+16}")

def mk_srd(A, d, ptr, nbytes):
    A(f"s_mov_b32 s{d}, s{ptr}")
    A(f"s_mov_b32 s{d+1}, s{ptr+1}")
    A(f"s_mov_b32 s{d+2}, {nbytes}")
    A(f"s_mov_b32 s{d+3}, 0x20000")

def ld_rows(d):
    b = V_DAT + 8*d
    return [f"buffer_load_dwordx4 {vr(b,4)}, {vr(V_I0,2)}, {srd(S_TAB)}, 0 idxen offen {GLD}",
            f"buffer_load_dwordx4 {vr(b+4,4)}, {vr(V_I1,2)}, {srd(S_TAB)}, 0 idxen offen {GLD}"]
def rd_rec(off, r):
    return [f"ds_read_u16 v{V_I0}, v{V_P} offset:{off}",
            f"ds_read_u16 v{V_I1}, v{V_P} offset:{off+4}",
            f"ds_read_u16_d16_hi v{V_E+2*r}, v{V_P} offset:{off+2}",
            f"ds_read_u16_d16_hi v{V_E+2*r+1}, v{V_P} offset:{off+6}"]
def c_head(d, r):
    b = V_DAT + 8*d; e = V_E + 2*r
    o = []
    for h in range(2):
        for k in range(2):
            sel = "op_sel_hi:[0,1,1]" if h == 0 else "op_sel:[1,0,0] op_sel_hi:[1,1,1]"
            o.append(f"v_pk_fma_f32 {vr(V_T+4*h+2*k,2)}, {vr(e,2)}, {vr(V_WC+2*k,2)}, {vr(b+4*h+2*k,2)} {sel}")
    for i in range(4): o.append(f"v_lshlrev_b64 {vr(V_V+2*i,2)}, 16, {vr(b+2*i,2)}")
    return o
def c_rest():
    o = []
    T, V, M, S, Q = V_T, V_V, V_M, V_S, V_Q
    for i in range(8): o.append(f"v_exp_f32 v{T+i}, v{T+i}")
    for i in range(4): o.append(f"v_pk_fma_f32 {vr(T+2*i,2)}, {vr(T+2*i,2)}, {vr(V_EA+2*(i%2),2)}, {sr(S_C,2)} clamp")
    for k in range(2): o.append(f"v_pk_mul_f32 {vr(M+2*k,2)}, {vr(T+2*k,2)}, {vr(T+4+2*k,2)}")
    for i in range(4): o.append(f"v_rcp_f32 v{M+i}, v{M+i}")
    for k in range(2): o.append(f"v_pk_add_f32 {vr(S+2*k,2)}, {vr(T+2*k,2)}, {vr(T+4+2*k,2)}")
    for k in range(2): o.append(f"v_pk_mul_f32 {vr(Q+2*k,2)}, {vr(V+2*k,2)}, {vr(T+4+2*k,2)}")
    for k in range(2): o.append(f"v_pk_fma_f32 {vr(Q+2*k,2)}, {vr(V+4+2*k,2)}, {vr(T+2*k,2)}, {vr(Q+2*k,2)}")
    for k in range(2): o.append(f"v_pk_fma_f32 {vr(V_DEN+2*k,2)}, {vr(S+2*k,2)}, {vr(M+2*k,2)}, {vr(V_DEN+2*k,2)}")
    for k in range(2): o.append(f"v_pk_fma_f32 {vr(V_NUM+2*k,2)}, {vr(Q+2*k,2)}, {vr(M+2*k,2)}, {vr(V_NUM+2*k,2)}")
    return o

def finalize(A, num, den, ux, loc):
    T, V = V_T, V_V
    for k in range(2): A(f"v_pk_add_f32 {vr(den+2*k,2)}, {vr(den+2*k,2)}, {sr(S_EPS,2)}")
    for i in range(4): A(f"v_rcp_f32 v{den+i}, v{den+i}")
    for i in range(4): A(f"v_and_b32 v{T+i}, s{S_MSK}, v{ux+i}")
    for i in range(4): A(f"v_lshlrev_b32 v{V+i}, 16, v{ux+i}")
    for k in range(2): A(f"v_pk_fma_f32 {vr(T+2*k,2)}, {vr(num+2*k,2)}, {vr(den+2*k,2)}, {vr(T+2*k,2)}")
    A(f"v_lshl_add_u32 v{T+4}, v{loc}, 7, v{V_OUTC}")
    A(f"v_cmp_gt_u32 vcc, {NPB}, v{loc}")
    for i in range(4): A(f"v_max_f32 v{T+i}, 0, v{T+i}")
    for k in range(2): A(f"v_pk_add_f32 {vr(T+2*k,2)}, {vr(T+2*k,2)}, {vr(V+2*k,2)}")
    A(f"v_cndmask_b32 v{T+4}, -1, v{T+4}, vcc")
    A(f"v_cvt_pk_bf16_f32 v{T+6}, v{T}, v{T+1}")
    A(f"v_cvt_pk_bf16_f32 v{T+7}, v{T+2}, v{T+3}")
    A(f"buffer_store_dwordx2 {vr(T+6,2)}, v{T+4}, {srd(S_OUT)}, 0 offen {OST}")

def arrive(A, addr, rtn=None):
    A(f"v_mov_b32 v120, {addr}")
    A("v_mov_b32 v121, 1")
    A("s_mov_b64 exec, 1")
    if rtn is None: A("ds_add_u32 v120, v121")
    else:
        A("ds_add_rtn_u32 v122, v120, v121")
        A("s_waitcnt lgkmcnt(0)")
        A(f"v_readfirstlane_b32 s{rtn}, v122")
    A("s_mov_b64 exec, -1")

def spin_lds(A, name, target):
    A(f"""
{name}:
    ds_read_b32 v122, v120
    s_waitcnt lgkmcnt(0)
    v_readfirstlane_b32 s{S_T}, v122
    s_cmp_lt_u32 s{S_T}, {target}
    s_cbranch_scc1 {name}
    """)

def get_tag(A, name):
    T = S_T
    A(f"""
    v_mov_b32 v120, {L_TAG}
{name}:
    ds_read_b64 v[122:123], v120
    s_waitcnt lgkmcnt(0)
    v_readfirstlane_b32 s{S_T0}, v122
    v_readfirstlane_b32 s{S_T1}, v123
    s_and_b32 s{T}, s{S_T0}, 3
    s_cbranch_scc0 {name}
    s_bfe_u32 s{T}, s{S_T0}, 0x40004
    s_lshl_b32 s{T}, s{T}, 24
    s_add_u32 s{S_WS}, s{KWS}, s{T}
    s_addc_u32 s{S_WS+1}, s{KWS+1}, 0
    s_mul_i32 s{T}, s{S_HALF}, {HS}
    s_add_u32 s{T}, s{T}, {WS_TAB}
    s_add_u32 s{S_TAB}, s{S_WS}, s{T}
    s_addc_u32 s{S_TAB+1}, s{S_WS+1}, 0
    s_or_b32 s{S_TAB+1}, s{S_TAB+1}, {128<<16}
    s_and_b32 s{S_T0}, s{S_T0}, 0xfff00002
    """)

def gen(A, diag):
    T = S_T
    EARLY = "--early" in sys.argv
    st = lambda i: stamp(A, i, diag and not (EARLY and 2 <= i <= 7))
    se = lambda i: stamp(A, i, diag and EARLY)
    A.label(f"{NAME}_kernel")
    A(f"""
    s_cmp_ge_u32 s2, 256
    s_cbranch_scc1 K_END
    s_load_dwordx16 {sr(S_K,16)}, s[0:1], 0
    s_load_dwordx8 {sr(S_K+16,8)}, s[0:1], 64
    s_and_b32 s{S_HALF}, s2, 1
    s_bfe_u32 s{T}, s2, 0x20001
    s_lshr_b32 s{T+1}, s2, 3
    s_lshl_b32 s{S_BIN}, s{T}, 5
    s_add_u32 s{S_BIN}, s{S_BIN}, s{T+1}
    s_mul_i32 s{S_NB}, s{S_BIN}, {NPB}
    v_readfirstlane_b32 s{S_WAVE}, v0
    s_lshr_b32 s{S_WAVE}, s{S_WAVE}, 6
    v_and_b32 v{V_LANE}, 63, v0
    v_and_b32 v26, 7, v{V_LANE}
    v_lshrrev_b32 v27, 4, v{V_LANE}
    v_xor_b32 v27, v26, v27
    v_lshlrev_b32 v27, 4, v27
    v_lshrrev_b32 v28, 3, v{V_LANE}
    v_lshl_add_u32 v24, v28, 7, v27
    v_xor_b32 v25, 64, v24
    v_lshlrev_b32 v29, 4, v{V_LANE}
    s_lshl_b32 s{T+6}, s{S_HALF}, 6
    s_lshl_b32 s{T+7}, s{S_NB}, 7
    s_sub_u32 s{T+9}, s{S_WAVE}, 7
    s_mov_b32 s{T+8}, {WS_EP}
    """)
    if diag: A(f"v_mov_b32 v{V_STAMP}, 0")
    if "--inv" in sys.argv:
        A(f"s_cmp_lg_u32 s{S_WAVE}, 0")
        A("s_cbranch_scc1 K_NINV")
        A("buffer_inv " + opt("--inv", "").replace("+", " "))
        A.label("K_NINV")
    A(f"""
    s_cmp_ge_u32 s{S_WAVE}, 7
    s_cbranch_scc1 K_L1
    s_mul_i32 s{T+2}, s{S_HALF}, 12
    s_lshl_b32 s{T+3}, s{S_WAVE}, 1
    s_add_u32 s{T+2}, s{T+2}, s{T+3}
    s_cmp_eq_u32 s{S_WAVE}, 6
    s_cselect_b32 s{T+2}, 24, s{T+2}
    s_lshl_b32 s{T+2}, s{T+2}, 10
    s_add_u32 m0, s{T+2}, {L_XST}
    s_add_u32 s{T+2}, s{T+2}, s{T+7}
    s_lshl_b32 s{T+3}, s{S_WAVE}, 10
    s_memrealtime {sr(S_T0,2)}
    s_waitcnt lgkmcnt(0)
    s_bfe_u32 s{S_GF}, s{S_T0}, {0x4000a if "--noreg" not in sys.argv else 0}
    """)
    st(0)
    A(f"""
    s_or_b32 s{T+14}, s2, s{S_WAVE}
    s_cmp_lg_u32 s{T+14}, 0
    s_cbranch_scc1 K_NEP
    """)
    mk_srd(A, S_A, KDBG, 256)
    A(f"""
    v_lshlrev_b32 v34, 6, v{V_LANE}
    s_lshl_b32 s{T+14}, s{S_T1}, 20
    s_lshl_b32 s{T+15}, s{S_GF}, 4
    s_or_b32 s{T+14}, s{T+14}, s{T+15}
    s_or_b32 s{T+14}, s{T+14}, 1
    v_mov_b32 v32, s{T+14}
    v_mov_b32 v33, s{S_T0}
    s_mov_b64 exec, 15
    buffer_store_dwordx2 v[32:33], v34, {srd(S_A)}, 0 offen sc1
    s_mov_b64 exec, -1
K_NEP:
    """)
    mk_srd(A, S_X, KX, N*128)
    mk_srd(A, S_A, KWB, 8192)
    mk_srd(A, S_B, KWV, 8192)
    A(f"""
    buffer_load_dwordx4 v24, {srd(S_X)}, s{T+2} offen lds
    s_cmp_eq_u32 s{S_WAVE}, 6
    s_cbranch_scc1 K_L0
    buffer_load_dwordx4 v25, {srd(S_X)}, s{T+2} offen offset:1024 lds
K_L0:
    s_add_u32 m0, s{T+3}, {L_WBV}
    s_nop 0
    buffer_load_dwordx4 v29, {srd(S_A)}, s{T+3} offen lds
    s_add_u32 m0, s{T+3}, {L_WBV+8192}
    s_cmp_eq_u32 s{S_WAVE}, 6
    buffer_load_dwordx4 v29, {srd(S_B)}, s{T+3} offen lds
    s_cbranch_scc0 K_L1
    buffer_load_dwordx4 v29, {srd(S_B)}, s{T+3} offen offset:1024 lds
    s_add_u32 m0, s{T+3}, {L_WBV}
    s_nop 0
    buffer_load_dwordx4 v29, {srd(S_A)}, s{T+3} offen offset:1024 lds
K_L1:
    v_mul_u32_u24 v30, {LS}, v0
    v_add_u32 v30, {L_LIST}, v30
    v_cmp_gt_u32 vcc, 200, v0
    v_mov_b32 v31, 0x40000000
    v_cndmask_b32 v30, v31, v30, vcc
    v_cmp_gt_u32 vcc, 256, v0
    v_subrev_u32 v32, 384, v0
    v_cndmask_b32 v30, 0, v30, vcc
    v_cmp_gt_u32 vcc, 256, v32
    v_mov_b32 v31, {NPB}
    v_cndmask_b32 v30, v30, v31, vcc
    v_lshlrev_b32 v31, 2, v0
    ds_write_b32 v31, v30
    v_subrev_u32 v34, 448, v0
    v_lshlrev_b32 v32, 4, v34
    v_lshlrev_b32 v33, 3, v34
    s_mul_i32 s{T+10}, s2, {CH*4}
    s_add_u32 s{T+11}, s{T+10}, {CH*2}
    s_lshr_b32 s{T+12}, s{T+10}, 1
    s_lshr_b32 s{T+13}, s{T+11}, 1
    s_waitcnt lgkmcnt(0)
    """)
    if diag:
        A(f"s_cmp_lt_u32 s{S_WAVE}, 7")
        A("s_cbranch_scc1 K_D0")
        st(0)
        A.label("K_D0")
    if WSOFF:
        A(f"s_add_u32 s{KWS}, s{KWS}, {WSOFF<<20}")
        A(f"s_addc_u32 s{KWS+1}, s{KWS+1}, 0")
    mk_srd(A, S_A, KDST, E*4)
    mk_srd(A, S_B, KSRC, E*4)
    mk_srd(A, S_WS, KE, E*2)
    mk_srd(A, S_X, KX, N*128)
    mk_srd(A, S_OUT, KWC, 128)
    DS_, SR_, EE_ = 64, 72, 80
    A(f"""
    v_lshlrev_b32 v27, 3, v26
    v_cmp_gt_u32 vcc, {NT}, v34
    v_mov_b32 v36, {PADROW}
    v_mov_b32 v37, {PADROW}
    v_mov_b32 v38, {PADROW}
    v_mov_b32 v39, {PADROW}
    v_lshlrev_b32 v30, 4, v0
    v_add_u32 v30, {L_LIST}, v30
    s_barrier
    buffer_load_dwordx2 {vr(V_WC+2,2)}, v27, {srd(S_OUT)}, s{T+6} offen
    s_cmp_ge_u32 s{T+9}, 7
    s_cbranch_scc1 K_NE0
    s_mov_b64 exec, vcc
    buffer_load_dwordx4 {vr(DS_,4)}, v32, {srd(S_A)}, s{T+10} offen{ENT}
    buffer_load_dwordx4 {vr(DS_+4,4)}, v32, {srd(S_A)}, s{T+11} offen{ENT}
    s_mov_b64 exec, -1
    v_mov_b32 v40, -1
    v_mov_b32 v41, -1
    ds_write_b64 v33, v[40:41] offset:{L_LOC}
K_NE0:
    ds_write_b128 v30, v[36:39] offset:{CHP*4}
    ds_write_b128 v30, v[36:39] offset:{CHP*4+16384}
    s_cbranch_scc1 K_NE
    s_mov_b64 exec, vcc
    buffer_load_dwordx4 {vr(SR_,4)}, v32, {srd(S_B)}, s{T+10} offen{ENT}
    buffer_load_dwordx4 {vr(SR_+4,4)}, v32, {srd(S_B)}, s{T+11} offen{ENT}
    buffer_load_dwordx2 {vr(EE_,2)}, v33, {srd(S_WS)}, s{T+12} offen{ENT}
    buffer_load_dwordx2 {vr(EE_+2,2)}, v33, {srd(S_WS)}, s{T+13} offen{ENT}
    s_mov_b64 exec, -1
K_NE:
    ds_write_b128 v30, v[36:39] offset:{CHP*4+32768}
    """)
    se(2)
    mk_srd(A, S_WS, KWS, WS_SIZE)
    mk_srd(A, S_OUT, KOUT, N*128)
    A(f"""
    s_mul_i32 s{T+2}, s{S_HALF}, {HS}
    s_add_u32 s{T+2}, s{T+2}, {WS_TAB}
    s_mov_b32 s{S_TAB+2}, {PADROW+1}
    s_mov_b32 s{S_TAB+3}, 0x20000
    s_mul_i32 s{S_PF}, s{T+1}, {784*128}
    s_add_u32 s{S_PF}, s{S_PF}, s{T+2}
    s_add_u32 s{T+3}, s{T+7}, s{T+6}
    v_add_u32 v{V_OUTC}, s{T+3}, v27
    v_lshlrev_b32 v{V_I0+1}, 4, v26
    v_mov_b32 v{V_I1+1}, v{V_I0+1}
    v_add_u32 v{V_AUC}, {L_AU}, v{V_I0+1}
    v_lshlrev_b32 v{V_OA}, 2, v28
    s_mov_b32 s{S_C}, 0x{f2u(2.0**-SH):08x}
    s_mov_b32 s{S_C+1}, 0x{f2u(2.0**-SH):08x}
    s_mov_b32 s{S_EPS}, 0x{f2u(1e-6*2.0**SH):08x}
    s_mov_b32 s{S_EPS+1}, 0x{f2u(1e-6*2.0**SH):08x}
    s_mov_b32 s{S_MSK}, 0xffff0000
    """)
    arrive(A, L_CE)
    se(3)
    A(f"""
    s_cmp_ge_u32 s{S_WAVE}, 14
    s_cbranch_scc1 K_HELP
    s_cmp_ge_u32 s{S_WAVE}, 7
    s_cbranch_scc1 K_BIN
    ; ---- table job: tile = 3*half + (w>>1), nt = w&1 ; wave 6: tile 6, nt = half
    s_mul_i32 s{T+10}, s{S_HALF}, 3
    s_lshr_b32 s{T+11}, s{S_WAVE}, 1
    s_add_u32 s{T+10}, s{T+10}, s{T+11}
    s_and_b32 s{T+11}, s{S_WAVE}, 1
    s_cmp_eq_u32 s{S_WAVE}, 6
    s_cselect_b32 s{T+10}, 6, s{T+10}
    s_cselect_b32 s{T+11}, s{S_HALF}, s{T+11}
    s_lshl_b32 s{T+12}, s{T+10}, 12
    s_mul_i32 s{T+13}, s{T+11}, {HS}
    s_add_u32 s{T+13}, s{T+13}, s{T+7}
    s_add_u32 s{T+15}, s{T+13}, {WS_TAB}
    s_mov_b32 s{S_B+2}, {NPB*128}
    s_mov_b32 s{S_B+3}, 0x20000
    v_and_b32 v28, 31, v{V_LANE}
    v_lshrrev_b32 v29, 5, v{V_LANE}
    v_bfe_u32 v30, v28, 1, 3
    v_xor_b32 v30, v30, v29
    v_lshlrev_b32 v30, 4, v30
    v_lshl_add_u32 v24, v28, 7, v30
    s_add_u32 s{T+13}, s{T+12}, {L_XST}
    v_add_u32 v30, s{T+13}, v24
    v_bfe_u32 v25, v{V_LANE}, 2, 2
    v_lshl_add_u32 v25, v29, 3, v25
    v_lshlrev_b32 v34, 7, v25
    v_bfe_u32 v35, v{V_LANE}, 4, 1
    v_lshl_add_u32 v34, v35, 5, v34
    v_and_b32 v36, 3, v{V_LANE}
    v_lshl_add_u32 v34, v36, 3, v34
    s_lshl_b32 s{T+13}, s{T+11}, 6
    s_add_u32 s{T+13}, s{T+13}, {L_WBV}
    v_add_u32 v34, s{T+13}, v34
    v_and_b32 v32, 1, v{V_LANE}
    v_xor_b32 v32, 1, v32
    v_lshlrev_b32 v32, 15, v32
    v_lshlrev_b32 v33, 9, v29
    v_lshl_add_u32 v33, v28, 2, v33
    v_add_u32 v33, s{T+12}, v33
    s_mov_b32 s{T+13}, 0x{f2u(-LOG2E):08x}
    s_mov_b32 s{T+14}, 0x07060302
    s_waitcnt vmcnt(1)
    """)
    arrive(A, L_CX)
    spin_lds(A, "K_SPX", 7)
    st(1)
    XB = 84
    Wm1 = [36, 40, 116, 8]
    for u in range(4):
        A(f"v_xor_b32 v31, {32*u}, v30")
        A(f"ds_read_b128 {vr(XB+4*u,4)}, v31")
        for tt in range(2):
            A(f"ds_read_b64_tr_b16 {vr(100+4*u+2*tt,2)}, v34 offset:{(16*u+4*tt)*128}")
        for tt in range(2):
            A(f"ds_read_b64_tr_b16 {vr(Wm1[u]+2*tt,2)}, v34 offset:{8192+(16*u+4*tt)*128}")
    for u in range(4):
        A(f"s_waitcnt lgkmcnt({15-5*u})")
        A(mfma(vr(48,16), vr(XB+4*u,4), vr(100+4*u,4), "0" if u == 0 else vr(48,16)))
        A(mfma(vr(64,16), vr(XB+4*u,4), vr(Wm1[u],4), "0" if u == 0 else vr(64,16)))
    TS = opt("--tabst", "sc1").replace("+", " ")
    A(f"""
    s_lshl_b32 s{T}, s{S_GF}, 24
    s_add_u32 s{T}, s{T}, s{T+15}
    s_add_u32 s{S_B}, s{KWS}, s{T}
    s_addc_u32 s{S_B+1}, s{KWS+1}, 0
    """)
    if "--tabdw" in sys.argv:
        arrive(A, L_CY)
        for r in range(16): A(f"v_mul_f32 v{48+r}, s{T+13}, v{48+r}")
        for r in range(16):
            A(f"v_add_u32 v{64+r}, v32, v{64+r}")
            A(f"v_perm_b32 v{48+r}, v{48+r}, v{64+r}, s{T+14}")
            A(f"buffer_store_dword v{48+r}, v33, {srd(S_B)}, 0 offen offset:{(8*(r>>2)+(r&3))*128} {TS}")
    else:
        A(f"""
        s_lshl_b32 s{T+4}, s{S_WAVE}, 11
        s_add_u32 s{T+4}, s{T+4}, {L_TST}
        v_subrev_u32 v33, s{T+12}, v33
        v_add_u32 v33, s{T+4}, v33
        v_add_u32 v34, 128, v33
        v_lshlrev_b32 v35, 4, v{V_LANE}
        v_add_u32 v36, s{T+4}, v35
        v_add_u32 v35, s{T+12}, v35
        """)
        for hf in range(2):
            for r in range(8*hf, 8*hf+8): A(f"v_mul_f32 v{48+r}, s{T+13}, v{48+r}")
            for r in range(8*hf, 8*hf+8):
                A(f"v_add_u32 v{64+r}, v32, v{64+r}")
                A(f"v_perm_b32 v{48+r}, v{48+r}, v{64+r}, s{T+14}")
            for q in range(2):
                r = 8*hf + 4*q
                A(f"ds_write2st64_b32 v33, v{48+r}, v{50+r} offset0:{4*q} offset1:{4*q+1}")
                A(f"ds_write2st64_b32 v34, v{49+r}, v{51+r} offset0:{4*q} offset1:{4*q+1}")
            A(f"ds_read_b128 {vr(100+8*hf,4)}, v36")
            A(f"ds_read_b128 {vr(104+8*hf,4)}, v36 offset:1024")
            if hf == 1:
                if "--tabhold" in sys.argv:
                    A(f"v_mov_b32 v120, {L_C2 if opt('--tabhold', 2) == 2 else L_C3}")
                    spin_lds(A, "K_SPH", 7)
                A("s_waitcnt lgkmcnt(6)")
                A(f"buffer_store_dwordx4 v[100:103], v35, {srd(S_B)}, 0 offen {TS}")
                A(f"buffer_store_dwordx4 v[104:107], v35, {srd(S_B)}, 0 offen offset:1024 {TS}")
        A("s_waitcnt lgkmcnt(0)")
        A(f"buffer_store_dwordx4 v[108:111], v35, {srd(S_B)}, 0 offen offset:2048 {TS}")
        A(f"buffer_store_dwordx4 v[112:115], v35, {srd(S_B)}, 0 offen offset:3072 {TS}")
        arrive(A, L_CY)
        st(2)
        get_tag(A, "K_GT0")
        A(f"""
        s_add_u32 s{T}, s{S_WS}, s{T+15}
        s_addc_u32 s{T+1}, s{S_WS+1}, 0
        s_cmp_eq_u32 s{T}, s{S_B}
        s_cbranch_scc1 K_RGOK
        s_mov_b32 s{S_B}, s{T}
        s_mov_b32 s{S_B+1}, s{T+1}
        buffer_store_dwordx4 v[100:103], v35, {srd(S_B)}, 0 offen {TS}
        buffer_store_dwordx4 v[104:107], v35, {srd(S_B)}, 0 offen offset:1024 {TS}
        buffer_store_dwordx4 v[108:111], v35, {srd(S_B)}, 0 offen offset:2048 {TS}
        buffer_store_dwordx4 v[112:115], v35, {srd(S_B)}, 0 offen offset:3072 {TS}
K_RGOK:
        """)
    A(f"""
    s_lshr_b32 s{T+12}, s2, 1
    s_or_b32 s{T+12}, s{T+12}, s{S_WAVE}
    s_cmp_lg_u32 s{T+12}, 0
    s_cbranch_scc1 K_NPAD
    v_lshlrev_b32 v32, 2, v{V_LANE}
    v_mov_b32 v33, 0x7f000000
    s_mul_i32 s{T+4}, s{S_HALF}, {HS}
    s_add_u32 s{T+4}, s{T+4}, {WS_TAB+PADROW*128}
    s_mov_b32 exec_hi, 0
    buffer_store_dword v33, v32, {srd(S_WS)}, s{T+4} offen sc1
    s_mov_b64 exec, -1
K_NPAD:
    s_waitcnt vmcnt(0)
    """)
    st(3)
    arrive(A, L_CP, rtn=T+3)
    A(f"""
    s_cmp_lg_u32 s{T+3}, 13
    s_cbranch_scc1 K_NPB
    s_bitcmp1_b32 s{S_T0}, 1
    s_cbranch_scc1 K_NPB
    s_call_b64 {sr(S_RET,2)}, K_PUB
    buffer_store_dwordx4 v[40:43], v44, {srd(S_WS)}, s{T+4} offen sc1
K_NPB:
    ; ---- A / U job for tile = wave
    v_and_b32 v28, 31, v{V_LANE}
    v_lshrrev_b32 v29, 5, v{V_LANE}
    v_bfe_u32 v30, v28, 1, 3
    v_xor_b32 v30, v30, v29
    v_lshlrev_b32 v30, 4, v30
    v_lshl_add_u32 v30, v28, 7, v30
    s_lshl_b32 s{T+12}, s{S_HALF}, 6
    v_xor_b32 v30, s{T+12}, v30
    s_lshl_b32 s{T+12}, s{S_WAVE}, 12
    s_add_u32 s{T+12}, s{T+12}, {L_XST}
    v_add_u32 v30, s{T+12}, v30
    v_bfe_u32 v25, v{V_LANE}, 2, 2
    v_lshl_add_u32 v25, v29, 3, v25
    v_lshlrev_b32 v34, 6, v25
    v_bfe_u32 v35, v{V_LANE}, 4, 1
    v_lshl_add_u32 v34, v35, 5, v34
    v_and_b32 v36, 1, v{V_LANE}
    v_bfe_u32 v37, v{V_LANE}, 1, 1
    v_lshl_add_u32 v36, v36, 1, v37
    v_lshl_add_u32 v34, v36, 3, v34
    s_lshl_b32 s{T+12}, s{S_HALF}, 11
    v_add_u32 v34, s{T+12}, v34
    v_xor_b32 v35, 2048, v34
    v_add_u32 v34, {L_WAU}, v34
    v_add_u32 v35, {L_WAU}, v35
    v_mov_b32 v120, {L_CY}
    """)
    spin_lds(A, "K_SPY", 8)
    if "--pfay" in sys.argv:
        A(f"""
        s_cmp_ge_u32 s{S_WAVE}, {PFA}
        s_cbranch_scc1 K_NPFA
        v_lshlrev_b32 v31, 7, v0
        buffer_load_ubyte v{V_DUMMY}, v31, {srd(S_WS)}, s{S_PF} offen {GLD}
K_NPFA:
        """)
    st(4)
    XA = 76
    Wu = [8, 12, 16, 40]
    for u in range(4):
        A(f"v_xor_b32 v31, {32*u}, v30")
        A(f"ds_read_b128 {vr(XA+4*u,4)}, v31")
        av = 34 if u < 2 else 35
        for tt in range(2):
            A(f"ds_read_b64_tr_b16 {vr(104+4*u+2*tt,2)}, v{av} offset:{((u&1)*16+4*tt)*64}")
        for tt in range(2):
            A(f"ds_read_b64_tr_b16 {vr(Wu[u]+2*tt,2)}, v{av} offset:{4096+((u&1)*16+4*tt)*64}")
    A(f"""
    s_lshl_b32 s{T+12}, s{S_WAVE}, 5
    v_add_u32 v28, s{T+12}, v28
    v_mul_u32_u24 v24, {AUS}, v28
    v_lshl_add_u32 v24, v29, 5, v24
    v_add_u32 v24, {L_AU}, v24
    """)
    for u in range(4):
        A(f"s_waitcnt lgkmcnt({15-5*u})")
        A(mfma(vr(48,16), vr(104+4*u,4), vr(XA+4*u,4), "0" if u == 0 else vr(48,16)))
    for u in range(4):
        A(mfma(vr(104,16), vr(Wu[u],4), vr(XA+4*u,4), "0" if u == 0 else vr(104,16)))
    A(f"""
    s_mov_b32 s{T+13}, 0x{f2u(-LOG2E):08x}
    v_mov_b32 v31, 0x{f2u(-float(SH)):08x}
    """)
    A(f"v_max3_f32 v32, |v48|, |v49|, |v50|")
    for i in range(3, 15, 2): A(f"v_max3_f32 v32, |v{48+i}|, |v{48+i+1}|, v32")
    A(f"v_max_f32 v32, |v63|, v32")
    for i in range(16): A(f"v_fma_f32 v{48+i}, v{48+i}, s{T+13}, v31")
    A(f"""
    s_mov_b32 s{T+12}, 0x05040100
    s_mov_b32 s{T+13}, 0x07060302
    v_mov_b32 v33, {L_FLAG}
    v_cmpx_gt_u32 vcc, 200, v28
    ds_write_b128 v24, v[48:51]
    ds_write_b128 v24, v[52:55] offset:16
    ds_write_b128 v24, v[56:59] offset:64
    ds_write_b128 v24, v[60:63] offset:80
    """)
    for i in range(8): A(f"v_cvt_pk_bf16_f32 v{8+i}, v{104+2*i}, v{105+2*i}")
    for i in range(8):
        A(f"v_perm_b32 v{104+2*i}, v{8+i}, v{XA+i}, s{T+12}")
        A(f"v_perm_b32 v{105+2*i}, v{8+i}, v{XA+i}, s{T+13}")
    A(f"""
    ds_write_b128 v24, v[104:107] offset:128
    ds_write_b128 v24, v[108:111] offset:144
    ds_write_b128 v24, v[112:115] offset:192
    ds_write_b128 v24, v[116:119] offset:208
    v_cmpx_gt_u32 vcc, {NPB}, v28
    v_cmpx_nge_f32 vcc, 0x{f2u(49.0):08x}, v32
    ds_write_b32 v33, v33
    s_mov_b64 exec, -1
    """)
    st(5)
    A("s_branch K_JOIN")
    BN, RK, TM = 48, 56, 84
    A(f"""
K_BIN:
    v_mov_b32 v31, v34
    s_mul_i32 s{T+10}, s2, {CH//4}
    v_add_u32 v32, s{T+10}, v31
    v_cmp_gt_u32 vcc, {NT}, v31
    s_mov_b32 s{T+11}, {E//4}
    v_cmp_gt_u32 {sr(T+4,2)}, s{T+11}, v32
    s_mov_b32 s{T+11}, {E//4 - NT}
    v_cmp_gt_u32 {sr(T+6,2)}, s{T+11}, v32
    s_and_b64 {sr(T+4,2)}, {sr(T+4,2)}, vcc
    s_and_b64 {sr(T+6,2)}, {sr(T+6,2)}, vcc
    s_mov_b32 s{T+8}, 42800
    s_movk_i32 s{T+9}, {NPB}
    v_mov_b32 v33, 1
    s_setprio 3
    """)
    for hlf in range(2):
        A(f"s_mov_b64 exec, {sr(T+4+2*hlf,2)}")
        A(f"s_waitcnt vmcnt({5-hlf})")
        ks = range(4*hlf, 4*hlf+4)
        for k in ks: A(f"v_mul_u32_u24 v{BN+k}, s{T+8}, v{DS_+k}")
        for k in ks: A(f"v_lshrrev_b32 v{BN+k}, 23, v{BN+k}")
        for k in ks:
            A(f"v_mul_u32_u24 v{TM+k}, s{T+9}, v{BN+k}")
            A(f"v_lshlrev_b32 v{BN+k}, 2, v{BN+k}")
            A(f"ds_add_rtn_u32 v{RK+k}, v{BN+k}, v33 offset:{L_HIST}")
        for k in ks: A(f"v_sub_u32 v{DS_+k}, v{DS_+k}, v{TM+k}")
    A("s_mov_b64 exec, -1")
    A(f"v_lshlrev_b32 v34, 3, v{V_LANE}")
    arrive(A, L_C2)
    st(3)
    spin_lds(A, "K_SP2", 7)
    st(4)
    A(f"""
    ds_read_b64 v[36:37], v34 offset:{L_HIST}
    s_waitcnt lgkmcnt(0)
    v_add_u32 v36, 3, v36
    v_add_u32 v37, 3, v37
    v_and_b32 v36, -4, v36
    v_and_b32 v37, -4, v37
    v_add_u32 v38, v36, v37
    v_mov_b32 v39, v38
    """)
    scan(A, 39)
    A(f"""
    v_sub_u32 v38, v39, v38
    v_add_u32 v39, v38, v36
    ds_write_b64 v34, v[38:39] offset:{L_OFF}
    """)
    for hlf in range(2):
        A(f"s_mov_b64 exec, {sr(T+4+2*hlf,2)}")
        for k in range(4*hlf, 4*hlf+4):
            A(f"ds_read_b32 v{TM+k}, v{BN+k} offset:{L_OFF}")
    A(f"""
    s_mov_b64 exec, -1
    v_mov_b32 v35, {L_REC}
    s_mov_b32 s{T+8}, 0x05040100
    s_mov_b32 s{T+9}, 0x07060100
    s_waitcnt lgkmcnt(0)
    """)
    for hlf in range(2):
        A(f"s_mov_b64 exec, {sr(T+4+2*hlf,2)}")
        for k in range(4*hlf, 4*hlf+4):
            A(f"v_add_u32 v{TM+k}, v{TM+k}, v{RK+k}")
            A(f"v_lshl_add_u32 v{RK+k}, v{TM+k}, 2, v35")
            A(f"ds_write_b8 v{TM+k}, v{DS_+k} offset:{L_LOC}")
    A("s_mov_b64 exec, -1")
    st(5)
    for hlf in range(2):
        A(f"s_waitcnt vmcnt({1-hlf})")
        A(f"s_mov_b64 exec, {sr(T+4+2*hlf,2)}")
        for k in range(4*hlf, 4*hlf+4):
            A(f"v_perm_b32 v{SR_+k}, v{EE_+k//2}, v{SR_+k}, s{T+8+(k&1)}")
            A(f"ds_write_b32 v{RK+k}, v{SR_+k}")
    A(f"""
    s_mov_b64 exec, -1
    v_lshlrev_b32 v32, 4, v31
    v_add_u32 v33, {L_REC}, v32
    s_mul_i32 s{T+10}, s2, {CHP*4}
    s_add_u32 s{T+11}, s{T+10}, {448*16}
    s_mul_i32 s{T+12}, s2, {CHP}
    s_add_u32 s{T+12}, s{T+12}, {WS_LOC}
    """)
    arrive(A, L_C3)
    get_tag(A, "K_GT1")
    A(f"v_mov_b32 v120, {L_C3}")
    spin_lds(A, "K_SP3", 7)
    st(6)
    A(f"""
    ds_read_b128 v[64:67], v33
    ds_read_b128 v[68:71], v33 offset:{448*16}
    ds_read_b128 v[72:75], v32 offset:{L_LOC}
    v_cmp_gt_u32 vcc, {CHP//16}, v31
    s_waitcnt lgkmcnt(2)
    buffer_store_dwordx4 v[64:67], v32, {srd(S_WS)}, s{T+10} offen {RS}
    s_waitcnt lgkmcnt(1)
    buffer_store_dwordx4 v[68:71], v32, {srd(S_WS)}, s{T+11} offen {RS}
    s_waitcnt lgkmcnt(0)
    s_and_saveexec_b64 {sr(T+4,2)}, vcc
    s_cbranch_execz K_NLOC
    buffer_store_dwordx4 v[72:75], v32, {srd(S_WS)}, s{T+12} offen {RS}
K_NLOC:
    s_mov_b64 exec, -1
    v_mov_b32 v76, {PADROW}
    v_mov_b32 v77, {PADROW}
    v_mov_b32 v78, {PADROW}
    v_mov_b32 v79, {PADROW}
    ds_write_b128 v33, v[76:79]
    ds_write_b128 v33, v[76:79] offset:{448*16}
    s_call_b64 {sr(S_RET,2)}, K_PUB
    s_waitcnt vmcnt(0)
    """)
    st(7)
    arrive(A, L_CP, rtn=T+3)
    A(f"""
    s_branch K_PUBQ
K_HELP:
    s_cmp_lg_u32 s{S_WAVE}, 15
    s_cbranch_scc1 K_NTG
    """)
    for k in range(4):
        A(f"""
        s_load_dwordx2 {sr(S_T0,2)}, {sr(KDBG,2)}, {64*k}
        s_waitcnt lgkmcnt(0)
        s_bitcmp1_b32 s{S_T0}, 0
        s_cbranch_scc1 K_TG2
        s_sleep {opt("--tsleep", 4)}
        """)
    mk_srd(A, S_B, KDBG, 256)
    A(f"""
    v_mov_b32 v34, 0
    s_mov_b32 s{T+13}, {SPIN}
K_TG:
    buffer_load_dwordx2 v[32:33], v34, {srd(S_B)}, 0 offen sc1
    s_waitcnt vmcnt(0)
    v_readfirstlane_b32 s{S_T0}, v32
    v_readfirstlane_b32 s{S_T1}, v33
    s_bitcmp1_b32 s{S_T0}, 0
    s_cbranch_scc1 K_TG2
    s_sleep 2
    s_sub_u32 s{T+13}, s{T+13}, 1
    s_cmp_lg_u32 s{T+13}, 0
    s_cbranch_scc1 K_TG
    s_mov_b32 s{S_T0}, 2
K_TG2:
    v_mov_b32 v32, s{S_T0}
    v_mov_b32 v33, s{S_T1}
    v_mov_b32 v35, {L_TAG}
    ds_write_b64 v35, v[32:33]
    """)
    st(1)
    get_tag(A, "K_GT3")
    A(f"""
    s_waitcnt vmcnt(0)
    s_branch K_JOIN
K_NTG:
    s_xor_b32 s{T+3}, s{S_HALF}, 1
    s_mul_i32 s{T+3}, s{T+3}, 12288
    s_add_u32 m0, s{T+3}, {L_XST}
    s_add_u32 s{T+3}, s{T+3}, s{T+7}
    v_lshrrev_b32 v30, 2, v{V_LANE}
    v_lshlrev_b32 v30, 7, v30
    v_and_b32 v31, 3, v{V_LANE}
    v_lshl_add_u32 v30, v31, 4, v30
    """)
    mk_srd(A, S_A, KWA, 8192)
    mk_srd(A, S_B, KWU, 8192)
    spin_lds(A, "K_SPE", 16)
    for g in range(3):
        A(f"""
        buffer_load_dwordx4 v24, {srd(S_X)}, s{T+3} offen lds
        buffer_load_dwordx4 v25, {srd(S_X)}, s{T+3} offen offset:1024 lds
        buffer_load_dwordx4 v24, {srd(S_X)}, s{T+3} offen offset:2048 lds
        buffer_load_dwordx4 v25, {srd(S_X)}, s{T+3} offen offset:3072 lds
        s_add_u32 m0, m0, 4096
        s_add_u32 s{T+3}, s{T+3}, 4096
        """)
    for m_, sd in enumerate((S_A, S_B)):
        A(f"s_mov_b32 m0, {L_WAU + 4096*m_}")
        A(f"s_mov_b32 s{T+4}, s{T+6}")
        for i4 in range(4):
            A(f"buffer_load_dwordx4 v30, {srd(sd)}, s{T+4} offen offset:{1024*i4} lds")
            A(f"s_add_u32 s{T+4}, s{T+4}, 1024")
    A("s_waitcnt vmcnt(0)")
    st(2)
    arrive(A, L_CY)
    get_tag(A, "K_GT2")
    A(f"""
    s_branch K_JOIN
K_PUB:
    v_lshlrev_b32 v122, 3, v{V_LANE}
    ds_read_b64 v[36:37], v122 offset:{L_HIST}
    ds_read_b64 v[38:39], v122 offset:{L_OFF}
    s_lshl_b32 s{T+4}, s2, 10
    s_add_u32 s{T+4}, s{T+4}, {WS_OFFS}
    v_lshlrev_b32 v44, 4, v{V_LANE}
    v_mov_b32 v41, s{S_T1}
    v_mov_b32 v43, s{S_T1}
    s_waitcnt lgkmcnt(0)
    v_add_u32 v36, 3, v36
    v_add_u32 v37, 3, v37
    v_lshrrev_b32 v36, 2, v36
    v_lshrrev_b32 v37, 2, v37
    v_lshrrev_b32 v38, 2, v38
    v_lshrrev_b32 v39, 2, v39
    v_lshl_or_b32 v40, v36, 10, v38
    v_lshl_or_b32 v42, v37, 10, v39
    v_or_b32 v40, s{S_T0}, v40
    v_or_b32 v42, s{S_T0}, v42
    s_setpc_b64 {sr(S_RET,2)}
K_PUBQ:
    s_cmp_lg_u32 s{T+3}, 13
    s_cbranch_scc1 K_JOIN
    s_bitcmp1_b32 s{S_T0}, 1
    s_cbranch_scc1 K_JOIN
    buffer_store_dwordx4 v[40:43], v44, {srd(S_WS)}, s{T+4} offen sc1
K_JOIN:
    s_setprio 0
    v_lshrrev_b32 v28, 3, v0
    v_lshlrev_b32 v24, 10, v28
    v_and_b32 v26, 7, v{V_LANE}
    v_mul_u32_u24 v28, {CHP//4}, v28
    v_add_u32 v28, v28, v26
    s_lshl_b32 s{T+5}, s{S_BIN}, 3
    s_add_u32 s{T+5}, s{T+5}, {WS_OFFS}
    s_add_u32 s{T+14}, s{T+5}, {128*1024}
    s_mov_b32 s{T+2}, {128*CHP*4}
    s_mov_b32 s{T+3}, {WS_LOC}
    s_mov_b32 s{T+4}, {WS_LOC+128*CHP}
    v_mov_b32 v31, 0x04000000
    v_mov_b32 v38, 4
    v_mov_b32 v39, 2
    v_add_u32 v25, 8, v26
    v_min_u32 v30, 783, v0
    v_lshlrev_b32 v30, 7, v30
    s_mov_b32 s{T+12}, 0xfff00000
    s_mov_b32 s{T+13}, {SPIN}
    v_lshlrev_b32 v{V_WC}, 16, v{V_WC+2}
    v_and_b32 v{V_WC+1}, s{S_MSK}, v{V_WC+2}
    v_lshlrev_b32 v{V_WC+2}, 16, v{V_WC+3}
    v_and_b32 v{V_WC+3}, s{S_MSK}, v{V_WC+3}
    s_mov_b32 s{T}, 0x{f2u(-LOG2E):08x}
    v_mul_f32 v{V_WC}, s{T}, v{V_WC}
    v_mul_f32 v{V_WC+1}, s{T}, v{V_WC+1}
    v_mul_f32 v{V_WC+2}, s{T}, v{V_WC+2}
    v_mul_f32 v{V_WC+3}, s{T}, v{V_WC+3}
    """)
    for i in range(2*R): A(f"v_mov_b32 v{V_E+i}, 0")
    def pfa():
        if PFA and "--pfay" not in sys.argv:
            A(f"""
            s_cmp_ge_u32 s{S_WAVE}, {PFA}
            s_cbranch_scc1 K_NPFA
            buffer_load_ubyte v{V_DUMMY}, v30, {srd(S_WS)}, s{S_PF} offen {GLD}
K_NPFA:
            """)
    if "--pfapre" in sys.argv: pfa()
    A("s_waitcnt lgkmcnt(0)")
    A("s_barrier")
    if "--pfapre" not in sys.argv: pfa()
    st(8)
    A(f"""
    s_bitcmp1_b32 s{S_T0}, 1
    s_cselect_b32 s{T+13}, 1, s{T+13}
K_POLL:
    buffer_load_dwordx2 v[32:33], v24, {srd(S_WS)}, s{T+5} offen sc1
    buffer_load_dwordx2 v[34:35], v24, {srd(S_WS)}, s{T+14} offen sc1
    s_waitcnt vmcnt(0)
    v_and_b32 v36, s{T+12}, v32
    v_and_b32 v37, s{T+12}, v34
    v_cmp_eq_u32 vcc, s{S_T1}, v33
    v_cmp_eq_u32 {sr(T+6,2)}, s{S_T1}, v35
    v_cmp_eq_u32 {sr(T+8,2)}, s{S_T0}, v36
    v_cmp_eq_u32 {sr(T+10,2)}, s{S_T0}, v37
    s_and_b64 vcc, vcc, {sr(T+6,2)}
    s_and_b64 {sr(T+8,2)}, {sr(T+8,2)}, {sr(T+10,2)}
    s_and_b64 vcc, vcc, {sr(T+8,2)}
    s_cmp_eq_u64 vcc, -1
    s_cbranch_scc1 K_GOT
    s_sleep {opt("--psleep", 2)}
    s_sub_u32 s{T+13}, s{T+13}, 1
    s_cmp_lg_u32 s{T+13}, 0
    s_cbranch_scc1 K_POLL
    v_mov_b32 v37, {L_FLAG}
    ds_write_b32 v37, v38
    v_mov_b32 v32, 0
    v_mov_b32 v34, 0
K_GOT:
    """)
    st(9)
    A(f"""
    v_bfe_u32 v40, v32, 10, 10
    v_bfe_u32 v41, v34, 10, 10
    v_and_b32 v32, 0x3ff, v32
    v_and_b32 v33, 0x3ff, v34
    v_cmp_lt_u32 {sr(T+6,2)}, v26, v40
    v_cmp_lt_u32 {sr(T+8,2)}, v26, v41
    v_add_u32 v32, v32, v28
    v_add_u32 v33, v33, v28
    v_cndmask_b32 v42, v31, v32, {sr(T+6,2)}
    v_cndmask_b32 v43, v31, v33, {sr(T+8,2)}
    v_lshlrev_b32 v36, 2, v42
    v_lshlrev_b32 v37, 2, v43
    v_lshlrev_b32 v42, 4, v42
    v_lshlrev_b32 v43, 4, v43
    buffer_load_dword v72, v36, {srd(S_WS)}, s{T+3} offen sc1
    buffer_load_dword v73, v37, {srd(S_WS)}, s{T+4} offen sc1
    buffer_load_dwordx4 v[64:67], v42, {srd(S_WS)}, 0 offen sc1
    buffer_load_dwordx4 v[68:71], v43, {srd(S_WS)}, s{T+2} offen sc1
    v_cmp_lt_u32 {sr(T+10,2)}, v25, v40
    v_cmp_lt_u32 {sr(T+12,2)}, v25, v41
    s_mov_b64 exec, {sr(T+10,2)}
    s_cbranch_execz K_OV0
    buffer_load_dword v74, v36, {srd(S_WS)}, s{T+3} offen offset:32 sc1
    buffer_load_dwordx4 v[76:79], v42, {srd(S_WS)}, 0 offen offset:128 sc1
K_OV0:
    s_mov_b64 exec, {sr(T+12,2)}
    s_cbranch_execz K_OV1
    buffer_load_dword v75, v37, {srd(S_WS)}, s{T+4} offen offset:32 sc1
    buffer_load_dwordx4 v[104:107], v43, {srd(S_WS)}, s{T+2} offen offset:128 sc1
K_OV1:
    s_mov_b64 exec, -1
    v_max_u32 v36, v40, v41
    v_mov_b32 v37, {L_FLAG}
    v_cmpx_lt_u32 vcc, {16 if not FORCE_SLOW else 0}, v36
    ds_write_b32 v37, v38
    s_mov_b64 exec, -1
    """)
    PFB = opt("--pfb", 1)
    def pfb():
        A(f"""
        s_cmp_lt_u32 s{S_WAVE}, {PFA}
        s_cbranch_scc1 K_NPFB
        s_cmp_ge_u32 s{S_WAVE}, {opt("--pfbn", 13)}
        s_cbranch_scc1 K_NPFB
        buffer_load_ubyte v{V_DUMMY}, v30, {srd(S_WS)}, s{S_PF} offen {GLD}
        """)
    def ins_atom(locw, a0):
        for k in range(4):
            A(f"v_lshlrev_b32_sdwa v{a0+k}, v39, v{locw} dst_sel:DWORD dst_unused:UNUSED_PAD src0_sel:DWORD src1_sel:BYTE_{k}")
            A(f"ds_add_rtn_u32 v{a0+k}, v{a0+k}, v38")
    def ins_write(a0, rec):
        for k in range(4):
            A(f"ds_write_b32 v{a0+k}, v{rec+k}")
    if PFB >= 1: arrive(A, L_CL)
    if PFB == 1: spin_lds(A, "K_SPM", 16)
    if PFB <= 1:
        pfb()
        A("""
        s_waitcnt vmcnt(1)
        s_branch K_INB
K_NPFB:
        s_waitcnt vmcnt(0)
K_INB:
        """)
    else:
        A("s_waitcnt vmcnt(0)")
    st(10)
    A(f"s_mov_b64 exec, {sr(T+6,2)}")
    ins_atom(72, 80)
    A(f"s_mov_b64 exec, {sr(T+8,2)}")
    ins_atom(73, 84)
    A(f"s_mov_b64 exec, {sr(T+10,2)}")
    A("s_cbranch_execz K_IA0")
    ins_atom(74, 88)
    A.label("K_IA0")
    A(f"s_mov_b64 exec, {sr(T+12,2)}")
    A("s_cbranch_execz K_IA1")
    ins_atom(75, 92)
    A("s_waitcnt lgkmcnt(0)")
    ins_write(92, 104)
    A.label("K_IA1")
    A(f"s_mov_b64 exec, {sr(T+8,2)}")
    A("s_waitcnt lgkmcnt(0)")
    ins_write(84, 68)
    A(f"s_mov_b64 exec, {sr(T+6,2)}")
    ins_write(80, 64)
    A(f"s_mov_b64 exec, {sr(T+10,2)}")
    A("s_cbranch_execz K_IW0")
    ins_write(88, 76)
    A.label("K_IW0")
    A("s_mov_b64 exec, -1")
    if PFB == 2:
        spin_lds(A, "K_SPM", 16)
        pfb()
        A.label("K_NPFB")
    A(f"""
K_IND:
    s_barrier
    """)
    st(11)
    A(f"""
    s_cmp_ge_u32 s{S_WAVE}, 4
    s_cbranch_scc1 K_S1
    s_setprio 3
    v_lshlrev_b32 v28, 2, v0
    ds_read_b32 v29, v28
    v_mul_u32_u24 v30, {LS}, v0
    v_add_u32 v30, {L_LIST-4}, v30
    v_cmp_gt_u32 vcc, 200, v0
    s_mov_b64 {sr(T+6,2)}, vcc
    v_cmp_gt_u32 vcc, {NPB}, v0
    v_mov_b32 v37, {L_FLAG}
    v_mov_b32 v36, 1
    s_waitcnt lgkmcnt(0)
    v_sub_u32 v29, v29, v30
    v_lshrrev_b32 v29, 3, v29
    v_max_u32 v31, 1, v29
    v_min_u32 v31, 63, v31
    v_cndmask_b32 v31, 0, v31, vcc
    v_lshlrev_b32 v32, 2, v31
    v_sub_u32 v32, 252, v32
    s_mov_b64 exec, {sr(T+6,2)}
    ds_add_rtn_u32 v33, v32, v36 offset:{L_H2}
    v_cmpx_lt_u32 vcc, {CAP//2}, v29
    ds_write_b32 v37, v38
    s_mov_b64 exec, -1
    v_lshlrev_b32 v34, 2, v{V_LANE}
    s_waitcnt lgkmcnt(0)
K_S1:
    s_barrier
    s_cmp_ge_u32 s{S_WAVE}, 4
    s_cbranch_scc1 K_S2
    ds_read_b32 v35, v34 offset:{L_H2}
    s_waitcnt lgkmcnt(0)
    v_mov_b32 v36, v35
    """)
    scan(A, 36)
    A(f"""
    v_sub_u32 v36, v36, v35
    ds_bpermute_b32 v36, v32, v36
    s_waitcnt lgkmcnt(0)
    v_add_u32 v33, v33, v36
    v_lshlrev_b32 v36, 2, v33
    v_and_b32 v35, 7, v33
    v_lshrrev_b32 v33, 1, v33
    s_mov_b64 exec, {sr(T+6,2)}
    ds_write_b32 v36, v0 offset:{L_ORD}
    v_cmpx_eq_u32 vcc, 0, v35
    ds_write_b32 v33, v31 offset:{L_LG}
    s_mov_b64 exec, -1
K_S2:
    v_and_b32 v34, 31, v{V_LANE}
    v_lshlrev_b32 v34, 2, v34
    v_mov_b32 v37, {L_FLAG}
    s_and_b32 s{S_WP}, s{S_WAVE}, 3
    s_lshl_b32 s{S_WP}, s{S_WP}, 2
    s_lshr_b32 s{T}, s{S_WAVE}, 2
    s_add_u32 s{S_WP}, s{S_WP}, s{T}
    s_waitcnt lgkmcnt(0)
    s_barrier
    """)
    st(12)
    A(f"""
    s_setprio 3
    ds_read_b32 v35, v34 offset:{L_LG}
    ds_read_b32 v38, v37
    s_waitcnt lgkmcnt(0)
    v_mov_b32 v36, v35
    v_readfirstlane_b32 s{T}, v38
    s_cmp_lg_u32 s{T}, 0
    s_cbranch_scc1 K_SLOW
    """)
    scan(A, 36, upto=32)
    A(f"""
    v_readlane_b32 s{S_TT}, v36, 31
    s_mul_i32 s{T+1}, s{S_WP}, s{S_TT}
    s_add_u32 s{T+2}, s{T+1}, s{S_TT}
    s_lshr_b32 s{T+1}, s{T+1}, 4
    s_lshr_b32 s{T+2}, s{T+2}, 4
    s_sub_u32 s{S_N1}, s{T+2}, s{T+1}
    s_sub_u32 s{S_N1}, s{S_N1}, 1
    s_min_u32 s{S_N1}, s{S_N1}, 58
    v_cmp_ge_u32 vcc, s{T+1}, v36
    s_bcnt1_i32_b32 s{S_GC}, vcc_lo
    s_lshl_b32 s{T+3}, s{S_GC}, 5
    v_add_u32 v{V_OA}, s{T+3}, v{V_OA}
    ds_read_b32 v{V_LC}, v{V_OA} offset:{L_ORD}
    ds_read_b32 v{V_LN}, v{V_OA} offset:{L_ORD+32}
    v_sub_u32 v35, v36, v35
    v_readlane_b32 s{S_GS}, v35, s{S_GC}
    s_mov_b32 s{S_GF}, s{S_GC}
    v_subrev_u32 v36, s{T+1}, v36
    v_subrev_u32 v36, 1, v36
    v_cmp_gt_u32 vcc, 64, v36
    v_mov_b32 v40, 1
    v_mov_b32 v41, 0
    v_lshlrev_b64 v[40:41], v36, v[40:41]
    v_cndmask_b32 v40, 0, v40, vcc
    v_cndmask_b32 v41, 0, v41, vcc
    """)
    for sh in (1, 2, 4, 8):
        for v in (40, 41):
            A(f"v_or_b32_dpp v{v}, v{v}, v{v} row_shr:{sh} row_mask:0xf bank_mask:0xf")
    for v in (40, 41):
        A(f"v_or_b32_dpp v{v}, v{v}, v{v} row_bcast:15 row_mask:0xa bank_mask:0xf")
    A(f"""
    v_readlane_b32 s{S_FL}, v40, 31
    v_readlane_b32 s{S_FL+1}, v41, 31
    s_sub_u32 s{T+4}, s{T+1}, s{S_GS}
    s_cmp_lg_u32 s{T+4}, 0
    s_cselect_b32 s{S_HEAD}, 1, 0
    s_lshl_b32 s{T+4}, s{T+4}, 3
    s_add_u32 s{T+4}, s{T+4}, {L_LIST}
    s_movk_i32 s{T+5}, {LS}
    v_mov_b32 v36, s{T+4}
    s_waitcnt lgkmcnt(0)
    v_mad_u32_u24 v{V_P}, v{V_LC}, s{T+5}, v36
    v_mov_b32 v{V_NB}, v{V_LN}
    """)
    for j in range(R):
        for x in rd_rec(0, j): A(x)
        if j == 0:
            A(f"""
            s_movk_i32 s{T+5}, {AUS}
            v_mad_u32_u24 v36, v{V_LC}, s{T+5}, v{V_AUC}
            ds_read_b128 {vr(V_EA,4)}, v36
            ds_read_b128 {vr(V_UX,4)}, v36 offset:128
            v_mad_u32_u24 v36, v{V_LN}, s{T+5}, v{V_AUC}
            ds_read_b128 {vr(V_AN,4)}, v36
            """)
        A(f"""
        v_add_u32 v{V_P}, 8, v{V_P}
        s_bitcmp1_b64 {sr(S_FL,2)}, {j}
        s_cbranch_scc0 K_PR{j}
        s_mov_b32 s{S_U}, -1
        s_call_b64 {sr(S_RET2,2)}, K_FETCH
K_PR{j}:
        """)
        if j < D:
            A("s_waitcnt lgkmcnt(0)")
            for x in ld_rows(j): A(x)
    A(f"""
    s_lshr_b64 {sr(S_FF,2)}, {sr(S_FL,2)}, {R}
    s_or_b64 {sr(S_EV,2)}, {sr(S_FL,2)}, {sr(S_FF,2)}
    s_lshl_b64 {sr(T,2)}, 1, s{S_N1}
    s_or_b64 {sr(S_EV,2)}, {sr(S_EV,2)}, {sr(T,2)}
    s_lshr_b64 {sr(T+2,2)}, {sr(T,2)}, 2
    s_or_b64 {sr(S_EV,2)}, {sr(S_EV,2)}, {sr(T+2,2)}
    s_lshr_b64 {sr(T+2,2)}, {sr(T,2)}, 4
    s_or_b64 {sr(S_EV,2)}, {sr(S_EV,2)}, {sr(T+2,2)}
    s_lshr_b64 {sr(T+2,2)}, {sr(T,2)}, 7
    s_or_b64 {sr(S_EV,2)}, {sr(S_EV,2)}, {sr(T+2,2)}
    s_mov_b64 {sr(S_EVC,2)}, {sr(S_EV,2)}
    """)
    for i in range(4): A(f"v_exp_f32 v{V_EA+i}, v{V_EA+i}")
    for i in range(8): A(f"v_mov_b32 v{V_NUM+i}, 0")
    st(13)
    A(".p2align 6")
    A.label("K_LOOP")
    for u in range(U):
        d, r = u % D, u % R
        A(f"s_waitcnt vmcnt({2*(D-1)}) lgkmcnt(0)")
        for x in c_head(d, r) + ld_rows(d) + rd_rec(8*u, r) + c_rest(): A(x)
        A(f"s_bitcmp1_b64 {sr(S_EV,2)}, {u}")
        A(f"s_cbranch_scc1 K_EV{u}")
        A.label(f"K_RT{u}")
    A(f"""
    v_add_u32 v{V_P}, {8*U}, v{V_P}
    s_lshr_b64 {sr(S_EV,2)}, {sr(S_EV,2)}, {U}
    s_cbranch_scc1 K_LOOP
    s_branch K_TAIL
    """)
    for u in range(U):
        A(f"""
K_EV{u}:
        s_mov_b32 s{S_U}, {u}
        s_call_b64 {sr(S_RET,2)}, K_EVENT
        s_branch K_RT{u}
        """)
    A(f"""
K_FETCH:
    s_add_u32 s{S_GF}, s{S_GF}, 1
    s_lshl_b32 s{T}, s{S_U}, 3
    s_sub_u32 s{T}, {L_LIST-8}, s{T}
    v_mov_b32 v{V_X0}, s{T}
    s_movk_i32 s{T+1}, {LS}
    v_mad_u32_u24 v{V_P}, v{V_NB}, s{T+1}, v{V_X0}
    s_sub_u32 s{T}, s{S_GF}, s{S_GC}
    s_lshl_b32 s{T}, s{T}, 5
    v_add_u32 v{V_X0}, s{T}, v{V_OA}
    ds_read_b32 v{V_NB}, v{V_X0} offset:{L_ORD+32}
    s_setpc_b64 {sr(S_RET2,2)}
K_EVENT:
    s_ff1_i32_b64 s{T+4}, {sr(S_EVC,2)}
    s_bitset0_b64 {sr(S_EVC,2)}, s{T+4}
    s_bitcmp1_b64 {sr(S_FF,2)}, s{T+4}
    s_cbranch_scc0 K_E1
    s_call_b64 {sr(S_RET2,2)}, K_FETCH
K_E1:
    s_bitcmp1_b64 {sr(S_FL,2)}, s{T+4}
    s_cbranch_scc0 K_E3
    s_cmp_eq_u32 s{S_HEAD}, 1
    s_cbranch_scc0 K_E2
    s_mov_b32 s{S_HEAD}, 0
    s_mov_b32 s{T+2}, 1
    s_call_b64 {sr(S_RET2,2)}, K_PART
    s_branch K_E2B
    """)
    A.label("K_E2")
    finalize(A, V_NUM, V_DEN, V_UX, V_LC)
    A(f"""
K_E2B:
    s_cmp_eq_u32 s{T+4}, s{S_N1}
    s_cbranch_scc1 K_DONE
    s_add_u32 s{S_GC}, s{S_GC}, 1
    v_add_u32 v{V_OA}, 32, v{V_OA}
    v_mov_b32 v{V_LC}, v{V_LN}
    ds_read_b32 v{V_LN}, v{V_OA} offset:{L_ORD+32}
    s_movk_i32 s{T+1}, {AUS}
    v_mad_u32_u24 v{V_X0}, v{V_LC}, s{T+1}, v{V_AUC}
    ds_read_b128 {vr(V_UX,4)}, v{V_X0} offset:128
    """)
    for i in range(4): A(f"v_exp_f32 v{V_EA+i}, v{V_AN+i}")
    for i in range(8): A(f"v_mov_b32 v{V_NUM+i}, 0")
    A(f"""
    s_waitcnt lgkmcnt(1)
    v_mad_u32_u24 v{V_X0}, v{V_LN}, s{T+1}, v{V_AUC}
    ds_read_b128 {vr(V_AN,4)}, v{V_X0}
K_E3:
    s_sub_u32 s{T}, s{S_N1}, s{T+4}
    s_cmp_eq_u32 s{T}, 0
    s_cbranch_scc1 K_TAIL
    s_cmp_gt_u32 s{T}, 7
    s_cbranch_scc1 K_E4
    s_setprio 2
    s_cmp_gt_u32 s{T}, 4
    s_cbranch_scc1 K_E4
    s_setprio 1
    s_cmp_gt_u32 s{T}, 2
    s_cbranch_scc1 K_E4
    s_setprio 0
K_E4:
    s_setpc_b64 {sr(S_RET,2)}
K_PART:
    s_lshl_b32 s{T}, s{S_WP}, 11
    s_add_u32 s{T}, s{T}, {L_SIDE}
    v_lshl_add_u32 v{V_X0}, v{V_LANE}, 4, s{T}
    ds_write_b128 v{V_X0}, {vr(V_NUM,4)}
    ds_write_b128 v{V_X0}, {vr(V_DEN,4)} offset:1024
    s_lshl_b32 s{T}, s{S_WP}, 2
    v_mov_b32 v{V_X0}, s{T}
    v_mov_b32 v{V_X1}, s{T+2}
    ds_write_b32 v{V_X0}, v{V_X1} offset:{L_HF}
    s_setpc_b64 {sr(S_RET2,2)}
K_TAIL:
    s_cmp_eq_u32 s{S_HEAD}, 1
    s_cbranch_scc0 K_TL
    s_mov_b32 s{T+2}, 2
    s_call_b64 {sr(S_RET2,2)}, K_PART
    s_branch K_DONE
K_TL:
    s_add_u32 s{S_WP}, s{S_WP}, 1
    s_cmp_ge_u32 s{S_WP}, 16
    s_cbranch_scc1 K_TF
    s_lshl_b32 s{T}, s{S_WP}, 2
    v_mov_b32 v{V_X1}, s{T}
    s_lshl_b32 s{T}, s{S_WP}, 11
    s_add_u32 s{T}, s{T}, {L_SIDE}
    v_lshl_add_u32 v{V_X0}, v{V_LANE}, 4, s{T}
    s_mov_b32 s{T+1}, 0x100000
K_TW:
    s_sub_u32 s{T+1}, s{T+1}, 1
    s_cbranch_scc1 K_TF
    ds_read_b32 v{V_HL}, v{V_X1} offset:{L_HF}
    ds_read_b128 {vr(V_HD,4)}, v{V_X0}
    ds_read_b128 {vr(V_HD+4,4)}, v{V_X0} offset:1024
    s_waitcnt lgkmcnt(0)
    v_readfirstlane_b32 s{T}, v{V_HL}
    s_cmp_eq_u32 s{T}, 0
    s_cbranch_scc1 K_TW
    """)
    for k in range(4): A(f"v_pk_add_f32 {vr(V_NUM+2*k,2)}, {vr(V_NUM+2*k,2)}, {vr(V_HD+2*k,2)}")
    A(f"""
    s_cmp_eq_u32 s{T}, 2
    s_cbranch_scc1 K_TL
K_TF:
    """)
    st(14)
    finalize(A, V_NUM, V_DEN, V_UX, V_LC)
    A.label("K_DONE")
    A.label("K_FIN")
    if diag:
        A("s_waitcnt vmcnt(0)")
        st(15)
        A(f"s_mov_b32 s{S_WS}, s{KWS}")
        A(f"s_mov_b32 s{S_WS+1}, s{KWS+1}")
        A(f"""
        s_lshl_b32 s{T}, s2, 4
        s_add_u32 s{T}, s{T}, s{S_WAVE}
        s_lshl_b32 s{T}, s{T}, 7
        s_add_u32 s{T}, s{T}, {WS_STAMP}
        v_lshlrev_b32 v{V_X0}, 2, v{V_LANE}
        v_cmpx_gt_u32 vcc, 32, v{V_LANE}
        buffer_store_dword v{V_STAMP}, v{V_X0}, {srd(S_WS)}, s{T} offen
        """)
        if "--persist" in sys.argv:
            A(f"""
            s_mov_b64 exec, -1
            s_or_b32 s{T}, s2, s{S_WAVE}
            s_cmp_lg_u32 s{T}, 0
            s_cbranch_scc1 K_END
            v_mov_b32 v30, 0
            s_mov_b32 s{T+3}, {WS_EP+256}
            buffer_load_dword v31, v30, {srd(S_WS)}, s{T+3} offen sc1
            s_waitcnt vmcnt(0)
            v_readfirstlane_b32 s{T+4}, v31
            v_mov_b32 v31, 0x12345678
            buffer_store_dword v31, v30, {srd(S_WS)}, s{T+3} offen sc1
            v_readlane_b32 s{T}, v{V_STAMP}, 16
            s_cmp_eq_u32 s{T+4}, 0x12345678
            s_movk_i32 s{T+5}, 6000
            s_cselect_b32 s{T+1}, 10000, s{T+5}
K_DSP2:
            s_sleep 1
            s_memrealtime s[100:101]
            s_waitcnt lgkmcnt(0)
            s_sub_u32 s{T+2}, s100, s{T}
            s_cmp_lt_u32 s{T+2}, s{T+1}
            s_cbranch_scc1 K_DSP2
            """)
        if "--spink" in sys.argv:
            k = opt("--spink", 0); w = opt("--spinw", 7)
            A(f"""
            s_mov_b64 exec, -1
            s_cmp_lg_u32 s{S_WAVE}, {w}
            s_cbranch_scc1 K_END
            """)
            if "--cond" in sys.argv:
                c = opt("--cond", "cold")
                A(f"""
                v_mov_b32 v30, 0
                s_lshl_b32 s{T+3}, s2, 7
                s_add_u32 s{T+3}, s{T+3}, {WS_EP+4096}
                buffer_load_dword v31, v30, {srd(S_WS)}, s{T+3} offen sc1
                s_waitcnt vmcnt(0)
                v_readfirstlane_b32 s{T+4}, v31
                v_mov_b32 v31, 0x12345678
                buffer_store_dword v31, v30, {srd(S_WS)}, s{T+3} offen sc1
                s_cmp_eq_u32 s{T+4}, 0x12345678
                s_cbranch_scc{1 if c == "cold" else 0} K_END
                """)
            A(f"""
            v_readlane_b32 s{T}, v{V_STAMP}, 16
            v_readlane_b32 s{T+1}, v{V_STAMP}, {16+k}
            s_sub_u32 s{T+1}, s{T+1}, s{T}
            s_mul_i32 s{T+1}, s{T+1}, 10
            s_add_u32 s{T+1}, s{T+1}, 6000
            s_min_u32 s{T+1}, s{T+1}, 100000
K_DSP:
            s_sleep 1
            s_memrealtime s[100:101]
            s_waitcnt lgkmcnt(0)
            s_sub_u32 s{T+2}, s100, s{T}
            s_cmp_lt_u32 s{T+2}, s{T+1}
            s_cbranch_scc1 K_DSP
            """)
        if "--dbg" in sys.argv:
            mk_srd(A, S_B, KDBG, 256)
            sel = opt("--dbgwg", -1)
            if sel >= 0:
                A(f"s_cmp_lg_u32 s2, {sel}")
                A("s_cbranch_scc1 K_END")
            A(f"""
            s_mov_b64 exec, -1
            v_readlane_b32 s{T}, v{V_STAMP}, 16
            s_not_b32 s{T}, s{T}
            v_writelane_b32 v{V_STAMP}, s{T}, 20
            v_subrev_u32 v{V_X0}, 64, v{V_X0}
            s_mov_b32 exec_lo, 0xfffe0000
            s_mov_b32 exec_hi, 0
            buffer_atomic_umax v{V_STAMP}, v{V_X0}, {srd(S_B)}, 0 offen sc1
            """)
    A("""
K_END:
    s_endpgm
    """)
    WQ = 64
    A(f"""
K_SLOW:
    s_setprio 0
    s_waitcnt vmcnt(0)
    v_mov_b32 v36, 0
    v_mov_b32 v37, 0
    v_mov_b32 v38, 0
    v_mov_b32 v39, 0
    v_lshlrev_b32 v29, 4, v0
    v_add_u32 v29, {L_LIST}, v29
    ds_write_b128 v29, v[36:39]
    ds_write_b128 v29, v[36:39] offset:16384
    ds_write_b128 v29, v[36:39] offset:32768
    ds_write_b128 v29, v[36:39] offset:49152
    v_and_b32 v28, 31, v{V_LANE}
    v_lshlrev_b32 v30, 1, v28
    s_lshl_b32 s{T}, s{S_HALF}, 6
    """)
    mk_srd(A, S_A, KWB, 8192)
    mk_srd(A, S_B, KWV, 8192)
    A(f"s_mov_b32 s{T+1}, s{T}")
    for k2 in range(32):
        A(f"""
        s_mov_b32 exec_hi, 0
        buffer_load_ushort v32, v30, {srd(S_A)}, s{T+1} offen
        buffer_load_ushort v33, v30, {srd(S_A)}, s{T+1} offen offset:128
        s_not_b64 exec, exec
        buffer_load_ushort v32, v30, {srd(S_B)}, s{T+1} offen
        buffer_load_ushort v33, v30, {srd(S_B)}, s{T+1} offen offset:128
        s_mov_b64 exec, -1
        s_add_u32 s{T+1}, s{T+1}, 256
        s_waitcnt vmcnt(0)
        v_lshl_or_b32 v{WQ+k2}, v33, 16, v32
        """)
    mk_srd(A, S_A, KWC, 128)
    A(f"""
    buffer_load_ushort v34, v30, {srd(S_A)}, s{T} offen
    v_lshlrev_b32 v30, 2, v28
    v_lshrrev_b32 v31, 5, v{V_LANE}
    v_xor_b32 v31, 1, v31
    v_lshl_add_u32 v35, v31, 7, v30
    v_add_u32 v35, {L_LIST}, v35
    v_add_u32 v30, {L_AU}, v30
    v_lshlrev_b32 v31, 2, v28
    s_waitcnt vmcnt(0) lgkmcnt(0)
    v_lshlrev_b32 v34, 16, v34
    v_mul_f32 v34, 0x{f2u(-LOG2E):08x}, v34
    """)
    mk_srd(A, S_A, KDST, E*4)
    mk_srd(A, S_B, KSRC, E*4)
    mk_srd(A, S_TAB, KE, E*2)
    XS = 34
    A(f"""
    s_barrier
    v_mov_b32 v36, v0
    s_mov_b32 s{S_T0}, {E}
K_SB:
    v_lshlrev_b32 v37, 2, v36
    v_lshlrev_b32 v38, 1, v36
    buffer_load_dword v39, v37, {srd(S_A)}, 0 offen
    buffer_load_dword v40, v37, {srd(S_B)}, 0 offen
    buffer_load_ushort v41, v38, {srd(S_TAB)}, 0 offen
    v_cmp_gt_u32 {sr(52,2)}, s{S_T0}, v36
    s_waitcnt vmcnt(0)
    v_subrev_u32 v39, s{S_NB}, v39
    v_cmp_gt_u32 vcc, {NPB}, v39
    s_and_b64 {sr(52,2)}, {sr(52,2)}, vcc
K_SE:
    s_cmp_eq_u64 {sr(52,2)}, 0
    s_cbranch_scc1 K_SN
    s_ff1_i32_b64 s34, {sr(52,2)}
    s_bitset0_b64 {sr(52,2)}, s34
    v_readlane_b32 s35, v40, s34
    v_readlane_b32 s{S_T1}, v39, s34
    v_readlane_b32 s{S_PF}, v41, s34
    s_min_u32 s35, s35, {N-1}
    s_lshl_b32 s35, s35, 7
    s_load_dwordx16 s[36:51], {sr(KX,2)}, s35
    s_add_u32 s35, s35, 64
    s_load_dwordx16 s[60:75], {sr(KX,2)}, s35
    s_mul_i32 s34, s{S_T1}, {AUS}
    v_add_u32 v42, s34, v30
    ds_read_b32 v43, v42
    s_lshl_b32 s{S_PF}, s{S_PF}, 16
    s_lshl_b32 s{S_T1}, s{S_T1}, 8
    v_mov_b32 v48, 0
    v_mov_b32 v49, 0
    s_waitcnt lgkmcnt(0)
    """)
    for k2 in range(16):
        A(f"v_dot2_f32_bf16 v48, s{36+k2}, v{WQ+k2}, v48")
        A(f"v_dot2_f32_bf16 v49, s{60+k2}, v{WQ+16+k2}, v49")
    A(f"""
    s_nop 3
    v_add_f32 v48, v48, v49
    v_fma_f32 v43, s{S_PF}, v34, v43
    v_mul_f32 v49, 0x{f2u(-LOG2E):08x}, v48
    v_add_f32 v49, v49, v43
    v_exp_f32 v49, v49
    v_add_f32 v49, s{S_C}, v49
    v_rcp_f32 v49, v49
    s_nop 1
    ds_bpermute_b32 v49, v31, v49
    v_cmp_gt_u32 vcc, 32, v{V_LANE}
    v_cndmask_b32 v48, v48, 1.0, vcc
    v_add_u32 v42, s{S_T1}, v35
    s_waitcnt lgkmcnt(0)
    v_mul_f32 v49, v49, v48
    ds_add_f32 v42, v49
    s_branch K_SE
K_SN:
    v_add_u32 v36, 1024, v36
    v_readfirstlane_b32 s34, v36
    s_cmp_lt_u32 s34, {E}
    s_cbranch_scc1 K_SB
    s_mov_b32 s{S_MSK}, 0xffff0000
    s_movk_i32 s34, {AUS}
    s_waitcnt lgkmcnt(0)
    s_barrier
    v_lshrrev_b32 v{V_LC}, 3, v0
    v_add_u32 v{V_X1}, {L_LIST}, v{V_I0+1}
    """)
    for it in range(2):
        A(f"""
        v_min_u32 v36, 199, v{V_LC}
        v_mad_u32_u24 v37, v36, s34, v{V_AUC}
        ds_read_b128 {vr(V_UX,4)}, v37 offset:128
        v_lshl_add_u32 v39, v36, 8, v{V_X1}
        ds_read_b128 {vr(V_NUM,4)}, v39
        ds_read_b128 {vr(V_DEN,4)}, v39 offset:128
        s_waitcnt lgkmcnt(0)
        """)
        finalize(A, V_NUM, V_DEN, V_UX, V_LC)
        A(f"v_add_u32 v{V_LC}, 128, v{V_LC}")
    A("s_endpgm")

HEADER = open(f"cdna_kernels/{NAME}.s.ref").read().split("; Override")[0]

def build(diag=False):
    A = Asm()
    out = HEADER
    out += f"; @launch grid=(256,1,1) block=(1024,1,1) lds={LDS}\n"
    out += '.amdgcn_target "amdgcn-amd-amdhsa--gfx950"\n.text\n'
    out += f".globl {NAME}_kernel\n.p2align 8\n.type {NAME}_kernel,@function\n"
    gen(A, diag)
    out += A.text()
    out += f""".section .rodata,"a"
.p2align 6
.amdhsa_kernel {NAME}_kernel
  .amdhsa_next_free_vgpr 128
  .amdhsa_next_free_sgpr 102
  .amdhsa_accum_offset 128
  .amdhsa_group_segment_fixed_size 0
  .amdhsa_kernarg_size 96
  .amdhsa_user_sgpr_count 2
  .amdhsa_user_sgpr_kernarg_segment_ptr 1
  .amdhsa_system_sgpr_workgroup_id_x 1
  .amdhsa_float_denorm_mode_32 3
.end_amdhsa_kernel
"""
    return out

if __name__ == "__main__":
    diag = "--diag" in sys.argv
    path = sys.argv[1] if len(sys.argv) > 1 and not sys.argv[1].startswith("--") else f"cdna_kernels/{NAME}.s"
    open(path, "w").write(build(diag))
    print("wrote", path, "LDS", LDS)
```

```python
import sys, struct
sys.path.insert(0, "gen")
import hazard
VERBOSE = "--verbose" in sys.argv
def opt(name, default):
    if name in sys.argv: return type(default)(sys.argv[sys.argv.index(name)+1])
    return default

NAME = "standalone__edge_featured_mpnn_gatedgcn__graph"
N, E = 25000, 800000
CH = 3128
NT = CH // 8
NPB = 196
CHP = 3584
WS_REC  = 0
WS_LOC  = 0x380000
WS_OFFS = 0x460000
WS_TF   = 0x4A0000
WS_EP   = 0x4A1000
WS_STAMP = 0x4B0000
WS_TAB  = 0x600000
HS      = 0x320000
PADROW  = 25088
WS_SIZE = WS_TAB + 2*HS
assert 256*CHP*4 <= WS_LOC and WS_LOC + 256*CHP <= WS_OFFS
L_CNT, L_H2, L_LG, L_FLAG, L_ORD, L_BL = 0, 1024, 1280, 1408, 1536, 2560
L_C2, L_C3, L_CX, L_CP, L_CY, L_CE, L_CL = L_FLAG+8, L_FLAG+12, L_FLAG+16, L_FLAG+20, L_FLAG+24, L_FLAG+28, L_FLAG+32
L_CS = L_FLAG+36
L_TAG = L_FLAG+40
L_HF = L_FLAG+64
L_HIST, L_OFF, L_LOC = 3072, 3584, 4096
L_AU   = L_LOC + CHP
AUS    = 272
L_WBV  = L_AU
L_TST  = L_AU + 16384
L_SIDE = L_AU + 200*AUS
L_XST  = L_SIDE
L_WAU  = L_SIDE + 25600
L_LIST = L_SIDE + 33792
L_REC  = L_LIST
LS     = 296
CAP    = 74
LDS    = L_LIST + 200*LS
assert LDS <= 163840 and L_SIDE % 128 == 0, (LDS, L_SIDE)
BLCAP  = 128
SH = 48
LOG2E = 1.4426950408889634
D = opt("--depth", 2)
R = D + 1
U = D * R
SPIN = opt("--spin", 30000)
FORCE_SLOW = "--slow" in sys.argv
PFA = opt("--pfa", 0)
PFAN = opt("--pfan", 1)
ENT = " nt" if "--nt" in sys.argv else ""
XNT = " nt" if "--xnt" in sys.argv else ""
RPF = "--rpf" in sys.argv
RS = opt("--recst", "sc1").replace("+", " ")
WSOFF = opt("--wsoff", 0)
AUF = "--aufirst" in sys.argv
PR = [int(x) for x in opt("--pr", "7,4,2").split(",")]
OST = opt("--ost", "").replace("+", " ")
GLD = opt("--gld", "sc1").replace("+", " ")

def f2u(x): return struct.unpack("<I", struct.pack("<f", x))[0]

class Asm:
    def __init__(self): self.l = []
    def __call__(self, s):
        for ln in s.strip("\n").split("\n"):
            t = ln.strip()
            if not t: continue
            self.l.append(t if t.endswith(":") else "    " + t)
    def label(self, n): self.l.append(n + ":")
    def text(self): return "\n".join(hazard.fix(self.l, VERBOSE)) + "\n"

def vr(a, n=1): return f"v{a}" if n == 1 else f"v[{a}:{a+n-1}]"
def sr(a, n=1): return f"s{a}" if n == 1 else f"s[{a}:{a+n-1}]"
def srd(b): return f"s[{b}:{b+3}]"
def mfma(d, a, b, c): return f"v_mfma_f32_32x32x16_bf16 {d}, {a}, {b}, {c}"

def scan(A, v, op="v_add_u32", upto=64):
    for sh in (1, 2, 4, 8):
        A(f"{op}_dpp v{v}, v{v}, v{v} row_shr:{sh} row_mask:0xf bank_mask:0xf")
    if upto >= 32:
        A(f"{op}_dpp v{v}, v{v}, v{v} row_bcast:15 row_mask:0xa bank_mask:0xf")
    if upto >= 64:
        A(f"{op}_dpp v{v}, v{v}, v{v} row_bcast:31 row_mask:0xc bank_mask:0xf")

V_LANE, V_P, V_NB, V_OA = 1, 2, 3, 4
V_AUC, V_OUTC = 5, 6
V_LC = 7
V_NUM, V_DEN = 8, 12
V_EA, V_WC = 16, 20
V_T, V_V, V_M = 24, 32, 40
V_I0, V_I1 = 44, 46
V_S, V_Q = 48, 52
V_UX = 56
V_LN = 60
V_HL = 61
V_X0, V_X1 = 62, 63
V_DAT = 64
V_E = 96
V_HD = 104
V_HUX = 112
V_AN = 116
V_DUMMY = 126
V_STAMP = 127
S_WS, S_TAB, S_OUT, S_X = 4, 8, 12, 16
S_A, S_B = 20, 24
S_C = 28
S_BIN, S_HALF, S_WAVE, S_WP = 30, 31, 32, 33
S_EV, S_EVC, S_FL, S_FF = 34, 36, 38, 40
S_N1, S_GC, S_GF, S_HEAD, S_U, S_TT, S_GS = 42, 43, 44, 45, 46, 47, 48
S_MSK = 49
S_RET, S_RET2 = 50, 52
S_EPS = 54
S_T0, S_T1 = 56, 57
S_PF = 58
S_NB = 59
S_ONE, S_MODE = 100, 101
S_T = 60
S_K = 76
KX, KE, KSRC, KDST, KWA, KWB, KWC, KWU, KWV, KOUT, KDBG, KWS = [S_K + 2*i for i in range(12)]

def stamp(A, idx, on):
    if on:
        A(f"s_memtime s[0:1]")
        A("s_waitcnt lgkmcnt(0)")
        A(f"v_writelane_b32 v{V_STAMP}, s0, {idx}")
        A(f"s_memrealtime s[0:1]")
        A("s_waitcnt lgkmcnt(0)")
        A(f"v_writelane_b32 v{V_STAMP}, s0, {idx+16}")

def mk_srd(A, d, ptr, nbytes):
    A(f"s_mov_b32 s{d}, s{ptr}")
    A(f"s_mov_b32 s{d+1}, s{ptr+1}")
    A(f"s_mov_b32 s{d+2}, {nbytes}")
    A(f"s_mov_b32 s{d+3}, 0x20000")

def ld_rows(d):
    b = V_DAT + 8*d
    return [f"buffer_load_dwordx4 {vr(b,4)}, {vr(V_I0,2)}, {srd(S_TAB)}, 0 idxen offen {GLD}",
            f"buffer_load_dwordx4 {vr(b+4,4)}, {vr(V_I1,2)}, {srd(S_TAB)}, 0 idxen offen {GLD}"]
def rd_rec(off, r):
    return [f"ds_read_u16 v{V_I0}, v{V_P} offset:{off}",
            f"ds_read_u16 v{V_I1}, v{V_P} offset:{off+4}",
            f"ds_read_u16_d16_hi v{V_E+2*r}, v{V_P} offset:{off+2}",
            f"ds_read_u16_d16_hi v{V_E+2*r+1}, v{V_P} offset:{off+6}"]
def c_head(d, r):
    b = V_DAT + 8*d; e = V_E + 2*r
    o = []
    for h in range(2):
        for k in range(2):
            sel = "op_sel_hi:[0,1,1]" if h == 0 else "op_sel:[1,0,0] op_sel_hi:[1,1,1]"
            o.append(f"v_pk_fma_f32 {vr(V_T+4*h+2*k,2)}, {vr(e,2)}, {vr(V_WC+2*k,2)}, {vr(b+4*h+2*k,2)} {sel}")
    for i in range(4): o.append(f"v_lshlrev_b64 {vr(V_V+2*i,2)}, 16, {vr(b+2*i,2)}")
    return o
def c_rest():
    o = []
    T, V, M, S, Q = V_T, V_V, V_M, V_S, V_Q
    for i in range(8): o.append(f"v_exp_f32 v{T+i}, v{T+i}")
    for i in range(4): o.append(f"v_pk_fma_f32 {vr(T+2*i,2)}, {vr(T+2*i,2)}, {vr(V_EA+2*(i%2),2)}, {sr(S_C,2)} clamp")
    for k in range(2): o.append(f"v_pk_mul_f32 {vr(M+2*k,2)}, {vr(T+2*k,2)}, {vr(T+4+2*k,2)}")
    for i in range(4): o.append(f"v_rcp_f32 v{M+i}, v{M+i}")
    for k in range(2): o.append(f"v_pk_add_f32 {vr(S+2*k,2)}, {vr(T+2*k,2)}, {vr(T+4+2*k,2)}")
    for k in range(2): o.append(f"v_pk_mul_f32 {vr(Q+2*k,2)}, {vr(V+2*k,2)}, {vr(T+4+2*k,2)}")
    for k in range(2): o.append(f"v_pk_fma_f32 {vr(Q+2*k,2)}, {vr(V+4+2*k,2)}, {vr(T+2*k,2)}, {vr(Q+2*k,2)}")
    for k in range(2): o.append(f"v_pk_fma_f32 {vr(V_DEN+2*k,2)}, {vr(S+2*k,2)}, {vr(M+2*k,2)}, {vr(V_DEN+2*k,2)}")
    for k in range(2): o.append(f"v_pk_fma_f32 {vr(V_NUM+2*k,2)}, {vr(Q+2*k,2)}, {vr(M+2*k,2)}, {vr(V_NUM+2*k,2)}")
    return o

def finalize(A, num, den, ux, loc):
    T, V = V_T, V_V
    for i in range(4): A(f"v_rcp_f32 v{den+i}, v{den+i}")
    for k in range(2): A(f"v_lshlrev_b64 {vr(T+2*k,2)}, 16, {vr(ux+2*k,2)}")
    A(f"v_lshl_add_u32 v{T+4}, v{loc}, 7, v{V_OUTC}")
    for k in range(2): A(f"v_pk_fma_f32 {vr(T+2*k,2)}, {vr(num+2*k,2)}, {vr(den+2*k,2)}, {vr(T+2*k,2)}")
    for i in range(4): A(f"v_max_f32 v{T+i}, 0, v{T+i}")
    for i in range(4): A(f"v_dot2_f32_bf16 v{T+i}, v{ux+i}, s{S_ONE}, v{T+i}")
    A("s_nop 1")
    A(f"v_cvt_pk_bf16_f32 v{T+6}, v{T}, v{T+1}")
    A(f"v_cvt_pk_bf16_f32 v{T+7}, v{T+2}, v{T+3}")
    A(f"buffer_store_dwordx2 {vr(T+6,2)}, v{T+4}, {srd(S_OUT)}, 0 offen {OST}")

def zero_acc(A, eps=True):
    for k in range(2): A(f"v_mov_b64 {vr(V_NUM+2*k,2)}, 0")
    for k in range(2): A(f"v_mov_b64 {vr(V_DEN+2*k,2)}, {sr(S_EPS,2)}")

def arrive(A, addr, rtn=None):
    A(f"v_mov_b32 v120, {addr}")
    A("v_mov_b32 v121, 1")
    A("s_mov_b64 exec, 1")
    if rtn is None: A("ds_add_u32 v120, v121")
    else:
        A("ds_add_rtn_u32 v122, v120, v121")
        A("s_waitcnt lgkmcnt(0)")
        A(f"v_readfirstlane_b32 s{rtn}, v122")
    A("s_mov_b64 exec, -1")

def spin_lds(A, name, target, slp=0):
    A(f"""
{name}:
    {"s_sleep " + str(slp) if slp else ""}
    ds_read_b32 v122, v120
    s_waitcnt lgkmcnt(0)
    v_readfirstlane_b32 s{S_T}, v122
    s_cmp_lt_u32 s{S_T}, {target}
    s_cbranch_scc1 {name}
    """)

def get_tag(A, name):
    T = S_T
    A(f"""
    v_mov_b32 v120, {L_TAG}
{name}:
    ds_read_b64 v[122:123], v120
    s_waitcnt lgkmcnt(0)
    v_readfirstlane_b32 s{S_T0}, v122
    v_readfirstlane_b32 s{S_T1}, v123
    s_and_b32 s{T}, s{S_T0}, 3
    s_cbranch_scc0 {name}
    s_bfe_u32 s{T}, s{S_T0}, 0x40004
    s_lshl_b32 s{T}, s{T}, 24
    s_add_u32 s{S_WS}, s{KWS}, s{T}
    s_addc_u32 s{S_WS+1}, s{KWS+1}, 0
    s_mul_i32 s{T}, s{S_HALF}, {HS}
    s_add_u32 s{T}, s{T}, {WS_TAB}
    s_add_u32 s{S_TAB}, s{S_WS}, s{T}
    s_addc_u32 s{S_TAB+1}, s{S_WS+1}, 0
    s_or_b32 s{S_TAB+1}, s{S_TAB+1}, {128<<16}
    s_and_b32 s{S_T0}, s{S_T0}, 0xfff00002
    """)

def gen(A, diag):
    T = S_T
    EARLY = "--early" in sys.argv
    st = lambda i: stamp(A, i, diag and not (EARLY and 2 <= i <= 7))
    se = lambda i: stamp(A, i, diag and EARLY)
    A.label(f"{NAME}_kernel")
    A(f"""
    s_cmp_ge_u32 s2, 256
    s_cbranch_scc1 K_END
    s_load_dwordx16 {sr(S_K,16)}, s[0:1], 0
    s_load_dwordx8 {sr(S_K+16,8)}, s[0:1], 64
    s_memrealtime {sr(S_T0,2)}
    s_and_b32 s{S_HALF}, s2, 1
    s_bfe_u32 s{T}, s2, 0x20001
    s_lshr_b32 s{T+1}, s2, 3
    s_lshl_b32 s{S_BIN}, s{T}, 5
    s_add_u32 s{S_BIN}, s{S_BIN}, s{T+1}
    s_mul_i32 s{S_NB}, s{S_BIN}, {NPB}
    v_readfirstlane_b32 s{S_WAVE}, v0
    s_lshr_b32 s{S_WAVE}, s{S_WAVE}, 6
    v_and_b32 v{V_LANE}, 63, v0
    v_and_b32 v26, 7, v{V_LANE}
    v_lshrrev_b32 v27, 4, v{V_LANE}
    v_xor_b32 v27, v26, v27
    v_lshlrev_b32 v27, 4, v27
    v_lshrrev_b32 v28, 3, v{V_LANE}
    v_lshl_add_u32 v24, v28, 7, v27
    v_xor_b32 v25, 64, v24
    v_lshlrev_b32 v29, 4, v{V_LANE}
    s_lshl_b32 s{T+6}, s{S_HALF}, 6
    s_lshl_b32 s{T+7}, s{S_NB}, 7
    s_sub_u32 s{T+9}, s{S_WAVE}, 7
    s_mov_b32 s{T+8}, {WS_EP}
    """)
    if diag: A(f"v_mov_b32 v{V_STAMP}, 0")
    if "--inv" in sys.argv:
        A(f"s_cmp_lg_u32 s{S_WAVE}, 0")
        A("s_cbranch_scc1 K_NINV")
        A("buffer_inv " + opt("--inv", "").replace("+", " "))
        A.label("K_NINV")
    A(f"""
    s_cmp_ge_u32 s{S_WAVE}, 7
    s_cbranch_scc1 K_L1
    s_mul_i32 s{T+2}, s{S_HALF}, 12
    s_lshl_b32 s{T+3}, s{S_WAVE}, 1
    s_add_u32 s{T+2}, s{T+2}, s{T+3}
    s_cmp_eq_u32 s{S_WAVE}, 6
    s_cselect_b32 s{T+2}, 24, s{T+2}
    s_lshl_b32 s{T+2}, s{T+2}, 10
    s_add_u32 m0, s{T+2}, {L_XST}
    s_add_u32 s{T+2}, s{T+2}, s{T+7}
    s_lshl_b32 s{T+3}, s{S_WAVE}, 10
    s_waitcnt lgkmcnt(0)
    s_bfe_u32 s{S_GF}, s{S_T0}, {0x4000a if "--noreg" not in sys.argv else 0}
    """)
    st(0)
    A(f"""
    s_or_b32 s{T+14}, s2, s{S_WAVE}
    s_cmp_lg_u32 s{T+14}, 0
    s_cbranch_scc1 K_NEP
    """)
    mk_srd(A, S_A, KDBG, 256)
    A(f"""
    v_lshlrev_b32 v34, 6, v{V_LANE}
    s_lshl_b32 s{T+14}, s{S_T1}, 20
    s_lshl_b32 s{T+15}, s{S_GF}, 4
    s_or_b32 s{T+14}, s{T+14}, s{T+15}
    s_or_b32 s{T+14}, s{T+14}, 1
    v_mov_b32 v32, s{T+14}
    v_mov_b32 v33, s{S_T0}
    s_mov_b64 exec, 15
    buffer_store_dwordx2 v[32:33], v34, {srd(S_A)}, 0 offen sc1
    s_mov_b64 exec, -1
K_NEP:
    """)
    mk_srd(A, S_X, KX, N*128)
    mk_srd(A, S_A, KWB, 8192)
    mk_srd(A, S_B, KWV, 8192)
    A(f"""
    buffer_load_dwordx4 v24, {srd(S_X)}, s{T+2} offen lds
    s_cmp_eq_u32 s{S_WAVE}, 6
    s_cbranch_scc1 K_L0
    buffer_load_dwordx4 v25, {srd(S_X)}, s{T+2} offen offset:1024 lds
K_L0:
    s_add_u32 m0, s{T+3}, {L_WBV}
    s_nop 0
    buffer_load_dwordx4 v29, {srd(S_A)}, s{T+3} offen lds
    s_add_u32 m0, s{T+3}, {L_WBV+8192}
    s_cmp_eq_u32 s{S_WAVE}, 6
    buffer_load_dwordx4 v29, {srd(S_B)}, s{T+3} offen lds
    s_cbranch_scc0 K_L1
    buffer_load_dwordx4 v29, {srd(S_B)}, s{T+3} offen offset:1024 lds
    s_add_u32 m0, s{T+3}, {L_WBV}
    s_nop 0
    buffer_load_dwordx4 v29, {srd(S_A)}, s{T+3} offen offset:1024 lds
K_L1:
    v_mul_u32_u24 v30, {LS}, v0
    v_add_u32 v30, {L_LIST}, v30
    v_cmp_gt_u32 vcc, 200, v0
    v_mov_b32 v31, 0x40000000
    v_cndmask_b32 v30, v31, v30, vcc
    v_cmp_gt_u32 vcc, 256, v0
    v_subrev_u32 v32, 384, v0
    v_cndmask_b32 v30, 0, v30, vcc
    v_cmp_gt_u32 vcc, 256, v32
    v_mov_b32 v31, {NPB}
    v_cndmask_b32 v30, v30, v31, vcc
    v_lshlrev_b32 v31, 2, v0
    ds_write_b32 v31, v30
    v_subrev_u32 v34, 448, v0
    v_lshlrev_b32 v32, 4, v34
    v_lshlrev_b32 v33, 3, v34
    s_mul_i32 s{T+10}, s2, {CH*4}
    s_add_u32 s{T+11}, s{T+10}, {CH*2}
    s_lshr_b32 s{T+12}, s{T+10}, 1
    s_lshr_b32 s{T+13}, s{T+11}, 1
    s_waitcnt lgkmcnt(0)
    s_bfe_u32 s{S_GF}, s{S_T0}, {0x4000a if "--noreg" not in sys.argv else 0}
    """)
    if diag:
        A(f"s_cmp_lt_u32 s{S_WAVE}, 7")
        A("s_cbranch_scc1 K_D0")
        st(0)
        A.label("K_D0")
    if WSOFF:
        A(f"s_add_u32 s{KWS}, s{KWS}, {WSOFF<<20}")
        A(f"s_addc_u32 s{KWS+1}, s{KWS+1}, 0")
    mk_srd(A, S_A, KDST, E*4)
    mk_srd(A, S_B, KSRC, E*4)
    mk_srd(A, S_WS, KE, E*2)
    mk_srd(A, S_X, KX, N*128)
    mk_srd(A, S_OUT, KWC, 128)
    DS_, SR_, EE_ = 64, 72, 80
    A(f"""
    v_lshlrev_b32 v27, 3, v26
    v_cmp_gt_u32 vcc, {NT}, v34
    v_mov_b32 v36, {PADROW}
    v_mov_b32 v37, {PADROW}
    v_mov_b32 v38, {PADROW}
    v_mov_b32 v39, {PADROW}
    v_lshlrev_b32 v30, 4, v0
    v_add_u32 v30, {L_LIST}, v30
    s_barrier
    buffer_load_dwordx2 {vr(V_WC+2,2)}, v27, {srd(S_OUT)}, s{T+6} offen
    s_cmp_ge_u32 s{T+9}, 7
    s_cbranch_scc1 K_NE0
    s_mov_b64 exec, vcc
    buffer_load_dwordx4 {vr(DS_,4)}, v32, {srd(S_A)}, s{T+10} offen{ENT}
    buffer_load_dwordx4 {vr(DS_+4,4)}, v32, {srd(S_A)}, s{T+11} offen{ENT}
    s_mov_b64 exec, -1
    v_mov_b32 v40, -1
    v_mov_b32 v41, -1
    ds_write_b64 v33, v[40:41] offset:{L_LOC}
K_NE0:
    ds_write_b128 v30, v[36:39] offset:{CHP*4}
    ds_write_b128 v30, v[36:39] offset:{CHP*4+16384}
    s_cbranch_scc1 K_NE
    s_mov_b64 exec, vcc
    buffer_load_dwordx4 {vr(SR_,4)}, v32, {srd(S_B)}, s{T+10} offen{ENT}
    buffer_load_dwordx4 {vr(SR_+4,4)}, v32, {srd(S_B)}, s{T+11} offen{ENT}
    buffer_load_dwordx2 {vr(EE_,2)}, v33, {srd(S_WS)}, s{T+12} offen{ENT}
    buffer_load_dwordx2 {vr(EE_+2,2)}, v33, {srd(S_WS)}, s{T+13} offen{ENT}
    s_mov_b64 exec, -1
K_NE:
    ds_write_b128 v30, v[36:39] offset:{CHP*4+32768}
    """)
    se(2)
    mk_srd(A, S_WS, KWS, WS_SIZE)
    A(f"""
    s_add_u32 s{S_OUT}, s{KOUT}, s{T+7}
    s_addc_u32 s{S_OUT+1}, s{KOUT+1}, 0
    s_sub_u32 s{S_OUT+2}, {N*128}, s{T+7}
    s_min_u32 s{S_OUT+2}, s{S_OUT+2}, {NPB*128}
    s_mov_b32 s{S_OUT+3}, 0x20000
    s_mov_b32 s{S_ONE}, 0x3f800000
    s_mov_b32 s{S_MODE}, 0
    s_mul_i32 s{T+2}, s{S_HALF}, {HS}
    s_add_u32 s{T+2}, s{T+2}, {WS_TAB}
    s_mov_b32 s{S_TAB+2}, {PADROW+1}
    s_mov_b32 s{S_TAB+3}, 0x20000
    s_mul_i32 s{S_PF}, s{T+1}, {784*128}
    s_add_u32 s{S_PF}, s{S_PF}, s{T+2}
    v_add_u32 v{V_OUTC}, s{T+6}, v27
    v_lshlrev_b32 v{V_I0+1}, 4, v26
    v_mov_b32 v{V_I1+1}, v{V_I0+1}
    v_add_u32 v{V_AUC}, {L_AU}, v{V_I0+1}
    v_lshlrev_b32 v{V_OA}, 2, v28
    s_mov_b32 s{S_C}, 0x{f2u(2.0**-SH):08x}
    s_mov_b32 s{S_C+1}, 0x{f2u(2.0**-SH):08x}
    s_mov_b32 s{S_EPS}, 0x{f2u(1e-6*2.0**SH):08x}
    s_mov_b32 s{S_EPS+1}, 0x{f2u(1e-6*2.0**SH):08x}
    s_mov_b32 s{S_MSK}, 0xffff0000
    """)
    arrive(A, L_CE)
    se(3)
    A(f"""
    s_cmp_ge_u32 s{S_WAVE}, 14
    s_cbranch_scc1 K_HELP
    s_cmp_ge_u32 s{S_WAVE}, 7
    s_cbranch_scc1 K_BIN
    ; ---- table job: tile = 3*half + (w>>1), nt = w&1 ; wave 6: tile 6, nt = half
    s_mul_i32 s{T+10}, s{S_HALF}, 3
    s_lshr_b32 s{T+11}, s{S_WAVE}, 1
    s_add_u32 s{T+10}, s{T+10}, s{T+11}
    s_and_b32 s{T+11}, s{S_WAVE}, 1
    s_cmp_eq_u32 s{S_WAVE}, 6
    s_cselect_b32 s{T+10}, 6, s{T+10}
    s_cselect_b32 s{T+11}, s{S_HALF}, s{T+11}
    s_lshl_b32 s{T+12}, s{T+10}, 12
    s_mul_i32 s{T+13}, s{T+11}, {HS}
    s_add_u32 s{T+13}, s{T+13}, s{T+7}
    s_add_u32 s{T+15}, s{T+13}, {WS_TAB}
    s_mov_b32 s{S_B+2}, {NPB*128}
    s_mov_b32 s{S_B+3}, 0x20000
    v_and_b32 v28, 31, v{V_LANE}
    v_lshrrev_b32 v29, 5, v{V_LANE}
    v_bfe_u32 v30, v28, 1, 3
    v_xor_b32 v30, v30, v29
    v_lshlrev_b32 v30, 4, v30
    v_lshl_add_u32 v24, v28, 7, v30
    s_add_u32 s{T+13}, s{T+12}, {L_XST}
    v_add_u32 v30, s{T+13}, v24
    v_bfe_u32 v25, v{V_LANE}, 2, 2
    v_lshl_add_u32 v25, v29, 3, v25
    v_lshlrev_b32 v34, 7, v25
    v_bfe_u32 v35, v{V_LANE}, 4, 1
    v_lshl_add_u32 v34, v35, 5, v34
    v_and_b32 v36, 3, v{V_LANE}
    v_lshl_add_u32 v34, v36, 3, v34
    s_lshl_b32 s{T+13}, s{T+11}, 6
    s_add_u32 s{T+13}, s{T+13}, {L_WBV}
    v_add_u32 v34, s{T+13}, v34
    v_and_b32 v32, 1, v{V_LANE}
    v_xor_b32 v32, 1, v32
    v_lshlrev_b32 v32, 15, v32
    v_lshlrev_b32 v33, 9, v29
    v_lshl_add_u32 v33, v28, 2, v33
    v_add_u32 v33, s{T+12}, v33
    s_mov_b32 s{T+13}, 0x{f2u(-LOG2E):08x}
    s_mov_b32 s{T+14}, 0x07060302
    s_waitcnt vmcnt(1)
    """)
    arrive(A, L_CX)
    spin_lds(A, "K_SPX", 7)
    st(1)
    XB = 84
    Wm1 = [36, 40, 116, 8]
    for u in range(4):
        A(f"v_xor_b32 v31, {32*u}, v30")
        A(f"ds_read_b128 {vr(XB+4*u,4)}, v31")
        for tt in range(2):
            A(f"ds_read_b64_tr_b16 {vr(100+4*u+2*tt,2)}, v34 offset:{(16*u+4*tt)*128}")
        for tt in range(2):
            A(f"ds_read_b64_tr_b16 {vr(Wm1[u]+2*tt,2)}, v34 offset:{8192+(16*u+4*tt)*128}")
    for u in range(4):
        A(f"s_waitcnt lgkmcnt({15-5*u})")
        A(mfma(vr(48,16), vr(XB+4*u,4), vr(100+4*u,4), "0" if u == 0 else vr(48,16)))
        A(mfma(vr(64,16), vr(XB+4*u,4), vr(Wm1[u],4), "0" if u == 0 else vr(64,16)))
    TS = opt("--tabst", "sc1").replace("+", " ")
    A(f"""
    s_lshl_b32 s{T}, s{S_GF}, 24
    s_add_u32 s{T}, s{T}, s{T+15}
    s_add_u32 s{S_B}, s{KWS}, s{T}
    s_addc_u32 s{S_B+1}, s{KWS+1}, 0
    """)
    if "--tabdw" in sys.argv:
        arrive(A, L_CY)
        for r in range(16): A(f"v_mul_f32 v{48+r}, s{T+13}, v{48+r}")
        for r in range(16):
            A(f"v_add_u32 v{64+r}, v32, v{64+r}")
            A(f"v_perm_b32 v{48+r}, v{48+r}, v{64+r}, s{T+14}")
            A(f"buffer_store_dword v{48+r}, v33, {srd(S_B)}, 0 offen offset:{(8*(r>>2)+(r&3))*128} {TS}")
    else:
        A(f"""
        s_lshl_b32 s{T+4}, s{S_WAVE}, 11
        s_add_u32 s{T+4}, s{T+4}, {L_TST}
        v_subrev_u32 v33, s{T+12}, v33
        v_add_u32 v33, s{T+4}, v33
        v_add_u32 v34, 128, v33
        v_lshlrev_b32 v35, 4, v{V_LANE}
        v_add_u32 v36, s{T+4}, v35
        v_add_u32 v35, s{T+12}, v35
        """)
        for hf in range(2):
            for r in range(8*hf, 8*hf+8): A(f"v_mul_f32 v{48+r}, s{T+13}, v{48+r}")
            for r in range(8*hf, 8*hf+8):
                A(f"v_add_u32 v{64+r}, v32, v{64+r}")
                A(f"v_perm_b32 v{48+r}, v{48+r}, v{64+r}, s{T+14}")
            for q in range(2):
                r = 8*hf + 4*q
                A(f"ds_write2st64_b32 v33, v{48+r}, v{50+r} offset0:{4*q} offset1:{4*q+1}")
                A(f"ds_write2st64_b32 v34, v{49+r}, v{51+r} offset0:{4*q} offset1:{4*q+1}")
            A(f"ds_read_b128 {vr(100+8*hf,4)}, v36")
            A(f"ds_read_b128 {vr(104+8*hf,4)}, v36 offset:1024")
            if hf == 1:
                if AUF: arrive(A, L_CY)
                if "--tabhold" in sys.argv:
                    A(f"v_mov_b32 v120, {[0,0,L_C2,L_C3,L_CS,L_CY][opt('--tabhold', 2)]}")
                    spin_lds(A, "K_SPH", opt("--tabn", 7), 1)
                A("s_waitcnt lgkmcnt(6)")
                A(f"buffer_store_dwordx4 v[100:103], v35, {srd(S_B)}, 0 offen {TS}")
                A(f"buffer_store_dwordx4 v[104:107], v35, {srd(S_B)}, 0 offen offset:1024 {TS}")
        A("s_waitcnt lgkmcnt(0)")
        A(f"buffer_store_dwordx4 v[108:111], v35, {srd(S_B)}, 0 offen offset:2048 {TS}")
        A(f"buffer_store_dwordx4 v[112:115], v35, {srd(S_B)}, 0 offen offset:3072 {TS}")
        if not AUF: arrive(A, L_CY)
        st(2)
        get_tag(A, "K_GT0")
        A(f"""
        s_add_u32 s{T}, s{S_WS}, s{T+15}
        s_addc_u32 s{T+1}, s{S_WS+1}, 0
        s_cmp_eq_u32 s{T}, s{S_B}
        s_cbranch_scc1 K_RGOK
        s_mov_b32 s{S_B}, s{T}
        s_mov_b32 s{S_B+1}, s{T+1}
        buffer_store_dwordx4 v[100:103], v35, {srd(S_B)}, 0 offen {TS}
        buffer_store_dwordx4 v[104:107], v35, {srd(S_B)}, 0 offen offset:1024 {TS}
        buffer_store_dwordx4 v[108:111], v35, {srd(S_B)}, 0 offen offset:2048 {TS}
        buffer_store_dwordx4 v[112:115], v35, {srd(S_B)}, 0 offen offset:3072 {TS}
K_RGOK:
        """)
    A(f"""
    s_lshr_b32 s{T+12}, s2, 1
    s_or_b32 s{T+12}, s{T+12}, s{S_WAVE}
    s_cmp_lg_u32 s{T+12}, 0
    s_cbranch_scc1 K_NPAD
    v_lshlrev_b32 v32, 2, v{V_LANE}
    v_mov_b32 v33, 0x7f000000
    s_mul_i32 s{T+4}, s{S_HALF}, {HS}
    s_add_u32 s{T+4}, s{T+4}, {WS_TAB+PADROW*128}
    s_mov_b32 exec_hi, 0
    buffer_store_dword v33, v32, {srd(S_WS)}, s{T+4} offen sc1
    s_mov_b64 exec, -1
K_NPAD:
    """)
    if AUF:
        A(f"s_call_b64 {sr(S_RET,2)}, K_AUJ")
        st(5)
    A("s_waitcnt vmcnt(0)")
    st(3)
    arrive(A, L_CP, rtn=T+3)
    A(f"""
    s_cmp_lg_u32 s{T+3}, 13
    s_cbranch_scc1 K_NPB
    s_bitcmp1_b32 s{S_T0}, 1
    s_cbranch_scc1 K_NPB
    s_call_b64 {sr(S_RET,2)}, K_PUB
    buffer_store_dwordx4 v[40:43], v44, {srd(S_WS)}, s{T+4} offen sc1
K_NPB:
    """)
    if not AUF:
        A(f"s_call_b64 {sr(S_RET,2)}, K_AUJ")
        st(5)
    A(f"""
    s_branch K_JOIN
K_AUJ:
    ; ---- A / U job for tile = wave
    v_and_b32 v28, 31, v{V_LANE}
    v_lshrrev_b32 v29, 5, v{V_LANE}
    v_bfe_u32 v30, v28, 1, 3
    v_xor_b32 v30, v30, v29
    v_lshlrev_b32 v30, 4, v30
    v_lshl_add_u32 v30, v28, 7, v30
    s_lshl_b32 s{T+12}, s{S_HALF}, 6
    v_xor_b32 v30, s{T+12}, v30
    s_lshl_b32 s{T+12}, s{S_WAVE}, 12
    s_add_u32 s{T+12}, s{T+12}, {L_XST}
    v_add_u32 v30, s{T+12}, v30
    v_bfe_u32 v25, v{V_LANE}, 2, 2
    v_lshl_add_u32 v25, v29, 3, v25
    v_lshlrev_b32 v34, 6, v25
    v_bfe_u32 v35, v{V_LANE}, 4, 1
    v_lshl_add_u32 v34, v35, 5, v34
    v_and_b32 v36, 1, v{V_LANE}
    v_bfe_u32 v37, v{V_LANE}, 1, 1
    v_lshl_add_u32 v36, v36, 1, v37
    v_lshl_add_u32 v34, v36, 3, v34
    s_lshl_b32 s{T+12}, s{S_HALF}, 11
    v_add_u32 v34, s{T+12}, v34
    v_xor_b32 v35, 2048, v34
    v_add_u32 v34, {L_WAU}, v34
    v_add_u32 v35, {L_WAU}, v35
    v_mov_b32 v120, {L_CY}
    """)
    spin_lds(A, "K_SPY", 8)
    if "--pfay" in sys.argv:
        A(f"""
        s_cmp_ge_u32 s{S_WAVE}, {PFA}
        s_cbranch_scc1 K_NPFA
        v_lshlrev_b32 v31, 7, v0
        buffer_load_ubyte v{V_DUMMY}, v31, {srd(S_WS)}, s{S_PF} offen {GLD}
K_NPFA:
        """)
    st(4)
    XA = 76
    Wu = [8, 12, 16, 40]
    for u in range(4):
        A(f"v_xor_b32 v31, {32*u}, v30")
        A(f"ds_read_b128 {vr(XA+4*u,4)}, v31")
        av = 34 if u < 2 else 35
        for tt in range(2):
            A(f"ds_read_b64_tr_b16 {vr(104+4*u+2*tt,2)}, v{av} offset:{((u&1)*16+4*tt)*64}")
        for tt in range(2):
            A(f"ds_read_b64_tr_b16 {vr(Wu[u]+2*tt,2)}, v{av} offset:{4096+((u&1)*16+4*tt)*64}")
    A(f"""
    s_lshl_b32 s{T+12}, s{S_WAVE}, 5
    v_add_u32 v28, s{T+12}, v28
    v_mul_u32_u24 v24, {AUS}, v28
    v_lshl_add_u32 v24, v29, 5, v24
    v_add_u32 v24, {L_AU}, v24
    """)
    for u in range(4):
        A(f"s_waitcnt lgkmcnt({15-5*u})")
        A(mfma(vr(48,16), vr(104+4*u,4), vr(XA+4*u,4), "0" if u == 0 else vr(48,16)))
    for u in range(4):
        A(mfma(vr(104,16), vr(Wu[u],4), vr(XA+4*u,4), "0" if u == 0 else vr(104,16)))
    A(f"""
    s_mov_b32 s{T+13}, 0x{f2u(-LOG2E):08x}
    v_mov_b32 v31, 0x{f2u(-float(SH)):08x}
    """)
    A(f"v_max3_f32 v32, |v48|, |v49|, |v50|")
    for i in range(3, 15, 2): A(f"v_max3_f32 v32, |v{48+i}|, |v{48+i+1}|, v32")
    A(f"v_max_f32 v32, |v63|, v32")
    for i in range(16): A(f"v_fma_f32 v{48+i}, v{48+i}, s{T+13}, v31")
    A(f"s_cmp_lg_u32 s{S_MODE}, 0")
    A("s_cbranch_scc1 K_AU1")
    for i in range(16): A(f"v_exp_f32 v{48+i}, v{48+i}")
    A.label("K_AU1")
    A(f"""
    s_mov_b32 s{T+12}, 0x05040302
    s_mov_b32 s{T+13}, 0x07060302
    v_mov_b32 v33, {L_FLAG}
    v_cmpx_gt_u32 vcc, 200, v28
    ds_write_b128 v24, v[48:51]
    ds_write_b128 v24, v[52:55] offset:16
    ds_write_b128 v24, v[56:59] offset:64
    ds_write_b128 v24, v[60:63] offset:80
    """)
    for i in range(8):
        A(f"v_add_u32 v{104+2*i}, 0x8000, v{104+2*i}")
        A(f"v_perm_b32 v{104+2*i}, v{XA+i}, v{104+2*i}, s{T+12}")
        A(f"v_perm_b32 v{105+2*i}, v{XA+i}, v{105+2*i}, s{T+13}")
    A(f"""
    ds_write_b128 v24, v[104:107] offset:128
    ds_write_b128 v24, v[108:111] offset:144
    ds_write_b128 v24, v[112:115] offset:192
    ds_write_b128 v24, v[116:119] offset:208
    v_cmpx_gt_u32 vcc, {NPB}, v28
    v_cmpx_nge_f32 vcc, 0x{f2u(49.0):08x}, v32
    ds_write_b32 v33, v33
    s_mov_b64 exec, -1
    """)
    A(f"s_setpc_b64 {sr(S_RET,2)}")
    BN, RK, TM = 48, 56, 84
    A(f"""
K_BIN:
    v_mov_b32 v31, v34
    s_mul_i32 s{T+10}, s2, {CH//4}
    v_add_u32 v32, s{T+10}, v31
    v_cmp_gt_u32 vcc, {NT}, v31
    s_mov_b32 s{T+11}, {E//4}
    v_cmp_gt_u32 {sr(T+4,2)}, s{T+11}, v32
    s_mov_b32 s{T+11}, {E//4 - NT}
    v_cmp_gt_u32 {sr(T+6,2)}, s{T+11}, v32
    s_and_b64 {sr(T+4,2)}, {sr(T+4,2)}, vcc
    s_and_b64 {sr(T+6,2)}, {sr(T+6,2)}, vcc
    s_mov_b32 s{T+8}, 42800
    s_movk_i32 s{T+9}, {NPB}
    v_mov_b32 v33, 1
    s_setprio 3
    """)
    for hlf in range(2):
        A(f"s_mov_b64 exec, {sr(T+4+2*hlf,2)}")
        A(f"s_waitcnt vmcnt({5-hlf})")
        ks = range(4*hlf, 4*hlf+4)
        for k in ks: A(f"v_mul_u32_u24 v{BN+k}, s{T+8}, v{DS_+k}")
        for k in ks: A(f"v_lshrrev_b32 v{BN+k}, 23, v{BN+k}")
        for k in ks:
            A(f"v_mul_u32_u24 v{TM+k}, s{T+9}, v{BN+k}")
            A(f"v_lshlrev_b32 v{BN+k}, 2, v{BN+k}")
            A(f"ds_add_rtn_u32 v{RK+k}, v{BN+k}, v33 offset:{L_HIST}")
        for k in ks: A(f"v_sub_u32 v{DS_+k}, v{DS_+k}, v{TM+k}")
    A("s_mov_b64 exec, -1")
    A(f"v_lshlrev_b32 v34, 3, v{V_LANE}")
    arrive(A, L_C2)
    st(3)
    spin_lds(A, "K_SP2", 7)
    st(4)
    A(f"""
    ds_read_b64 v[36:37], v34 offset:{L_HIST}
    s_waitcnt lgkmcnt(0)
    v_add_u32 v36, 3, v36
    v_add_u32 v37, 3, v37
    v_and_b32 v36, -4, v36
    v_and_b32 v37, -4, v37
    v_add_u32 v38, v36, v37
    v_mov_b32 v39, v38
    """)
    scan(A, 39)
    A(f"""
    v_sub_u32 v38, v39, v38
    v_add_u32 v39, v38, v36
    ds_write_b64 v34, v[38:39] offset:{L_OFF}
    """)
    for hlf in range(2):
        A(f"s_mov_b64 exec, {sr(T+4+2*hlf,2)}")
        for k in range(4*hlf, 4*hlf+4):
            A(f"ds_read_b32 v{TM+k}, v{BN+k} offset:{L_OFF}")
    A(f"""
    s_mov_b64 exec, -1
    v_mov_b32 v35, {L_REC}
    s_mov_b32 s{T+8}, 0x05040100
    s_mov_b32 s{T+9}, 0x07060100
    s_waitcnt lgkmcnt(0)
    """)
    for hlf in range(2):
        A(f"s_mov_b64 exec, {sr(T+4+2*hlf,2)}")
        for k in range(4*hlf, 4*hlf+4):
            A(f"v_add_u32 v{TM+k}, v{TM+k}, v{RK+k}")
            A(f"v_lshl_add_u32 v{RK+k}, v{TM+k}, 2, v35")
            A(f"ds_write_b8 v{TM+k}, v{DS_+k} offset:{L_LOC}")
    A("s_mov_b64 exec, -1")
    st(5)
    for hlf in range(2):
        A(f"s_waitcnt vmcnt({1-hlf})")
        if hlf == 0 and opt('--tabhold', 2) == 4: arrive(A, L_CS)
        A(f"s_mov_b64 exec, {sr(T+4+2*hlf,2)}")
        for k in range(4*hlf, 4*hlf+4):
            A(f"v_perm_b32 v{SR_+k}, v{EE_+k//2}, v{SR_+k}, s{T+8+(k&1)}")
            A(f"ds_write_b32 v{RK+k}, v{SR_+k}")
    A(f"""
    s_mov_b64 exec, -1
    v_lshlrev_b32 v32, 4, v31
    v_add_u32 v33, {L_REC}, v32
    s_mul_i32 s{T+10}, s2, {CHP*4}
    s_add_u32 s{T+11}, s{T+10}, {448*16}
    s_mul_i32 s{T+12}, s2, {CHP}
    s_add_u32 s{T+12}, s{T+12}, {WS_LOC}
    """)
    arrive(A, L_C3)
    A(f"""
    s_lshl_b32 s{T}, s{S_GF}, 24
    s_add_u32 s{S_WS}, s{KWS}, s{T}
    s_addc_u32 s{S_WS+1}, s{KWS+1}, 0
    """)
    spin_lds(A, "K_SP3", 7)
    st(6)
    A(f"""
    ds_read_b128 v[64:67], v33
    ds_read_b128 v[68:71], v33 offset:{448*16}
    ds_read_b128 v[72:75], v32 offset:{L_LOC}
K_CO:
    v_cmp_gt_u32 vcc, {CHP//16}, v31
    s_waitcnt lgkmcnt(2)
    buffer_store_dwordx4 v[64:67], v32, {srd(S_WS)}, s{T+10} offen {RS}
    s_waitcnt lgkmcnt(1)
    buffer_store_dwordx4 v[68:71], v32, {srd(S_WS)}, s{T+11} offen {RS}
    s_waitcnt lgkmcnt(0)
    s_and_saveexec_b64 {sr(T+4,2)}, vcc
    s_cbranch_execz K_NLOC
    buffer_store_dwordx4 v[72:75], v32, {srd(S_WS)}, s{T+12} offen {RS}
K_NLOC:
    s_mov_b64 exec, -1
    s_mov_b32 s{T+14}, s{S_WS}
    """)
    get_tag(A, "K_GT1")
    A(f"""
    s_cmp_lg_u32 s{T+14}, s{S_WS}
    s_cbranch_scc1 K_CO
    v_mov_b32 v76, {PADROW}
    v_mov_b32 v77, {PADROW}
    v_mov_b32 v78, {PADROW}
    v_mov_b32 v79, {PADROW}
    ds_write_b128 v33, v[76:79]
    ds_write_b128 v33, v[76:79] offset:{448*16}
    s_call_b64 {sr(S_RET,2)}, K_PUB
    s_waitcnt vmcnt(0)
    """)
    st(7)
    arrive(A, L_CP, rtn=T+3)
    A(f"""
    s_branch K_PUBQ
K_HELP:
    s_cmp_lg_u32 s{S_WAVE}, 15
    s_cbranch_scc1 K_NTG
    """)
    for k in range(4):
        A(f"""
        s_load_dwordx2 {sr(S_T0,2)}, {sr(KDBG,2)}, {64*k}
        s_waitcnt lgkmcnt(0)
        s_bitcmp1_b32 s{S_T0}, 0
        s_cbranch_scc1 K_TG2
        s_sleep {opt("--tsleep", 4)}
        """)
    mk_srd(A, S_B, KDBG, 256)
    A(f"""
    v_mov_b32 v34, 0
    s_mov_b32 s{T+13}, {SPIN}
K_TG:
    buffer_load_dwordx2 v[32:33], v34, {srd(S_B)}, 0 offen sc1
    s_waitcnt vmcnt(0)
    v_readfirstlane_b32 s{S_T0}, v32
    v_readfirstlane_b32 s{S_T1}, v33
    s_bitcmp1_b32 s{S_T0}, 0
    s_cbranch_scc1 K_TG2
    s_sleep 2
    s_sub_u32 s{T+13}, s{T+13}, 1
    s_cmp_lg_u32 s{T+13}, 0
    s_cbranch_scc1 K_TG
    s_mov_b32 s{S_T0}, 2
K_TG2:
    v_mov_b32 v32, s{S_T0}
    v_mov_b32 v33, s{S_T1}
    v_mov_b32 v35, {L_TAG}
    ds_write_b64 v35, v[32:33]
    """)
    st(1)
    get_tag(A, "K_GT3")
    A(f"""
    s_waitcnt vmcnt(0)
    s_branch K_JOIN
K_NTG:
    s_xor_b32 s{T+3}, s{S_HALF}, 1
    s_mul_i32 s{T+3}, s{T+3}, 12288
    s_add_u32 m0, s{T+3}, {L_XST}
    s_add_u32 s{T+3}, s{T+3}, s{T+7}
    v_lshrrev_b32 v30, 2, v{V_LANE}
    v_lshlrev_b32 v30, 7, v30
    v_and_b32 v31, 3, v{V_LANE}
    v_lshl_add_u32 v30, v31, 4, v30
    """)
    mk_srd(A, S_A, KWA, 8192)
    mk_srd(A, S_B, KWU, 8192)
    XL = opt("--xlate", 0)
    if XL == 0: spin_lds(A, "K_SPE", 16)
    else:
        A(f"v_mov_b32 v120, {[0, L_C2, L_C3, L_CP][XL]}")
        spin_lds(A, "K_SPE", [0, 7, 7, 14][XL], 1)
    for g in range(3):
        A(f"""
        buffer_load_dwordx4 v24, {srd(S_X)}, s{T+3} offen lds
        buffer_load_dwordx4 v25, {srd(S_X)}, s{T+3} offen offset:1024 lds
        buffer_load_dwordx4 v24, {srd(S_X)}, s{T+3} offen offset:2048 lds
        buffer_load_dwordx4 v25, {srd(S_X)}, s{T+3} offen offset:3072 lds
        s_add_u32 m0, m0, 4096
        s_add_u32 s{T+3}, s{T+3}, 4096
        """)
    for m_, sd in enumerate((S_A, S_B)):
        A(f"s_mov_b32 m0, {L_WAU + 4096*m_}")
        A(f"s_mov_b32 s{T+4}, s{T+6}")
        for i4 in range(4):
            A(f"buffer_load_dwordx4 v30, {srd(sd)}, s{T+4} offen offset:{1024*i4} lds")
            A(f"s_add_u32 s{T+4}, s{T+4}, 1024")
    A("s_waitcnt vmcnt(0)")
    st(2)
    arrive(A, L_CY)
    get_tag(A, "K_GT2")
    A(f"""
    s_branch K_JOIN
K_PUB:
    v_lshlrev_b32 v122, 3, v{V_LANE}
    ds_read_b64 v[36:37], v122 offset:{L_HIST}
    ds_read_b64 v[38:39], v122 offset:{L_OFF}
    s_lshl_b32 s{T+4}, s2, 10
    s_add_u32 s{T+4}, s{T+4}, {WS_OFFS}
    v_lshlrev_b32 v44, 4, v{V_LANE}
    v_mov_b32 v41, s{S_T1}
    v_mov_b32 v43, s{S_T1}
    s_waitcnt lgkmcnt(0)
    v_add_u32 v36, 3, v36
    v_add_u32 v37, 3, v37
    v_lshrrev_b32 v36, 2, v36
    v_lshrrev_b32 v37, 2, v37
    v_lshrrev_b32 v38, 2, v38
    v_lshrrev_b32 v39, 2, v39
    v_lshl_or_b32 v40, v36, 10, v38
    v_lshl_or_b32 v42, v37, 10, v39
    v_or_b32 v40, s{S_T0}, v40
    v_or_b32 v42, s{S_T0}, v42
    s_setpc_b64 {sr(S_RET,2)}
K_PUBQ:
    s_cmp_lg_u32 s{T+3}, 13
    s_cbranch_scc1 K_JOIN
    s_bitcmp1_b32 s{S_T0}, 1
    s_cbranch_scc1 K_JOIN
    buffer_store_dwordx4 v[40:43], v44, {srd(S_WS)}, s{T+4} offen sc1
K_JOIN:
    s_setprio 0
    v_lshrrev_b32 v28, 3, v0
    v_lshlrev_b32 v24, 10, v28
    v_and_b32 v26, 7, v{V_LANE}
    v_mul_u32_u24 v28, {CHP//4}, v28
    v_add_u32 v28, v28, v26
    s_lshl_b32 s{T+5}, s{S_BIN}, 3
    s_add_u32 s{T+5}, s{T+5}, {WS_OFFS}
    s_add_u32 s{T+14}, s{T+5}, {128*1024}
    s_mov_b32 s{T+2}, {128*CHP*4}
    s_mov_b32 s{T+3}, {WS_LOC}
    s_mov_b32 s{T+4}, {WS_LOC+128*CHP}
    v_mov_b32 v31, 0x04000000
    v_mov_b32 v38, 4
    v_mov_b32 v39, 2
    v_add_u32 v25, 8, v26
    v_min_u32 v30, 783, v0
    v_lshlrev_b32 v30, 7, v30
    s_mov_b32 s{T+12}, 0xfff00000
    s_mov_b32 s{T+13}, {SPIN}
    v_lshlrev_b32 v{V_WC}, 16, v{V_WC+2}
    v_and_b32 v{V_WC+1}, s{S_MSK}, v{V_WC+2}
    v_lshlrev_b32 v{V_WC+2}, 16, v{V_WC+3}
    v_and_b32 v{V_WC+3}, s{S_MSK}, v{V_WC+3}
    s_mov_b32 s{T}, 0x{f2u(-LOG2E):08x}
    v_mul_f32 v{V_WC}, s{T}, v{V_WC}
    v_mul_f32 v{V_WC+1}, s{T}, v{V_WC+1}
    v_mul_f32 v{V_WC+2}, s{T}, v{V_WC+2}
    v_mul_f32 v{V_WC+3}, s{T}, v{V_WC+3}
    """)
    for i in range(2*R): A(f"v_mov_b32 v{V_E+i}, 0")
    def pfa():
        if PFA and "--pfay" not in sys.argv:
            A(f"""
            s_cmp_ge_u32 s{S_WAVE}, {PFA}
            s_cbranch_scc1 K_NPFA
            buffer_load_ubyte v{V_DUMMY}, v30, {srd(S_WS)}, s{S_PF} offen {GLD}
K_NPFA:
            """)
    if "--pfapre" in sys.argv: pfa()
    A("s_waitcnt lgkmcnt(0)")
    A("s_barrier")
    if "--pfapre" not in sys.argv: pfa()
    if opt("--pdelay", 0): A(f"s_sleep {opt('--pdelay', 0)}")
    st(8)
    A(f"""
    s_bitcmp1_b32 s{S_T0}, 1
    s_cselect_b32 s{T+13}, 1, s{T+13}
K_POLL:
    buffer_load_dwordx2 v[32:33], v24, {srd(S_WS)}, s{T+5} offen sc1
    buffer_load_dwordx2 v[34:35], v24, {srd(S_WS)}, s{T+14} offen sc1
    s_waitcnt vmcnt(0)
    v_and_b32 v36, s{T+12}, v32
    v_and_b32 v37, s{T+12}, v34
    v_cmp_eq_u32 vcc, s{S_T1}, v33
    v_cmp_eq_u32 {sr(T+6,2)}, s{S_T1}, v35
    v_cmp_eq_u32 {sr(T+8,2)}, s{S_T0}, v36
    v_cmp_eq_u32 {sr(T+10,2)}, s{S_T0}, v37
    s_and_b64 vcc, vcc, {sr(T+6,2)}
    s_and_b64 {sr(T+8,2)}, {sr(T+8,2)}, {sr(T+10,2)}
    s_and_b64 vcc, vcc, {sr(T+8,2)}
    s_cmp_eq_u64 vcc, -1
    s_cbranch_scc1 K_GOT
    s_sleep {opt("--psleep", 2)}
    s_sub_u32 s{T+13}, s{T+13}, 1
    s_cmp_lg_u32 s{T+13}, 0
    s_cbranch_scc1 K_POLL
    v_mov_b32 v37, {L_FLAG}
    ds_write_b32 v37, v38
    v_mov_b32 v32, 0
    v_mov_b32 v34, 0
K_GOT:
    """)
    st(9)
    A(f"""
    v_bfe_u32 v40, v32, 10, 10
    v_bfe_u32 v41, v34, 10, 10
    v_and_b32 v32, 0x3ff, v32
    v_and_b32 v33, 0x3ff, v34
    v_cmp_lt_u32 {sr(T+6,2)}, v26, v40
    v_cmp_lt_u32 {sr(T+8,2)}, v26, v41
    v_add_u32 v32, v32, v28
    v_add_u32 v33, v33, v28
    v_cndmask_b32 v42, v31, v32, {sr(T+6,2)}
    v_cndmask_b32 v43, v31, v33, {sr(T+8,2)}
    v_lshlrev_b32 v36, 2, v42
    v_lshlrev_b32 v37, 2, v43
    v_lshlrev_b32 v42, 4, v42
    v_lshlrev_b32 v43, 4, v43
    buffer_load_dword v72, v36, {srd(S_WS)}, s{T+3} offen sc1
    buffer_load_dword v73, v37, {srd(S_WS)}, s{T+4} offen sc1
    buffer_load_dwordx4 v[64:67], v42, {srd(S_WS)}, 0 offen sc1
    buffer_load_dwordx4 v[68:71], v43, {srd(S_WS)}, s{T+2} offen sc1
    v_cmp_lt_u32 {sr(T+10,2)}, v25, v40
    v_cmp_lt_u32 {sr(T+12,2)}, v25, v41
    s_mov_b64 exec, {sr(T+10,2)}
    s_cbranch_execz K_OV0
    buffer_load_dword v74, v36, {srd(S_WS)}, s{T+3} offen offset:32 sc1
    buffer_load_dwordx4 v[76:79], v42, {srd(S_WS)}, 0 offen offset:128 sc1
K_OV0:
    s_mov_b64 exec, {sr(T+12,2)}
    s_cbranch_execz K_OV1
    buffer_load_dword v75, v37, {srd(S_WS)}, s{T+4} offen offset:32 sc1
    buffer_load_dwordx4 v[104:107], v43, {srd(S_WS)}, s{T+2} offen offset:128 sc1
K_OV1:
    s_mov_b64 exec, -1
    v_max_u32 v36, v40, v41
    v_mov_b32 v37, {L_FLAG}
    v_cmpx_lt_u32 vcc, {16 if not FORCE_SLOW else 0}, v36
    ds_write_b32 v37, v38
    s_mov_b64 exec, -1
    """)
    PFB = opt("--pfb", 1)
    def pfb():
        A(f"""
        s_cmp_lt_u32 s{S_WAVE}, {PFA}
        s_cbranch_scc1 K_NPFB
        s_cmp_ge_u32 s{S_WAVE}, {opt("--pfbn", 13)}
        s_cbranch_scc1 K_NPFB
        buffer_load_ubyte v{V_DUMMY}, v30, {srd(S_WS)}, s{S_PF} offen {GLD}
        """)
    def ins_atom(locw, a0):
        for k in range(4):
            A(f"v_lshlrev_b32_sdwa v{a0+k}, v39, v{locw} dst_sel:DWORD dst_unused:UNUSED_PAD src0_sel:DWORD src1_sel:BYTE_{k}")
            A(f"ds_add_rtn_u32 v{a0+k}, v{a0+k}, v38")
    def ins_write(a0, rec):
        for k in range(4):
            A(f"ds_write_b32 v{a0+k}, v{rec+k}")
    if PFB >= 1: arrive(A, L_CL)
    if PFB == 1: spin_lds(A, "K_SPM", 16)
    if PFB <= 1:
        pfb()
        A("""
        s_waitcnt vmcnt(1)
        s_branch K_INB
K_NPFB:
        s_waitcnt vmcnt(0)
K_INB:
        """)
    else:
        A("s_waitcnt vmcnt(0)")
    st(10)
    A(f"s_mov_b64 exec, {sr(T+6,2)}")
    ins_atom(72, 80)
    A(f"s_mov_b64 exec, {sr(T+8,2)}")
    ins_atom(73, 84)
    A(f"s_mov_b64 exec, {sr(T+10,2)}")
    A("s_cbranch_execz K_IA0")
    ins_atom(74, 88)
    A.label("K_IA0")
    A(f"s_mov_b64 exec, {sr(T+12,2)}")
    A("s_cbranch_execz K_IA1")
    ins_atom(75, 92)
    A("s_waitcnt lgkmcnt(0)")
    ins_write(92, 104)
    A.label("K_IA1")
    A(f"s_mov_b64 exec, {sr(T+8,2)}")
    A("s_waitcnt lgkmcnt(0)")
    ins_write(84, 68)
    A(f"s_mov_b64 exec, {sr(T+6,2)}")
    ins_write(80, 64)
    A(f"s_mov_b64 exec, {sr(T+10,2)}")
    A("s_cbranch_execz K_IW0")
    ins_write(88, 76)
    A.label("K_IW0")
    A("s_mov_b64 exec, -1")
    if PFB == 2:
        spin_lds(A, "K_SPM", 16)
        pfb()
        A.label("K_NPFB")
    A(f"""
K_IND:
    s_barrier
    """)
    st(11)
    A(f"""
    s_cmp_ge_u32 s{S_WAVE}, 4
    s_cbranch_scc1 K_S1
    s_setprio 3
    v_lshlrev_b32 v28, 2, v0
    ds_read_b32 v29, v28
    v_mul_u32_u24 v30, {LS}, v0
    v_add_u32 v30, {L_LIST-4}, v30
    v_cmp_gt_u32 vcc, 200, v0
    s_mov_b64 {sr(T+6,2)}, vcc
    v_cmp_gt_u32 vcc, {NPB}, v0
    v_mov_b32 v37, {L_FLAG}
    v_mov_b32 v36, 1
    s_waitcnt lgkmcnt(0)
    v_sub_u32 v29, v29, v30
    v_lshrrev_b32 v29, 3, v29
    v_max_u32 v31, 1, v29
    v_min_u32 v31, 63, v31
    v_cndmask_b32 v31, 0, v31, vcc
    v_lshlrev_b32 v32, 2, v31
    v_sub_u32 v32, 252, v32
    s_mov_b64 exec, {sr(T+6,2)}
    ds_add_rtn_u32 v33, v32, v36 offset:{L_H2}
    v_cmpx_lt_u32 vcc, {CAP//2}, v29
    ds_write_b32 v37, v38
    s_mov_b64 exec, -1
    v_lshlrev_b32 v34, 2, v{V_LANE}
    s_waitcnt lgkmcnt(0)
K_S1:
    s_barrier
    s_cmp_ge_u32 s{S_WAVE}, 4
    s_cbranch_scc1 K_S2
    ds_read_b32 v35, v34 offset:{L_H2}
    s_waitcnt lgkmcnt(0)
    v_mov_b32 v36, v35
    """)
    scan(A, 36)
    A(f"""
    v_sub_u32 v36, v36, v35
    ds_bpermute_b32 v36, v32, v36
    s_waitcnt lgkmcnt(0)
    v_add_u32 v33, v33, v36
    v_lshlrev_b32 v36, 2, v33
    v_and_b32 v35, 7, v33
    v_lshrrev_b32 v33, 1, v33
    s_mov_b64 exec, {sr(T+6,2)}
    ds_write_b32 v36, v0 offset:{L_ORD}
    v_cmpx_eq_u32 vcc, 0, v35
    ds_write_b32 v33, v31 offset:{L_LG}
    s_mov_b64 exec, -1
K_S2:
    v_and_b32 v34, 31, v{V_LANE}
    v_lshlrev_b32 v34, 2, v34
    v_mov_b32 v37, {L_FLAG}
    s_and_b32 s{S_WP}, s{S_WAVE}, 3
    s_lshl_b32 s{S_WP}, s{S_WP}, 2
    s_lshr_b32 s{T}, s{S_WAVE}, 2
    s_add_u32 s{S_WP}, s{S_WP}, s{T}
    s_waitcnt lgkmcnt(0)
    s_barrier
    """)
    st(12)
    A(f"""
    s_setprio 3
    ds_read_b32 v35, v34 offset:{L_LG}
    ds_read_b32 v38, v37
    s_waitcnt lgkmcnt(0)
    v_mov_b32 v36, v35
    v_readfirstlane_b32 s{T}, v38
    s_cmp_lg_u32 s{T}, 0
    s_cbranch_scc1 K_SLOW
    """)
    scan(A, 36, upto=32)
    A(f"""
    v_readlane_b32 s{S_TT}, v36, 31
    s_mul_i32 s{T+1}, s{S_WP}, s{S_TT}
    s_add_u32 s{T+2}, s{T+1}, s{S_TT}
    s_lshr_b32 s{T+1}, s{T+1}, 4
    s_lshr_b32 s{T+2}, s{T+2}, 4
    s_sub_u32 s{S_N1}, s{T+2}, s{T+1}
    s_sub_u32 s{S_N1}, s{S_N1}, 1
    s_min_u32 s{S_N1}, s{S_N1}, 58
    v_cmp_ge_u32 vcc, s{T+1}, v36
    s_bcnt1_i32_b32 s{S_GC}, vcc_lo
    s_lshl_b32 s{T+3}, s{S_GC}, 5
    v_add_u32 v{V_OA}, s{T+3}, v{V_OA}
    ds_read_b32 v{V_LC}, v{V_OA} offset:{L_ORD}
    ds_read_b32 v{V_LN}, v{V_OA} offset:{L_ORD+32}
    v_sub_u32 v35, v36, v35
    v_readlane_b32 s{S_GS}, v35, s{S_GC}
    s_mov_b32 s{S_GF}, s{S_GC}
    v_subrev_u32 v36, s{T+1}, v36
    v_subrev_u32 v36, 1, v36
    v_cmp_gt_u32 vcc, 64, v36
    v_mov_b32 v40, 1
    v_mov_b32 v41, 0
    v_lshlrev_b64 v[40:41], v36, v[40:41]
    v_cndmask_b32 v40, 0, v40, vcc
    v_cndmask_b32 v41, 0, v41, vcc
    """)
    for sh in (1, 2, 4, 8):
        for v in (40, 41):
            A(f"v_or_b32_dpp v{v}, v{v}, v{v} row_shr:{sh} row_mask:0xf bank_mask:0xf")
    for v in (40, 41):
        A(f"v_or_b32_dpp v{v}, v{v}, v{v} row_bcast:15 row_mask:0xa bank_mask:0xf")
    A(f"""
    v_readlane_b32 s{S_FL}, v40, 31
    v_readlane_b32 s{S_FL+1}, v41, 31
    s_sub_u32 s{T+4}, s{T+1}, s{S_GS}
    s_cmp_lg_u32 s{T+4}, 0
    s_cselect_b32 s{S_HEAD}, 1, 0
    s_lshl_b32 s{T+4}, s{T+4}, 3
    s_add_u32 s{T+4}, s{T+4}, {L_LIST}
    s_movk_i32 s{T+5}, {LS}
    v_mov_b32 v36, s{T+4}
    s_waitcnt lgkmcnt(0)
    v_mad_u32_u24 v{V_P}, v{V_LC}, s{T+5}, v36
    v_mov_b32 v{V_NB}, v{V_LN}
    """)
    for j in range(R):
        for x in rd_rec(0, j): A(x)
        if j == 0:
            A(f"""
            s_movk_i32 s{T+5}, {AUS}
            v_mad_u32_u24 v36, v{V_LC}, s{T+5}, v{V_AUC}
            ds_read_b128 {vr(V_EA,4)}, v36
            ds_read_b128 {vr(V_UX,4)}, v36 offset:128
            """)
        A(f"""
        v_add_u32 v{V_P}, 8, v{V_P}
        s_bitcmp1_b64 {sr(S_FL,2)}, {j}
        s_cbranch_scc0 K_PR{j}
        s_mov_b32 s{S_U}, -1
        s_call_b64 {sr(S_RET2,2)}, K_FETCH
K_PR{j}:
        """)
        if j < D:
            A("s_waitcnt lgkmcnt(0)")
            for x in ld_rows(j): A(x)
    A(f"""
    s_lshr_b64 {sr(S_FF,2)}, {sr(S_FL,2)}, {R}
    s_or_b64 {sr(S_EV,2)}, {sr(S_FL,2)}, {sr(S_FF,2)}
    s_lshl_b64 {sr(T,2)}, 1, s{S_N1}
    s_or_b64 {sr(S_EV,2)}, {sr(S_EV,2)}, {sr(T,2)}
    s_lshr_b64 {sr(T+2,2)}, {sr(T,2)}, {PR[2]}
    s_or_b64 {sr(S_EV,2)}, {sr(S_EV,2)}, {sr(T+2,2)}
    s_lshr_b64 {sr(T+2,2)}, {sr(T,2)}, {PR[1]}
    s_or_b64 {sr(S_EV,2)}, {sr(S_EV,2)}, {sr(T+2,2)}
    s_lshr_b64 {sr(T+2,2)}, {sr(T,2)}, {PR[0]}
    s_or_b64 {sr(S_EV,2)}, {sr(S_EV,2)}, {sr(T+2,2)}
    s_mov_b64 {sr(S_EVC,2)}, {sr(S_EV,2)}
    """)
    zero_acc(A)
    A(f"""
    s_cmp_eq_u32 s{S_HEAD}, 0
    s_cbranch_scc1 K_NHZ
    v_mov_b64 {vr(V_DEN,2)}, 0
    v_mov_b64 {vr(V_DEN+2,2)}, 0
K_NHZ:
    """)
    st(13)
    A(".p2align 6")
    A.label("K_LOOP")
    for u in range(U):
        d, r = u % D, u % R
        A(f"s_waitcnt vmcnt({2*(D-1)}) lgkmcnt(0)")
        for x in c_head(d, r) + ld_rows(d) + rd_rec(8*u, r) + c_rest(): A(x)
        A(f"s_bitcmp1_b64 {sr(S_EV,2)}, {u}")
        A(f"s_cbranch_scc1 K_EV{u}")
        A.label(f"K_RT{u}")
    A(f"""
    v_add_u32 v{V_P}, {8*U}, v{V_P}
    s_lshr_b64 {sr(S_EV,2)}, {sr(S_EV,2)}, {U}
    s_cbranch_scc1 K_LOOP
    s_branch K_TAIL
    """)
    for u in range(U):
        A(f"""
K_EV{u}:
        s_mov_b32 s{S_U}, {u}
        s_call_b64 {sr(S_RET,2)}, K_EVENT
        s_branch K_RT{u}
        """)
    A(f"""
K_FETCH:
    s_add_u32 s{S_GF}, s{S_GF}, 1
    s_lshl_b32 s{T}, s{S_U}, 3
    s_sub_u32 s{T}, {L_LIST-8}, s{T}
    v_mov_b32 v{V_X0}, s{T}
    s_movk_i32 s{T+1}, {LS}
    v_mad_u32_u24 v{V_P}, v{V_NB}, s{T+1}, v{V_X0}
    s_sub_u32 s{T}, s{S_GF}, s{S_GC}
    s_lshl_b32 s{T}, s{T}, 5
    v_add_u32 v{V_X0}, s{T}, v{V_OA}
    ds_read_b32 v{V_NB}, v{V_X0} offset:{L_ORD+32}
    s_setpc_b64 {sr(S_RET2,2)}
K_EVENT:
    s_ff1_i32_b64 s{T+4}, {sr(S_EVC,2)}
    s_bitset0_b64 {sr(S_EVC,2)}, s{T+4}
    s_bitcmp1_b64 {sr(S_FF,2)}, s{T+4}
    s_cbranch_scc0 K_E1
    s_call_b64 {sr(S_RET2,2)}, K_FETCH
K_E1:
    s_bitcmp1_b64 {sr(S_FL,2)}, s{T+4}
    s_cbranch_scc0 K_E3
    s_cmp_eq_u32 s{S_HEAD}, 1
    s_cbranch_scc0 K_E2
    s_mov_b32 s{S_HEAD}, 0
    s_mov_b32 s{T+2}, 1
    s_call_b64 {sr(S_RET2,2)}, K_PART
    s_branch K_E2B
    """)
    A.label("K_E2")
    finalize(A, V_NUM, V_DEN, V_UX, V_LC)
    A(f"""
K_E2B:
    s_cmp_eq_u32 s{T+4}, s{S_N1}
    s_cbranch_scc1 K_DONE
    s_add_u32 s{S_GC}, s{S_GC}, 1
    v_add_u32 v{V_OA}, 32, v{V_OA}
    s_movk_i32 s{T+1}, {AUS}
    v_mad_u32_u24 v{V_X0}, v{V_LN}, s{T+1}, v{V_AUC}
    v_mov_b32 v{V_LC}, v{V_LN}
    ds_read_b128 {vr(V_EA,4)}, v{V_X0}
    ds_read_b128 {vr(V_UX,4)}, v{V_X0} offset:128
    ds_read_b32 v{V_LN}, v{V_OA} offset:{L_ORD+32}
    """)
    zero_acc(A)
    A(f"""
K_E3:
    s_sub_u32 s{T}, s{S_N1}, s{T+4}
    s_cmp_eq_u32 s{T}, 0
    s_cbranch_scc1 K_TAIL
    s_cmp_gt_u32 s{T}, {PR[0]}
    s_cbranch_scc1 K_E4
    s_setprio 2
    s_cmp_gt_u32 s{T}, {PR[1]}
    s_cbranch_scc1 K_E4
    s_setprio 1
    s_cmp_gt_u32 s{T}, {PR[2]}
    s_cbranch_scc1 K_E4
    s_setprio 0
K_E4:
    s_setpc_b64 {sr(S_RET,2)}
K_PART:
    s_lshl_b32 s{T}, s{S_WP}, 11
    s_add_u32 s{T}, s{T}, {L_SIDE}
    v_lshl_add_u32 v{V_X0}, v{V_LANE}, 4, s{T}
    ds_write_b128 v{V_X0}, {vr(V_NUM,4)}
    ds_write_b128 v{V_X0}, {vr(V_DEN,4)} offset:1024
    s_lshl_b32 s{T}, s{S_WP}, 2
    v_mov_b32 v{V_X0}, s{T}
    v_mov_b32 v{V_X1}, s{T+2}
    ds_write_b32 v{V_X0}, v{V_X1} offset:{L_HF}
    s_setpc_b64 {sr(S_RET2,2)}
K_TAIL:
    s_cmp_eq_u32 s{S_HEAD}, 1
    s_cbranch_scc0 K_TL
    s_mov_b32 s{T+2}, 2
    s_call_b64 {sr(S_RET2,2)}, K_PART
    s_branch K_DONE
K_TL:
    s_add_u32 s{S_WP}, s{S_WP}, 1
    s_cmp_ge_u32 s{S_WP}, 16
    s_cbranch_scc1 K_TF
    s_lshl_b32 s{T}, s{S_WP}, 2
    v_mov_b32 v{V_X1}, s{T}
    s_lshl_b32 s{T}, s{S_WP}, 11
    s_add_u32 s{T}, s{T}, {L_SIDE}
    v_lshl_add_u32 v{V_X0}, v{V_LANE}, 4, s{T}
    s_mov_b32 s{T+1}, 0x100000
K_TW:
    s_sub_u32 s{T+1}, s{T+1}, 1
    s_cbranch_scc1 K_TF
    ds_read_b32 v{V_HL}, v{V_X1} offset:{L_HF}
    ds_read_b128 {vr(V_HD,4)}, v{V_X0}
    ds_read_b128 {vr(V_HD+4,4)}, v{V_X0} offset:1024
    s_waitcnt lgkmcnt(0)
    v_readfirstlane_b32 s{T}, v{V_HL}
    s_cmp_eq_u32 s{T}, 0
    s_cbranch_scc1 K_TW
    """)
    for k in range(4): A(f"v_pk_add_f32 {vr(V_NUM+2*k,2)}, {vr(V_NUM+2*k,2)}, {vr(V_HD+2*k,2)}")
    A(f"""
    s_cmp_eq_u32 s{T}, 2
    s_cbranch_scc1 K_TL
K_TF:
    """)
    st(14)
    finalize(A, V_NUM, V_DEN, V_UX, V_LC)
    A.label("K_DONE")
    A.label("K_FIN")
    if diag:
        A("s_waitcnt vmcnt(0)")
        st(15)
        A(f"s_mov_b32 s{S_WS}, s{KWS}")
        A(f"s_mov_b32 s{S_WS+1}, s{KWS+1}")
        A(f"""
        s_lshl_b32 s{T}, s2, 4
        s_add_u32 s{T}, s{T}, s{S_WAVE}
        s_lshl_b32 s{T}, s{T}, 7
        s_add_u32 s{T}, s{T}, {WS_STAMP}
        v_lshlrev_b32 v{V_X0}, 2, v{V_LANE}
        v_cmpx_gt_u32 vcc, 32, v{V_LANE}
        buffer_store_dword v{V_STAMP}, v{V_X0}, {srd(S_WS)}, s{T} offen
        """)
        if "--persist" in sys.argv:
            A(f"""
            s_mov_b64 exec, -1
            s_or_b32 s{T}, s2, s{S_WAVE}
            s_cmp_lg_u32 s{T}, 0
            s_cbranch_scc1 K_END
            v_mov_b32 v30, 0
            s_mov_b32 s{T+3}, {WS_EP+256}
            buffer_load_dword v31, v30, {srd(S_WS)}, s{T+3} offen sc1
            s_waitcnt vmcnt(0)
            v_readfirstlane_b32 s{T+4}, v31
            v_mov_b32 v31, 0x12345678
            buffer_store_dword v31, v30, {srd(S_WS)}, s{T+3} offen sc1
            v_readlane_b32 s{T}, v{V_STAMP}, 16
            s_cmp_eq_u32 s{T+4}, 0x12345678
            s_movk_i32 s{T+5}, 6000
            s_cselect_b32 s{T+1}, 10000, s{T+5}
K_DSP2:
            s_sleep 1
            s_memrealtime s[0:1]
            s_waitcnt lgkmcnt(0)
            s_sub_u32 s{T+2}, s0, s{T}
            s_cmp_lt_u32 s{T+2}, s{T+1}
            s_cbranch_scc1 K_DSP2
            """)
        if "--spink" in sys.argv:
            k = opt("--spink", 0); w = opt("--spinw", 7)
            A(f"""
            s_mov_b64 exec, -1
            s_cmp_lg_u32 s{S_WAVE}, {w}
            s_cbranch_scc1 K_END
            """)
            if "--cond" in sys.argv:
                c = opt("--cond", "cold")
                A(f"""
                v_mov_b32 v30, 0
                s_lshl_b32 s{T+3}, s2, 7
                s_add_u32 s{T+3}, s{T+3}, {WS_EP+4096}
                buffer_load_dword v31, v30, {srd(S_WS)}, s{T+3} offen sc1
                s_waitcnt vmcnt(0)
                v_readfirstlane_b32 s{T+4}, v31
                v_mov_b32 v31, 0x12345678
                buffer_store_dword v31, v30, {srd(S_WS)}, s{T+3} offen sc1
                s_cmp_eq_u32 s{T+4}, 0x12345678
                s_cbranch_scc{1 if c == "cold" else 0} K_END
                """)
            A(f"""
            s_mov_b32 s{T}, s{S_T1}
            v_readlane_b32 s{T+1}, v{V_STAMP}, {16+abs(k)}
            s_sub_u32 s{T+1}, s{T+1}, s{T}
            s_max_i32 s{T+1}, s{T+1}, 0
            {"s_mov_b32 s61, 0" if k < 0 else ""}
            s_mul_i32 s{T+1}, s{T+1}, 10
            s_add_u32 s{T+1}, s{T+1}, 6000
            s_min_u32 s{T+1}, s{T+1}, 100000
K_DSP:
            s_sleep 1
            s_memrealtime s[0:1]
            s_waitcnt lgkmcnt(0)
            s_sub_u32 s{T+2}, s0, s{T}
            s_cmp_lt_u32 s{T+2}, s{T+1}
            s_cbranch_scc1 K_DSP
            """)
        if "--dbg" in sys.argv:
            mk_srd(A, S_B, KDBG, 256)
            sel = opt("--dbgwg", -1)
            if sel >= 0:
                A(f"s_cmp_lg_u32 s2, {sel}")
                A("s_cbranch_scc1 K_END")
            A(f"""
            s_mov_b64 exec, -1
            v_readlane_b32 s{T}, v{V_STAMP}, 16
            s_not_b32 s{T}, s{T}
            v_writelane_b32 v{V_STAMP}, s{T}, 20
            v_subrev_u32 v{V_X0}, 64, v{V_X0}
            s_mov_b32 exec_lo, 0xfffe0000
            s_mov_b32 exec_hi, 0
            buffer_atomic_umax v{V_STAMP}, v{V_X0}, {srd(S_B)}, 0 offen sc1
            """)
    A("""
K_END:
    s_endpgm
    """)
    WQ = 64
    A(f"""
K_SLOW:
    s_setprio 0
    s_waitcnt vmcnt(0)
    s_mov_b32 s{S_MODE}, 1
    s_cmp_ge_u32 s{S_WAVE}, 7
    s_cbranch_scc1 K_SL0
    s_call_b64 {sr(S_RET,2)}, K_AUJ
K_SL0:
    v_mov_b32 v36, 0
    v_mov_b32 v37, 0
    v_mov_b32 v38, 0
    v_mov_b32 v39, 0
    v_lshlrev_b32 v29, 4, v0
    v_add_u32 v29, {L_LIST}, v29
    ds_write_b128 v29, v[36:39]
    ds_write_b128 v29, v[36:39] offset:16384
    ds_write_b128 v29, v[36:39] offset:32768
    ds_write_b128 v29, v[36:39] offset:49152
    v_and_b32 v28, 31, v{V_LANE}
    v_lshlrev_b32 v30, 1, v28
    s_lshl_b32 s{T}, s{S_HALF}, 6
    """)
    mk_srd(A, S_A, KWB, 8192)
    mk_srd(A, S_B, KWV, 8192)
    A(f"s_mov_b32 s{T+1}, s{T}")
    for k2 in range(32):
        A(f"""
        s_mov_b32 exec_hi, 0
        buffer_load_ushort v32, v30, {srd(S_A)}, s{T+1} offen
        buffer_load_ushort v33, v30, {srd(S_A)}, s{T+1} offen offset:128
        s_not_b64 exec, exec
        buffer_load_ushort v32, v30, {srd(S_B)}, s{T+1} offen
        buffer_load_ushort v33, v30, {srd(S_B)}, s{T+1} offen offset:128
        s_mov_b64 exec, -1
        s_add_u32 s{T+1}, s{T+1}, 256
        s_waitcnt vmcnt(0)
        v_lshl_or_b32 v{WQ+k2}, v33, 16, v32
        """)
    mk_srd(A, S_A, KWC, 128)
    A(f"""
    buffer_load_ushort v34, v30, {srd(S_A)}, s{T} offen
    v_lshlrev_b32 v30, 2, v28
    v_lshrrev_b32 v31, 5, v{V_LANE}
    v_xor_b32 v31, 1, v31
    v_lshl_add_u32 v35, v31, 7, v30
    v_add_u32 v35, {L_LIST}, v35
    v_add_u32 v30, {L_AU}, v30
    v_lshlrev_b32 v31, 2, v28
    s_waitcnt vmcnt(0) lgkmcnt(0)
    v_lshlrev_b32 v34, 16, v34
    v_mul_f32 v34, 0x{f2u(-LOG2E):08x}, v34
    """)
    mk_srd(A, S_A, KDST, E*4)
    mk_srd(A, S_B, KSRC, E*4)
    mk_srd(A, S_TAB, KE, E*2)
    XS = 34
    A(f"""
    s_barrier
    v_mov_b32 v36, v0
    s_mov_b32 s{S_T0}, {E}
K_SB:
    v_lshlrev_b32 v37, 2, v36
    v_lshlrev_b32 v38, 1, v36
    buffer_load_dword v39, v37, {srd(S_A)}, 0 offen
    buffer_load_dword v40, v37, {srd(S_B)}, 0 offen
    buffer_load_ushort v41, v38, {srd(S_TAB)}, 0 offen
    v_cmp_gt_u32 {sr(52,2)}, s{S_T0}, v36
    s_waitcnt vmcnt(0)
    v_subrev_u32 v39, s{S_NB}, v39
    v_cmp_gt_u32 vcc, {NPB}, v39
    s_and_b64 {sr(52,2)}, {sr(52,2)}, vcc
K_SE:
    s_cmp_eq_u64 {sr(52,2)}, 0
    s_cbranch_scc1 K_SN
    s_ff1_i32_b64 s34, {sr(52,2)}
    s_bitset0_b64 {sr(52,2)}, s34
    v_readlane_b32 s35, v40, s34
    v_readlane_b32 s{S_T1}, v39, s34
    v_readlane_b32 s{S_PF}, v41, s34
    s_min_u32 s35, s35, {N-1}
    s_lshl_b32 s35, s35, 7
    s_load_dwordx16 s[36:51], {sr(KX,2)}, s35
    s_add_u32 s35, s35, 64
    s_load_dwordx16 s[60:75], {sr(KX,2)}, s35
    s_mul_i32 s34, s{S_T1}, {AUS}
    v_add_u32 v42, s34, v30
    ds_read_b32 v43, v42
    s_lshl_b32 s{S_PF}, s{S_PF}, 16
    s_lshl_b32 s{S_T1}, s{S_T1}, 8
    v_mov_b32 v48, 0
    v_mov_b32 v49, 0
    s_waitcnt lgkmcnt(0)
    """)
    for k2 in range(16):
        A(f"v_dot2_f32_bf16 v48, s{36+k2}, v{WQ+k2}, v48")
        A(f"v_dot2_f32_bf16 v49, s{60+k2}, v{WQ+16+k2}, v49")
    A(f"""
    s_nop 3
    v_add_f32 v48, v48, v49
    v_fma_f32 v43, s{S_PF}, v34, v43
    v_mul_f32 v49, 0x{f2u(-LOG2E):08x}, v48
    v_add_f32 v49, v49, v43
    v_exp_f32 v49, v49
    v_add_f32 v49, s{S_C}, v49
    v_rcp_f32 v49, v49
    s_nop 1
    ds_bpermute_b32 v49, v31, v49
    v_cmp_gt_u32 vcc, 32, v{V_LANE}
    v_cndmask_b32 v48, v48, 1.0, vcc
    v_add_u32 v42, s{S_T1}, v35
    s_waitcnt lgkmcnt(0)
    v_mul_f32 v49, v49, v48
    ds_add_f32 v42, v49
    s_branch K_SE
K_SN:
    v_add_u32 v36, 1024, v36
    v_readfirstlane_b32 s34, v36
    s_cmp_lt_u32 s34, {E}
    s_cbranch_scc1 K_SB
    s_mov_b32 s{S_MSK}, 0xffff0000
    s_movk_i32 s34, {AUS}
    s_waitcnt lgkmcnt(0)
    s_barrier
    v_lshrrev_b32 v{V_LC}, 3, v0
    v_add_u32 v{V_X1}, {L_LIST}, v{V_I0+1}
    """)
    for it in range(2):
        A(f"""
        v_min_u32 v36, 199, v{V_LC}
        v_mad_u32_u24 v37, v36, s34, v{V_AUC}
        ds_read_b128 {vr(V_UX,4)}, v37 offset:128
        v_lshl_add_u32 v39, v36, 8, v{V_X1}
        ds_read_b128 {vr(V_NUM,4)}, v39
        ds_read_b128 {vr(V_DEN,4)}, v39 offset:128
        s_waitcnt lgkmcnt(0)
        v_pk_add_f32 {vr(V_DEN,2)}, {vr(V_DEN,2)}, {sr(S_EPS,2)}
        v_pk_add_f32 {vr(V_DEN+2,2)}, {vr(V_DEN+2,2)}, {sr(S_EPS,2)}
        """)
        finalize(A, V_NUM, V_DEN, V_UX, V_LC)
        A(f"v_add_u32 v{V_LC}, 128, v{V_LC}")
    A("s_endpgm")

HEADER = open(f"cdna_kernels/{NAME}.s.ref").read().split("; Override")[0]

def build(diag=False):
    A = Asm()
    out = HEADER
    out += f"; @launch grid=(256,1,1) block=(1024,1,1) lds={LDS}\n"
    out += '.amdgcn_target "amdgcn-amd-amdhsa--gfx950"\n.text\n'
    out += f".globl {NAME}_kernel\n.p2align 8\n.type {NAME}_kernel,@function\n"
    gen(A, diag)
    out += A.text()
    out += f""".section .rodata,"a"
.p2align 6
.amdhsa_kernel {NAME}_kernel
  .amdhsa_next_free_vgpr 128
  .amdhsa_next_free_sgpr 102
  .amdhsa_accum_offset 128
  .amdhsa_group_segment_fixed_size 0
  .amdhsa_kernarg_size 96
  .amdhsa_user_sgpr_count 2
  .amdhsa_user_sgpr_kernarg_segment_ptr 1
  .amdhsa_system_sgpr_workgroup_id_x 1
  .amdhsa_float_denorm_mode_32 3
.end_amdhsa_kernel
"""
    return out

if __name__ == "__main__":
    diag = "--diag" in sys.argv
    path = sys.argv[1] if len(sys.argv) > 1 and not sys.argv[1].startswith("--") else f"cdna_kernels/{NAME}.s"
    open(path, "w").write(build(diag))
    print("wrote", path, "LDS", LDS)
```

```python
import sys, struct
sys.path.insert(0, "gen")
import hazard
VERBOSE = "--verbose" in sys.argv
def opt(name, default):
    if name in sys.argv: return type(default)(sys.argv[sys.argv.index(name)+1])
    return default

NAME = "standalone__edge_featured_mpnn_gatedgcn__graph"
N, E = 25000, 800000
CH = 3128
NT = CH // 8
NPB = 196
CHP = 3584
WS_REC  = 0
WS_LOC  = 0x380000
WS_OFFS = 0x460000
WS_TF   = 0x4A0000
WS_EP   = 0x4A1000
WS_STAMP = 0x4B0000
WS_TAB  = 0x600000
HS      = 0x320000
PADROW  = 25088
WS_SIZE = WS_TAB + 2*HS
assert 256*CHP*4 <= WS_LOC and WS_LOC + 256*CHP <= WS_OFFS
L_CNT, L_H2, L_LG, L_FLAG, L_ORD, L_BL = 0, 1024, 1280, 1408, 1536, 2560
L_C2, L_C3, L_CX, L_CP, L_CY, L_CE, L_CL = L_FLAG+8, L_FLAG+12, L_FLAG+16, L_FLAG+20, L_FLAG+24, L_FLAG+28, L_FLAG+32
L_CS = L_FLAG+36
L_TAG = L_FLAG+40
L_HF = L_FLAG+64
L_HIST, L_OFF, L_LOC = 3072, 3584, 4096
L_AU   = L_LOC + CHP
AUS    = 272
L_WBV  = L_AU
L_TST  = L_AU + 16384
L_SIDE = L_AU + 200*AUS
L_XST  = L_SIDE
L_WAU  = L_SIDE + 25600
L_LIST = L_SIDE + 33792
L_REC  = L_LIST
LS     = 296
CAP    = 74
LDS    = L_LIST + 200*LS
assert LDS <= 163840 and L_SIDE % 128 == 0, (LDS, L_SIDE)
BLCAP  = 128
SH = 48
LOG2E = 1.4426950408889634
D = opt("--depth", 2)
R = D + 1
U = D * R
SPIN = opt("--spin", 4000)
FORCE_SLOW = "--slow" in sys.argv
PFA = opt("--pfa", 0)
PFAN = opt("--pfan", 1)
ENT = " nt" if "--nt" in sys.argv else ""
XNT = " nt" if "--xnt" in sys.argv else ""
RPF = "--rpf" in sys.argv
RS = opt("--recst", "sc1").replace("+", " ")
WSOFF = opt("--wsoff", 0)
AUF = "--aufirst" in sys.argv
AUL = "--aulate" in sys.argv
PR = [int(x) for x in opt("--pr", "7,4,2").split(",")]
OST = opt("--ost", "").replace("+", " ")
GLD = opt("--gld", "sc1").replace("+", " ")

def f2u(x): return struct.unpack("<I", struct.pack("<f", x))[0]

class Asm:
    def __init__(self): self.l = []
    def __call__(self, s):
        for ln in s.strip("\n").split("\n"):
            t = ln.strip()
            if not t: continue
            self.l.append(t if t.endswith(":") else "    " + t)
    def label(self, n): self.l.append(n + ":")
    def text(self): return "\n".join(hazard.fix(self.l, VERBOSE)) + "\n"

def vr(a, n=1): return f"v{a}" if n == 1 else f"v[{a}:{a+n-1}]"
def sr(a, n=1): return f"s{a}" if n == 1 else f"s[{a}:{a+n-1}]"
def srd(b): return f"s[{b}:{b+3}]"
def mfma(d, a, b, c): return f"v_mfma_f32_32x32x16_bf16 {d}, {a}, {b}, {c}"

def scan(A, v, op="v_add_u32", upto=64):
    for sh in (1, 2, 4, 8):
        A(f"{op}_dpp v{v}, v{v}, v{v} row_shr:{sh} row_mask:0xf bank_mask:0xf")
    if upto >= 32:
        A(f"{op}_dpp v{v}, v{v}, v{v} row_bcast:15 row_mask:0xa bank_mask:0xf")
    if upto >= 64:
        A(f"{op}_dpp v{v}, v{v}, v{v} row_bcast:31 row_mask:0xc bank_mask:0xf")

V_LANE, V_P, V_NB, V_OA = 1, 2, 3, 4
V_AUC, V_OUTC = 5, 6
V_LC = 7
V_NUM, V_DEN = 8, 12
V_EA, V_WC = 16, 20
V_T, V_V, V_M = 24, 32, 40
V_I0, V_I1 = 44, 46
V_S, V_Q = 48, 52
V_UX = 56
V_LN = 60
V_HL = 61
V_X0, V_X1 = 62, 63
V_DAT = 64
V_E = 96
V_HD = 104
V_HUX = 112
V_AN = 116
V_DUMMY = 126
V_STAMP = 127
S_WS, S_TAB, S_OUT, S_X = 4, 8, 12, 16
S_A, S_B = 20, 24
S_C = 28
S_BIN, S_HALF, S_WAVE, S_WP = 30, 31, 32, 33
S_EV, S_EVC, S_FL, S_FF = 34, 36, 38, 40
S_N1, S_GC, S_GF, S_HEAD, S_U, S_TT, S_GS = 42, 43, 44, 45, 46, 47, 48
S_MSK = 49
S_RET, S_RET2 = 50, 52
S_EPS = 54
S_T0, S_T1 = 56, 57
S_PF = 58
S_NB = 59
S_ONE, S_MODE = 100, 101
S_T = 60
S_K = 76
KX, KE, KSRC, KDST, KWA, KWB, KWC, KWU, KWV, KOUT, KDBG, KWS = [S_K + 2*i for i in range(12)]

def stamp(A, idx, on):
    if on:
        A(f"s_memtime s[0:1]")
        A("s_waitcnt lgkmcnt(0)")
        A(f"v_writelane_b32 v{V_STAMP}, s0, {idx}")
        A(f"s_memrealtime s[0:1]")
        A("s_waitcnt lgkmcnt(0)")
        A(f"v_writelane_b32 v{V_STAMP}, s0, {idx+16}")

def mk_srd(A, d, ptr, nbytes):
    A(f"s_mov_b32 s{d}, s{ptr}")
    A(f"s_mov_b32 s{d+1}, s{ptr+1}")
    A(f"s_mov_b32 s{d+2}, {nbytes}")
    A(f"s_mov_b32 s{d+3}, 0x20000")

def ld_rows(d):
    b = V_DAT + 8*d
    return [f"buffer_load_dwordx4 {vr(b,4)}, {vr(V_I0,2)}, {srd(S_TAB)}, 0 idxen offen {GLD}",
            f"buffer_load_dwordx4 {vr(b+4,4)}, {vr(V_I1,2)}, {srd(S_TAB)}, 0 idxen offen {GLD}"]
def rd_rec(off, r):
    return [f"ds_read_u16 v{V_I0}, v{V_P} offset:{off}",
            f"ds_read_u16 v{V_I1}, v{V_P} offset:{off+4}",
            f"ds_read_u16_d16_hi v{V_E+2*r}, v{V_P} offset:{off+2}",
            f"ds_read_u16_d16_hi v{V_E+2*r+1}, v{V_P} offset:{off+6}"]
def c_head(d, r):
    b = V_DAT + 8*d; e = V_E + 2*r
    o = []
    for h in range(2):
        for k in range(2):
            sel = "op_sel_hi:[0,1,1]" if h == 0 else "op_sel:[1,0,0] op_sel_hi:[1,1,1]"
            o.append(f"v_pk_fma_f32 {vr(V_T+4*h+2*k,2)}, {vr(e,2)}, {vr(V_WC+2*k,2)}, {vr(b+4*h+2*k,2)} {sel}")
    for i in range(4): o.append(f"v_lshlrev_b64 {vr(V_V+2*i,2)}, 16, {vr(b+2*i,2)}")
    return o
def c_rest():
    o = []
    T, V, M, S, Q = V_T, V_V, V_M, V_S, V_Q
    for i in range(8): o.append(f"v_exp_f32 v{T+i}, v{T+i}")
    for i in range(4): o.append(f"v_pk_fma_f32 {vr(T+2*i,2)}, {vr(T+2*i,2)}, {vr(V_EA+2*(i%2),2)}, {sr(S_C,2)} clamp")
    for k in range(2): o.append(f"v_pk_mul_f32 {vr(M+2*k,2)}, {vr(T+2*k,2)}, {vr(T+4+2*k,2)}")
    for i in range(4): o.append(f"v_rcp_f32 v{M+i}, v{M+i}")
    for k in range(2): o.append(f"v_pk_add_f32 {vr(S+2*k,2)}, {vr(T+2*k,2)}, {vr(T+4+2*k,2)}")
    for k in range(2): o.append(f"v_pk_mul_f32 {vr(Q+2*k,2)}, {vr(V+2*k,2)}, {vr(T+4+2*k,2)}")
    for k in range(2): o.append(f"v_pk_fma_f32 {vr(Q+2*k,2)}, {vr(V+4+2*k,2)}, {vr(T+2*k,2)}, {vr(Q+2*k,2)}")
    for k in range(2): o.append(f"v_pk_fma_f32 {vr(V_DEN+2*k,2)}, {vr(S+2*k,2)}, {vr(M+2*k,2)}, {vr(V_DEN+2*k,2)}")
    for k in range(2): o.append(f"v_pk_fma_f32 {vr(V_NUM+2*k,2)}, {vr(Q+2*k,2)}, {vr(M+2*k,2)}, {vr(V_NUM+2*k,2)}")
    return o

def finalize(A, num, den, ux, loc):
    T, V = V_T, V_V
    for i in range(4): A(f"v_rcp_f32 v{den+i}, v{den+i}")
    for k in range(2): A(f"v_lshlrev_b64 {vr(T+2*k,2)}, 16, {vr(ux+2*k,2)}")
    A(f"v_lshl_add_u32 v{T+4}, v{loc}, 7, v{V_OUTC}")
    for k in range(2): A(f"v_pk_fma_f32 {vr(T+2*k,2)}, {vr(num+2*k,2)}, {vr(den+2*k,2)}, {vr(T+2*k,2)}")
    for i in range(4): A(f"v_max_f32 v{T+i}, 0, v{T+i}")
    for i in range(4): A(f"v_dot2_f32_bf16 v{T+i}, v{ux+i}, s{S_ONE}, v{T+i}")
    A("s_nop 1")
    A(f"v_cvt_pk_bf16_f32 v{T+6}, v{T}, v{T+1}")
    A(f"v_cvt_pk_bf16_f32 v{T+7}, v{T+2}, v{T+3}")
    A(f"buffer_store_dwordx2 {vr(T+6,2)}, v{T+4}, {srd(S_OUT)}, 0 offen {OST}")

def zero_acc(A, eps=True):
    for k in range(2): A(f"v_mov_b64 {vr(V_NUM+2*k,2)}, 0")
    for k in range(2): A(f"v_mov_b64 {vr(V_DEN+2*k,2)}, {sr(S_EPS,2)}")

def combine(A, tag):
    A(f"s_cmp_lg_u32 s{S_GC}, 0")
    A(f"s_cbranch_scc1 K_CB{tag}")
    for k in range(4): A(f"v_mov_b64 {vr(V_T+2*k,2)}, {vr(V_NUM+2*k,2)}")
    for i in range(8): A(f"v_permlane32_swap_b32 v{V_NUM+i}, v{V_T+i}")
    for k in range(4): A(f"v_pk_add_f32 {vr(V_NUM+2*k,2)}, {vr(V_NUM+2*k,2)}, {vr(V_T+2*k,2)}")
    A.label(f"K_CB{tag}")

def arrive(A, addr, rtn=None):
    A(f"v_mov_b32 v120, {addr}")
    A("v_mov_b32 v121, 1")
    A("s_mov_b64 exec, 1")
    if rtn is None: A("ds_add_u32 v120, v121")
    else:
        A("ds_add_rtn_u32 v122, v120, v121")
        A("s_waitcnt lgkmcnt(0)")
        A(f"v_readfirstlane_b32 s{rtn}, v122")
    A("s_mov_b64 exec, -1")

def spin_lds(A, name, target, slp=0):
    A(f"""
{name}:
    {"s_sleep " + str(slp) if slp else ""}
    ds_read_b32 v122, v120
    s_waitcnt lgkmcnt(0)
    v_readfirstlane_b32 s{S_T}, v122
    s_cmp_lt_u32 s{S_T}, {target}
    s_cbranch_scc1 {name}
    """)

def get_tag(A, name):
    T = S_T
    A(f"""
    v_mov_b32 v120, {L_TAG}
{name}:
    ds_read_b64 v[122:123], v120
    s_waitcnt lgkmcnt(0)
    v_readfirstlane_b32 s{S_T0}, v122
    v_readfirstlane_b32 s{S_T1}, v123
    s_and_b32 s{T}, s{S_T0}, 3
    s_cbranch_scc0 {name}
    s_bfe_u32 s{T}, s{S_T0}, 0x40004
    s_lshl_b32 s{T}, s{T}, 24
    s_add_u32 s{S_WS}, s{KWS}, s{T}
    s_addc_u32 s{S_WS+1}, s{KWS+1}, 0
    s_mul_i32 s{T}, s{S_HALF}, {HS}
    s_add_u32 s{T}, s{T}, {WS_TAB}
    s_add_u32 s{S_TAB}, s{S_WS}, s{T}
    s_addc_u32 s{S_TAB+1}, s{S_WS+1}, 0
    s_or_b32 s{S_TAB+1}, s{S_TAB+1}, {128<<16}
    s_and_b32 s{S_T0}, s{S_T0}, 0xfff00002
    """)

def gen(A, diag):
    T = S_T
    EARLY = "--early" in sys.argv
    st = lambda i: stamp(A, i, diag and not (EARLY and 2 <= i <= 7))
    se = lambda i: stamp(A, i, diag and EARLY)
    A.label(f"{NAME}_kernel")
    A(f"""
    s_cmp_ge_u32 s2, 256
    s_cbranch_scc1 K_END
    s_load_dwordx16 {sr(S_K,16)}, s[0:1], 0
    s_load_dwordx8 {sr(S_K+16,8)}, s[0:1], 64
    s_memrealtime {sr(S_T0,2)}
    s_and_b32 s{S_HALF}, s2, 1
    s_bfe_u32 s{T}, s2, 0x20001
    s_lshr_b32 s{T+1}, s2, 3
    s_lshl_b32 s{S_BIN}, s{T}, 5
    s_add_u32 s{S_BIN}, s{S_BIN}, s{T+1}
    s_mul_i32 s{S_NB}, s{S_BIN}, {NPB}
    v_readfirstlane_b32 s{S_WAVE}, v0
    s_lshr_b32 s{S_WAVE}, s{S_WAVE}, 6
    v_and_b32 v{V_LANE}, 63, v0
    v_and_b32 v26, 7, v{V_LANE}
    v_lshrrev_b32 v27, 4, v{V_LANE}
    v_xor_b32 v27, v26, v27
    v_lshlrev_b32 v27, 4, v27
    v_lshrrev_b32 v28, 3, v{V_LANE}
    v_lshl_add_u32 v24, v28, 7, v27
    v_xor_b32 v25, 64, v24
    v_lshlrev_b32 v29, 4, v{V_LANE}
    s_lshl_b32 s{T+6}, s{S_HALF}, 6
    s_lshl_b32 s{T+7}, s{S_NB}, 7
    s_sub_u32 s{T+9}, s{S_WAVE}, 7
    s_mov_b32 s{T+8}, {WS_EP}
    """)
    if diag: A(f"v_mov_b32 v{V_STAMP}, 0")
    if "--inv" in sys.argv:
        A(f"s_cmp_lg_u32 s{S_WAVE}, 0")
        A("s_cbranch_scc1 K_NINV")
        A("buffer_inv " + opt("--inv", "").replace("+", " "))
        A.label("K_NINV")
    A(f"""
    s_cmp_ge_u32 s{S_WAVE}, 7
    s_cbranch_scc1 K_L1
    s_mul_i32 s{T+2}, s{S_HALF}, 12
    s_lshl_b32 s{T+3}, s{S_WAVE}, 1
    s_add_u32 s{T+2}, s{T+2}, s{T+3}
    s_cmp_eq_u32 s{S_WAVE}, 6
    s_cselect_b32 s{T+2}, 24, s{T+2}
    s_lshl_b32 s{T+2}, s{T+2}, 10
    s_add_u32 m0, s{T+2}, {L_XST}
    s_add_u32 s{T+2}, s{T+2}, s{T+7}
    s_lshl_b32 s{T+3}, s{S_WAVE}, 10
    s_waitcnt lgkmcnt(0)
    s_bfe_u32 s{S_GF}, s{S_T0}, {0x4000a if "--noreg" not in sys.argv else 0}
    """)
    st(0)
    A(f"""
    s_or_b32 s{T+14}, s2, s{S_WAVE}
    s_cmp_lg_u32 s{T+14}, 0
    s_cbranch_scc1 K_NEP
    """)
    mk_srd(A, S_A, KDBG, 256)
    A(f"""
    v_lshlrev_b32 v34, 6, v{V_LANE}
    s_lshl_b32 s{T+14}, s{S_T1}, 20
    s_lshl_b32 s{T+15}, s{S_GF}, 4
    s_or_b32 s{T+14}, s{T+14}, s{T+15}
    s_or_b32 s{T+14}, s{T+14}, 1
    v_mov_b32 v32, s{T+14}
    v_mov_b32 v33, s{S_T0}
    s_mov_b64 exec, 15
    buffer_store_dwordx2 v[32:33], v34, {srd(S_A)}, 0 offen sc1
    s_mov_b64 exec, -1
K_NEP:
    """)
    mk_srd(A, S_X, KX, N*128)
    mk_srd(A, S_A, KWB, 8192)
    mk_srd(A, S_B, KWV, 8192)
    A(f"""
    buffer_load_dwordx4 v24, {srd(S_X)}, s{T+2} offen lds
    s_cmp_eq_u32 s{S_WAVE}, 6
    s_cbranch_scc1 K_L0
    buffer_load_dwordx4 v25, {srd(S_X)}, s{T+2} offen offset:1024 lds
K_L0:
    s_add_u32 m0, s{T+3}, {L_WBV}
    s_nop 0
    buffer_load_dwordx4 v29, {srd(S_A)}, s{T+3} offen lds
    s_add_u32 m0, s{T+3}, {L_WBV+8192}
    s_cmp_eq_u32 s{S_WAVE}, 6
    buffer_load_dwordx4 v29, {srd(S_B)}, s{T+3} offen lds
    s_cbranch_scc0 K_L1
    buffer_load_dwordx4 v29, {srd(S_B)}, s{T+3} offen offset:1024 lds
    s_add_u32 m0, s{T+3}, {L_WBV}
    s_nop 0
    buffer_load_dwordx4 v29, {srd(S_A)}, s{T+3} offen offset:1024 lds
K_L1:
    v_mul_u32_u24 v30, {LS}, v0
    v_add_u32 v30, {L_LIST}, v30
    v_cmp_gt_u32 vcc, 200, v0
    v_mov_b32 v31, 0x40000000
    v_cndmask_b32 v30, v31, v30, vcc
    v_cmp_gt_u32 vcc, 256, v0
    v_subrev_u32 v32, 384, v0
    v_cndmask_b32 v30, 0, v30, vcc
    v_cmp_gt_u32 vcc, 256, v32
    v_mov_b32 v31, {NPB}
    v_cndmask_b32 v30, v30, v31, vcc
    v_lshlrev_b32 v31, 2, v0
    ds_write_b32 v31, v30
    v_subrev_u32 v34, 448, v0
    v_lshlrev_b32 v32, 4, v34
    v_lshlrev_b32 v33, 3, v34
    s_mul_i32 s{T+10}, s2, {CH*4}
    s_add_u32 s{T+11}, s{T+10}, {CH*2}
    s_lshr_b32 s{T+12}, s{T+10}, 1
    s_lshr_b32 s{T+13}, s{T+11}, 1
    s_waitcnt lgkmcnt(0)
    s_bfe_u32 s{S_GF}, s{S_T0}, {0x4000a if "--noreg" not in sys.argv else 0}
    """)
    if diag:
        A(f"s_cmp_lt_u32 s{S_WAVE}, 7")
        A("s_cbranch_scc1 K_D0")
        st(0)
        A.label("K_D0")
    if WSOFF:
        A(f"s_add_u32 s{KWS}, s{KWS}, {WSOFF<<20}")
        A(f"s_addc_u32 s{KWS+1}, s{KWS+1}, 0")
    mk_srd(A, S_A, KDST, E*4)
    mk_srd(A, S_B, KSRC, E*4)
    mk_srd(A, S_WS, KE, E*2)
    mk_srd(A, S_X, KX, N*128)
    mk_srd(A, S_OUT, KWC, 128)
    DS_, SR_, EE_ = 64, 72, 80
    A(f"""
    v_lshlrev_b32 v27, 3, v26
    v_cmp_gt_u32 vcc, {NT}, v34
    v_mov_b32 v36, {PADROW}
    v_mov_b32 v37, {PADROW}
    v_mov_b32 v38, {PADROW}
    v_mov_b32 v39, {PADROW}
    v_lshlrev_b32 v30, 4, v0
    v_add_u32 v30, {L_LIST}, v30
    s_barrier
    buffer_load_dwordx2 {vr(V_WC+2,2)}, v27, {srd(S_OUT)}, s{T+6} offen
    s_cmp_ge_u32 s{T+9}, 7
    s_cbranch_scc1 K_NE0
    s_mov_b64 exec, vcc
    buffer_load_dwordx4 {vr(DS_,4)}, v32, {srd(S_A)}, s{T+10} offen{ENT}
    buffer_load_dwordx4 {vr(DS_+4,4)}, v32, {srd(S_A)}, s{T+11} offen{ENT}
    s_mov_b64 exec, -1
    v_mov_b32 v40, -1
    v_mov_b32 v41, -1
    ds_write_b64 v33, v[40:41] offset:{L_LOC}
K_NE0:
    ds_write_b128 v30, v[36:39] offset:{CHP*4}
    ds_write_b128 v30, v[36:39] offset:{CHP*4+16384}
    s_cbranch_scc1 K_NE
    s_mov_b64 exec, vcc
    buffer_load_dwordx4 {vr(SR_,4)}, v32, {srd(S_B)}, s{T+10} offen{ENT}
    buffer_load_dwordx4 {vr(SR_+4,4)}, v32, {srd(S_B)}, s{T+11} offen{ENT}
    buffer_load_dwordx2 {vr(EE_,2)}, v33, {srd(S_WS)}, s{T+12} offen{ENT}
    buffer_load_dwordx2 {vr(EE_+2,2)}, v33, {srd(S_WS)}, s{T+13} offen{ENT}
    s_mov_b64 exec, -1
K_NE:
    ds_write_b128 v30, v[36:39] offset:{CHP*4+32768}
    """)
    se(2)
    mk_srd(A, S_WS, KWS, WS_SIZE)
    A(f"""
    s_add_u32 s{S_OUT}, s{KOUT}, s{T+7}
    s_addc_u32 s{S_OUT+1}, s{KOUT+1}, 0
    s_sub_u32 s{S_OUT+2}, {N*128}, s{T+7}
    s_min_u32 s{S_OUT+2}, s{S_OUT+2}, {NPB*128}
    s_mov_b32 s{S_OUT+3}, 0x20000
    s_mov_b32 s{S_ONE}, 0x3f800000
    s_mov_b32 s{S_MODE}, 0
    s_mul_i32 s{T+2}, s{S_HALF}, {HS}
    s_add_u32 s{T+2}, s{T+2}, {WS_TAB}
    s_mov_b32 s{S_TAB+2}, {PADROW+1}
    s_mov_b32 s{S_TAB+3}, 0x20000
    s_mul_i32 s{S_PF}, s{T+1}, {784*128}
    s_add_u32 s{S_PF}, s{S_PF}, s{T+2}
    v_add_u32 v{V_OUTC}, s{T+6}, v27
    v_lshlrev_b32 v{V_I0+1}, 4, v26
    v_mov_b32 v{V_I1+1}, v{V_I0+1}
    v_add_u32 v{V_AUC}, {L_AU}, v{V_I0+1}
    v_lshlrev_b32 v{V_OA}, 2, v28
    s_mov_b32 s{S_C}, 0x{f2u(2.0**-SH):08x}
    s_mov_b32 s{S_C+1}, 0x{f2u(2.0**-SH):08x}
    s_mov_b32 s{S_EPS}, 0x{f2u(1e-6*2.0**SH):08x}
    s_mov_b32 s{S_EPS+1}, 0x{f2u(1e-6*2.0**SH):08x}
    s_mov_b32 s{S_MSK}, 0xffff0000
    """)
    arrive(A, L_CE)
    se(3)
    A(f"""
    s_cmp_ge_u32 s{S_WAVE}, 14
    s_cbranch_scc1 K_HELP
    s_cmp_ge_u32 s{S_WAVE}, 7
    s_cbranch_scc1 K_BIN
    ; ---- table job: tile = 3*half + (w>>1), nt = w&1 ; wave 6: tile 6, nt = half
    s_mul_i32 s{T+10}, s{S_HALF}, 3
    s_lshr_b32 s{T+11}, s{S_WAVE}, 1
    s_add_u32 s{T+10}, s{T+10}, s{T+11}
    s_and_b32 s{T+11}, s{S_WAVE}, 1
    s_cmp_eq_u32 s{S_WAVE}, 6
    s_cselect_b32 s{T+10}, 6, s{T+10}
    s_cselect_b32 s{T+11}, s{S_HALF}, s{T+11}
    s_lshl_b32 s{T+12}, s{T+10}, 12
    s_mul_i32 s{T+13}, s{T+11}, {HS}
    s_add_u32 s{T+13}, s{T+13}, s{T+7}
    s_add_u32 s{T+15}, s{T+13}, {WS_TAB}
    s_mov_b32 s{S_B+2}, {NPB*128}
    s_mov_b32 s{S_B+3}, 0x20000
    v_and_b32 v28, 31, v{V_LANE}
    v_lshrrev_b32 v29, 5, v{V_LANE}
    v_bfe_u32 v30, v28, 1, 3
    v_xor_b32 v30, v30, v29
    v_lshlrev_b32 v30, 4, v30
    v_lshl_add_u32 v24, v28, 7, v30
    s_add_u32 s{T+13}, s{T+12}, {L_XST}
    v_add_u32 v30, s{T+13}, v24
    v_bfe_u32 v25, v{V_LANE}, 2, 2
    v_lshl_add_u32 v25, v29, 3, v25
    v_lshlrev_b32 v34, 7, v25
    v_bfe_u32 v35, v{V_LANE}, 4, 1
    v_lshl_add_u32 v34, v35, 5, v34
    v_and_b32 v36, 3, v{V_LANE}
    v_lshl_add_u32 v34, v36, 3, v34
    s_lshl_b32 s{T+13}, s{T+11}, 6
    s_add_u32 s{T+13}, s{T+13}, {L_WBV}
    v_add_u32 v34, s{T+13}, v34
    v_and_b32 v32, 1, v{V_LANE}
    v_xor_b32 v32, 1, v32
    v_lshlrev_b32 v32, 15, v32
    v_lshlrev_b32 v33, 9, v29
    v_lshl_add_u32 v33, v28, 2, v33
    v_add_u32 v33, s{T+12}, v33
    s_mov_b32 s{T+13}, 0x{f2u(-LOG2E):08x}
    s_mov_b32 s{T+14}, 0x07060302
    s_waitcnt vmcnt(1)
    """)
    arrive(A, L_CX)
    spin_lds(A, "K_SPX", 7)
    st(1)
    XB = 84
    Wm1 = [36, 40, 116, 8]
    for u in range(4):
        A(f"v_xor_b32 v31, {32*u}, v30")
        A(f"ds_read_b128 {vr(XB+4*u,4)}, v31")
        for tt in range(2):
            A(f"ds_read_b64_tr_b16 {vr(100+4*u+2*tt,2)}, v34 offset:{(16*u+4*tt)*128}")
        for tt in range(2):
            A(f"ds_read_b64_tr_b16 {vr(Wm1[u]+2*tt,2)}, v34 offset:{8192+(16*u+4*tt)*128}")
    for u in range(4):
        A(f"s_waitcnt lgkmcnt({15-5*u})")
        A(mfma(vr(48,16), vr(XB+4*u,4), vr(100+4*u,4), "0" if u == 0 else vr(48,16)))
        A(mfma(vr(64,16), vr(XB+4*u,4), vr(Wm1[u],4), "0" if u == 0 else vr(64,16)))
    TS = opt("--tabst", "sc1").replace("+", " ")
    A(f"""
    s_lshl_b32 s{T}, s{S_GF}, 24
    s_add_u32 s{T}, s{T}, s{T+15}
    s_add_u32 s{S_B}, s{KWS}, s{T}
    s_addc_u32 s{S_B+1}, s{KWS+1}, 0
    """)
    if "--tabdw" in sys.argv:
        arrive(A, L_CY)
        for r in range(16): A(f"v_mul_f32 v{48+r}, s{T+13}, v{48+r}")
        for r in range(16):
            A(f"v_add_u32 v{64+r}, v32, v{64+r}")
            A(f"v_perm_b32 v{48+r}, v{48+r}, v{64+r}, s{T+14}")
            A(f"buffer_store_dword v{48+r}, v33, {srd(S_B)}, 0 offen offset:{(8*(r>>2)+(r&3))*128} {TS}")
    else:
        A(f"""
        s_lshl_b32 s{T+4}, s{S_WAVE}, 11
        s_add_u32 s{T+4}, s{T+4}, {L_TST}
        v_subrev_u32 v33, s{T+12}, v33
        v_add_u32 v33, s{T+4}, v33
        v_add_u32 v34, 128, v33
        v_lshlrev_b32 v35, 4, v{V_LANE}
        v_add_u32 v36, s{T+4}, v35
        v_add_u32 v35, s{T+12}, v35
        """)
        for hf in range(2):
            for r in range(8*hf, 8*hf+8): A(f"v_mul_f32 v{48+r}, s{T+13}, v{48+r}")
            for r in range(8*hf, 8*hf+8):
                A(f"v_add_u32 v{64+r}, v32, v{64+r}")
                A(f"v_perm_b32 v{48+r}, v{48+r}, v{64+r}, s{T+14}")
            for q in range(2):
                r = 8*hf + 4*q
                A(f"ds_write2st64_b32 v33, v{48+r}, v{50+r} offset0:{4*q} offset1:{4*q+1}")
                A(f"ds_write2st64_b32 v34, v{49+r}, v{51+r} offset0:{4*q} offset1:{4*q+1}")
            A(f"ds_read_b128 {vr(100+8*hf,4)}, v36")
            A(f"ds_read_b128 {vr(104+8*hf,4)}, v36 offset:1024")
            if hf == 1:
                if AUF: arrive(A, L_CY)
                if "--tabhold" in sys.argv:
                    A(f"v_mov_b32 v120, {[0,0,L_C2,L_C3,L_CS,L_CY][opt('--tabhold', 2)]}")
                    spin_lds(A, "K_SPH", opt("--tabn", 7), 1)
                A("s_waitcnt lgkmcnt(6)")
                A(f"buffer_store_dwordx4 v[100:103], v35, {srd(S_B)}, 0 offen {TS}")
                A(f"buffer_store_dwordx4 v[104:107], v35, {srd(S_B)}, 0 offen offset:1024 {TS}")
        A("s_waitcnt lgkmcnt(0)")
        A(f"buffer_store_dwordx4 v[108:111], v35, {srd(S_B)}, 0 offen offset:2048 {TS}")
        A(f"buffer_store_dwordx4 v[112:115], v35, {srd(S_B)}, 0 offen offset:3072 {TS}")
        if not AUF: arrive(A, L_CY)
        st(2)
        get_tag(A, "K_GT0")
        A(f"""
        s_add_u32 s{T}, s{S_WS}, s{T+15}
        s_addc_u32 s{T+1}, s{S_WS+1}, 0
        s_cmp_eq_u32 s{T}, s{S_B}
        s_cbranch_scc1 K_RGOK
        s_mov_b32 s{S_B}, s{T}
        s_mov_b32 s{S_B+1}, s{T+1}
        buffer_store_dwordx4 v[100:103], v35, {srd(S_B)}, 0 offen {TS}
        buffer_store_dwordx4 v[104:107], v35, {srd(S_B)}, 0 offen offset:1024 {TS}
        buffer_store_dwordx4 v[108:111], v35, {srd(S_B)}, 0 offen offset:2048 {TS}
        buffer_store_dwordx4 v[112:115], v35, {srd(S_B)}, 0 offen offset:3072 {TS}
K_RGOK:
        """)
    A(f"""
    s_lshr_b32 s{T+12}, s2, 1
    s_or_b32 s{T+12}, s{T+12}, s{S_WAVE}
    s_cmp_lg_u32 s{T+12}, 0
    s_cbranch_scc1 K_NPAD
    v_lshlrev_b32 v32, 2, v{V_LANE}
    v_mov_b32 v33, 0x7f000000
    s_mul_i32 s{T+4}, s{S_HALF}, {HS}
    s_add_u32 s{T+4}, s{T+4}, {WS_TAB+PADROW*128}
    s_mov_b32 exec_hi, 0
    buffer_store_dword v33, v32, {srd(S_WS)}, s{T+4} offen sc1
    s_mov_b64 exec, -1
K_NPAD:
    """)
    if AUF:
        A(f"s_call_b64 {sr(S_RET,2)}, K_AUJ")
        st(5)
    A("s_waitcnt vmcnt(0)")
    st(3)
    arrive(A, L_CP, rtn=T+3)
    A(f"""
    s_cmp_lg_u32 s{T+3}, 13
    s_cbranch_scc1 K_NPB
    s_bitcmp1_b32 s{S_T0}, 1
    s_cbranch_scc1 K_NPB
    s_call_b64 {sr(S_RET,2)}, K_PUB
    buffer_store_dwordx4 v[40:43], v44, {srd(S_WS)}, s{T+4} offen sc1
K_NPB:
    """)
    if not AUF and not AUL:
        A(f"s_call_b64 {sr(S_RET,2)}, K_AUJ")
        st(5)
    A(f"""
    s_branch K_JOIN
K_AUJ:
    ; ---- A / U job for tile = wave
    v_and_b32 v28, 31, v{V_LANE}
    v_lshrrev_b32 v29, 5, v{V_LANE}
    v_bfe_u32 v30, v28, 1, 3
    v_xor_b32 v30, v30, v29
    v_lshlrev_b32 v30, 4, v30
    v_lshl_add_u32 v30, v28, 7, v30
    s_lshl_b32 s{T+14}, s{S_HALF}, 6
    v_xor_b32 v30, s{T+14}, v30
    s_lshl_b32 s{T+14}, s{S_WAVE}, 12
    s_add_u32 s{T+14}, s{T+14}, {L_XST}
    v_add_u32 v30, s{T+14}, v30
    v_bfe_u32 v25, v{V_LANE}, 2, 2
    v_lshl_add_u32 v25, v29, 3, v25
    v_lshlrev_b32 v34, 6, v25
    v_bfe_u32 v35, v{V_LANE}, 4, 1
    v_lshl_add_u32 v34, v35, 5, v34
    v_and_b32 v36, 1, v{V_LANE}
    v_bfe_u32 v37, v{V_LANE}, 1, 1
    v_lshl_add_u32 v36, v36, 1, v37
    v_lshl_add_u32 v34, v36, 3, v34
    s_lshl_b32 s{T+14}, s{S_HALF}, 11
    v_add_u32 v34, s{T+14}, v34
    v_xor_b32 v35, 2048, v34
    v_add_u32 v34, {L_WAU}, v34
    v_add_u32 v35, {L_WAU}, v35
    v_mov_b32 v120, {L_CY}
    """)
    spin_lds(A, "K_SPY", 8)
    if "--pfay" in sys.argv:
        A(f"""
        s_cmp_ge_u32 s{S_WAVE}, {PFA}
        s_cbranch_scc1 K_NPFA
        v_lshlrev_b32 v31, 7, v0
        buffer_load_ubyte v{V_DUMMY}, v31, {srd(S_WS)}, s{S_PF} offen {GLD}
K_NPFA:
        """)
    st(4)
    XA = 80
    Wu = [8, 12, 16, 40]
    for u in range(4):
        A(f"v_xor_b32 v31, {32*u}, v30")
        A(f"ds_read_b128 {vr(XA+4*u,4)}, v31")
        av = 34 if u < 2 else 35
        for tt in range(2):
            A(f"ds_read_b64_tr_b16 {vr(104+4*u+2*tt,2)}, v{av} offset:{((u&1)*16+4*tt)*64}")
        for tt in range(2):
            A(f"ds_read_b64_tr_b16 {vr(Wu[u]+2*tt,2)}, v{av} offset:{4096+((u&1)*16+4*tt)*64}")
    A(f"""
    s_lshl_b32 s{T+14}, s{S_WAVE}, 5
    v_add_u32 v28, s{T+14}, v28
    v_mul_u32_u24 v24, {AUS}, v28
    v_lshl_add_u32 v24, v29, 5, v24
    v_add_u32 v24, {L_AU}, v24
    """)
    for u in range(4):
        A(f"s_waitcnt lgkmcnt({15-5*u})")
        A(mfma(vr(48,16), vr(104+4*u,4), vr(XA+4*u,4), "0" if u == 0 else vr(48,16)))
    for u in range(4):
        A(mfma(vr(104,16), vr(Wu[u],4), vr(XA+4*u,4), "0" if u == 0 else vr(104,16)))
    A(f"""
    s_mov_b32 s{T+15}, 0x{f2u(-LOG2E):08x}
    v_mov_b32 v31, 0x{f2u(-float(SH)):08x}
    """)
    A(f"v_max3_f32 v32, |v48|, |v49|, |v50|")
    for i in range(3, 15, 2): A(f"v_max3_f32 v32, |v{48+i}|, |v{48+i+1}|, v32")
    A(f"v_max_f32 v32, |v63|, v32")
    for i in range(16): A(f"v_fma_f32 v{48+i}, v{48+i}, s{T+15}, v31")
    A(f"s_cmp_lg_u32 s{S_MODE}, 0")
    A("s_cbranch_scc1 K_AU1")
    for i in range(16): A(f"v_exp_f32 v{48+i}, v{48+i}")
    A.label("K_AU1")
    A(f"""
    s_mov_b32 s{T+14}, 0x05040302
    s_mov_b32 s{T+15}, 0x07060302
    v_mov_b32 v33, {L_FLAG}
    v_cmpx_gt_u32 vcc, 200, v28
    ds_write_b128 v24, v[48:51]
    ds_write_b128 v24, v[52:55] offset:16
    ds_write_b128 v24, v[56:59] offset:64
    ds_write_b128 v24, v[60:63] offset:80
    """)
    for i in range(8):
        A(f"v_add_u32 v{104+2*i}, 0x8000, v{104+2*i}")
        A(f"v_perm_b32 v{104+2*i}, v{XA+i}, v{104+2*i}, s{T+14}")
        A(f"v_perm_b32 v{105+2*i}, v{XA+i}, v{105+2*i}, s{T+15}")
    A(f"""
    ds_write_b128 v24, v[104:107] offset:128
    ds_write_b128 v24, v[108:111] offset:144
    ds_write_b128 v24, v[112:115] offset:192
    ds_write_b128 v24, v[116:119] offset:208
    v_cmpx_gt_u32 vcc, {NPB}, v28
    v_cmpx_nge_f32 vcc, 0x{f2u(49.0):08x}, v32
    ds_write_b32 v33, v33
    s_mov_b64 exec, -1
    """)
    A(f"s_setpc_b64 {sr(S_RET,2)}")
    BN, RK, TM = 48, 56, 84
    A(f"""
K_BIN:
    v_mov_b32 v31, v34
    s_mul_i32 s{T+10}, s2, {CH//4}
    v_add_u32 v32, s{T+10}, v31
    v_cmp_gt_u32 vcc, {NT}, v31
    s_mov_b32 s{T+11}, {E//4}
    v_cmp_gt_u32 {sr(T+4,2)}, s{T+11}, v32
    s_mov_b32 s{T+11}, {E//4 - NT}
    v_cmp_gt_u32 {sr(T+6,2)}, s{T+11}, v32
    s_and_b64 {sr(T+4,2)}, {sr(T+4,2)}, vcc
    s_and_b64 {sr(T+6,2)}, {sr(T+6,2)}, vcc
    s_mov_b32 s{T+8}, 42800
    s_movk_i32 s{T+9}, {NPB}
    v_mov_b32 v33, 1
    s_setprio 3
    """)
    for hlf in range(2):
        A(f"s_mov_b64 exec, {sr(T+4+2*hlf,2)}")
        A(f"s_waitcnt vmcnt({5-hlf})")
        ks = range(4*hlf, 4*hlf+4)
        for k in ks: A(f"v_mul_u32_u24 v{BN+k}, s{T+8}, v{DS_+k}")
        for k in ks: A(f"v_lshrrev_b32 v{BN+k}, 23, v{BN+k}")
        for k in ks:
            A(f"v_mul_u32_u24 v{TM+k}, s{T+9}, v{BN+k}")
            A(f"v_lshlrev_b32 v{BN+k}, 2, v{BN+k}")
            A(f"ds_add_rtn_u32 v{RK+k}, v{BN+k}, v33 offset:{L_HIST}")
        for k in ks: A(f"v_sub_u32 v{DS_+k}, v{DS_+k}, v{TM+k}")
    A("s_mov_b64 exec, -1")
    A(f"v_lshlrev_b32 v34, 3, v{V_LANE}")
    arrive(A, L_C2)
    st(3)
    spin_lds(A, "K_SP2", 7)
    st(4)
    A(f"""
    ds_read_b64 v[36:37], v34 offset:{L_HIST}
    s_waitcnt lgkmcnt(0)
    v_add_u32 v36, 3, v36
    v_add_u32 v37, 3, v37
    v_and_b32 v36, -4, v36
    v_and_b32 v37, -4, v37
    v_add_u32 v38, v36, v37
    v_mov_b32 v39, v38
    """)
    scan(A, 39)
    A(f"""
    v_sub_u32 v38, v39, v38
    v_add_u32 v39, v38, v36
    ds_write_b64 v34, v[38:39] offset:{L_OFF}
    """)
    if opt("--cspos", 2) == 0: arrive(A, L_CS)
    for hlf in range(2):
        A(f"s_mov_b64 exec, {sr(T+4+2*hlf,2)}")
        for k in range(4*hlf, 4*hlf+4):
            A(f"ds_read_b32 v{TM+k}, v{BN+k} offset:{L_OFF}")
    A(f"""
    s_mov_b64 exec, -1
    v_mov_b32 v35, {L_REC}
    s_mov_b32 s{T+8}, 0x05040100
    s_mov_b32 s{T+9}, 0x07060100
    s_waitcnt lgkmcnt(0)
    """)
    if opt("--cspos", 2) == 1: arrive(A, L_CS)
    for hlf in range(2):
        A(f"s_mov_b64 exec, {sr(T+4+2*hlf,2)}")
        for k in range(4*hlf, 4*hlf+4):
            A(f"v_add_u32 v{TM+k}, v{TM+k}, v{RK+k}")
            A(f"v_lshl_add_u32 v{RK+k}, v{TM+k}, 2, v35")
            A(f"ds_write_b8 v{TM+k}, v{DS_+k} offset:{L_LOC}")
    A("s_mov_b64 exec, -1")
    st(5)
    for hlf in range(2):
        A(f"s_waitcnt vmcnt({1-hlf})")
        if hlf == 0 and opt('--tabhold', 2) == 4 and opt('--cspos', 2) == 2: arrive(A, L_CS)
        A(f"s_mov_b64 exec, {sr(T+4+2*hlf,2)}")
        for k in range(4*hlf, 4*hlf+4):
            A(f"v_perm_b32 v{SR_+k}, v{EE_+k//2}, v{SR_+k}, s{T+8+(k&1)}")
            A(f"ds_write_b32 v{RK+k}, v{SR_+k}")
    A(f"""
    s_mov_b64 exec, -1
    v_lshlrev_b32 v32, 4, v31
    v_add_u32 v33, {L_REC}, v32
    s_mul_i32 s{T+10}, s2, {CHP*4}
    s_add_u32 s{T+11}, s{T+10}, {448*16}
    s_mul_i32 s{T+12}, s2, {CHP}
    s_add_u32 s{T+12}, s{T+12}, {WS_LOC}
    """)
    arrive(A, L_C3)
    A(f"""
    s_lshl_b32 s{T}, s{S_GF}, 24
    s_add_u32 s{S_WS}, s{KWS}, s{T}
    s_addc_u32 s{S_WS+1}, s{KWS+1}, 0
    """)
    spin_lds(A, "K_SP3", 7)
    st(6)
    A(f"""
    ds_read_b128 v[64:67], v33
    ds_read_b128 v[68:71], v33 offset:{448*16}
    ds_read_b128 v[72:75], v32 offset:{L_LOC}
K_CO:
    v_cmp_gt_u32 vcc, {CHP//16}, v31
    s_waitcnt lgkmcnt(2)
    buffer_store_dwordx4 v[64:67], v32, {srd(S_WS)}, s{T+10} offen {RS}
    s_waitcnt lgkmcnt(1)
    buffer_store_dwordx4 v[68:71], v32, {srd(S_WS)}, s{T+11} offen {RS}
    s_waitcnt lgkmcnt(0)
    s_and_saveexec_b64 {sr(T+4,2)}, vcc
    s_cbranch_execz K_NLOC
    buffer_store_dwordx4 v[72:75], v32, {srd(S_WS)}, s{T+12} offen {RS}
K_NLOC:
    s_mov_b64 exec, -1
    s_mov_b32 s{T+14}, s{S_WS}
    """)
    get_tag(A, "K_GT1")
    A(f"""
    s_cmp_lg_u32 s{T+14}, s{S_WS}
    s_cbranch_scc1 K_CO
    v_mov_b32 v76, {PADROW}
    v_mov_b32 v77, {PADROW}
    v_mov_b32 v78, {PADROW}
    v_mov_b32 v79, {PADROW}
    ds_write_b128 v33, v[76:79]
    ds_write_b128 v33, v[76:79] offset:{448*16}
    s_call_b64 {sr(S_RET,2)}, K_PUB
    s_waitcnt vmcnt(0)
    """)
    st(7)
    arrive(A, L_CP, rtn=T+3)
    A(f"""
    s_branch K_PUBQ
K_HELP:
    s_cmp_lg_u32 s{S_WAVE}, 15
    s_cbranch_scc1 K_NTG
    """)
    for k in range(4):
        A(f"""
        s_load_dwordx2 {sr(S_T0,2)}, {sr(KDBG,2)}, {64*k}
        s_waitcnt lgkmcnt(0)
        s_bitcmp1_b32 s{S_T0}, 0
        s_cbranch_scc1 K_TG2
        s_sleep {opt("--tsleep", 4)}
        """)
    mk_srd(A, S_B, KDBG, 256)
    A(f"""
    v_mov_b32 v34, 0
    s_mov_b32 s{T+13}, {SPIN}
K_TG:
    buffer_load_dwordx2 v[32:33], v34, {srd(S_B)}, 0 offen sc1
    s_waitcnt vmcnt(0)
    v_readfirstlane_b32 s{S_T0}, v32
    v_readfirstlane_b32 s{S_T1}, v33
    s_bitcmp1_b32 s{S_T0}, 0
    s_cbranch_scc1 K_TG2
    s_sleep 2
    s_sub_u32 s{T+13}, s{T+13}, 1
    s_cmp_lg_u32 s{T+13}, 0
    s_cbranch_scc1 K_TG
    s_mov_b32 s{S_T0}, 2
K_TG2:
    v_mov_b32 v32, s{S_T0}
    v_mov_b32 v33, s{S_T1}
    v_mov_b32 v35, {L_TAG}
    ds_write_b64 v35, v[32:33]
    """)
    st(1)
    get_tag(A, "K_GT3")
    A(f"""
    s_waitcnt vmcnt(0)
    s_branch K_JOIN
K_NTG:
    s_xor_b32 s{T+3}, s{S_HALF}, 1
    s_mul_i32 s{T+3}, s{T+3}, 12288
    s_add_u32 m0, s{T+3}, {L_XST}
    s_add_u32 s{T+3}, s{T+3}, s{T+7}
    v_lshrrev_b32 v30, 2, v{V_LANE}
    v_lshlrev_b32 v30, 7, v30
    v_and_b32 v31, 3, v{V_LANE}
    v_lshl_add_u32 v30, v31, 4, v30
    """)
    mk_srd(A, S_A, KWA, 8192)
    mk_srd(A, S_B, KWU, 8192)
    XL = opt("--xlate", 0)
    if XL == 0: spin_lds(A, "K_SPE", 16)
    else:
        A(f"v_mov_b32 v120, {[0, L_C2, L_C3, L_CP, L_CS][XL]}")
        spin_lds(A, "K_SPE", [0, 7, 7, opt("--cpn", 14), 7][XL], 1)
    if AUL:
        get_tag(A, "K_GT2")
        A("s_waitcnt vmcnt(0)")
    for g in range(3):
        A(f"""
        buffer_load_dwordx4 v24, {srd(S_X)}, s{T+3} offen lds
        buffer_load_dwordx4 v25, {srd(S_X)}, s{T+3} offen offset:1024 lds
        buffer_load_dwordx4 v24, {srd(S_X)}, s{T+3} offen offset:2048 lds
        buffer_load_dwordx4 v25, {srd(S_X)}, s{T+3} offen offset:3072 lds
        s_add_u32 m0, m0, 4096
        s_add_u32 s{T+3}, s{T+3}, 4096
        """)
    for m_, sd in enumerate((S_A, S_B)):
        A(f"s_mov_b32 m0, {L_WAU + 4096*m_}")
        A(f"s_mov_b32 s{T+4}, s{T+6}")
        for i4 in range(4):
            A(f"buffer_load_dwordx4 v30, {srd(sd)}, s{T+4} offen offset:{1024*i4} lds")
            A(f"s_add_u32 s{T+4}, s{T+4}, 1024")
    if not AUL:
        A("s_waitcnt vmcnt(0)")
        st(2)
        arrive(A, L_CY)
        get_tag(A, "K_GT2")
    A(f"""
    s_branch K_JOIN
K_PUB:
    v_lshlrev_b32 v122, 3, v{V_LANE}
    ds_read_b64 v[36:37], v122 offset:{L_HIST}
    ds_read_b64 v[38:39], v122 offset:{L_OFF}
    s_lshl_b32 s{T+4}, s2, 10
    s_add_u32 s{T+4}, s{T+4}, {WS_OFFS}
    v_lshlrev_b32 v44, 4, v{V_LANE}
    v_mov_b32 v41, s{S_T1}
    v_mov_b32 v43, s{S_T1}
    s_waitcnt lgkmcnt(0)
    v_add_u32 v36, 3, v36
    v_add_u32 v37, 3, v37
    v_lshrrev_b32 v36, 2, v36
    v_lshrrev_b32 v37, 2, v37
    v_lshrrev_b32 v38, 2, v38
    v_lshrrev_b32 v39, 2, v39
    v_lshl_or_b32 v40, v36, 10, v38
    v_lshl_or_b32 v42, v37, 10, v39
    v_or_b32 v40, s{S_T0}, v40
    v_or_b32 v42, s{S_T0}, v42
    s_setpc_b64 {sr(S_RET,2)}
K_PUBQ:
    s_cmp_lg_u32 s{T+3}, 13
    s_cbranch_scc1 K_JOIN
    s_bitcmp1_b32 s{S_T0}, 1
    s_cbranch_scc1 K_JOIN
    buffer_store_dwordx4 v[40:43], v44, {srd(S_WS)}, s{T+4} offen sc1
K_JOIN:
    s_setprio 0
    """)
    if "--cmap" in sys.argv:
        A(f"""
        s_and_b32 s{T+5}, s{S_WAVE}, 7
        s_lshr_b32 s{T+2}, s{S_WAVE}, 3
        s_lshl_b32 s{T+2}, s{T+2}, 6
        s_add_u32 s{T+5}, s{T+5}, s{T+2}
        v_and_b32 v28, 56, v{V_LANE}
        v_add_u32 v28, s{T+5}, v28
        """)
    else:
        A("v_lshrrev_b32 v28, 3, v0")
    A(f"""
    v_lshlrev_b32 v24, 10, v28
    v_and_b32 v26, 7, v{V_LANE}
    v_mul_u32_u24 v28, {CHP//4}, v28
    v_add_u32 v28, v28, v26
    s_lshl_b32 s{T+5}, s{S_BIN}, 3
    s_add_u32 s{T+5}, s{T+5}, {WS_OFFS}
    s_add_u32 s{T+14}, s{T+5}, {128*1024}
    s_mov_b32 s{T+2}, {128*CHP*4}
    s_mov_b32 s{T+3}, {WS_LOC}
    s_mov_b32 s{T+4}, {WS_LOC+128*CHP}
    v_mov_b32 v31, 0x04000000
    v_mov_b32 v38, 4
    v_mov_b32 v39, 2
    v_add_u32 v25, 8, v26
    v_min_u32 v30, 783, v0
    v_lshlrev_b32 v30, 7, v30
    s_mov_b32 s{T+12}, 0xfff00000
    s_mov_b32 s{T+13}, {SPIN}
    v_lshlrev_b32 v{V_WC}, 16, v{V_WC+2}
    v_and_b32 v{V_WC+1}, s{S_MSK}, v{V_WC+2}
    v_lshlrev_b32 v{V_WC+2}, 16, v{V_WC+3}
    v_and_b32 v{V_WC+3}, s{S_MSK}, v{V_WC+3}
    s_mov_b32 s{T}, 0x{f2u(-LOG2E):08x}
    v_mul_f32 v{V_WC}, s{T}, v{V_WC}
    v_mul_f32 v{V_WC+1}, s{T}, v{V_WC+1}
    v_mul_f32 v{V_WC+2}, s{T}, v{V_WC+2}
    v_mul_f32 v{V_WC+3}, s{T}, v{V_WC+3}
    """)
    def pfa():
        if PFA and "--pfay" not in sys.argv:
            A(f"""
            s_cmp_ge_u32 s{S_WAVE}, {PFA}
            s_cbranch_scc1 K_NPFA
            buffer_load_ubyte v{V_DUMMY}, v30, {srd(S_WS)}, s{S_PF} offen {GLD}
K_NPFA:
            """)
    if "--pfapre" in sys.argv: pfa()
    A("s_waitcnt lgkmcnt(0)")
    A("s_barrier")
    if "--pfapre" not in sys.argv: pfa()
    if opt("--pdelay", 0): A(f"s_sleep {opt('--pdelay', 0)}")
    st(8)
    A(f"""
    s_bitcmp1_b32 s{S_T0}, 1
    s_cselect_b32 s{T+13}, 1, s{T+13}
K_POLL:
    buffer_load_dwordx2 v[32:33], v24, {srd(S_WS)}, s{T+5} offen sc1
    buffer_load_dwordx2 v[34:35], v24, {srd(S_WS)}, s{T+14} offen sc1
    """)
    if AUL:
        A(f"""
        s_cmp_lg_u32 s{S_WAVE}, 14
        s_cbranch_scc1 K_NCY
        s_waitcnt vmcnt(2)
        """)
        arrive(A, L_CY)
        A.label("K_NCY")
    A(f"""
    s_waitcnt vmcnt(0)
    v_and_b32 v36, s{T+12}, v32
    v_and_b32 v37, s{T+12}, v34
    v_cmp_eq_u32 vcc, s{S_T1}, v33
    v_cmp_eq_u32 {sr(T+6,2)}, s{S_T1}, v35
    v_cmp_eq_u32 {sr(T+8,2)}, s{S_T0}, v36
    v_cmp_eq_u32 {sr(T+10,2)}, s{S_T0}, v37
    s_and_b64 vcc, vcc, {sr(T+6,2)}
    s_and_b64 {sr(T+8,2)}, {sr(T+8,2)}, {sr(T+10,2)}
    s_and_b64 vcc, vcc, {sr(T+8,2)}
    s_cmp_eq_u64 vcc, -1
    s_cbranch_scc1 K_GOT
    s_sleep {opt("--psleep", 2)}
    s_sub_u32 s{T+13}, s{T+13}, 1
    s_cmp_lg_u32 s{T+13}, 0
    s_cbranch_scc1 K_POLL
    v_mov_b32 v37, {L_FLAG}
    ds_write_b32 v37, v38
    v_mov_b32 v32, 0
    v_mov_b32 v34, 0
K_GOT:
    """)
    st(9)
    A(f"""
    v_bfe_u32 v40, v32, 10, 10
    v_bfe_u32 v41, v34, 10, 10
    v_and_b32 v32, 0x3ff, v32
    v_and_b32 v33, 0x3ff, v34
    v_cmp_lt_u32 {sr(T+6,2)}, v26, v40
    v_cmp_lt_u32 {sr(T+8,2)}, v26, v41
    v_add_u32 v32, v32, v28
    v_add_u32 v33, v33, v28
    v_cndmask_b32 v42, v31, v32, {sr(T+6,2)}
    v_cndmask_b32 v43, v31, v33, {sr(T+8,2)}
    v_lshlrev_b32 v36, 2, v42
    v_lshlrev_b32 v37, 2, v43
    v_lshlrev_b32 v42, 4, v42
    v_lshlrev_b32 v43, 4, v43
    buffer_load_dword v72, v36, {srd(S_WS)}, s{T+3} offen sc1
    buffer_load_dword v73, v37, {srd(S_WS)}, s{T+4} offen sc1
    buffer_load_dwordx4 v[64:67], v42, {srd(S_WS)}, 0 offen sc1
    buffer_load_dwordx4 v[68:71], v43, {srd(S_WS)}, s{T+2} offen sc1
    v_cmp_lt_u32 {sr(T+10,2)}, v25, v40
    v_cmp_lt_u32 {sr(T+12,2)}, v25, v41
    s_mov_b64 exec, {sr(T+10,2)}
    s_cbranch_execz K_OV0
    buffer_load_dword v74, v36, {srd(S_WS)}, s{T+3} offen offset:32 sc1
    buffer_load_dwordx4 v[76:79], v42, {srd(S_WS)}, 0 offen offset:128 sc1
K_OV0:
    s_mov_b64 exec, {sr(T+12,2)}
    s_cbranch_execz K_OV1
    buffer_load_dword v75, v37, {srd(S_WS)}, s{T+4} offen offset:32 sc1
    buffer_load_dwordx4 v[96:99], v43, {srd(S_WS)}, s{T+2} offen offset:128 sc1
K_OV1:
    s_mov_b64 exec, -1
    v_max_u32 v36, v40, v41
    v_mov_b32 v37, {L_FLAG}
    v_cmpx_lt_u32 vcc, {16 if not FORCE_SLOW else 0}, v36
    ds_write_b32 v37, v38
    s_mov_b64 exec, -1
    """)
    PFB = opt("--pfb", 1)
    def pfb():
        A(f"""
        s_cmp_lt_u32 s{S_WAVE}, {PFA}
        s_cbranch_scc1 K_NPFB
        s_cmp_ge_u32 s{S_WAVE}, {opt("--pfbn", 13)}
        s_cbranch_scc1 K_NPFB
        buffer_load_ubyte v{V_DUMMY}, v30, {srd(S_WS)}, s{S_PF} offen {GLD}
        """)
    def ins_atom(locw, a0):
        for k in range(4):
            A(f"v_lshlrev_b32_sdwa v{a0+k}, v39, v{locw} dst_sel:DWORD dst_unused:UNUSED_PAD src0_sel:DWORD src1_sel:BYTE_{k}")
            A(f"ds_add_rtn_u32 v{a0+k}, v{a0+k}, v38")
    def ins_write(a0, rec):
        for k in range(4):
            A(f"ds_write_b32 v{a0+k}, v{rec+k}")
    if PFB >= 1: arrive(A, L_CL)
    if AUL:
        A(f"""
        s_cmp_ge_u32 s{S_WAVE}, 7
        s_cbranch_scc1 K_NAU
        s_call_b64 {sr(S_RET,2)}, K_AUJ
        v_min_u32 v30, 783, v0
        v_lshlrev_b32 v30, 7, v30
        v_mov_b32 v120, {L_CL}
        """)
        st(5)
        A.label("K_NAU")
    if PFB == 1: spin_lds(A, "K_SPM", 16)
    if PFB <= 1:
        pfb()
        A("""
        s_waitcnt vmcnt(1)
        s_branch K_INB
K_NPFB:
        s_waitcnt vmcnt(0)
K_INB:
        """)
    else:
        A("s_waitcnt vmcnt(0)")
    st(10)
    A(f"s_mov_b64 exec, {sr(T+6,2)}")
    ins_atom(72, 80)
    A(f"s_mov_b64 exec, {sr(T+8,2)}")
    ins_atom(73, 84)
    A(f"s_mov_b64 exec, {sr(T+10,2)}")
    A("s_cbranch_execz K_IA0")
    ins_atom(74, 88)
    A.label("K_IA0")
    A(f"s_mov_b64 exec, {sr(T+12,2)}")
    A("s_cbranch_execz K_IA1")
    ins_atom(75, 92)
    A("s_waitcnt lgkmcnt(0)")
    ins_write(92, 96)
    A.label("K_IA1")
    A(f"s_mov_b64 exec, {sr(T+8,2)}")
    A("s_waitcnt lgkmcnt(0)")
    ins_write(84, 68)
    A(f"s_mov_b64 exec, {sr(T+6,2)}")
    ins_write(80, 64)
    A(f"s_mov_b64 exec, {sr(T+10,2)}")
    A("s_cbranch_execz K_IW0")
    ins_write(88, 76)
    A.label("K_IW0")
    A("s_mov_b64 exec, -1")
    if PFB == 2:
        spin_lds(A, "K_SPM", 16)
        pfb()
        A.label("K_NPFB")
    A(f"""
K_IND:
    s_barrier
    """)
    st(11)
    A(f"""
    s_cmp_ge_u32 s{S_WAVE}, 4
    s_cbranch_scc1 K_S1
    s_setprio 3
    v_lshlrev_b32 v28, 2, v0
    ds_read_b32 v29, v28
    v_mul_u32_u24 v30, {LS}, v0
    v_add_u32 v30, {L_LIST-4}, v30
    v_cmp_gt_u32 vcc, {NPB}, v0
    s_mov_b64 {sr(T+6,2)}, vcc
    v_mov_b32 v37, {L_FLAG}
    v_mov_b32 v36, 1
    s_waitcnt lgkmcnt(0)
    v_sub_u32 v29, v29, v30
    v_lshrrev_b32 v29, 3, v29
    v_med3_u32 v31, v29, 1, 63
    v_lshlrev_b32 v32, 2, v31
    v_sub_u32 v32, 252, v32
    s_mov_b64 exec, {sr(T+6,2)}
    ds_add_rtn_u32 v33, v32, v36 offset:{L_H2}
    v_cmpx_lt_u32 vcc, {CAP//2-1}, v29
    ds_write_b32 v37, v38
    s_mov_b64 exec, -1
    v_lshlrev_b32 v34, 2, v{V_LANE}
    s_waitcnt lgkmcnt(0)
K_S1:
    s_barrier
    s_cmp_ge_u32 s{S_WAVE}, 4
    s_cbranch_scc1 K_S2
    ds_read_b32 v35, v34 offset:{L_H2}
    s_waitcnt lgkmcnt(0)
    v_mov_b32 v36, v35
    """)
    scan(A, 36)
    A(f"""
    v_sub_u32 v36, v36, v35
    ds_bpermute_b32 v36, v32, v36
    s_waitcnt lgkmcnt(0)
    v_add_u32 v33, v33, v36
    v_lshlrev_b32 v36, 2, v33
    v_and_b32 v35, 7, v33
    v_lshrrev_b32 v30, 1, v33
    v_add_u32 v29, 1, v31
    v_lshrrev_b32 v29, 1, v29
    s_mov_b64 exec, {sr(T+6,2)}
    ds_write_b32 v36, v0 offset:{L_ORD+16}
    v_cmpx_eq_u32 vcc, 4, v35
    ds_write_b32 v30, v31 offset:{L_LG+2}
    s_mov_b64 exec, {sr(T+6,2)}
    v_cmpx_gt_u32 vcc, 4, v33
    ds_write_b32 v36, v0 offset:{L_ORD}
    v_cmpx_eq_u32 vcc, 0, v33
    ds_write_b32 v36, v29 offset:{L_LG}
    s_mov_b64 exec, -1
K_S2:
    """)
    for i in range(2*R): A(f"v_mov_b32 v{V_E+i}, 0")
    A(f"""
    v_and_b32 v34, 31, v{V_LANE}
    v_lshlrev_b32 v34, 2, v34
    v_mov_b32 v37, {L_FLAG}
    s_and_b32 s{S_WP}, s{S_WAVE}, 3
    s_lshl_b32 s{S_WP}, s{S_WP}, 2
    s_lshr_b32 s{T}, s{S_WAVE}, 2
    s_add_u32 s{S_WP}, s{S_WP}, s{T}
    s_waitcnt lgkmcnt(0)
    s_barrier
    """)
    st(12)
    A(f"""
    s_setprio 3
    ds_read_b32 v35, v34 offset:{L_LG}
    ds_read_b32 v38, v37
    s_waitcnt lgkmcnt(0)
    v_mov_b32 v36, v35
    v_readfirstlane_b32 s{T}, v38
    s_cmp_lg_u32 s{T}, 0
    s_cbranch_scc1 K_SLOW
    """)
    scan(A, 36, upto=32)
    A(f"""
    v_readlane_b32 s{S_TT}, v36, 31
    v_readlane_b32 s{T+6}, v36, 0
    s_mul_i32 s{T+1}, s{S_WP}, s{S_TT}
    s_add_u32 s{T+2}, s{T+1}, s{S_TT}
    s_lshr_b32 s{T+1}, s{T+1}, 4
    s_lshr_b32 s{T+2}, s{T+2}, 4
    s_sub_u32 s{S_N1}, s{T+2}, s{T+1}
    s_sub_u32 s{S_N1}, s{S_N1}, 1
    s_min_u32 s{S_N1}, s{S_N1}, 58
    v_cmp_ge_u32 vcc, s{T+1}, v36
    s_bcnt1_i32_b32 s{S_GC}, vcc_lo
    s_lshl_b32 s{T+3}, s{S_GC}, 5
    v_add_u32 v{V_OA}, s{T+3}, v{V_OA}
    ds_read_b32 v{V_LC}, v{V_OA} offset:{L_ORD}
    ds_read_b32 v{V_LN}, v{V_OA} offset:{L_ORD+32}
    v_sub_u32 v35, v36, v35
    v_readlane_b32 s{S_GS}, v35, s{S_GC}
    s_mov_b32 s{S_GF}, s{S_GC}
    v_subrev_u32 v36, s{T+1}, v36
    v_subrev_u32 v36, 1, v36
    v_cmp_gt_u32 vcc, 64, v36
    v_mov_b32 v40, 1
    v_mov_b32 v41, 0
    v_lshlrev_b64 v[40:41], v36, v[40:41]
    v_cndmask_b32 v40, 0, v40, vcc
    v_cndmask_b32 v41, 0, v41, vcc
    """)
    for sh in (1, 2, 4, 8):
        for v in (40, 41):
            A(f"v_or_b32_dpp v{v}, v{v}, v{v} row_shr:{sh} row_mask:0xf bank_mask:0xf")
    for v in (40, 41):
        A(f"v_or_b32_dpp v{v}, v{v}, v{v} row_bcast:15 row_mask:0xa bank_mask:0xf")
    A(f"""
    v_readlane_b32 s{S_FL}, v40, 31
    v_readlane_b32 s{S_FL+1}, v41, 31
    s_sub_u32 s{T+4}, s{T+1}, s{S_GS}
    s_cmp_lg_u32 s{T+4}, 0
    s_cselect_b32 s{S_HEAD}, 1, 0
    s_lshl_b32 s{T+4}, s{T+4}, 3
    s_add_u32 s{T+4}, s{T+4}, {L_LIST}
    s_movk_i32 s{T+5}, {LS}
    s_lshl_b32 s{T+6}, s{T+6}, 3
    s_cmp_eq_u32 s{S_GC}, 0
    s_cselect_b32 s{T+6}, s{T+6}, 0
    v_lshrrev_b32 v36, 5, v{V_LANE}
    v_mul_u32_u24 v36, s{T+6}, v36
    v_add_u32 v36, s{T+4}, v36
    s_waitcnt lgkmcnt(0)
    v_mad_u32_u24 v{V_P}, v{V_LC}, s{T+5}, v36
    v_mov_b32 v{V_NB}, v{V_LN}
    """)
    for j in range(R):
        for x in rd_rec(0, j): A(x)
        if j == 0:
            A(f"""
            s_movk_i32 s{T+5}, {AUS}
            v_mad_u32_u24 v36, v{V_LC}, s{T+5}, v{V_AUC}
            ds_read_b128 {vr(V_EA,4)}, v36
            ds_read_b128 {vr(V_UX,4)}, v36 offset:128
            """)
        A(f"""
        v_add_u32 v{V_P}, 8, v{V_P}
        s_bitcmp1_b64 {sr(S_FL,2)}, {j}
        s_cbranch_scc0 K_PR{j}
        s_mov_b32 s{S_U}, -1
        s_call_b64 {sr(S_RET2,2)}, K_FETCH
K_PR{j}:
        """)
        if j < D:
            A("s_waitcnt lgkmcnt(0)")
            for x in ld_rows(j): A(x)
    A(f"""
    s_lshr_b64 {sr(S_FF,2)}, {sr(S_FL,2)}, {R}
    s_or_b64 {sr(S_EV,2)}, {sr(S_FL,2)}, {sr(S_FF,2)}
    s_lshl_b64 {sr(T,2)}, 1, s{S_N1}
    s_or_b64 {sr(S_EV,2)}, {sr(S_EV,2)}, {sr(T,2)}
    s_lshr_b64 {sr(T+2,2)}, {sr(T,2)}, {PR[2]}
    s_or_b64 {sr(S_EV,2)}, {sr(S_EV,2)}, {sr(T+2,2)}
    s_lshr_b64 {sr(T+2,2)}, {sr(T,2)}, {PR[1]}
    s_or_b64 {sr(S_EV,2)}, {sr(S_EV,2)}, {sr(T+2,2)}
    s_lshr_b64 {sr(T+2,2)}, {sr(T,2)}, {PR[0]}
    s_or_b64 {sr(S_EV,2)}, {sr(S_EV,2)}, {sr(T+2,2)}
    s_lshr_b64 {sr(T+2,2)}, {sr(T,2)}, {R}
    s_or_b64 {sr(S_EV,2)}, {sr(S_EV,2)}, {sr(T+2,2)}
    s_mov_b64 {sr(S_EVC,2)}, {sr(S_EV,2)}
    """)
    zero_acc(A)
    A(f"""
    s_cmp_lg_u32 s{S_WP}, 0
    s_cselect_b32 exec_lo, -1, 0
    s_cselect_b32 s{T}, s{S_HEAD}, 1
    s_cmp_eq_u32 s{T}, 0
    s_cbranch_scc1 K_NHZ
    v_mov_b64 {vr(V_DEN,2)}, 0
    v_mov_b64 {vr(V_DEN+2,2)}, 0
K_NHZ:
    s_mov_b64 exec, -1
    """)
    st(13)
    A(".p2align 6")
    A.label("K_LOOP")
    for u in range(U):
        d, r = u % D, u % R
        A(f"s_waitcnt vmcnt({2*(D-1)}) lgkmcnt(0)")
        for x in c_head(d, r) + ld_rows(d) + rd_rec(8*u, r) + c_rest(): A(x)
        A(f"s_bitcmp1_b64 {sr(S_EV,2)}, {u}")
        A(f"s_cbranch_scc1 K_EV{u}")
        A.label(f"K_RT{u}")
    A(f"""
    v_add_u32 v{V_P}, {8*U}, v{V_P}
    s_lshr_b64 {sr(S_EV,2)}, {sr(S_EV,2)}, {U}
    s_cbranch_scc1 K_LOOP
    s_branch K_TAIL
    """)
    for u in range(U):
        A(f"""
K_EV{u}:
        s_mov_b32 s{S_U}, {u}
        s_call_b64 {sr(S_RET,2)}, K_EVENT
        s_branch K_RT{u}
        """)
    A(f"""
K_FETCH:
    s_add_u32 s{S_GF}, s{S_GF}, 1
    s_lshl_b32 s{T}, s{S_U}, 3
    s_sub_u32 s{T}, {L_LIST-8}, s{T}
    v_mov_b32 v{V_X0}, s{T}
    s_movk_i32 s{T+1}, {LS}
    v_mad_u32_u24 v{V_P}, v{V_NB}, s{T+1}, v{V_X0}
    s_sub_u32 s{T}, s{S_GF}, s{S_GC}
    s_lshl_b32 s{T}, s{T}, 5
    v_add_u32 v{V_X0}, s{T}, v{V_OA}
    ds_read_b32 v{V_NB}, v{V_X0} offset:{L_ORD+32}
    s_setpc_b64 {sr(S_RET2,2)}
K_EVENT:
    s_ff1_i32_b64 s{T+4}, {sr(S_EVC,2)}
    s_bitset0_b64 {sr(S_EVC,2)}, s{T+4}
    s_bitcmp1_b64 {sr(S_FF,2)}, s{T+4}
    s_cbranch_scc0 K_E1
    s_call_b64 {sr(S_RET2,2)}, K_FETCH
K_E1:
    s_bitcmp1_b64 {sr(S_FL,2)}, s{T+4}
    s_cbranch_scc0 K_E3
    s_cmp_eq_u32 s{S_HEAD}, 1
    s_cbranch_scc0 K_E2
    s_mov_b32 s{S_HEAD}, 0
    s_mov_b32 s{T+2}, 1
    s_call_b64 {sr(S_RET2,2)}, K_PART
    s_branch K_E2B
    """)
    A.label("K_E2")
    combine(A, 0)
    finalize(A, V_NUM, V_DEN, V_UX, V_LC)
    A(f"""
K_E2B:
    s_cmp_eq_u32 s{T+4}, s{S_N1}
    s_cbranch_scc1 K_DONE
    s_add_u32 s{S_GC}, s{S_GC}, 1
    v_add_u32 v{V_OA}, 32, v{V_OA}
    s_movk_i32 s{T+1}, {AUS}
    v_mad_u32_u24 v{V_X0}, v{V_LN}, s{T+1}, v{V_AUC}
    v_mov_b32 v{V_LC}, v{V_LN}
    ds_read_b128 {vr(V_EA,4)}, v{V_X0}
    ds_read_b128 {vr(V_UX,4)}, v{V_X0} offset:128
    ds_read_b32 v{V_LN}, v{V_OA} offset:{L_ORD+32}
    """)
    zero_acc(A)
    A(f"""
K_E3:
    s_sub_u32 s{T}, s{S_N1}, s{T+4}
    s_cmp_eq_u32 s{T}, 0
    s_cbranch_scc1 K_TAIL
    s_cmp_lg_u32 s{T}, {R}
    s_cbranch_scc1 K_E5
    s_lshl_b32 s{T+1}, s{S_U}, 3
    s_sub_u32 s{T+1}, {L_LOC+CHP-64-8}, s{T+1}
    v_mov_b32 v{V_P}, s{T+1}
    s_mov_b64 {sr(S_FF,2)}, 0
K_E5:
    s_cmp_gt_u32 s{T}, {PR[0]}
    s_cbranch_scc1 K_E4
    s_setprio 2
    s_cmp_gt_u32 s{T}, {PR[1]}
    s_cbranch_scc1 K_E4
    s_setprio 1
    s_cmp_gt_u32 s{T}, {PR[2]}
    s_cbranch_scc1 K_E4
    s_setprio 0
K_E4:
    s_setpc_b64 {sr(S_RET,2)}
K_PART:
    s_lshl_b32 s{T}, s{S_WP}, 11
    s_add_u32 s{T}, s{T}, {L_SIDE}
    v_lshl_add_u32 v{V_X0}, v{V_LANE}, 4, s{T}
    ds_write_b128 v{V_X0}, {vr(V_NUM,4)}
    ds_write_b128 v{V_X0}, {vr(V_DEN,4)} offset:1024
    s_lshl_b32 s{T}, s{S_WP}, 2
    v_mov_b32 v{V_X0}, s{T}
    v_mov_b32 v{V_X1}, s{T+2}
    ds_write_b32 v{V_X0}, v{V_X1} offset:{L_HF}
    s_setpc_b64 {sr(S_RET2,2)}
K_TAIL:
    s_cmp_eq_u32 s{S_HEAD}, 1
    s_cbranch_scc0 K_TL
    s_mov_b32 s{T+2}, 2
    s_call_b64 {sr(S_RET2,2)}, K_PART
    s_branch K_DONE
K_TL:
    s_add_u32 s{S_WP}, s{S_WP}, 1
    s_cmp_ge_u32 s{S_WP}, 16
    s_cbranch_scc1 K_TF
    s_lshl_b32 s{T}, s{S_WP}, 2
    v_mov_b32 v{V_X1}, s{T}
    s_lshl_b32 s{T}, s{S_WP}, 11
    s_add_u32 s{T}, s{T}, {L_SIDE}
    v_lshl_add_u32 v{V_X0}, v{V_LANE}, 4, s{T}
    s_mov_b32 s{T+1}, 0x100000
K_TW:
    s_sub_u32 s{T+1}, s{T+1}, 1
    s_cbranch_scc1 K_TF
    ds_read_b32 v{V_HL}, v{V_X1} offset:{L_HF}
    ds_read_b128 {vr(V_HD,4)}, v{V_X0}
    ds_read_b128 {vr(V_HD+4,4)}, v{V_X0} offset:1024
    s_waitcnt lgkmcnt(0)
    v_readfirstlane_b32 s{T}, v{V_HL}
    s_cmp_eq_u32 s{T}, 0
    s_cbranch_scc1 K_TW
    """)
    for k in range(4): A(f"v_pk_add_f32 {vr(V_NUM+2*k,2)}, {vr(V_NUM+2*k,2)}, {vr(V_HD+2*k,2)}")
    A(f"""
    s_cmp_eq_u32 s{T}, 2
    s_cbranch_scc1 K_TL
K_TF:
    """)
    st(14)
    combine(A, 1)
    finalize(A, V_NUM, V_DEN, V_UX, V_LC)
    A.label("K_DONE")
    A.label("K_FIN")
    if diag:
        A("s_waitcnt vmcnt(0)")
        st(15)
        A(f"s_mov_b32 s{S_WS}, s{KWS}")
        A(f"s_mov_b32 s{S_WS+1}, s{KWS+1}")
        A(f"""
        s_lshl_b32 s{T}, s2, 4
        s_add_u32 s{T}, s{T}, s{S_WAVE}
        s_lshl_b32 s{T}, s{T}, 7
        s_add_u32 s{T}, s{T}, {WS_STAMP}
        v_lshlrev_b32 v{V_X0}, 2, v{V_LANE}
        v_cmpx_gt_u32 vcc, 32, v{V_LANE}
        buffer_store_dword v{V_STAMP}, v{V_X0}, {srd(S_WS)}, s{T} offen
        """)
        if "--persist" in sys.argv:
            A(f"""
            s_mov_b64 exec, -1
            s_or_b32 s{T}, s2, s{S_WAVE}
            s_cmp_lg_u32 s{T}, 0
            s_cbranch_scc1 K_END
            v_mov_b32 v30, 0
            s_mov_b32 s{T+3}, {WS_EP+256}
            buffer_load_dword v31, v30, {srd(S_WS)}, s{T+3} offen sc1
            s_waitcnt vmcnt(0)
            v_readfirstlane_b32 s{T+4}, v31
            v_mov_b32 v31, 0x12345678
            buffer_store_dword v31, v30, {srd(S_WS)}, s{T+3} offen sc1
            v_readlane_b32 s{T}, v{V_STAMP}, 16
            s_cmp_eq_u32 s{T+4}, 0x12345678
            s_movk_i32 s{T+5}, 6000
            s_cselect_b32 s{T+1}, 10000, s{T+5}
K_DSP2:
            s_sleep 1
            s_memrealtime s[0:1]
            s_waitcnt lgkmcnt(0)
            s_sub_u32 s{T+2}, s0, s{T}
            s_cmp_lt_u32 s{T+2}, s{T+1}
            s_cbranch_scc1 K_DSP2
            """)
        if "--spink" in sys.argv:
            k = opt("--spink", 0); w = opt("--spinw", 7)
            A(f"""
            s_mov_b64 exec, -1
            s_cmp_lg_u32 s{S_WAVE}, {w}
            s_cbranch_scc1 K_END
            """)
            if "--cond" in sys.argv:
                c = opt("--cond", "cold")
                A(f"""
                v_mov_b32 v30, 0
                s_lshl_b32 s{T+3}, s2, 7
                s_add_u32 s{T+3}, s{T+3}, {WS_EP+4096}
                buffer_load_dword v31, v30, {srd(S_WS)}, s{T+3} offen sc1
                s_waitcnt vmcnt(0)
                v_readfirstlane_b32 s{T+4}, v31
                v_mov_b32 v31, 0x12345678
                buffer_store_dword v31, v30, {srd(S_WS)}, s{T+3} offen sc1
                s_cmp_eq_u32 s{T+4}, 0x12345678
                s_cbranch_scc{1 if c == "cold" else 0} K_END
                """)
            A(f"""
            s_mov_b32 s{T}, s{S_T1}
            v_readlane_b32 s{T+1}, v{V_STAMP}, {16+abs(k)}
            s_sub_u32 s{T+1}, s{T+1}, s{T}
            s_max_i32 s{T+1}, s{T+1}, 0
            {"s_mov_b32 s61, 0" if k < 0 else ""}
            s_mul_i32 s{T+1}, s{T+1}, 10
            s_add_u32 s{T+1}, s{T+1}, 6000
            s_min_u32 s{T+1}, s{T+1}, 100000
K_DSP:
            s_sleep 1
            s_memrealtime s[0:1]
            s_waitcnt lgkmcnt(0)
            s_sub_u32 s{T+2}, s0, s{T}
            s_cmp_lt_u32 s{T+2}, s{T+1}
            s_cbranch_scc1 K_DSP
            """)
        if "--dbg" in sys.argv:
            mk_srd(A, S_B, KDBG, 256)
            sel = opt("--dbgwg", -1)
            if sel >= 0:
                A(f"s_cmp_lg_u32 s2, {sel}")
                A("s_cbranch_scc1 K_END")
            A(f"""
            s_mov_b64 exec, -1
            v_readlane_b32 s{T}, v{V_STAMP}, 16
            s_not_b32 s{T}, s{T}
            v_writelane_b32 v{V_STAMP}, s{T}, 20
            v_subrev_u32 v{V_X0}, 64, v{V_X0}
            s_mov_b32 exec_lo, 0xfffe0000
            s_mov_b32 exec_hi, 0
            buffer_atomic_umax v{V_STAMP}, v{V_X0}, {srd(S_B)}, 0 offen sc1
            """)
    A("""
K_END:
    s_endpgm
    """)
    WQ = 64
    A(f"""
K_SLOW:
    s_setprio 0
    s_waitcnt vmcnt(0)
    s_mov_b32 s{S_MODE}, 1
    s_cmp_ge_u32 s{S_WAVE}, 7
    s_cbranch_scc1 K_SL0
    s_call_b64 {sr(S_RET,2)}, K_AUJ
K_SL0:
    v_mov_b32 v36, 0
    v_mov_b32 v37, 0
    v_mov_b32 v38, 0
    v_mov_b32 v39, 0
    v_lshlrev_b32 v29, 4, v0
    v_add_u32 v29, {L_LIST}, v29
    ds_write_b128 v29, v[36:39]
    ds_write_b128 v29, v[36:39] offset:16384
    ds_write_b128 v29, v[36:39] offset:32768
    ds_write_b128 v29, v[36:39] offset:49152
    v_and_b32 v28, 31, v{V_LANE}
    v_lshlrev_b32 v30, 1, v28
    s_lshl_b32 s{T}, s{S_HALF}, 6
    """)
    mk_srd(A, S_A, KWB, 8192)
    mk_srd(A, S_B, KWV, 8192)
    A(f"s_mov_b32 s{T+1}, s{T}")
    for k2 in range(32):
        A(f"""
        s_mov_b32 exec_hi, 0
        buffer_load_ushort v32, v30, {srd(S_A)}, s{T+1} offen
        buffer_load_ushort v33, v30, {srd(S_A)}, s{T+1} offen offset:128
        s_not_b64 exec, exec
        buffer_load_ushort v32, v30, {srd(S_B)}, s{T+1} offen
        buffer_load_ushort v33, v30, {srd(S_B)}, s{T+1} offen offset:128
        s_mov_b64 exec, -1
        s_add_u32 s{T+1}, s{T+1}, 256
        s_waitcnt vmcnt(0)
        v_lshl_or_b32 v{WQ+k2}, v33, 16, v32
        """)
    mk_srd(A, S_A, KWC, 128)
    A(f"""
    buffer_load_ushort v34, v30, {srd(S_A)}, s{T} offen
    v_lshlrev_b32 v30, 2, v28
    v_lshrrev_b32 v31, 5, v{V_LANE}
    v_xor_b32 v31, 1, v31
    v_lshl_add_u32 v35, v31, 7, v30
    v_add_u32 v35, {L_LIST}, v35
    v_add_u32 v30, {L_AU}, v30
    v_lshlrev_b32 v31, 2, v28
    s_waitcnt vmcnt(0) lgkmcnt(0)
    v_lshlrev_b32 v34, 16, v34
    v_mul_f32 v34, 0x{f2u(-LOG2E):08x}, v34
    """)
    mk_srd(A, S_A, KDST, E*4)
    mk_srd(A, S_B, KSRC, E*4)
    mk_srd(A, S_TAB, KE, E*2)
    XS = 34
    A(f"""
    s_barrier
    v_mov_b32 v36, v0
    s_mov_b32 s{S_T0}, {E}
K_SB:
    v_lshlrev_b32 v37, 2, v36
    v_lshlrev_b32 v38, 1, v36
    buffer_load_dword v39, v37, {srd(S_A)}, 0 offen
    buffer_load_dword v40, v37, {srd(S_B)}, 0 offen
    buffer_load_ushort v41, v38, {srd(S_TAB)}, 0 offen
    v_cmp_gt_u32 {sr(52,2)}, s{S_T0}, v36
    s_waitcnt vmcnt(0)
    v_subrev_u32 v39, s{S_NB}, v39
    v_cmp_gt_u32 vcc, {NPB}, v39
    s_and_b64 {sr(52,2)}, {sr(52,2)}, vcc
K_SE:
    s_cmp_eq_u64 {sr(52,2)}, 0
    s_cbranch_scc1 K_SN
    s_ff1_i32_b64 s34, {sr(52,2)}
    s_bitset0_b64 {sr(52,2)}, s34
    v_readlane_b32 s35, v40, s34
    v_readlane_b32 s{S_T1}, v39, s34
    v_readlane_b32 s{S_PF}, v41, s34
    s_min_u32 s35, s35, {N-1}
    s_lshl_b32 s35, s35, 7
    s_load_dwordx16 s[36:51], {sr(KX,2)}, s35
    s_add_u32 s35, s35, 64
    s_load_dwordx16 s[60:75], {sr(KX,2)}, s35
    s_mul_i32 s34, s{S_T1}, {AUS}
    v_add_u32 v42, s34, v30
    ds_read_b32 v43, v42
    s_lshl_b32 s{S_PF}, s{S_PF}, 16
    s_lshl_b32 s{S_T1}, s{S_T1}, 8
    v_mov_b32 v48, 0
    v_mov_b32 v49, 0
    s_waitcnt lgkmcnt(0)
    """)
    for k2 in range(16):
        A(f"v_dot2_f32_bf16 v48, s{36+k2}, v{WQ+k2}, v48")
        A(f"v_dot2_f32_bf16 v49, s{60+k2}, v{WQ+16+k2}, v49")
    A(f"""
    s_nop 3
    v_add_f32 v48, v48, v49
    v_fma_f32 v43, s{S_PF}, v34, v43
    v_mul_f32 v49, 0x{f2u(-LOG2E):08x}, v48
    v_add_f32 v49, v49, v43
    v_exp_f32 v49, v49
    v_add_f32 v49, s{S_C}, v49
    v_rcp_f32 v49, v49
    s_nop 1
    ds_bpermute_b32 v49, v31, v49
    v_cmp_gt_u32 vcc, 32, v{V_LANE}
    v_cndmask_b32 v48, v48, 1.0, vcc
    v_add_u32 v42, s{S_T1}, v35
    s_waitcnt lgkmcnt(0)
    v_mul_f32 v49, v49, v48
    ds_add_f32 v42, v49
    s_branch K_SE
K_SN:
    v_add_u32 v36, 1024, v36
    v_readfirstlane_b32 s34, v36
    s_cmp_lt_u32 s34, {E}
    s_cbranch_scc1 K_SB
    s_mov_b32 s{S_MSK}, 0xffff0000
    s_movk_i32 s34, {AUS}
    s_waitcnt lgkmcnt(0)
    s_barrier
    v_lshrrev_b32 v{V_LC}, 3, v0
    v_add_u32 v{V_X1}, {L_LIST}, v{V_I0+1}
    """)
    for it in range(2):
        A(f"""
        v_min_u32 v36, 199, v{V_LC}
        v_mad_u32_u24 v37, v36, s34, v{V_AUC}
        ds_read_b128 {vr(V_UX,4)}, v37 offset:128
        v_lshl_add_u32 v39, v36, 8, v{V_X1}
        ds_read_b128 {vr(V_NUM,4)}, v39
        ds_read_b128 {vr(V_DEN,4)}, v39 offset:128
        s_waitcnt lgkmcnt(0)
        v_pk_add_f32 {vr(V_DEN,2)}, {vr(V_DEN,2)}, {sr(S_EPS,2)}
        v_pk_add_f32 {vr(V_DEN+2,2)}, {vr(V_DEN+2,2)}, {sr(S_EPS,2)}
        """)
        finalize(A, V_NUM, V_DEN, V_UX, V_LC)
        A(f"v_add_u32 v{V_LC}, 128, v{V_LC}")
    A("s_endpgm")

HEADER = open(f"cdna_kernels/{NAME}.s.ref").read().split("; Override")[0]

def build(diag=False):
    A = Asm()
    out = HEADER
    out += f"; @launch grid=(256,1,1) block=(1024,1,1) lds={LDS}\n"
    out += '.amdgcn_target "amdgcn-amd-amdhsa--gfx950"\n.text\n'
    out += f".globl {NAME}_kernel\n.p2align 8\n.type {NAME}_kernel,@function\n"
    gen(A, diag)
    out += A.text()
    out += f""".section .rodata,"a"
.p2align 6
.amdhsa_kernel {NAME}_kernel
  .amdhsa_next_free_vgpr 128
  .amdhsa_next_free_sgpr 102
  .amdhsa_accum_offset 128
  .amdhsa_group_segment_fixed_size 0
  .amdhsa_kernarg_size 96
  .amdhsa_user_sgpr_count 2
  .amdhsa_user_sgpr_kernarg_segment_ptr 1
  .amdhsa_system_sgpr_workgroup_id_x 1
  .amdhsa_float_denorm_mode_32 3
.end_amdhsa_kernel
"""
    return out

if __name__ == "__main__":
    diag = "--diag" in sys.argv
    path = sys.argv[1] if len(sys.argv) > 1 and not sys.argv[1].startswith("--") else f"cdna_kernels/{NAME}.s"
    open(path, "w").write(build(diag))
    print("wrote", path, "LDS", LDS)
```
